```python
import torch

def _softmax(x, axis=-1):
    return torch.softmax(x, dim=axis)
def _gelu(x):
    return torch.nn.functional.gelu(x, approximate="tanh")
def _silu(x):
    return torch.nn.functional.silu(x)
def _sigmoid(x):
    return torch.sigmoid(x)
def _layernorm(x, axis=-1, eps=1e-5):
    m = x.mean(dim=axis, keepdim=True)
    v = x.var(dim=axis, keepdim=True, unbiased=False)
    return (x - m) / torch.sqrt(v + eps)
def _scatter_add(tgt, idx, src, axis=0):
    return tgt.clone().index_add_(axis, idx, src)
def _segment_sum(src, seg, n):
    out = torch.zeros((n,) + src.shape[1:], dtype=src.dtype)
    return out.index_add_(0, seg, src)
def _pad(x, pw):
    flat = tuple(v for pair in reversed(pw) for v in pair)
    return torch.nn.functional.pad(x, flat)

kernel_name = 'sequential_preLN__mha_block_cached__dense_activation_silu__decode'

def setup_inputs():

    _w = (lambda a: (lambda t: t.to(torch.bfloat16) if t.is_floating_point() else t)(torch.as_tensor(a)))
    def _A_setup():
        B, Sq, D = 2, 1, 512
        H, Sk, Dh = 32, 4096, 128
        return {
            "x": _w((lambda *s: torch.randn(*s, dtype=torch.bfloat16) * 0.1)(B, Sq, D)),
            "k_cache": _w((lambda *s: torch.randn(*s, dtype=torch.bfloat16) * 1.6)(B, H, Sk, Dh)),
            "v_cache": _w((lambda *s: torch.randn(*s, dtype=torch.bfloat16) * 1.6)(B, H, Sk, Dh)),
            "wq": _w((lambda *s: torch.randn(*s, dtype=torch.bfloat16) * 1.6)(D, H * Dh) * (D ** -0.5)),
            "wo": _w((lambda *s: torch.randn(*s, dtype=torch.bfloat16) * 1.6)(H * Dh, D) * ((H * Dh) ** -0.5)),
        }
    _A_in = _A_setup()

    def _B_setup():
        B, S, D, F = 2, 1, 512, 1376
        return {
            "x": _w((lambda *s: torch.randn(*s, dtype=torch.bfloat16) * 0.1)(B, S, D)),
            "w1": _w((lambda *s: torch.randn(*s, dtype=torch.bfloat16) * 3.2)(D, F) * (D ** -0.5)),
            "w2": _w((lambda *s: torch.randn(*s, dtype=torch.bfloat16) * 3.2)(F, D) * (F ** -0.5)),
        }
    _B_in = _B_setup()

    return {
        "A_x": _A_in["x"],
        "A_k_cache": _A_in["k_cache"],
        "A_v_cache": _A_in["v_cache"],
        "A_wq": _A_in["wq"],
        "A_wo": _A_in["wo"],
        "B_x": _B_in["x"],
        "B_w1": _B_in["w1"],
        "B_w2": _B_in["w2"],
    }

def reference(A_x, A_k_cache, A_v_cache, A_wq, A_wo, B_x, B_w1, B_w2):
    def _A_ref(x, k_cache, v_cache, wq, wo):
        B, Sq, D = x.shape
        H, Dh = 32, 128
        q = (lambda x, *d: x.permute(*d))((x @ wq).reshape(B, Sq, H, Dh), 0, 2, 1, 3)
        scores = torch.einsum("bhqd,bhkd->bhqk", q, k_cache) * (Dh ** -0.5)
        p = _softmax(scores, axis=-1)
        o = torch.einsum("bhqk,bhkd->bhqd", p, v_cache)
        return (lambda x, *d: x.permute(*d))(o, 0, 2, 1, 3).reshape(B, Sq, H * Dh) @ wo

    def _B_ref(x, w1, w2):
        h = torch.einsum("bsd,df->bsf", x, w1)
        h = _silu(h)
        out = torch.einsum("bsf,fd->bsd", h, w2)
        return out

    x = A_x
    h = x + _A_ref(_layernorm(x, axis=-1), A_k_cache, A_v_cache, A_wq, A_wo)
    h2 = h + _B_ref(_layernorm(h, axis=-1), B_w1, B_w2)
    return h2
```

```python
import re

TRANS = ("v_exp_f32", "v_log_f32", "v_rcp_f32", "v_rsq_f32", "v_sqrt_f32", "v_sin_f32", "v_cos_f32")

def regs_of(tok):
    tok = tok.strip()
    neg = tok.startswith("-")
    if neg: tok = tok[1:]
    if tok.startswith("abs(") or tok.startswith("|"):
        tok = tok.strip("|")
        if tok.startswith("abs("): tok = tok[4:-1]
    m = re.fullmatch(r"([vsa])(\d+)", tok)
    if m: return [(m.group(1), int(m.group(2)))]
    m = re.fullmatch(r"([vsa])\[(\d+):(\d+)\]", tok)
    if m: return [(m.group(1), i) for i in range(int(m.group(2)), int(m.group(3)) + 1)]
    if tok == "vcc": return [("s", "vcc")]
    if tok in ("vcc_lo", "vcc_hi"): return [("s", "vcc")]
    if tok == "exec": return [("s", "exec")]
    if tok == "m0": return [("s", "m0")]
    return []

class Asm:
    def __init__(self):
        self.lines = []
        self.slot = 0
        self.vw = {}
        self.tw = {}
        self.mw = {}
        self.mc = {}
        self.sw = {}
        self.stw = {}
        self.m0w = -100
        self.execw_valu = -100
        self.dw = {}
        self.nops = 0

    def raw(self, s):
        self.lines.append(s)

    def comment(self, s):
        self.lines.append("  ; " + s)

    def label(self, name):
        self.lines.append(name + ":")

    def nop(self, n):
        while n > 0:
            k = min(n, 16)
            self.lines.append(f"  s_nop {k-1}")
            self.slot += k
            self.nops += k
            n -= k

    def fence(self, n=0):
        self.nop(n)

    def I(self, op, *ops, mods=""):
        ops = [str(o) for o in ops]
        need = 0
        def req(prod_slot, n):
            nonlocal need
            have = self.slot - prod_slot - 1
            if have < n: need = max(need, n - have)
        is_mfma = op.startswith("v_mfma")
        is_valu = op.startswith("v_") and not is_mfma
        is_vmem = op.startswith(("buffer_", "global_", "flat_"))
        is_ds = op.startswith("ds_")
        is_dpp = ("row_" in mods) or ("quad_perm" in mods) or op.endswith("_dpp")
        base = op.replace("_e32", "").replace("_e64", "").replace("_dpp", "")
        dsts, srcs = [], []
        if is_valu:
            if base.startswith("v_cmp"):
                dsts = regs_of(ops[0]); srcs = [r for o in ops[1:] for r in regs_of(o)]
            elif base in ("v_readlane_b32", "v_readfirstlane_b32"):
                dsts = regs_of(ops[0]); srcs = [r for o in ops[1:] for r in regs_of(o)]
            elif base.startswith("v_permlane") and "swap" in base:
                dsts = regs_of(ops[0]) + regs_of(ops[1]); srcs = list(dsts)
            elif base in ("v_add_co_u32", "v_sub_co_u32", "v_addc_co_u32", "v_subb_co_u32"):
                dsts = regs_of(ops[0]) + regs_of(ops[1]); srcs = [r for o in ops[2:] for r in regs_of(o)]
            else:
                dsts = regs_of(ops[0]); srcs = [r for o in ops[1:] for r in regs_of(o)]
                if base in ("v_fmac_f32", "v_dot2c_f32_bf16", "v_writelane_b32", "v_pk_fmac_f16") or is_dpp:
                    srcs += dsts
                if base == "v_cndmask_b32" and len(ops) == 3:
                    srcs += [("s", "vcc")]
        elif is_mfma:
            dsts = regs_of(ops[0]); srcs = [r for o in ops[1:] for r in regs_of(o)]
        elif is_vmem or is_ds:
            is_store = ("store" in op) or ("write" in op) or ("atomic" in op) or op.startswith("ds_add")
            is_lds_dma = is_vmem and re.search(r"\blds\b", mods) is not None
            if is_store or is_lds_dma:
                srcs = [r for o in ops for r in regs_of(o)]
            else:
                dsts = regs_of(ops[0]); srcs = [r for o in ops[1:] for r in regs_of(o)]
        else:
            srcs = [r for o in ops for r in regs_of(o)]
        vsrcs = [n for (k, n) in srcs if k == "v"]
        vdsts = [n for (k, n) in dsts if k == "v"]
        ssrcs = [n for (k, n) in srcs if k == "s"]
        if is_valu:
            if is_dpp:
                for r in regs_of(ops[1]):
                    if r[0] == "v" and r[1] in self.vw: req(self.vw[r[1]], 2)
                req(self.execw_valu, 5)
            if base.startswith("v_permlane"):
                for r in vsrcs:
                    if r in self.vw: req(self.vw[r], 2)
            if base in ("v_readlane_b32", "v_readfirstlane_b32"):
                for r in vsrcs:
                    if r in self.vw: req(self.vw[r], 1)
                if base == "v_readlane_b32":
                    for r in ssrcs:
                        if r in self.sw: req(self.sw[r], 4)
            for r in ssrcs:
                if r in self.sw: req(self.sw[r], 2)
            if base not in TRANS:
                for r in vsrcs:
                    if r in self.tw: req(self.tw[r], 1)
            for n_, r in enumerate(vsrcs + vdsts):
                if r in self.dw:
                    ds_, dop = self.dw[r]
                    if dop == base and base.startswith("v_dot2_") and [("v", r)] == regs_of(ops[3]) and ("v", r) not in regs_of(ops[1]) + regs_of(ops[2]):
                        pass
                    else:
                        req(ds_, 3)
            for r in vsrcs + vdsts:
                if r in self.mw:
                    s, p = self.mw[r]; req(s, {2: 5, 4: 8, 8: 12, 16: 20}[p])
            for r in vdsts:
                if r in self.mc:
                    s, p = self.mc[r]; req(s, {2: 1, 4: 3, 8: 7, 16: 15}[p])
                if r in self.stw: req(self.stw[r], 2)
        if is_mfma:
            passes = 8 if "32x32" in op else 4
            d = regs_of(ops[0]); a = regs_of(ops[1]) + regs_of(ops[2]); c = regs_of(ops[3])
            for (k, r) in a + c:
                if k == "v" and r in self.vw: req(self.vw[r], 2)
            for (k, r) in a:
                if k == "v" and r in self.mw:
                    s, p = self.mw[r]; req(s, {2: 5, 4: 8, 8: 12, 16: 20}[p])
            if c != d or True:
                for (k, r) in c:
                    if k == "v" and r in self.mw:
                        s, p = self.mw[r]
                        if c == d and p == passes and all(self.mw.get(x[1], (None,))[0] == s for x in c):
                            pass
                        else:
                            req(s, {2: 4, 4: 6, 8: 10, 16: 18}[p])
            req(self.execw_valu, 4)
        if is_vmem or is_ds or is_mfma:
            for r in vsrcs + vdsts:
                if r in self.dw: req(self.dw[r][0], 3)
        if is_vmem or is_ds:
            for r in ssrcs:
                if r in self.sw: req(self.sw[r], 5)
            for r in vsrcs + vdsts:
                if r in self.mw:
                    s, p = self.mw[r]; req(s, {2: 5, 4: 8, 8: 12, 16: 20}[p])
            for r in vdsts:
                if r in self.stw: req(self.stw[r], 1)
            if is_vmem and re.search(r"\blds\b", mods): req(self.m0w, 1)
        if not (is_valu or is_mfma or is_vmem or is_ds):
            for r in ssrcs:
                if r in self.sw: req(self.sw[r], 1)
        if need: self.nop(need)
        line = "  " + op + (" " + ", ".join(ops) if ops else "") + ((" " + mods) if mods else "")
        self.lines.append(line)
        s = self.slot
        if is_valu:
            for r in vdsts:
                self.vw[r] = s
                self.mw.pop(r, None)
                if base in TRANS: self.tw[r] = s
                else: self.tw.pop(r, None)
                if base.startswith("v_dot"): self.dw[r] = (s, base)
                else: self.dw.pop(r, None)
            for (k, n) in dsts:
                if k == "s": self.sw[n] = s
            if base.startswith("v_cmpx"): self.execw_valu = s
        elif is_mfma:
            passes = 8 if "32x32" in op else 4
            for (k, r) in regs_of(ops[0]):
                if k == "v":
                    self.mw[r] = (s, passes); self.vw.pop(r, None); self.tw.pop(r, None)
            for (k, r) in regs_of(ops[3]):
                if k == "v": self.mc[r] = (s, passes)
        elif is_vmem or is_ds:
            for r in vdsts:
                self.vw.pop(r, None); self.tw.pop(r, None); self.mw.pop(r, None)
            if is_vmem and ("store" in op) and ("x3" in op or "x4" in op):
                di = 0 if op.startswith("buffer_") else 1
                for (k, r) in regs_of(ops[di]):
                    if k == "v": self.stw[r] = s
        else:
            if ops and ops[0] == "m0": self.m0w = s
            if ops and op.startswith("s_") and not op.startswith(("s_cmp", "s_cbranch", "s_waitcnt", "s_barrier", "s_branch", "s_nop", "s_setprio", "s_sleep", "s_endpgm")):
                for (k, n) in regs_of(ops[0]):
                    if k == "s": self.sw.pop(n, None)
        self.slot += 1

    def text(self):
        return "\n".join(self.lines) + "\n"

def vr(a, n=1):
    return f"v{a}" if n == 1 else f"v[{a}:{a+n-1}]"
def sr(a, n=1):
    return f"s{a}" if n == 1 else f"s[{a}:{a+n-1}]"
```

```python
import sys
from asmlib import Asm, vr, sr

KN = "sequential_preLN__mha_block_cached__dense_activation_silu__decode_kernel"

QPART = 0x000000
ML    = 0x040000
OPART = 0x050000
YPART = 0x080000
HBUF  = 0x100000
UPART = 0x110000
STAMP = 0x200000
WSSZ  = 0x400000
L_QP = 0
L_OP = 0
L_QB = 16384
L_ML = 16384 + 256
L_CNT = 16384 + 256 + 128
L_UP = 16384 + 512
L_HN = 16384 + 1024
L_WB = 16384 + 1024 + 8192
LDS_SIZE = L_WB + 33792 + 256
WROW = 1056

LOG2E = 0x3FB8AA3B
SCALE = 0x3DB504F3
PERM = [0, 2, 1, 3]
SPIN_MAX = 400000

sW, sE, sHalf, sBH, sB, sH, sM, sJ = 3, 4, 5, 6, 7, 8, 9, 10
sT0, sT1, sT2, sT3, sT4 = 11, 12, 13, 14, 15
pX, pK, pV, pWQ, pWO, pBX, pW1, pW2, pOUT, pDBG, pWS = 16, 18, 20, 22, 24, 26, 28, 30, 32, 34, 36
rK, rV, rWS, rX, rWQ, rWA, rWB, rOUT, rDBG = 40, 44, 48, 52, 56, 60, 64, 68, 72
sOFF = 76
sN = 93
sSpin = 94
sF = 95
sMask = 96
sA0, sA1 = 98, 99
sM0A, sM0B = 100, 101
sStamp0 = 38
vLane, vC, vG, vKV = 1, 2, 3, 4
vT5, vT6, vT7 = 5, 6, 7
vQ = 8
vD = 12
vS, vS2 = 16, 17
vACC = 20
DATA0 = 28
def kslot(i): return DATA0 + 4 * i
def vslot(i):
    if i < 8: return DATA0 + 4 * (17 + i)
    return DATA0 + 4 * (i - 8)

class Gen:
    def __init__(self, stamps=False, stop=None, nact=16, skew=False):
        self.a = Asm()
        self.stamps = stamps
        self.stop = stop
        self.nact = nact
        self.skew = skew
        self.issued = []
        self.nstamp = 0
        self.lab = 0

    def L(self, p="L"):
        self.lab += 1
        return f"{p}_{self.lab}"

    def I(self, *a, **k): self.a.I(*a, **k)

    def stamp(self, k):
        if not self.stamps: return
        if k == 0:
            self.I("s_memrealtime", sr(sStamp0, 2)); return
        if k == 1:
            self.I("s_waitcnt", "lgkmcnt(0)")
            self.I("v_mov_b32", "v0", 0)
            self.I("v_writelane_b32", "v0", sr(sStamp0), 0)
        self.I("s_memrealtime", sr(sStamp0, 2))
        self.I("s_waitcnt", "lgkmcnt(0)")
        self.I("v_writelane_b32", "v0", sr(sStamp0), k)

    def csel(self, dst, x, y):
        self.I("s_mov_b32", sr(dst), x)
        self.I("s_cselect_b32", sr(dst), sr(dst), y)

    def exec63(self):
        self.I("s_mov_b32", "exec_lo", 0); self.I("s_mov_b32", "exec_hi", "0x80000000")

    def srd(self, r, plo, size, addoff=None):
        I = self.I
        if addoff is None:
            I("s_mov_b32", sr(r), sr(plo)); I("s_mov_b32", sr(r + 1), sr(plo + 1))
        else:
            I("s_add_u32", sr(r), sr(plo), addoff); I("s_addc_u32", sr(r + 1), sr(plo + 1), 0)
        I("s_mov_b32", sr(r + 2), size); I("s_mov_b32", sr(r + 3), "0x20000")

    def vm(self, tag, op, *ops, mods=""):
        self.I(op, *ops, mods=mods)
        self.issued.append(tag)

    def wait_vm(self, tag, extra=""):
        idx = self.issued.index(tag)
        n = len(self.issued) - 1 - idx
        self.I("s_waitcnt", f"vmcnt({min(n, 63)})" + extra)

    def dpp(self, op, d, s0, s1, ctrl, rm="0xf"):
        self.I(op + "_dpp", vr(d), vr(s0), vr(s1), mods=f"{ctrl} row_mask:{rm} bank_mask:0xf")

    def row_reduce(self, op, regs):
        for sh in (8, 4, 2, 1):
            for r in regs:
                self.dpp(op, r, r, r, f"row_ror:{sh}")

    def wave_reduce63(self, op, regs):
        self.row_reduce(op, regs)
        for r in regs: self.dpp(op, r, r, r, "row_bcast:15", "0xa")
        for r in regs: self.dpp(op, r, r, r, "row_bcast:31", "0xc")

    def swap_add(self, which, a, b, d, op="v_add_f32"):
        self.I(f"v_permlane{which}_swap_b32", vr(a), vr(b))
        self.I(op, vr(d), vr(a), vr(b))

    def unpack(self, lo, hi, src):
        self.I("v_lshlrev_b32", vr(lo), 16, vr(src))
        self.I("v_and_b32", vr(hi), "0xffff0000", vr(src))

    def spin_guard(self, lab_loop, lab_out):
        self.I("s_sub_u32", sr(sSpin), sr(sSpin), 1)
        self.I("s_cbranch_scc1", lab_out)
        self.I("s_branch", lab_loop)

    def poll(self, loads, regs, extra_check=None):
        I = self.I
        lp, ok = self.L("POLL"), self.L("POK")
        I("s_mov_b32", sr(sSpin), SPIN_MAX)
        self.a.label(lp)
        loads()
        I("s_waitcnt", "vmcnt(0)")
        rs = list(regs)
        t = vT7
        if len(rs) == 1:
            I("v_cmp_eq_u32", "vcc", -1, vr(rs[0]))
        else:
            first = True
            while rs:
                if first:
                    if len(rs) >= 3:
                        I("v_max3_u32", vr(t), vr(rs[0]), vr(rs[1]), vr(rs[2])); rs = rs[3:]
                    else:
                        I("v_max_u32", vr(t), vr(rs[0]), vr(rs[1])); rs = rs[2:]
                    first = False
                elif len(rs) >= 2:
                    I("v_max3_u32", vr(t), vr(t), vr(rs[0]), vr(rs[1])); rs = rs[2:]
                else:
                    I("v_max_u32", vr(t), vr(t), vr(rs[0])); rs = rs[1:]
            I("v_cmp_eq_u32", "vcc", -1, vr(t))
        I("s_cbranch_vccz", ok)
        self.spin_guard(lp, ok)
        self.a.label(ok)

    def clamp(self, r):
        self.I("v_min_u32", vr(r), -2, vr(r))

    def ln_scalars(self, s10, s20, s11, s21, vm0, vm1, vr0, vr1, t0, t1, t2):
        I = self.I
        inv = "0x3b000000"
        I("v_mov_b32", vr(vm0), sr(s10)); I("v_mov_b32", vr(vm1), sr(s11))
        I("v_mov_b32", vr(vr0), sr(s20)); I("v_mov_b32", vr(vr1), sr(s21))
        for r in (vm0, vm1, vr0, vr1): I("v_mul_f32", vr(r), inv, vr(r))
        I("v_fma_f32", vr(vr0), f"-{vr(vm0)}", vr(vm0), vr(vr0))
        I("v_fma_f32", vr(vr1), f"-{vr(vm1)}", vr(vm1), vr(vr1))
        I("v_max_f32", vr(vr0), 0, vr(vr0)); I("v_max_f32", vr(vr1), 0, vr(vr1))
        I("v_cvt_pk_bf16_f32", vr(t0), vr(vm0), vr(vm1))
        I("v_cvt_pk_bf16_f32", vr(t1), vr(vr0), vr(vr1))
        self.unpack(vm0, vm1, t0)
        self.unpack(vr0, vr1, t1)
        I("v_add_f32", vr(vr0), "0x3727c5ac", vr(vr0)); I("v_add_f32", vr(vr1), "0x3727c5ac", vr(vr1))
        I("v_cvt_pk_bf16_f32", vr(t1), vr(vr0), vr(vr1))
        self.unpack(vr0, vr1, t1)
        I("v_sqrt_f32", vr(vr0), vr(vr0)); I("v_sqrt_f32", vr(vr1), vr(vr1))
        I("v_cvt_pk_bf16_f32", vr(t1), vr(vr0), vr(vr1))
        self.unpack(vr0, vr1, t1)
        I("v_rcp_f32", vr(vr0), vr(vr0)); I("v_rcp_f32", vr(vr1), vr(vr1))

    def build(self):
        a, I = self.a, self.I
        self.stamp(0)
        I("s_load_dwordx16", sr(16, 16), "s[0:1]", 0)
        I("s_load_dwordx4", sr(32, 4), "s[0:1]", 64)
        I("s_load_dwordx2", sr(36, 2), "s[0:1]", 80)
        I("s_cmp_ge_u32", "s2", 256)
        I("s_cbranch_scc1", "L_END")
        I("v_and_b32", vr(vLane), 63, "v0")
        I("v_lshrrev_b32", vr(vT5), 6, "v0")
        I("v_and_b32", vr(vC), 15, "v0")
        I("v_readfirstlane_b32", sr(sW), vr(vT5))
        I("v_bfe_u32", vr(vG), "v0", 4, 2)
        I("s_and_b32", sr(sT0), "s2", 7)
        I("s_lshr_b32", sr(sT1), "s2", 3)
        I("s_and_b32", sr(sE), sr(sT0), 1)
        I("s_lshr_b32", sr(sT0), sr(sT0), 1)
        I("s_lshl_b32", sr(sT0), sr(sT0), 4)
        I("s_lshr_b32", sr(sBH), sr(sT1), 1)
        I("s_add_u32", sr(sBH), sr(sBH), sr(sT0))
        I("s_and_b32", sr(sHalf), sr(sT1), 1)
        I("s_lshr_b32", sr(sB), sr(sBH), 5)
        I("s_and_b32", sr(sH), sr(sBH), 31)
        I("s_lshl_b32", sr(sM), sr(sHalf), 1); I("s_add_u32", sr(sM), sr(sM), sr(sE))
        I("s_lshl_b32", sr(sJ), sr(sB), 2); I("s_add_u32", sr(sJ), sr(sJ), sr(sM))
        I("v_lshlrev_b32", vr(vKV), 4, vr(vLane))
        I("s_lshl_b32", sr(sT0), sr(sW), 15)
        I("v_add_u32", vr(vKV), sr(sT0), vr(vKV))
        I("s_cmp_eq_u32", sr(sE), 0)
        self.csel(sT0, 1024, -1024)
        I("s_mul_i32", sr(sOFF), sr(sE), 31744)
        for i in range(1, 17):
            I("s_add_u32", sr(sOFF + i), sr(sOFF + i - 1), sr(sT0))
        I("s_mov_b32", sr(sN), self.nact)
        I("s_waitcnt", "lgkmcnt(0)")
        I("s_lshl_b32", sr(sT0), sr(sBH), 20); I("s_lshl_b32", sr(sT1), sr(sHalf), 19); I("s_add_u32", sr(sT0), sr(sT0), sr(sT1))
        self.srd(rK, pK, "0x80000", sr(sT0))
        self.srd(rV, pV, "0x80000", sr(sT0))
        self.srd(rWS, pWS, hex(WSSZ))
        self.srd(rX, pX, 2048)
        I("s_lshl_b32", sr(sT0), sr(sH), 8)
        I("s_sub_u32", sr(sT1), hex(512 * 8192), sr(sT0))
        self.srd(rWQ, pWQ, sr(sT1), sr(sT0))
        self.srd(rDBG, pDBG, 256)
        self.srd(rOUT, pOUT, 2048)
        lab_ffn, lab_roledone = self.L("RFFN"), self.L("RDONE")
        I("s_cmp_eq_u32", sr(sE), 0)
        I("s_cbranch_scc0", lab_ffn)
        I("s_lshl_b32", sr(sT0), sr(sB), 1); I("s_add_u32", sr(sT0), sr(sT0), sr(sHalf))
        I("s_lshl_b32", sr(sF), sr(sH), 2); I("s_add_u32", sr(sF), sr(sF), sr(sT0))
        I("s_lshl_b32", sr(sT0), sr(sF), 15)
        self.srd(rWA, pWO, 32768, sr(sT0))
        self.srd(rWB, pWO, 32768, sr(sT0))
        I("s_branch", lab_roledone)
        a.label(lab_ffn)
        I("s_lshl_b32", sr(sF), sr(sBH), 1); I("s_add_u32", sr(sF), sr(sF), sr(sHalf))
        I("s_lshl_b32", sr(sT0), sr(sF), 5)
        I("s_sub_u32", sr(sT1), hex(512 * 2752), sr(sT0))
        I("s_cmp_lt_u32", sr(sF), 86)
        I("s_cselect_b32", sr(sT1), sr(sT1), 0)
        I("s_cselect_b32", sr(sT0), sr(sT0), 0)
        self.srd(rWA, pW1, sr(sT1), sr(sT0))
        I("s_lshl_b32", sr(sT0), sr(sF), 14)
        I("s_cmp_lt_u32", sr(sF), 86)
        I("s_cselect_b32", sr(sT1), 16384, 0)
        I("s_cselect_b32", sr(sT0), sr(sT0), 0)
        self.srd(rWB, pW2, sr(sT1), sr(sT0))
        a.label(lab_roledone)

        lab_noinv = self.L("NOINV")
        I("s_cmp_eq_u32", sr(sW), 1)
        I("s_cbranch_scc0", lab_noinv)
        for k in range(4): I("v_mov_b32", vr(8 + k), -1)
        I("v_lshlrev_b32", vr(vT5), 4, vr(vLane))
        I("s_lshl_b32", sr(sT0), sr(sH), 3); I("s_add_u32", sr(sT0), sr(sT0), sr(sJ)); I("s_lshl_b32", sr(sT0), sr(sT0), 10)
        I("buffer_store_dwordx4", vr(8, 4), vr(vT5), sr(rWS, 4), sr(sT0), mods=f"offen offset:{QPART} sc1")
        I("s_lshl_b32", sr(sT0), sr(sBH), 2); I("s_add_u32", sr(sT0), sr(sT0), sr(sM))
        I("s_lshl_b32", sr(sT1), sr(sT0), 9); I("s_add_u32", sr(sT1), sr(sT1), hex(OPART))
        I("s_lshl_b32", sr(sT2), sr(sT0), 3); I("s_add_u32", sr(sT2), sr(sT2), hex(ML))
        I("s_mov_b32", "exec_lo", -1); I("s_mov_b32", "exec_hi", 0)
        I("buffer_store_dwordx4", vr(8, 4), vr(vT5), sr(rWS, 4), sr(sT1), mods="offen sc1")
        I("s_mov_b64", "exec", 1)
        I("buffer_store_dwordx2", vr(8, 2), vr(vT5), sr(rWS, 4), sr(sT2), mods="offen sc1")
        I("s_or_b32", sr(sT0), sr(sE), sr(sHalf))
        I("s_lshl_b32", sr(sT1), sr(sBH), 6); I("s_add_u32", sr(sT1), sr(sT1), hex(HBUF))
        I("s_cmp_eq_u32", sr(sT0), 0)
        I("s_cselect_b32", sr(sT1), sr(sT1), hex(0x40000000))
        I("s_mov_b64", "exec", 15)
        I("buffer_store_dwordx4", vr(8, 4), vr(vT5), sr(rWS, 4), sr(sT1), mods="offen sc1")
        I("s_mov_b64", "exec", -1)
        I("s_cmp_eq_u32", sr(sE), 0)
        self.csel(sT0, 8192, 6144)
        self.csel(sT1, hex(YPART), hex(UPART))
        I("s_lshl_b32", sr(sT2), sr(sF), 6); I("s_add_u32", sr(sT1), sr(sT1), sr(sT2))
        I("s_cmp_eq_u32", sr(sE), 0); self.csel(sT3, 128, 86)
        I("s_cmp_lt_u32", sr(sF), sr(sT3)); I("s_cselect_b32", sr(sT1), sr(sT1), hex(0x40000000))
        I("v_lshrrev_b32", vr(vT6), 2, vr(vLane))
        I("v_mul_lo_u32", vr(vT6), vr(vT6), sr(sT0))
        I("v_and_b32", vr(vT7), 3, vr(vLane)); I("v_lshlrev_b32", vr(vT7), 4, vr(vT7))
        I("v_add_u32", vr(vT6), vr(vT6), vr(vT7))
        I("s_lshl_b32", sr(sT0), sr(sT0), 4)
        for k in range(4):
            I("buffer_store_dwordx4", vr(8, 4), vr(vT6), sr(rWS, 4), sr(sT1), mods="offen sc1")
            if k < 3: I("s_add_u32", sr(sT1), sr(sT1), sr(sT0))
        a.label(lab_noinv)

        XF0, XF1, XR0, XR1, WQ = 8, 12, 16, 17, 18
        I("v_lshlrev_b32", vr(vT5), 4, vr(vLane))
        self.vm("xf0", "buffer_load_dwordx4", vr(XF0, 4), vr(vT5), sr(rX, 4), 0, mods="offen")
        self.vm("xf1", "buffer_load_dwordx4", vr(XF1, 4), vr(vT5), sr(rX, 4), 0, mods="offen offset:1024")
        I("s_lshl_b32", sr(sT0), sr(sJ), 6); I("s_lshl_b32", sr(sT1), sr(sW), 2); I("s_add_u32", sr(sT0), sr(sT0), sr(sT1))
        I("v_add_u32", vr(vT6), sr(sT0), vr(vG))
        I("v_lshlrev_b32", vr(vT7), 1, vr(vT6))
        self.vm("xr0", "buffer_load_ushort", vr(XR0), vr(vT7), sr(rX, 4), 0, mods="offen")
        self.vm("xr1", "buffer_load_ushort", vr(XR1), vr(vT7), sr(rX, 4), 0, mods="offen offset:1024")
        I("v_lshlrev_b32", vr(vT6), 13, vr(vT6))
        I("v_lshlrev_b32", vr(vT7), 4, vr(vC))
        I("v_add_u32", vr(vT6), vr(vT6), vr(vT7))
        self.vm("wq", "buffer_load_dwordx4", vr(WQ, 4), vr(vT6), sr(rWQ, 4), 0, mods="offen nt")
        lab_noat = self.L("NOAT")
        I("s_cmp_eq_u32", sr(sW), 1)
        I("s_cbranch_scc0", lab_noat)
        I("s_waitcnt", "vmcnt(5)")
        I("v_mov_b32", vr(vT5), 0); I("v_mov_b32", vr(vT6), 1)
        I("s_lshl_b32", sr(sT0), sr(sH), 2)
        I("s_mov_b64", "exec", 1)
        I("buffer_atomic_add", vr(vT6), vr(vT5), sr(rDBG, 4), sr(sT0), mods="offen sc1")
        I("s_mov_b64", "exec", -1)
        a.label(lab_noat)
        for i in range(15):
            self.vm(f"K{i}", "buffer_load_dwordx4", vr(kslot(i), 4), vr(vKV), sr(rK, 4), sr(sOFF + i), mods="offen nt")
        for i in range(8):
            self.vm(f"V{i}", "buffer_load_dwordx4", vr(vslot(i), 4), vr(vKV), sr(rV, 4), sr(sOFF + i), mods="offen nt")
        self.stamp(1)
        I("v_mov_b32", vr(vT5), L_CNT); I("v_mov_b32", vr(vT6), 0)
        I("ds_write_b32", vr(vT5), vr(vT6))
        self.wait_vm("wq")
        A1, A2, B1, B2, T0, T1 = 22, 23, 24, 25, 26, 27
        for (src, s1, s2) in ((XF0, A1, A2), (XF1, B1, B2)):
            for k in range(4):
                self.unpack(T0, T1, src + k)
                if k == 0:
                    I("v_add_f32", vr(s1), vr(T0), vr(T1))
                    I("v_mul_f32", vr(s2), vr(T0), vr(T0))
                else:
                    I("v_add_f32", vr(s1), vr(s1), vr(T0)); I("v_add_f32", vr(s1), vr(s1), vr(T1))
                    I("v_fmac_f32", vr(s2), vr(T0), vr(T0))
                I("v_fmac_f32", vr(s2), vr(T1), vr(T1))
        self.wave_reduce63("v_add_f32", [A1, A2, B1, B2])
        for (r, s) in ((A1, sT0), (A2, sT1), (B1, sT2), (B2, sT3)):
            I("v_readlane_b32", sr(s), vr(r), 63)
        M0, M1, R0, R1 = 22, 23, 24, 25
        self.ln_scalars(sT0, sT1, sT2, sT3, M0, M1, R0, R1, T0, T1, None)
        I("v_lshlrev_b32", vr(XR0), 16, vr(XR0)); I("v_lshlrev_b32", vr(XR1), 16, vr(XR1))
        I("v_sub_f32", vr(XR0), vr(XR0), vr(M0)); I("v_sub_f32", vr(XR1), vr(XR1), vr(M1))
        I("v_cvt_pk_bf16_f32", vr(T0), vr(XR0), vr(XR1))
        self.unpack(XR0, XR1, T0)
        I("v_mul_f32", vr(XR0), vr(XR0), vr(R0)); I("v_mul_f32", vr(XR1), vr(XR1), vr(R1))
        I("v_cvt_pk_bf16_f32", vr(T0), vr(XR0), vr(XR1))
        self.unpack(XR0, XR1, T0)
        for bb, xn in ((0, XR0), (1, XR1)):
            P = 8
            for k in range(4):
                self.unpack(P + 2 * k, P + 2 * k + 1, WQ + k)
            for e in range(8):
                I("v_mul_f32", vr(P + e), vr(P + e), vr(xn))
            for i in range(4):
                self.swap_add(32, P + 2 * i, P + 2 * i + 1, P + 2 * i)
            for i in range(2):
                self.swap_add(16, P + 4 * i, P + 4 * i + 2, 24 + 2 * bb + i)
        I("v_lshlrev_b32", vr(vT5), 4, vr(vLane))
        I("s_lshl_b32", sr(sT0), sr(sW), 10)
        I("v_add_u32", vr(vT5), sr(sT0), vr(vT5))
        I("ds_write_b128", vr(vT5), vr(24, 4), mods=f"offset:{L_QP}")
        I("s_waitcnt", "lgkmcnt(0)")
        I("s_barrier")
        self.stamp(2)
        lab_notw0 = self.L("NW0")
        I("s_cmp_eq_u32", sr(sW), 0)
        I("s_cbranch_scc0", lab_notw0)
        I("v_lshlrev_b32", vr(vT5), 4, vr(vLane))
        for rnd in range(4):
            for k in range(4):
                I("ds_read_b128", vr(12 + 4 * k, 4), vr(vT5), mods=f"offset:{L_QP + (4 * rnd + k) * 1024}")
            I("s_waitcnt", "lgkmcnt(0)")
            for e in range(4):
                if rnd == 0:
                    I("v_add_f32", vr(8 + e), vr(12 + e), vr(16 + e))
                else:
                    I("v_add_f32", vr(8 + e), vr(8 + e), vr(12 + e)); I("v_add_f32", vr(8 + e), vr(8 + e), vr(16 + e))
                I("v_add_f32", vr(20 + e), vr(20 + e), vr(24 + e))
                I("v_add_f32", vr(8 + e), vr(8 + e), vr(20 + e))
        for e in range(4): self.clamp(8 + e)
        I("s_lshl_b32", sr(sT0), sr(sH), 3); I("s_add_u32", sr(sT1), sr(sT0), sr(sJ)); I("s_lshl_b32", sr(sT1), sr(sT1), 10)
        I("buffer_store_dwordx4", vr(8, 4), vr(vT5), sr(rWS, 4), sr(sT1), mods=f"offen offset:{QPART} sc1")
        lp, ok = self.L("CNT"), self.L("CNTOK")
        I("s_mov_b32", sr(sSpin), SPIN_MAX)
        I("v_mov_b32", vr(vT6), 0)
        I("s_lshl_b32", sr(sT2), sr(sH), 2)
        a.label(lp)
        I("buffer_load_dword", vr(vT7), vr(vT6), sr(rDBG, 4), sr(sT2), mods="offen sc1")
        I("s_waitcnt", "vmcnt(0)")
        I("v_readfirstlane_b32", sr(sT3), vr(vT7))
        I("s_cmp_ge_u32", sr(sT3), 8)
        I("s_cbranch_scc1", ok)
        self.spin_guard(lp, ok)
        a.label(ok)
        self.stamp(3)
        I("s_lshl_b32", sr(sT0), sr(sH), 13)
        I("s_lshl_b32", sr(sT1), sr(sB), 3); I("s_add_u32", sr(sT0), sr(sT0), sr(sT1))
        I("s_add_u32", sr(sT1), sr(sT0), 4096)
        def loads():
            for j in range(8):
                I("buffer_load_dwordx2", vr(12 + 2 * j, 2), vr(vT5), sr(rWS, 4), sr(sT0 if j < 4 else sT1),
                  mods=f"offen offset:{QPART + (j % 4) * 1024} sc1")
        self.poll(loads, range(12, 28))
        for k in (0, 1):
            I("v_add_f32", vr(12 + k), vr(12 + k), vr(14 + k)); I("v_add_f32", vr(16 + k), vr(16 + k), vr(18 + k))
            I("v_add_f32", vr(20 + k), vr(20 + k), vr(22 + k)); I("v_add_f32", vr(24 + k), vr(24 + k), vr(26 + k))
            I("v_add_f32", vr(12 + k), vr(12 + k), vr(16 + k)); I("v_add_f32", vr(20 + k), vr(20 + k), vr(24 + k))
            I("v_add_f32", vr(12 + k), vr(12 + k), vr(20 + k))
        I("v_cvt_pk_bf16_f32", vr(12), vr(12), vr(13))
        I("v_and_b32", vr(vT6), 1, vr(vG)); I("v_lshlrev_b32", vr(vT6), 1, vr(vT6))
        I("v_lshrrev_b32", vr(vT7), 1, vr(vG)); I("v_or_b32", vr(vT6), vr(vT6), vr(vT7))
        I("v_lshl_add_u32", vr(vT6), vr(vC), 3, vr(vT6))
        I("v_lshlrev_b32", vr(vT6), 1, vr(vT6))
        I("ds_write_b16", vr(vT6), vr(12), mods=f"offset:{L_QB}")
        I("ds_write_b16_d16_hi", vr(vT6), vr(12), mods=f"offset:{L_QB + 8}")
        I("s_waitcnt", "lgkmcnt(0)")
        a.label(lab_notw0)
        I("s_barrier")
        self.stamp(4)
        if self.stop == "q":
            return self.finish()
        I("v_lshlrev_b32", vr(vT5), 4, vr(vC))
        I("ds_read_b128", vr(vQ, 4), vr(vT5), mods=f"offset:{L_QB}")
        for i in (15, 16):
            I("s_cmp_gt_u32", sr(sN), i)
            I("s_cselect_b32", sr(sOFF + i), sr(sOFF + i), hex(0x40000000))
        for i in (15, 16):
            self.vm(f"K{i}", "buffer_load_dwordx4", vr(kslot(i), 4), vr(vKV), sr(rK, 4), sr(sOFF + i), mods="offen nt")
        I("s_mov_b32", sr(sMask), "0x00010001"); I("s_mov_b32", sr(sMask + 1), "0x00010001")
        I("v_mov_b32", vr(vS), 0)
        I("s_waitcnt", "lgkmcnt(0)")
        groups = [[0, 1, 2, 3], [4, 5, 6, 7], [8, 9, 10, 11], [12, 13, 14], [15, 16]]
        nextv = 8
        for grp in groups:
            self.wait_vm(f"K{grp[-1]}")
            for n, i in enumerate(grp):
                I("v_dot2_f32_bf16", vr(vD + n), vr(kslot(i)), vr(vQ), 0)
            for k in range(1, 4):
                for n, i in enumerate(grp):
                    I("v_dot2_f32_bf16", vr(vD + n), vr(kslot(i) + k), vr(vQ + k), vr(vD + n))
            for i in grp:
                if i <= 8 and nextv <= 16:
                    assert vslot(nextv) == kslot(i)
                    self.vm(f"V{nextv}", "buffer_load_dwordx4", vr(vslot(nextv), 4), vr(vKV), sr(rV, 4), sr(sOFF + nextv), mods="offen nt")
                    nextv += 1
            self.row_reduce("v_add_f32", [vD + n for n in range(len(grp))])
            for n, i in enumerate(grp):
                if i < 16:
                    I("v_cndmask_b32", vr(vS), vr(vS), vr(vD + n), sr(sMask, 2))
                    if i < 15: I("s_lshl_b64", sr(sMask, 2), sr(sMask, 2), 1)
                else:
                    I("v_mov_b32", vr(vS2), vr(vD + n))
            if nextv == 17 and "WA" not in self.issued:
                self.weights_dma()
        assert nextv == 17
        T0, T1 = 18, 19
        I("v_cvt_pk_bf16_f32", vr(T0), vr(vS), vr(vS2))
        self.unpack(vS, vS2, T0)
        I("v_mul_f32", vr(vS), hex(SCALE), vr(vS)); I("v_mul_f32", vr(vS2), hex(SCALE), vr(vS2))
        I("v_cvt_pk_bf16_f32", vr(T0), vr(vS), vr(vS2))
        self.unpack(vS, vS2, T0)
        I("v_mov_b32", vr(T1), "0xff800000")
        I("v_cmp_gt_u32", "vcc", sr(sN), vr(vC))
        I("v_cndmask_b32", vr(vS), vr(T1), vr(vS), "vcc")
        I("s_cmp_gt_u32", sr(sN), 16)
        self.csel(sT0, "0x7f800000", "0xff800000")
        I("v_min_f32", vr(vS2), sr(sT0), vr(vS2))
        I("v_max_f32", vr(T0), vr(vS), vr(vS2))
        self.wave_reduce63("v_max_f32", [T0])
        I("v_readlane_b32", sr(sT0), vr(T0), 63)
        I("v_subrev_f32", vr(vS), sr(sT0), vr(vS)); I("v_subrev_f32", vr(vS2), sr(sT0), vr(vS2))
        I("v_mul_f32", vr(vS), hex(LOG2E), vr(vS)); I("v_mul_f32", vr(vS2), hex(LOG2E), vr(vS2))
        I("v_exp_f32", vr(vS), vr(vS)); I("v_exp_f32", vr(vS2), vr(vS2))
        I("v_mov_b32", vr(T0), vr(vS))
        I("v_fmac_f32", vr(T0), "0x3d800000", vr(vS2))
        self.wave_reduce63("v_add_f32", [T0])
        I("v_mov_b32", vr(T1), vr(T0))
        I("v_mov_b32", vr(T0), sr(sT0))
        I("s_lshl_b32", sr(sT1), sr(sW), 3)
        I("v_mov_b32", vr(vT5), sr(sT1))
        self.exec63()
        I("ds_write_b64", vr(vT5), vr(T0, 2), mods=f"offset:{L_ML}")
        I("s_waitcnt", "lgkmcnt(0)")
        I("v_mov_b32", vr(vT5), L_CNT); I("v_mov_b32", vr(vT6), 1)
        I("ds_add_u32", vr(vT5), vr(vT6))
        I("s_mov_b64", "exec", -1)
        self.stamp(5)
        for e in range(8): I("v_mov_b32", vr(vACC + e), 0)
        for i in range(17):
            self.wait_vm(f"V{i}")
            for k in range(4):
                t = 8 + 2 * (k % 4)
                self.unpack(t, t + 1, vslot(i) + k)
            for k in range(4):
                t = 8 + 2 * (k % 4)
                if i < 16:
                    for hh in range(2):
                        I("v_fmac_f32_dpp", vr(vACC + 2 * k + hh), vr(vS), vr(t + hh), mods=f"row_newbcast:{i} row_mask:0xf bank_mask:0xf")
                else:
                    for hh in range(2):
                        I("v_fmac_f32", vr(vACC + 2 * k + hh), vr(vS2), vr(t + hh))
        self.stamp(6)
        for i in range(4):
            self.swap_add(32, vACC + 2 * i, vACC + 2 * i + 1, vACC + 2 * i)
        for i in range(2):
            self.swap_add(16, vACC + 4 * i, vACC + 4 * i + 2, 8 + i)
        I("v_and_b32", vr(vT6), 1, vr(vG)); I("v_lshlrev_b32", vr(vT6), 1, vr(vT6))
        I("v_lshrrev_b32", vr(vT7), 1, vr(vG)); I("v_or_b32", vr(vT6), vr(vT6), vr(vT7))
        I("v_lshl_add_u32", vr(vT5), vr(vC), 3, vr(vT6))
        I("v_lshlrev_b32", vr(vT5), 2, vr(vT5))
        I("s_lshl_b32", sr(sT0), sr(sW), 9)
        I("v_add_u32", vr(vT5), sr(sT0), vr(vT5))
        I("ds_write_b32", vr(vT5), vr(8), mods=f"offset:{L_OP}")
        I("ds_write_b32", vr(vT5), vr(9), mods=f"offset:{L_OP + 16}")
        lab_w4, lab_join = self.L("W4"), self.L("JOIN")
        I("s_cmp_lt_u32", sr(sW), 4)
        I("s_cbranch_scc0", lab_w4)
        lp, ok = self.L("LC"), self.L("LCOK")
        I("v_mov_b32", vr(vT7), L_CNT)
        a.label(lp)
        I("ds_read_b32", vr(12), vr(vT7))
        I("s_waitcnt", "lgkmcnt(0)")
        I("v_readfirstlane_b32", sr(sT0), vr(12))
        I("s_cmp_ge_u32", sr(sT0), 16)
        I("s_cbranch_scc0", lp)
        I("v_lshrrev_b32", vr(vT7), 3, vr(vLane))
        I("v_lshlrev_b32", vr(13), 4, vr(vT7))
        I("ds_read_b128", vr(12, 4), vr(13), mods=f"offset:{L_ML}")
        I("s_waitcnt", "lgkmcnt(0)")
        I("v_max_f32", vr(16), vr(12), vr(14))
        self.wave_reduce63("v_max_f32", [16])
        I("v_readlane_b32", sr(sT0), vr(16), 63)
        I("v_subrev_f32", vr(12), sr(sT0), vr(12)); I("v_subrev_f32", vr(14), sr(sT0), vr(14))
        I("v_mul_f32", vr(12), hex(LOG2E), vr(12)); I("v_mul_f32", vr(14), hex(LOG2E), vr(14))
        I("v_exp_f32", vr(12), vr(12)); I("v_exp_f32", vr(14), vr(14))
        I("v_mul_f32", vr(16), vr(12), vr(13)); I("v_fmac_f32", vr(16), vr(14), vr(15))
        I("v_mul_f32", vr(16), "0x3e000000", vr(16))
        self.wave_reduce63("v_add_f32", [16])
        lab_noml = self.L("NOML")
        I("s_cmp_eq_u32", sr(sW), 0)
        I("s_cbranch_scc0", lab_noml)
        I("v_mov_b32", vr(17), vr(16))
        I("v_mov_b32", vr(16), sr(sT0))
        self.clamp(16); self.clamp(17)
        I("s_lshl_b32", sr(sT1), sr(sBH), 2); I("s_add_u32", sr(sT1), sr(sT1), sr(sM)); I("s_lshl_b32", sr(sT1), sr(sT1), 3)
        I("s_add_u32", sr(sT1), sr(sT1), hex(ML))
        I("v_mov_b32", vr(vT5), 0)
        self.exec63()
        I("buffer_store_dwordx2", vr(16, 2), vr(vT5), sr(rWS, 4), sr(sT1), mods="offen sc1")
        I("s_mov_b64", "exec", -1)
        a.label(lab_noml)
        a.label(lab_w4)
        I("s_waitcnt", "lgkmcnt(0)")
        I("s_barrier")
        self.stamp(7)
        lab_exit_wait = self.L("XW")
        I("s_cmp_lt_u32", sr(sW), 4)
        I("s_cbranch_scc0", lab_exit_wait)
        I("v_and_b32", vr(vT5), 7, vr(vLane)); I("v_lshlrev_b32", vr(vT5), 4, vr(vT5))
        I("v_lshlrev_b32", vr(vT6), 10, vr(vT7))
        I("v_add_u32", vr(vT5), vr(vT5), vr(vT6))
        I("s_lshl_b32", sr(sT0), sr(sW), 7)
        I("v_add_u32", vr(vT5), sr(sT0), vr(vT5))
        I("ds_read_b128", vr(20, 4), vr(vT5), mods=f"offset:{L_OP}")
        I("ds_read_b128", vr(24, 4), vr(vT5), mods=f"offset:{L_OP + 512}")
        I("s_waitcnt", "lgkmcnt(0)")
        for e in range(4):
            I("v_mul_f32", vr(20 + e), vr(20 + e), vr(12))
        for e in range(4):
            I("v_fmac_f32", vr(20 + e), vr(24 + e), vr(14))
        self.swap_add(32, 20, 21, 20); self.swap_add(32, 22, 23, 22)
        self.swap_add(16, 20, 22, 20)
        self.dpp("v_add_f32", 20, 20, 20, "row_ror:8")
        self.clamp(20)
        I("v_and_b32", vr(vT6), 1, vr(vG)); I("v_lshlrev_b32", vr(vT6), 1, vr(vT6))
        I("v_lshrrev_b32", vr(vT5), 1, vr(vG)); I("v_or_b32", vr(vT6), vr(vT6), vr(vT5))
        I("v_and_b32", vr(vT5), 7, vr(vLane))
        I("v_lshl_add_u32", vr(vT5), vr(vT5), 2, vr(vT6))
        I("v_lshlrev_b32", vr(vT5), 2, vr(vT5))
        I("s_lshl_b32", sr(sT1), sr(sBH), 2); I("s_add_u32", sr(sT1), sr(sT1), sr(sM)); I("s_lshl_b32", sr(sT1), sr(sT1), 9)
        I("s_add_u32", sr(sT1), sr(sT1), sr(sT0)); I("s_add_u32", sr(sT1), sr(sT1), hex(OPART))
        I("s_mov_b32", "exec_lo", "0x00ff00ff"); I("s_mov_b32", "exec_hi", "0x00ff00ff")
        I("buffer_store_dword", vr(20), vr(vT5), sr(rWS, 4), sr(sT1), mods="offen sc1")
        I("s_mov_b64", "exec", -1)
        self.stamp(8)
        if self.stop == "attn":
            I("s_branch", "L_FIN")
            a.label(lab_exit_wait)
            I("s_branch", "L_FIN")
            return self.finish()
        self.tail(lab_exit_wait)
        return self.finish()

    def weights_dma(self):
        I = self.I
        l0, l1 = self.L("DW"), self.L("DWJ")
        I("s_cmp_eq_u32", sr(sE), 0)
        I("s_cbranch_scc0", l0)
        I("s_lshl_b32", sr(sT0), sr(sW), 11)
        I("v_lshlrev_b32", vr(vT5), 4, vr(vLane)); I("v_add_u32", vr(vT5), sr(sT0), vr(vT5))
        I("v_add_u32", vr(vT6), 1024, vr(vT5))
        I("s_mul_i32", sr(sM0A), sr(sW), 2 * WROW); I("s_add_u32", sr(sM0A), sr(sM0A), L_WB)
        I("s_add_u32", sr(sM0B), sr(sM0A), WROW)
        I("s_branch", l1)
        self.a.label(l0)
        I("s_lshl_b32", sr(sT0), sr(sW), 5)
        I("v_lshrrev_b32", vr(vT5), 1, vr(vLane)); I("v_add_u32", vr(vT5), sr(sT0), vr(vT5))
        I("s_movk_i32", sr(sT1), 2752)
        I("v_mul_lo_u32", vr(vT5), vr(vT5), sr(sT1))
        I("v_and_b32", vr(vT6), 1, vr(vLane)); I("v_lshlrev_b32", vr(vT6), 4, vr(vT6))
        I("v_add_u32", vr(vT5), vr(vT5), vr(vT6))
        I("s_lshl_b32", sr(sT0), sr(sW), 10)
        I("v_lshlrev_b32", vr(vT6), 4, vr(vLane)); I("v_add_u32", vr(vT6), sr(sT0), vr(vT6))
        I("s_add_u32", sr(sM0A), sr(sT0), L_WB)
        I("s_mul_i32", sr(sM0B), sr(sW), WROW); I("s_add_u32", sr(sM0B), sr(sM0B), L_WB + 16384)
        self.a.label(l1)
        I("s_mov_b32", "m0", sr(sM0A))
        self.vm("WA", "buffer_load_dwordx4", vr(vT5), sr(rWA, 4), 0, mods="offen nt lds")
        I("s_mov_b32", "m0", sr(sM0B))
        self.vm("WB", "buffer_load_dwordx4", vr(vT6), sr(rWB, 4), 0, mods="offen nt lds")

    def tail(self, lab_exit_wait):
        a, I = self.a, self.I
        lab_norole = "L_FIN"
        I("s_waitcnt", "vmcnt(1)")
        I("s_barrier")
        lab_ffn = self.L("FFN")
        I("s_cmp_eq_u32", sr(sE), 0)
        I("s_cbranch_scc0", lab_ffn)
        self.wo_stage()
        a.label(lab_ffn)
        I("s_cmp_lt_u32", sr(sF), 86)
        I("s_cbranch_scc0", "L_FIN")
        self.ffn_stage()
        I("s_branch", "L_FIN")
        a.label(lab_exit_wait)
        I("s_waitcnt", "vmcnt(0)")
        I("s_barrier")
        I("s_branch", "L_FIN")

    def check_all_counters(self):
        a, I = self.a, self.I
        lp, ok = self.L("CA"), self.L("CAOK")
        I("s_mov_b32", sr(sSpin), SPIN_MAX)
        I("v_and_b32", vr(vT5), 31, vr(vLane)); I("v_lshlrev_b32", vr(vT5), 2, vr(vT5))
        a.label(lp)
        I("buffer_load_dword", vr(vT6), vr(vT5), sr(rDBG, 4), 0, mods="offen sc1")
        I("s_waitcnt", "vmcnt(0)")
        I("v_cmp_gt_u32", "vcc", 8, vr(vT6))
        I("s_cbranch_vccz", ok)
        self.spin_guard(lp, ok)
        a.label(ok)

    def wo_stage(self):
        a, I = self.a, self.I
        vI4, vI2 = 8, 9
        BW = 64
        I("v_lshrrev_b32", vr(vI4), 2, vr(vC)); I("v_and_b32", vr(vI2), 3, vr(vC))
        I("v_lshl_add_u32", vr(vT5), vr(vG), 3, vr(vI4))
        I("s_movk_i32", sr(sT0), WROW)
        I("v_mul_lo_u32", vr(vT5), vr(vT5), sr(sT0))
        I("v_lshl_add_u32", vr(vT5), vr(vI2), 3, vr(vT5))
        I("s_lshl_b32", sr(sT0), sr(sW), 8)
        I("v_add_u32", vr(vT5), sr(sT0), vr(vT5))
        for tt in range(8):
            I("ds_read_b64_tr_b16", vr(BW + 4 * tt, 2), vr(vT5), mods=f"offset:{L_WB + 32 * tt}")
            I("ds_read_b64_tr_b16", vr(BW + 4 * tt + 2, 2), vr(vT5), mods=f"offset:{L_WB + 4 * WROW + 32 * tt}")
        vBS, vMS = 10, 11
        I("v_bfe_u32", vr(vBS), vr(vC), 2, 1); I("v_and_b32", vr(vMS), 3, vr(vC))
        I("v_lshlrev_b32", vr(vT6), 10, vr(vBS))
        I("s_lshl_b32", sr(sT0), sr(sH), 5); I("s_add_u32", sr(sT0), sr(sT0), hex(ML))
        I("v_lshl_add_u32", vr(vT5), vr(vMS), 3, vr(vT6))
        def loads_ml():
            I("buffer_load_dwordx4", vr(12, 4), vr(vT6), sr(rWS, 4), sr(sT0), mods="offen sc1")
            I("buffer_load_dwordx4", vr(16, 4), vr(vT6), sr(rWS, 4), sr(sT0), mods="offen offset:16 sc1")
            I("buffer_load_dwordx2", vr(20, 2), vr(vT5), sr(rWS, 4), sr(sT0), mods="offen sc1")
        self.poll(loads_ml, range(12, 22))
        I("v_max3_f32", vr(22), vr(12), vr(14), vr(16)); I("v_max_f32", vr(22), vr(22), vr(18))
        for r in (12, 14, 16, 18, 20):
            I("v_sub_f32", vr(r), vr(r), vr(22)); I("v_mul_f32", vr(r), hex(LOG2E), vr(r))
        for r in (12, 14, 16, 18, 20):
            I("v_exp_f32", vr(r), vr(r))
        I("v_mul_f32", vr(23), vr(12), vr(13))
        I("v_fmac_f32", vr(23), vr(14), vr(15)); I("v_fmac_f32", vr(23), vr(16), vr(17)); I("v_fmac_f32", vr(23), vr(18), vr(19))
        I("v_rcp_f32", vr(23), vr(23))
        I("v_mul_f32", vr(23), vr(23), vr(20))
        self.stamp(9)
        I("v_lshlrev_b32", vr(vT6), 16, vr(vBS))
        I("v_lshl_add_u32", vr(vT6), vr(vMS), 9, vr(vT6))
        I("v_lshl_add_u32", vr(vT6), vr(vG), 5, vr(vT6))
        I("s_lshl_b32", sr(sT0), sr(sH), 11)
        I("s_and_b32", sr(sT1), sr(sF), 3); I("s_lshl_b32", sr(sT1), sr(sT1), 7)
        I("s_add_u32", sr(sT0), sr(sT0), sr(sT1)); I("s_add_u32", sr(sT0), sr(sT0), hex(OPART))
        def loads_o():
            I("buffer_load_dwordx4", vr(12, 4), vr(vT6), sr(rWS, 4), sr(sT0), mods="offen sc1")
            I("buffer_load_dwordx4", vr(16, 4), vr(vT6), sr(rWS, 4), sr(sT0), mods="offen offset:16 sc1")
        I("s_waitcnt", "lgkmcnt(0)")
        self.poll(loads_o, range(12, 20))
        self.stamp(10)
        for e in range(8): I("v_mul_f32", vr(12 + e), vr(12 + e), vr(23))
        for e in range(8): self.dpp("v_add_f32", 12 + e, 12 + e, 12 + e, "quad_perm:[1,0,3,2]")
        for e in range(8): self.dpp("v_add_f32", 12 + e, 12 + e, 12 + e, "quad_perm:[2,3,0,1]")
        for k in range(4): I("v_cvt_pk_bf16_f32", vr(24 + k), vr(12 + 2 * k), vr(13 + 2 * k))
        DD = 32
        for tt in range(8):
            I("v_mfma_f32_16x16x32_bf16", vr(DD + 4 * tt, 4), vr(24, 4), vr(BW + 4 * tt, 4), 0)
        I("v_and_b32", vr(vT5), 1, vr(vG)); I("v_lshlrev_b32", vr(vT5), 18, vr(vT5))
        I("v_lshrrev_b32", vr(vT6), 1, vr(vG)); I("v_lshlrev_b32", vr(vT6), 13, vr(vT6))
        I("v_add_u32", vr(vT5), vr(vT5), vr(vT6))
        I("v_lshl_add_u32", vr(vT5), vr(vC), 2, vr(vT5))
        I("s_lshl_b32", sr(sT0), sr(sW), 16)
        I("s_lshl_b32", sr(sT1), sr(sF), 6); I("s_add_u32", sr(sT0), sr(sT0), sr(sT1)); I("s_add_u32", sr(sT0), sr(sT0), hex(YPART))
        I("s_mov_b32", sr(sMask), 0); I("s_mov_b32", sr(sMask + 1), -1)
        for tt in range(0, 8, 2):
            I("v_cndmask_b32", vr(12 + tt), vr(DD + 4 * tt), vr(DD + 4 * tt + 4), sr(sMask, 2))
            self.clamp(12 + tt)
            I("buffer_store_dword", vr(12 + tt), vr(vT5), sr(rWS, 4), sr(sT0), mods="offen sc1")
            if tt < 6: I("s_add_u32", sr(sT0), sr(sT0), 16384)
        self.stamp(11)
        if self.stop == "y":
            I("s_branch", "L_FIN"); return
        I("s_or_b32", sr(sT0), sr(sHalf), sr(sW))
        I("s_cmp_eq_u32", sr(sT0), 0)
        I("s_cbranch_scc0", "L_FIN")
        self.reducer()
        I("s_branch", "L_FIN")

    def reduce16(self, r0, out):
        self.swap_add(32, r0, r0 + 1, r0); self.swap_add(32, r0 + 2, r0 + 3, r0 + 2)
        self.swap_add(16, r0, r0 + 2, out)
        self.dpp("v_add_f32", out, out, out, "row_ror:8")
        self.dpp("v_add_f32", out, out, out, "row_ror:4")

    def reducer(self):
        a, I = self.a, self.I
        self.check_all_counters()
        vCol = 8
        I("v_and_b32", vr(vT6), 1, vr(vG)); I("v_lshlrev_b32", vr(vT6), 1, vr(vT6))
        I("v_lshrrev_b32", vr(vT7), 1, vr(vG)); I("v_or_b32", vr(vT6), vr(vT6), vr(vT7))
        I("v_and_b32", vr(vCol), 3, vr(vLane))
        I("v_lshl_add_u32", vr(vCol), vr(vCol), 2, vr(vT6))
        I("s_lshl_b32", sr(sT0), sr(sBH), 5)
        I("v_lshlrev_b32", vr(vT6), 1, vr(vCol))
        I("buffer_load_ushort", vr(9), vr(vT6), sr(rX, 4), sr(sT0), mods="offen")
        I("v_lshlrev_b32", vr(vT5), 4, vr(vLane))
        I("s_lshl_b32", sr(sT0), sr(sBH), 13); I("s_add_u32", sr(sT0), sr(sT0), hex(YPART))
        I("s_add_u32", sr(sT1), sr(sT0), 4096)
        def loads():
            for k in range(8):
                I("buffer_load_dwordx4", vr(32 + 4 * k, 4), vr(vT5), sr(rWS, 4), sr(sT0 if k < 4 else sT1), mods=f"offen offset:{(k % 4) * 1024} sc1")
        self.poll(loads, range(32, 64))
        self.stamp(12)
        for e in range(4):
            for k in (0, 2, 4, 6):
                I("v_add_f32", vr(32 + 4 * k + e), vr(32 + 4 * k + e), vr(36 + 4 * k + e))
            I("v_add_f32", vr(32 + e), vr(32 + e), vr(40 + e)); I("v_add_f32", vr(48 + e), vr(48 + e), vr(56 + e))
            I("v_add_f32", vr(32 + e), vr(32 + e), vr(48 + e))
        self.reduce16(32, 10)
        I("v_cvt_pk_bf16_f32", vr(10), vr(10), vr(10))
        I("v_lshlrev_b32", vr(10), 16, vr(10))
        I("v_lshlrev_b32", vr(9), 16, vr(9))
        I("v_add_f32", vr(10), vr(10), vr(9))
        I("v_cvt_pk_bf16_f32", vr(10), vr(10), vr(10))
        I("v_lshlrev_b32", vr(10), 16, vr(10))
        I("v_mov_b32", vr(11), vr(10))
        self.clamp(11)
        I("v_lshlrev_b32", vr(vT6), 2, vr(vCol))
        I("s_lshl_b32", sr(sT0), sr(sBH), 6); I("s_add_u32", sr(sT0), sr(sT0), hex(HBUF))
        I("s_mov_b32", "exec_lo", "0x000f000f"); I("s_mov_b32", "exec_hi", "0x000f000f")
        I("buffer_store_dword", vr(11), vr(vT6), sr(rWS, 4), sr(sT0), mods="offen sc1")
        I("s_mov_b64", "exec", -1)
        self.stamp(13)
        if self.stop == "h":
            return
        I("s_mul_i32", sr(sT0), sr(sBH), 6144); I("s_add_u32", sr(sT0), sr(sT0), hex(UPART))
        I("s_add_u32", sr(rWA), sr(pWS), sr(sT0)); I("s_addc_u32", sr(rWA + 1), sr(pWS + 1), 0)
        I("s_mov_b32", sr(rWA + 2), 86 * 64); I("s_mov_b32", sr(rWA + 3), "0x20000")
        I("s_movk_i32", sr(sT1), 4096)
        def loads3():
            for k in range(6):
                I("buffer_load_dwordx4", vr(32 + 4 * k, 4), vr(vT5), sr(rWA, 4), (0 if k < 4 else sr(sT1)), mods=f"offen offset:{(k % 4) * 1024} sc1")
        self.poll(loads3, range(32, 56))
        self.stamp(14)
        for e in range(4):
            for k in (0, 2, 4):
                I("v_add_f32", vr(32 + 4 * k + e), vr(32 + 4 * k + e), vr(36 + 4 * k + e))
            I("v_add_f32", vr(32 + e), vr(32 + e), vr(40 + e)); I("v_add_f32", vr(32 + e), vr(32 + e), vr(48 + e))
        self.reduce16(32, 12)
        I("v_cvt_pk_bf16_f32", vr(12), vr(12), vr(12))
        I("v_lshlrev_b32", vr(12), 16, vr(12))
        I("v_add_f32", vr(12), vr(12), vr(10))
        I("v_cvt_pk_bf16_f32", vr(12), vr(12), vr(12))
        I("v_lshlrev_b32", vr(vT6), 1, vr(vCol))
        I("s_lshl_b32", sr(sT0), sr(sBH), 5)
        I("s_mov_b32", "exec_lo", "0x000f000f"); I("s_mov_b32", "exec_hi", "0x000f000f")
        I("buffer_store_short", vr(12), vr(vT6), sr(rOUT, 4), sr(sT0), mods="offen")
        I("s_mov_b64", "exec", -1)
        self.stamp(15)

    def ffn_stage(self):
        a, I = self.a, self.I
        if self.stop in ("y", "h"):
            return
        vI4, vI2 = 8, 9
        B1, B2 = 64, 80
        I("v_lshrrev_b32", vr(vI4), 2, vr(vC)); I("v_and_b32", vr(vI2), 3, vr(vC))
        I("v_lshl_add_u32", vr(vT5), vr(vG), 3, vr(vI4)); I("v_lshlrev_b32", vr(vT5), 5, vr(vT5))
        I("v_lshl_add_u32", vr(vT5), vr(vI2), 3, vr(vT5))
        I("s_lshl_b32", sr(sT0), sr(sW), 12)
        I("v_add_u32", vr(vT5), sr(sT0), vr(vT5))
        for ks in range(4):
            I("ds_read_b64_tr_b16", vr(B1 + 4 * ks, 2), vr(vT5), mods=f"offset:{L_WB + ks * 1024}")
            I("ds_read_b64_tr_b16", vr(B1 + 4 * ks + 2, 2), vr(vT5), mods=f"offset:{L_WB + ks * 1024 + 128}")
        I("v_lshl_add_u32", vr(vT6), vr(vG), 2, vr(vI4))
        I("s_movk_i32", sr(sT0), WROW)
        I("v_mul_lo_u32", vr(vT6), vr(vT6), sr(sT0))
        I("v_lshl_add_u32", vr(vT6), vr(vI2), 3, vr(vT6))
        I("s_lshl_b32", sr(sT0), sr(sW), 8)
        I("v_add_u32", vr(vT6), sr(sT0), vr(vT6))
        for tt in range(8):
            I("ds_read_b64_tr_b16", vr(B2 + 2 * tt, 2), vr(vT6), mods=f"offset:{L_WB + 16384 + 32 * tt}")
        self.check_all_counters()
        H0, H1 = 12, 20
        I("v_lshlrev_b32", vr(vT5), 5, vr(vLane))
        I("s_mov_b32", sr(sT0), hex(HBUF))
        def loads():
            I("buffer_load_dwordx4", vr(H0, 4), vr(vT5), sr(rWS, 4), sr(sT0), mods="offen sc1")
            I("buffer_load_dwordx4", vr(H0 + 4, 4), vr(vT5), sr(rWS, 4), sr(sT0), mods="offen offset:16 sc1")
            I("buffer_load_dwordx4", vr(H1, 4), vr(vT5), sr(rWS, 4), sr(sT0), mods="offen offset:2048 sc1")
            I("buffer_load_dwordx4", vr(H1 + 4, 4), vr(vT5), sr(rWS, 4), sr(sT0), mods="offen offset:2064 sc1")
        I("s_waitcnt", "lgkmcnt(0)")
        self.poll(loads, range(12, 28))
        self.stamp(9)
        A1, A2, B1s, B2s = 28, 29, 30, 31
        for (src, s1, s2) in ((H0, A1, A2), (H1, B1s, B2s)):
            I("v_add_f32", vr(s1), vr(src), vr(src + 1))
            I("v_mul_f32", vr(s2), vr(src), vr(src))
            I("v_fmac_f32", vr(s2), vr(src + 1), vr(src + 1))
            for e in range(2, 8):
                I("v_add_f32", vr(s1), vr(s1), vr(src + e))
                I("v_fmac_f32", vr(s2), vr(src + e), vr(src + e))
        self.wave_reduce63("v_add_f32", [A1, A2, B1s, B2s])
        for (r, s) in ((A1, sT0), (A2, sT1), (B1s, sT2), (B2s, sT3)):
            I("v_readlane_b32", sr(s), vr(r), 63)
        M0, M1, R0, R1, T0, T1 = 28, 29, 30, 31, 32, 33
        self.ln_scalars(sT0, sT1, sT2, sT3, M0, M1, R0, R1, T0, T1, None)
        for (src, m, r) in ((H0, M0, R0), (H1, M1, R1)):
            for e in range(8):
                I("v_sub_f32", vr(src + e), vr(src + e), vr(m))
            for e in range(8):
                I("v_mul_f32", vr(src + e), vr(src + e), vr(r))
        for k in range(4):
            I("v_cvt_pk_bf16_f32", vr(36 + k), vr(H0 + 2 * k), vr(H0 + 2 * k + 1))
            I("v_cvt_pk_bf16_f32", vr(40 + k), vr(H1 + 2 * k), vr(H1 + 2 * k + 1))
        I("v_lshlrev_b32", vr(vT5), 4, vr(vLane))
        I("s_lshl_b32", sr(sT0), sr(sW), 11)
        I("v_add_u32", vr(vT5), sr(sT0), vr(vT5))
        I("ds_write_b128", vr(vT5), vr(36, 4), mods=f"offset:{L_HN}")
        I("ds_write_b128", vr(vT5), vr(40, 4), mods=f"offset:{L_HN + 1024}")
        I("v_bfe_u32", vr(vT6), vr(vC), 2, 1)
        I("v_lshlrev_b32", vr(vT6), 10, vr(vT6))
        I("v_lshl_add_u32", vr(vT6), vr(vG), 4, vr(vT6))
        I("s_mul_i32", sr(sT0), sr(sW), 2048 + 256)
        I("v_add_u32", vr(vT6), sr(sT0), vr(vT6))
        I("s_waitcnt", "lgkmcnt(0)")
        for ks in range(4):
            I("ds_read_b128", vr(44 + 4 * ks, 4), vr(vT6), mods=f"offset:{L_HN + ks * 64}")
        I("s_waitcnt", "lgkmcnt(0)")
        for ks in range(4):
            I("v_mfma_f32_16x16x32_bf16", vr(32, 4), vr(44 + 4 * ks, 4), vr(B1 + 4 * ks, 4), (0 if ks == 0 else vr(32, 4)))
        I("v_and_b32", vr(vT5), 1, vr(vG)); I("v_lshlrev_b32", vr(vT5), 6, vr(vT5))
        I("v_lshl_add_u32", vr(vT5), vr(vC), 2, vr(vT5))
        I("s_lshl_b32", sr(sT0), sr(sW), 7)
        I("v_add_u32", vr(vT5), sr(sT0), vr(vT5))
        I("ds_write_b32", vr(vT5), vr(32), mods=f"offset:{L_UP}")
        I("s_waitcnt", "lgkmcnt(0)")
        I("s_barrier")
        I("v_bfe_u32", vr(vT6), vr(vC), 2, 1)
        I("v_lshlrev_b32", vr(vT6), 6, vr(vT6))
        I("v_lshl_add_u32", vr(vT6), vr(vG), 4, vr(vT6))
        for w in range(4):
            I("ds_read_b128", vr(12 + 4 * w, 4), vr(vT6), mods=f"offset:{L_UP + w * 128}")
        I("s_waitcnt", "lgkmcnt(0)")
        for e in range(4):
            I("v_add_f32", vr(12 + e), vr(12 + e), vr(16 + e)); I("v_add_f32", vr(20 + e), vr(20 + e), vr(24 + e))
        for e in range(4):
            I("v_add_f32", vr(12 + e), vr(12 + e), vr(20 + e))
        I("v_cvt_pk_bf16_f32", vr(16), vr(12), vr(13)); I("v_cvt_pk_bf16_f32", vr(17), vr(14), vr(15))
        self.unpack(12, 13, 16); self.unpack(14, 15, 17)
        for e in range(4): I("v_mul_f32", vr(16 + e), "0xbfb8aa3b", vr(12 + e))
        for e in range(4): I("v_exp_f32", vr(16 + e), vr(16 + e))
        for e in range(4): I("v_add_f32", vr(16 + e), 1.0, vr(16 + e))
        for e in range(4): I("v_rcp_f32", vr(16 + e), vr(16 + e))
        for e in range(4): I("v_mul_f32", vr(12 + e), vr(12 + e), vr(16 + e))
        I("v_cvt_pk_bf16_f32", vr(20), vr(12), vr(13)); I("v_cvt_pk_bf16_f32", vr(21), vr(14), vr(15))
        self.stamp(10)
        DD = 32
        for tt in range(8):
            I("v_mfma_f32_16x16x16_bf16", vr(DD + 4 * tt, 4), vr(20, 2), vr(B2 + 2 * tt, 2), 0)
        I("v_and_b32", vr(vT5), 1, vr(vG)); I("s_mov_b32", sr(sT0), 32 * 6144); I("v_mul_lo_u32", vr(vT5), vr(vT5), sr(sT0))
        I("v_lshrrev_b32", vr(vT6), 1, vr(vG)); I("s_movk_i32", sr(sT0), 6144); I("v_mul_lo_u32", vr(vT6), vr(vT6), sr(sT0))
        I("v_add_u32", vr(vT5), vr(vT5), vr(vT6))
        I("v_lshl_add_u32", vr(vT5), vr(vC), 2, vr(vT5))
        I("s_mul_i32", sr(sT0), sr(sW), 8 * 6144)
        I("s_lshl_b32", sr(sT1), sr(sF), 6); I("s_add_u32", sr(sT0), sr(sT0), sr(sT1)); I("s_add_u32", sr(sT0), sr(sT0), hex(UPART))
        I("s_mov_b32", sr(sMask), 0); I("s_mov_b32", sr(sMask + 1), -1)
        for tt in range(0, 8, 2):
            I("v_cndmask_b32", vr(12 + tt), vr(DD + 4 * tt), vr(DD + 4 * tt + 4), sr(sMask, 2))
            self.clamp(12 + tt)
            I("buffer_store_dword", vr(12 + tt), vr(vT5), sr(rWS, 4), sr(sT0), mods="offen sc1")
            if tt < 6: I("s_add_u32", sr(sT0), sr(sT0), 2 * 6144)
        self.stamp(11)

    def finish(self):
        a, I = self.a, self.I
        a.label("L_FIN")
        if self.stamps:
            self.stamp(20)
            I("s_mov_b64", "exec", -1)
            I("s_lshl_b32", sr(sT0), "s2", 4); I("s_add_u32", sr(sT0), sr(sT0), sr(sW)); I("s_lshl_b32", sr(sT0), sr(sT0), 8)
            I("s_add_u32", sr(sT0), sr(sT0), hex(STAMP))
            I("v_lshlrev_b32", vr(vT5), 2, vr(vLane))
            I("buffer_store_dword", "v0", vr(vT5), sr(rWS, 4), sr(sT0), mods="offen")
        a.label("L_END")
        return self.wrap()

    def wrap(self):
        body = self.a.text()
        hdr = open("sequential_preLN__mha_block_cached__dense_activation_silu__decode.s.ref").read().split("\n")
        top = [l for l in hdr if l.startswith(";") and "@launch" not in l and "Override" not in l and "grid=ceil" not in l]
        top = top[:12]
        out = "\n".join(top) + "\n"
        out += f"; @launch grid=(256,1,1) block=(1024,1,1) lds={LDS_SIZE}\n"
        out += f""".amdgcn_target "amdgcn-amd-amdhsa--gfx950"
.text
.globl {KN}
.p2align 8
.type {KN},@function
{KN}:
{body}  s_endpgm
.section .rodata,"a"
.p2align 6
.amdhsa_kernel {KN}
  .amdhsa_next_free_vgpr 128
  .amdhsa_next_free_sgpr 102
  .amdhsa_accum_offset 128
  .amdhsa_group_segment_fixed_size 0
  .amdhsa_kernarg_size 88
  .amdhsa_user_sgpr_count 2
  .amdhsa_user_sgpr_kernarg_segment_ptr 1
  .amdhsa_system_sgpr_workgroup_id_x 1
.end_amdhsa_kernel
"""
        return out

if __name__ == "__main__":
    kw = {}
    for x in sys.argv[2:]:
        k, v = x.split("=")
        kw[k] = int(v) if v.lstrip("-").isdigit() else v
    g = Gen(**kw)
    open(sys.argv[1], "w").write(g.build())
    print("nops inserted:", g.a.nops, "lines", len(g.a.lines))
```

```python
import sys
from asmlib import Asm, vr, sr

KN = "sequential_preLN__mha_block_cached__dense_activation_silu__decode_kernel"

QPART = 0x000000
ML    = 0x040000
OPART = 0x050000
YPART = 0x080000
HBUF  = 0x100000
UPART = 0x110000
STAMP = 0x200000
WSSZ  = 0x400000
L_QP = 0
L_OP = 0
L_QB = 16384
L_ML = 16384 + 256
L_CNT = 16384 + 256 + 128
L_QCNT = L_CNT + 4
L_FPUB = L_CNT + 8
L_FQ = L_CNT + 12
L_UP = 16384 + 512
L_HN = 16384 + 1024
L_WB = 16384 + 1024 + 8192
L_XN = L_WB
LDS_SIZE = L_WB + 33792 + 256
WROW = 1056

LOG2E = 0x3FB8AA3B
SCALE = 0x3DB504F3
PERM = [0, 2, 1, 3]
SPIN_MAX = 400000

sW, sE, sHalf, sBH, sB, sH, sM, sJ = 3, 4, 5, 6, 7, 8, 9, 10
sT0, sT1, sT2, sT3, sT4 = 11, 12, 13, 14, 15
pX, pK, pV, pWQ, pWO, pBX, pW1, pW2, pOUT, pDBG, pWS = 16, 18, 20, 22, 24, 26, 28, 30, 32, 34, 36
rK, rV, rWS, rX, rWQ, rWA, rWB, rOUT, rDBG = 40, 44, 48, 52, 56, 60, 64, 68, 72
sOFF = 76
sN = 93
sSpin = 94
sF = 95
sMask = 96
sA0, sA1 = 98, 99
sM0A, sM0B = 100, 101
sStamp0 = 38
sRB = 26
vLane, vC, vG, vKV = 1, 2, 3, 4
vT5, vT6, vT7 = 5, 6, 7
vQ = 8
vD = 12
vS, vS2 = 16, 17
vACC = 20
DATA0 = 28
def kslot(i): return DATA0 + 4 * i
def vslot(i):
    if i < 8: return DATA0 + 4 * (17 + i)
    return DATA0 + 4 * (i - 8)

class Gen:
    def __init__(self, stamps=False, stop=None, nact=16, skew=False, npre=4, kprio=0):
        self.a = Asm()
        self.stamps = stamps
        self.stop = stop
        self.nact = nact
        self.skew = skew
        self.npre = npre
        self.kprio = kprio
        self.issued = []
        self.nstamp = 0
        self.lab = 0

    def L(self, p="L"):
        self.lab += 1
        return f"{p}_{self.lab}"

    def I(self, *a, **k): self.a.I(*a, **k)

    def stamp(self, k):
        if not self.stamps: return
        if k == 0:
            self.I("s_memrealtime", sr(sStamp0, 2)); return
        if k == 1:
            self.I("s_waitcnt", "lgkmcnt(0)")
            self.I("v_mov_b32", "v0", 0)
            self.I("v_writelane_b32", "v0", sr(sStamp0), 0)
        self.I("s_memrealtime", sr(sStamp0, 2))
        self.I("s_waitcnt", "lgkmcnt(0)")
        self.I("v_writelane_b32", "v0", sr(sStamp0), k)

    def csel(self, dst, x, y):
        self.I("s_mov_b32", sr(dst), x)
        self.I("s_cselect_b32", sr(dst), sr(dst), y)

    def exec63(self):
        self.I("s_mov_b32", "exec_lo", 0); self.I("s_mov_b32", "exec_hi", "0x80000000")

    def srd(self, r, plo, size, addoff=None):
        I = self.I
        if addoff is None:
            I("s_mov_b32", sr(r), sr(plo)); I("s_mov_b32", sr(r + 1), sr(plo + 1))
        else:
            I("s_add_u32", sr(r), sr(plo), addoff); I("s_addc_u32", sr(r + 1), sr(plo + 1), 0)
        I("s_mov_b32", sr(r + 2), size); I("s_mov_b32", sr(r + 3), "0x20000")

    def vm(self, tag, op, *ops, mods=""):
        self.I(op, *ops, mods=mods)
        self.issued.append(tag)

    def wait_vm(self, tag, extra=""):
        idx = self.issued.index(tag)
        n = len(self.issued) - 1 - idx
        self.I("s_waitcnt", f"vmcnt({min(n, 63)})" + extra)

    def dpp(self, op, d, s0, s1, ctrl, rm="0xf"):
        self.I(op + "_dpp", vr(d), vr(s0), vr(s1), mods=f"{ctrl} row_mask:{rm} bank_mask:0xf")

    def row_reduce(self, op, regs):
        for sh in (8, 4, 2, 1):
            for r in regs:
                self.dpp(op, r, r, r, f"row_ror:{sh}")

    def wave_reduce63(self, op, regs):
        self.row_reduce(op, regs)
        for r in regs: self.dpp(op, r, r, r, "row_bcast:15", "0xa")
        for r in regs: self.dpp(op, r, r, r, "row_bcast:31", "0xc")

    def swap_add(self, which, a, b, d, op="v_add_f32"):
        self.I(f"v_permlane{which}_swap_b32", vr(a), vr(b))
        self.I(op, vr(d), vr(a), vr(b))

    def unpack(self, lo, hi, src):
        self.I("v_lshlrev_b32", vr(lo), 16, vr(src))
        self.I("v_and_b32", vr(hi), "0xffff0000", vr(src))

    def spin_guard(self, lab_loop, lab_out):
        self.I("s_sub_u32", sr(sSpin), sr(sSpin), 1)
        self.I("s_cbranch_scc1", lab_out)
        self.I("s_branch", lab_loop)

    def poll(self, loads, regs, extra_check=None):
        I = self.I
        lp, ok = self.L("POLL"), self.L("POK")
        I("s_mov_b32", sr(sSpin), SPIN_MAX)
        self.a.label(lp)
        loads()
        I("s_waitcnt", "vmcnt(0)")
        rs = list(regs)
        t = vT7
        if len(rs) == 1:
            I("v_cmp_eq_u32", "vcc", -1, vr(rs[0]))
        else:
            first = True
            while rs:
                if first:
                    if len(rs) >= 3:
                        I("v_max3_u32", vr(t), vr(rs[0]), vr(rs[1]), vr(rs[2])); rs = rs[3:]
                    else:
                        I("v_max_u32", vr(t), vr(rs[0]), vr(rs[1])); rs = rs[2:]
                    first = False
                elif len(rs) >= 2:
                    I("v_max3_u32", vr(t), vr(t), vr(rs[0]), vr(rs[1])); rs = rs[2:]
                else:
                    I("v_max_u32", vr(t), vr(t), vr(rs[0])); rs = rs[1:]
            I("v_cmp_eq_u32", "vcc", -1, vr(t))
        I("s_cbranch_vccz", ok)
        self.spin_guard(lp, ok)
        self.a.label(ok)

    def clamp(self, r):
        self.I("v_min_u32", vr(r), -2, vr(r))

    def ln_scalars(self, s10, s20, s11, s21, vm0, vm1, vr0, vr1, t0, t1, t2):
        I = self.I
        inv = "0x3b000000"
        I("v_mov_b32", vr(vm0), sr(s10)); I("v_mov_b32", vr(vm1), sr(s11))
        I("v_mov_b32", vr(vr0), sr(s20)); I("v_mov_b32", vr(vr1), sr(s21))
        for r in (vm0, vm1, vr0, vr1): I("v_mul_f32", vr(r), inv, vr(r))
        I("v_fma_f32", vr(vr0), f"-{vr(vm0)}", vr(vm0), vr(vr0))
        I("v_fma_f32", vr(vr1), f"-{vr(vm1)}", vr(vm1), vr(vr1))
        I("v_max_f32", vr(vr0), 0, vr(vr0)); I("v_max_f32", vr(vr1), 0, vr(vr1))
        I("v_cvt_pk_bf16_f32", vr(t0), vr(vm0), vr(vm1))
        I("v_cvt_pk_bf16_f32", vr(t1), vr(vr0), vr(vr1))
        self.unpack(vm0, vm1, t0)
        self.unpack(vr0, vr1, t1)
        I("v_add_f32", vr(vr0), "0x3727c5ac", vr(vr0)); I("v_add_f32", vr(vr1), "0x3727c5ac", vr(vr1))
        I("v_cvt_pk_bf16_f32", vr(t1), vr(vr0), vr(vr1))
        self.unpack(vr0, vr1, t1)
        I("v_sqrt_f32", vr(vr0), vr(vr0)); I("v_sqrt_f32", vr(vr1), vr(vr1))
        I("v_cvt_pk_bf16_f32", vr(t1), vr(vr0), vr(vr1))
        self.unpack(vr0, vr1, t1)
        I("v_rcp_f32", vr(vr0), vr(vr0)); I("v_rcp_f32", vr(vr1), vr(vr1))

    def perm_g(self, d, t):
        I = self.I
        I("v_and_b32", vr(d), 1, vr(vG)); I("v_lshlrev_b32", vr(d), 1, vr(d))
        I("v_lshrrev_b32", vr(t), 1, vr(vG)); I("v_or_b32", vr(d), vr(d), vr(t))

    def ln_scalars1(self, s1, s2, vm0, vr0, t0):
        I = self.I
        inv = "0x3b000000"
        I("v_mov_b32", vr(vm0), sr(s1)); I("v_mov_b32", vr(vr0), sr(s2))
        I("v_mul_f32", vr(vm0), inv, vr(vm0)); I("v_mul_f32", vr(vr0), inv, vr(vr0))
        I("v_fma_f32", vr(vr0), f"-{vr(vm0)}", vr(vm0), vr(vr0))
        I("v_max_f32", vr(vr0), 0, vr(vr0))
        I("v_cvt_pk_bf16_f32", vr(t0), vr(vm0), vr(vr0))
        self.unpack(vm0, vr0, t0)
        I("v_add_f32", vr(vr0), "0x3727c5ac", vr(vr0))
        I("v_cvt_pk_bf16_f32", vr(t0), vr(vr0), vr(vr0))
        I("v_lshlrev_b32", vr(vr0), 16, vr(t0))
        I("v_sqrt_f32", vr(vr0), vr(vr0))
        I("v_cvt_pk_bf16_f32", vr(t0), vr(vr0), vr(vr0))
        I("v_lshlrev_b32", vr(vr0), 16, vr(t0))
        I("v_rcp_f32", vr(vr0), vr(vr0))

    def lds_add(self, off):
        I = self.I
        I("v_mov_b32", vr(vT6), off); I("v_mov_b32", vr(vT7), 1)
        I("s_mov_b64", "exec", 1)
        I("ds_add_u32", vr(vT6), vr(vT7))
        I("s_mov_b64", "exec", -1)

    def lds_wait(self, off, val, sleep=1):
        I = self.I
        lp = self.L("LW")
        ok = self.L("LWOK")
        I("v_mov_b32", vr(vT6), off)
        self.a.label(lp)
        I("ds_read_b32", vr(vT7), vr(vT6))
        I("s_waitcnt", "lgkmcnt(0)")
        I("v_readfirstlane_b32", sr(sT4), vr(vT7))
        I("s_cmp_ge_u32", sr(sT4), val)
        I("s_cbranch_scc1", ok)
        if sleep: I("s_sleep", sleep)
        I("s_branch", lp)
        self.a.label(ok)

    def invalidate(self):
        I = self.I
        for k in range(4): I("v_mov_b32", vr(8 + k), -1)
        I("v_lshlrev_b32", vr(vT5), 4, vr(vLane))
        I("s_lshl_b32", sr(sT0), sr(sBH), 2); I("s_add_u32", sr(sT0), sr(sT0), sr(sM))
        I("s_lshl_b32", sr(sT1), sr(sT0), 9); I("s_add_u32", sr(sT1), sr(sT1), hex(OPART))
        I("s_lshl_b32", sr(sT2), sr(sT0), 3); I("s_add_u32", sr(sT2), sr(sT2), hex(ML))
        I("s_mov_b32", "exec_lo", -1); I("s_mov_b32", "exec_hi", 0)
        I("buffer_store_dwordx4", vr(8, 4), vr(vT5), sr(rWS, 4), sr(sT1), mods="offen sc1")
        I("s_mov_b64", "exec", 1)
        I("buffer_store_dwordx2", vr(8, 2), vr(vT5), sr(rWS, 4), sr(sT2), mods="offen sc1")
        I("s_or_b32", sr(sT0), sr(sE), sr(sHalf))
        I("s_lshl_b32", sr(sT1), sr(sBH), 6); I("s_add_u32", sr(sT1), sr(sT1), hex(HBUF))
        I("s_cmp_eq_u32", sr(sT0), 0)
        I("s_cselect_b32", sr(sT1), sr(sT1), hex(0x40000000))
        I("s_mov_b64", "exec", 15)
        I("buffer_store_dwordx4", vr(8, 4), vr(vT5), sr(rWS, 4), sr(sT1), mods="offen sc1")
        I("s_mov_b64", "exec", -1)
        I("s_cmp_eq_u32", sr(sE), 0)
        self.csel(sT0, 8192, 6144)
        self.csel(sT1, hex(YPART), hex(UPART))
        I("s_lshl_b32", sr(sT2), sr(sF), 6); I("s_add_u32", sr(sT1), sr(sT1), sr(sT2))
        I("s_cmp_eq_u32", sr(sE), 0); self.csel(sT3, 128, 86)
        I("s_cmp_lt_u32", sr(sF), sr(sT3)); I("s_cselect_b32", sr(sT1), sr(sT1), hex(0x40000000))
        I("v_lshrrev_b32", vr(vT6), 2, vr(vLane))
        I("v_mul_lo_u32", vr(vT6), vr(vT6), sr(sT0))
        I("v_and_b32", vr(vT7), 3, vr(vLane)); I("v_lshlrev_b32", vr(vT7), 4, vr(vT7))
        I("v_add_u32", vr(vT6), vr(vT6), vr(vT7))
        I("s_lshl_b32", sr(sT0), sr(sT0), 4)
        for k in range(4):
            I("buffer_store_dwordx4", vr(8, 4), vr(vT6), sr(rWS, 4), sr(sT1), mods="offen sc1")
            if k < 3: I("s_add_u32", sr(sT1), sr(sT1), sr(sT0))

    def build(self):
        a, I = self.a, self.I
        self.stamp(0)
        I("s_load_dwordx16", sr(16, 16), "s[0:1]", 0)
        I("s_load_dwordx4", sr(32, 4), "s[0:1]", 64)
        I("s_load_dwordx2", sr(36, 2), "s[0:1]", 80)
        I("s_cmp_ge_u32", "s2", 256)
        I("s_cbranch_scc1", "L_END")
        I("v_and_b32", vr(vLane), 63, "v0")
        I("v_lshrrev_b32", vr(vT5), 6, "v0")
        I("v_and_b32", vr(vC), 15, "v0")
        I("v_readfirstlane_b32", sr(sW), vr(vT5))
        I("v_bfe_u32", vr(vG), "v0", 4, 2)
        I("s_and_b32", sr(sT0), "s2", 7)
        I("s_lshr_b32", sr(sT1), "s2", 3)
        I("s_and_b32", sr(sE), sr(sT0), 1)
        I("s_lshr_b32", sr(sT0), sr(sT0), 1)
        I("s_and_b32", sr(sHalf), sr(sT1), 1)
        I("s_lshr_b32", sr(sT1), sr(sT1), 1)
        I("s_lshr_b32", sr(sB), sr(sT1), 3)
        I("s_and_b32", sr(sT1), sr(sT1), 7)
        I("s_lshl_b32", sr(sH), sr(sT0), 3); I("s_add_u32", sr(sH), sr(sH), sr(sT1))
        I("s_lshl_b32", sr(sBH), sr(sB), 5); I("s_add_u32", sr(sBH), sr(sBH), sr(sH))
        I("s_lshl_b32", sr(sM), sr(sHalf), 1); I("s_add_u32", sr(sM), sr(sM), sr(sE))
        I("s_lshl_b32", sr(sJ), sr(sB), 2); I("s_add_u32", sr(sJ), sr(sJ), sr(sM))
        I("v_lshlrev_b32", vr(vKV), 4, vr(vLane))
        I("s_lshl_b32", sr(sT0), sr(sW), 15)
        I("v_add_u32", vr(vKV), sr(sT0), vr(vKV))
        I("s_cmp_eq_u32", sr(sE), 0)
        self.csel(sT0, 1024, -1024)
        I("s_mul_i32", sr(sOFF), sr(sE), 31744)
        for i in range(1, 17):
            I("s_add_u32", sr(sOFF + i), sr(sOFF + i - 1), sr(sT0))
        I("s_mov_b32", sr(sN), self.nact)
        I("s_waitcnt", "lgkmcnt(0)")
        I("s_lshl_b32", sr(sT0), sr(sBH), 20); I("s_lshl_b32", sr(sT1), sr(sHalf), 19); I("s_add_u32", sr(sT0), sr(sT0), sr(sT1))
        self.srd(rK, pK, "0x80000", sr(sT0))
        self.srd(rV, pV, "0x80000", sr(sT0))
        self.srd(rWS, pWS, hex(WSSZ))
        self.srd(rX, pX, 2048)
        I("s_lshl_b32", sr(sT0), sr(sH), 8)
        I("s_sub_u32", sr(sT1), hex(512 * 8192), sr(sT0))
        self.srd(rWQ, pWQ, sr(sT1), sr(sT0))
        self.srd(rDBG, pDBG, 256)
        self.srd(rOUT, pOUT, 2048)
        lab_ffn, lab_roledone = self.L("RFFN"), self.L("RDONE")
        I("s_cmp_eq_u32", sr(sE), 0)
        I("s_cbranch_scc0", lab_ffn)
        I("s_lshl_b32", sr(sT0), sr(sB), 1); I("s_add_u32", sr(sT0), sr(sT0), sr(sHalf))
        I("s_lshl_b32", sr(sF), sr(sH), 2); I("s_add_u32", sr(sF), sr(sF), sr(sT0))
        I("s_lshl_b32", sr(sT0), sr(sF), 15)
        self.srd(rWA, pWO, 32768, sr(sT0))
        self.srd(rWB, pWO, 32768, sr(sT0))
        I("s_branch", lab_roledone)
        a.label(lab_ffn)
        I("s_lshl_b32", sr(sF), sr(sBH), 1); I("s_add_u32", sr(sF), sr(sF), sr(sHalf))
        I("s_lshl_b32", sr(sT0), sr(sF), 5)
        I("s_sub_u32", sr(sT1), hex(512 * 2752), sr(sT0))
        I("s_cmp_lt_u32", sr(sF), 86)
        I("s_cselect_b32", sr(sT1), sr(sT1), 0)
        I("s_cselect_b32", sr(sT0), sr(sT0), 0)
        self.srd(rWA, pW1, sr(sT1), sr(sT0))
        I("s_lshl_b32", sr(sT0), sr(sF), 14)
        I("s_cmp_lt_u32", sr(sF), 86)
        I("s_cselect_b32", sr(sT1), 16384, 0)
        I("s_cselect_b32", sr(sT0), sr(sT0), 0)
        self.srd(rWB, pW2, sr(sT1), sr(sT0))
        a.label(lab_roledone)

        I("s_setprio", 3)
        lab_noinv = self.L("NOINV")
        I("s_cmp_eq_u32", sr(sW), 15)
        I("s_cbranch_scc0", lab_noinv)
        self.invalidate()
        a.label(lab_noinv)
        NP = self.npre
        XF, WQ = 8, kslot(17)
        I("s_lshl_b32", sr(sT0), sr(sB), 1); I("s_add_u32", sr(sT0), sr(sT0), sr(sHalf)); I("s_lshl_b32", sr(sT0), sr(sT0), 2)
        I("s_add_u32", sr(sT0), sr(sT0), sr(sW)); I("s_and_b32", sr(sRB), sr(sT0), 15)
        I("v_lshlrev_b32", vr(vT5), 4, vr(vLane))
        I("s_lshl_b32", sr(sT1), sr(sB), 10)
        self.vm("xf", "buffer_load_dwordx4", vr(XF, 4), vr(vT5), sr(rX, 4), sr(sT1), mods="offen")
        I("s_lshl_b32", sr(sT0), sr(sRB), 5)
        I("v_lshl_add_u32", vr(vT6), vr(vG), 1, sr(sT0))
        I("v_lshlrev_b32", vr(vT7), 13, vr(vT6))
        I("v_lshl_add_u32", vr(vT7), vr(vC), 4, vr(vT7))
        kq = 0
        for i in range(8):
            off = (8 * (i >> 1) + (i & 1)) * 8192
            while kq < NP and kq * 8 <= i * NP:
                self.vm(f"K{kq}", "buffer_load_dwordx4", vr(kslot(kq), 4), vr(vKV), sr(rK, 4), sr(sOFF + kq), mods="offen nt")
                kq += 1
            I("s_mov_b32", sr(sT2), off)
            self.vm(f"wq{i}", "buffer_load_dwordx4", vr(WQ + 4 * i, 4), vr(vT7), sr(rWQ, 4), sr(sT2), mods="offen")
            if i == 1:
                I("v_lshlrev_b32", vr(vT5), 2, vr(vLane)); I("v_mov_b32", vr(vT6), 0)
                I("s_mov_b64", "exec", 15)
                I("ds_write_b32", vr(vT5), vr(vT6), mods=f"offset:{L_CNT}")
                I("s_mov_b64", "exec", -1)
                I("s_waitcnt", "lgkmcnt(0)")
                I("s_barrier")
        while kq < NP:
            self.vm(f"K{kq}", "buffer_load_dwordx4", vr(kslot(kq), 4), vr(vKV), sr(rK, 4), sr(sOFF + kq), mods="offen nt")
            kq += 1
        self.stamp(1)
        lab_noat = self.L("NOAT")
        I("s_cmp_eq_u32", sr(sW), 15)
        I("s_cbranch_scc0", lab_noat)
        I("s_waitcnt", f"vmcnt({len(self.issued)})")
        self.stamp(17)
        I("v_mov_b32", vr(vT5), 0); I("v_mov_b32", vr(vT6), 1)
        I("s_lshl_b32", sr(sT0), sr(sH), 2)
        I("s_mov_b64", "exec", 1)
        I("buffer_atomic_add", vr(vT6), vr(vT5), sr(rDBG, 4), sr(sT0), mods="offen sc1")
        I("s_mov_b64", "exec", -1)
        a.label(lab_noat)
        I("s_mov_b32", sr(sT4), "0x3f803f80")
        self.wait_vm("xf")
        A1, A2, T0, T1 = 22, 23, 26, 27
        for k in range(4):
            I("v_dot2_f32_bf16", vr(A1), vr(XF + k), sr(sT4), (0 if k == 0 else vr(A1)))
            I("v_dot2_f32_bf16", vr(A2), vr(XF + k), vr(XF + k), (0 if k == 0 else vr(A2)))
        self.wave_reduce63("v_add_f32", [A1, A2])
        I("v_readlane_b32", sr(sT0), vr(A1), 63); I("v_readlane_b32", sr(sT1), vr(A2), 63)
        M0, R0 = 22, 23
        self.ln_scalars1(sT0, sT1, M0, R0, T0)
        XU = 12
        for k in range(4): self.unpack(XU + 2 * k, XU + 2 * k + 1, XF + k)
        for e in range(8): I("v_sub_f32", vr(XU + e), vr(XU + e), vr(M0))
        for k in range(4): I("v_cvt_pk_bf16_f32", vr(XF + k), vr(XU + 2 * k), vr(XU + 2 * k + 1))
        for k in range(4): self.unpack(XU + 2 * k, XU + 2 * k + 1, XF + k)
        for e in range(8): I("v_mul_f32", vr(XU + e), vr(XU + e), vr(R0))
        for k in range(4): I("v_cvt_pk_bf16_f32", vr(XF + k), vr(XU + 2 * k), vr(XU + 2 * k + 1))
        I("v_lshlrev_b32", vr(vT5), 4, vr(vLane))
        I("s_lshl_b32", sr(sT0), sr(sW), 10)
        I("v_add_u32", vr(vT5), sr(sT0), vr(vT5))
        I("ds_write_b128", vr(vT5), vr(XF, 4), mods=f"offset:{L_XN}")
        I("s_lshl_b32", sr(sT1), sr(sRB), 6); I("s_add_u32", sr(sT0), sr(sT0), sr(sT1))
        I("v_lshlrev_b32", vr(vT5), 2, vr(vG))
        I("v_add_u32", vr(vT5), sr(sT0), vr(vT5))
        I("s_waitcnt", "lgkmcnt(0)")
        for ip in range(4):
            I("ds_read_b32", vr(12 + ip), vr(vT5), mods=f"offset:{L_XN + 16 * ip}")
        P = vACC
        PT = kslot(15)
        I("s_mov_b32", sr(sT2), "0x05040100"); I("s_mov_b32", sr(sT3), "0x07060302")
        I("s_waitcnt", "lgkmcnt(0)")
        for ip in range(4):
            self.wait_vm(f"wq{2 * ip + 1}")
            wa, wb = WQ + 8 * ip, WQ + 8 * ip + 4
            for k in range(4):
                I("v_perm_b32", vr(PT + 2 * k), vr(wb + k), vr(wa + k), sr(sT2))
                I("v_perm_b32", vr(PT + 2 * k + 1), vr(wb + k), vr(wa + k), sr(sT3))
            for e in range(8):
                I("v_dot2_f32_bf16", vr(P + e), vr(PT + e), vr(12 + ip), (0 if ip == 0 else vr(P + e)))
        for i in range(4): I("v_permlane32_swap_b32", vr(P + 2 * i), vr(P + 2 * i + 1))
        for i in range(4): I("v_add_f32", vr(P + 2 * i), vr(P + 2 * i), vr(P + 2 * i + 1))
        for i in range(2): I("v_permlane16_swap_b32", vr(P + 4 * i), vr(P + 4 * i + 2))
        for i in range(2): I("v_add_f32", vr(8 + i), vr(P + 4 * i), vr(P + 4 * i + 2))
        self.perm_g(vT6, vT7)
        I("v_lshl_add_u32", vr(vT5), vr(vC), 3, vr(vT6))
        I("v_lshlrev_b32", vr(vT5), 2, vr(vT5))
        I("s_lshl_b32", sr(sT0), sr(sW), 9)
        I("v_add_u32", vr(vT5), sr(sT0), vr(vT5))
        I("ds_write_b32", vr(vT5), vr(8), mods=f"offset:{L_QP}")
        I("ds_write_b32", vr(vT5), vr(9), mods=f"offset:{L_QP + 16}")
        I("s_waitcnt", "lgkmcnt(0)")
        I("v_mov_b32", vr(vT6), L_QCNT); I("v_mov_b32", vr(vT7), 1)
        I("s_mov_b64", "exec", 1)
        I("ds_add_rtn_u32", vr(vT5), vr(vT6), vr(vT7))
        I("s_mov_b64", "exec", -1)
        I("s_waitcnt", "lgkmcnt(0)")
        I("v_readfirstlane_b32", sr(sT0), vr(vT5))
        self.stamp(2)
        lab_notlast = self.L("NOTLAST")
        I("s_cmp_eq_u32", sr(sT0), 15)
        I("s_cbranch_scc0", lab_notlast)
        I("v_and_b32", vr(vT5), 31, vr(vLane)); I("v_lshlrev_b32", vr(vT5), 4, vr(vT5))
        I("v_lshrrev_b32", vr(vT6), 5, vr(vLane)); I("v_lshlrev_b32", vr(vT6), 12, vr(vT6))
        I("v_add_u32", vr(vT5), vr(vT5), vr(vT6))
        RB = WQ
        for k in range(8):
            I("ds_read_b128", vr(RB + 4 * k, 4), vr(vT5), mods=f"offset:{L_QP + 512 * k}")
        I("s_waitcnt", "lgkmcnt(0)")
        for e in range(4):
            for k in (0, 2, 4, 6): I("v_add_f32", vr(RB + 4 * k + e), vr(RB + 4 * k + e), vr(RB + 4 * k + 4 + e))
        for e in range(4):
            I("v_add_f32", vr(RB + e), vr(RB + e), vr(RB + 8 + e)); I("v_add_f32", vr(RB + 16 + e), vr(RB + 16 + e), vr(RB + 24 + e))
        for e in range(4): I("v_add_f32", vr(RB + e), vr(RB + e), vr(RB + 16 + e))
        for e in range(4): I("v_mov_b32", vr(RB + 4 + e), vr(RB + e))
        for e in range(4): I("v_permlane32_swap_b32", vr(RB + e), vr(RB + 4 + e))
        for e in range(4): I("v_add_f32", vr(RB + e), vr(RB + e), vr(RB + 4 + e))
        I("v_cvt_pk_bf16_f32", vr(RB + 8), vr(RB), vr(RB + 1)); I("v_cvt_pk_bf16_f32", vr(RB + 9), vr(RB + 2), vr(RB + 3))
        I("v_and_b32", vr(vT5), 31, vr(vLane)); I("v_lshlrev_b32", vr(vT5), 3, vr(vT5))
        I("ds_write_b64", vr(vT5), vr(RB + 8, 2), mods=f"offset:{L_QB}")
        I("s_waitcnt", "lgkmcnt(0)")
        self.lds_add(L_FQ)
        a.label(lab_notlast)
        I("s_setprio", 2)
        for i in (15, 16):
            I("s_cmp_gt_u32", sr(sN), i)
            I("s_cselect_b32", sr(sOFF + i), sr(sOFF + i), hex(0x40000000))
        for i in range(NP, 17):
            self.vm(f"K{i}", "buffer_load_dwordx4", vr(kslot(i), 4), vr(vKV), sr(rK, 4), sr(sOFF + i), mods="offen nt")
        I("s_setprio", 1)
        for i in range(8):
            self.vm(f"V{i}", "buffer_load_dwordx4", vr(vslot(i), 4), vr(vKV), sr(rV, 4), sr(sOFF + i), mods="offen nt")
        self.stamp(16)
        self.lds_wait(L_FQ, 1)
        I("s_setprio", 0)
        self.stamp(4)
        I("v_lshlrev_b32", vr(vT5), 4, vr(vC))
        I("ds_read_b128", vr(vQ, 4), vr(vT5), mods=f"offset:{L_QB}")
        I("s_mov_b32", sr(sMask), "0x00010001"); I("s_mov_b32", sr(sMask + 1), "0x00010001")
        I("v_mov_b32", vr(vS), 0)
        I("s_waitcnt", "lgkmcnt(0)")
        groups = [[0, 1, 2, 3], [4, 5, 6, 7], [8, 9, 10, 11], [12, 13, 14], [15, 16]]
        nextv = 8
        for grp in groups:
            self.wait_vm(f"K{grp[-1]}")
            for n, i in enumerate(grp):
                I("v_dot2_f32_bf16", vr(vD + n), vr(kslot(i)), vr(vQ), 0)
            for k in range(1, 4):
                for n, i in enumerate(grp):
                    I("v_dot2_f32_bf16", vr(vD + n), vr(kslot(i) + k), vr(vQ + k), vr(vD + n))
            for i in grp:
                if i <= 8 and nextv <= 16:
                    assert vslot(nextv) == kslot(i)
                    self.vm(f"V{nextv}", "buffer_load_dwordx4", vr(vslot(nextv), 4), vr(vKV), sr(rV, 4), sr(sOFF + nextv), mods="offen nt")
                    nextv += 1
            self.row_reduce("v_add_f32", [vD + n for n in range(len(grp))])
            for n, i in enumerate(grp):
                if i < 16:
                    I("v_cndmask_b32", vr(vS), vr(vS), vr(vD + n), sr(sMask, 2))
                    if i < 15: I("s_lshl_b64", sr(sMask, 2), sr(sMask, 2), 1)
                else:
                    I("v_mov_b32", vr(vS2), vr(vD + n))
            if nextv == 17 and "WA" not in self.issued:
                self.weights_dma()
        assert nextv == 17
        T0, T1 = 18, 19
        I("v_cvt_pk_bf16_f32", vr(T0), vr(vS), vr(vS2))
        self.unpack(vS, vS2, T0)
        I("v_mul_f32", vr(vS), hex(SCALE), vr(vS)); I("v_mul_f32", vr(vS2), hex(SCALE), vr(vS2))
        I("v_cvt_pk_bf16_f32", vr(T0), vr(vS), vr(vS2))
        self.unpack(vS, vS2, T0)
        I("v_mov_b32", vr(T1), "0xff800000")
        I("v_cmp_gt_u32", "vcc", sr(sN), vr(vC))
        I("v_cndmask_b32", vr(vS), vr(T1), vr(vS), "vcc")
        I("s_cmp_gt_u32", sr(sN), 16)
        self.csel(sT0, "0x7f800000", "0xff800000")
        I("v_min_f32", vr(vS2), sr(sT0), vr(vS2))
        I("v_max_f32", vr(T0), vr(vS), vr(vS2))
        self.wave_reduce63("v_max_f32", [T0])
        I("v_readlane_b32", sr(sT0), vr(T0), 63)
        I("v_subrev_f32", vr(vS), sr(sT0), vr(vS)); I("v_subrev_f32", vr(vS2), sr(sT0), vr(vS2))
        I("v_mul_f32", vr(vS), hex(LOG2E), vr(vS)); I("v_mul_f32", vr(vS2), hex(LOG2E), vr(vS2))
        I("v_exp_f32", vr(vS), vr(vS)); I("v_exp_f32", vr(vS2), vr(vS2))
        I("v_mov_b32", vr(T0), vr(vS))
        I("v_fmac_f32", vr(T0), "0x3d800000", vr(vS2))
        self.wave_reduce63("v_add_f32", [T0])
        I("v_mov_b32", vr(T1), vr(T0))
        I("v_mov_b32", vr(T0), sr(sT0))
        I("s_lshl_b32", sr(sT1), sr(sW), 3)
        I("v_mov_b32", vr(vT5), sr(sT1))
        self.exec63()
        I("ds_write_b64", vr(vT5), vr(T0, 2), mods=f"offset:{L_ML}")
        I("s_waitcnt", "lgkmcnt(0)")
        I("v_mov_b32", vr(vT5), L_CNT); I("v_mov_b32", vr(vT6), 1)
        I("ds_add_u32", vr(vT5), vr(vT6))
        I("s_mov_b64", "exec", -1)
        self.stamp(5)
        for e in range(8): I("v_mov_b32", vr(vACC + e), 0)
        for i in range(17):
            self.wait_vm(f"V{i}")
            for k in range(4):
                t = 8 + 2 * (k % 4)
                self.unpack(t, t + 1, vslot(i) + k)
            for k in range(4):
                t = 8 + 2 * (k % 4)
                if i < 16:
                    for hh in range(2):
                        I("v_fmac_f32_dpp", vr(vACC + 2 * k + hh), vr(vS), vr(t + hh), mods=f"row_newbcast:{i} row_mask:0xf bank_mask:0xf")
                else:
                    for hh in range(2):
                        I("v_fmac_f32", vr(vACC + 2 * k + hh), vr(vS2), vr(t + hh))
        self.stamp(6)
        for i in range(4):
            self.swap_add(32, vACC + 2 * i, vACC + 2 * i + 1, vACC + 2 * i)
        for i in range(2):
            self.swap_add(16, vACC + 4 * i, vACC + 4 * i + 2, 8 + i)
        I("v_and_b32", vr(vT6), 1, vr(vG)); I("v_lshlrev_b32", vr(vT6), 1, vr(vT6))
        I("v_lshrrev_b32", vr(vT7), 1, vr(vG)); I("v_or_b32", vr(vT6), vr(vT6), vr(vT7))
        I("v_lshl_add_u32", vr(vT5), vr(vC), 3, vr(vT6))
        I("v_lshlrev_b32", vr(vT5), 2, vr(vT5))
        I("s_lshl_b32", sr(sT0), sr(sW), 9)
        I("v_add_u32", vr(vT5), sr(sT0), vr(vT5))
        I("ds_write_b32", vr(vT5), vr(8), mods=f"offset:{L_OP}")
        I("ds_write_b32", vr(vT5), vr(9), mods=f"offset:{L_OP + 16}")
        lab_w4, lab_join = self.L("W4"), self.L("JOIN")
        I("s_cmp_lt_u32", sr(sW), 4)
        I("s_cbranch_scc0", lab_w4)
        lp, ok = self.L("LC"), self.L("LCOK")
        I("v_mov_b32", vr(vT7), L_CNT)
        a.label(lp)
        I("ds_read_b32", vr(12), vr(vT7))
        I("s_waitcnt", "lgkmcnt(0)")
        I("v_readfirstlane_b32", sr(sT0), vr(12))
        I("s_cmp_ge_u32", sr(sT0), 16)
        I("s_cbranch_scc0", lp)
        I("v_lshrrev_b32", vr(vT7), 3, vr(vLane))
        I("v_lshlrev_b32", vr(13), 4, vr(vT7))
        I("ds_read_b128", vr(12, 4), vr(13), mods=f"offset:{L_ML}")
        I("s_waitcnt", "lgkmcnt(0)")
        I("v_max_f32", vr(16), vr(12), vr(14))
        self.wave_reduce63("v_max_f32", [16])
        I("v_readlane_b32", sr(sT0), vr(16), 63)
        I("v_subrev_f32", vr(12), sr(sT0), vr(12)); I("v_subrev_f32", vr(14), sr(sT0), vr(14))
        I("v_mul_f32", vr(12), hex(LOG2E), vr(12)); I("v_mul_f32", vr(14), hex(LOG2E), vr(14))
        I("v_exp_f32", vr(12), vr(12)); I("v_exp_f32", vr(14), vr(14))
        I("v_mul_f32", vr(16), vr(12), vr(13)); I("v_fmac_f32", vr(16), vr(14), vr(15))
        I("v_mul_f32", vr(16), "0x3e000000", vr(16))
        self.wave_reduce63("v_add_f32", [16])
        lab_noml = self.L("NOML")
        I("s_cmp_eq_u32", sr(sW), 0)
        I("s_cbranch_scc0", lab_noml)
        I("v_mov_b32", vr(17), vr(16))
        I("v_mov_b32", vr(16), sr(sT0))
        self.clamp(16); self.clamp(17)
        I("s_lshl_b32", sr(sT1), sr(sBH), 2); I("s_add_u32", sr(sT1), sr(sT1), sr(sM)); I("s_lshl_b32", sr(sT1), sr(sT1), 3)
        I("s_add_u32", sr(sT1), sr(sT1), hex(ML))
        I("v_mov_b32", vr(vT5), 0)
        self.exec63()
        I("buffer_store_dwordx2", vr(16, 2), vr(vT5), sr(rWS, 4), sr(sT1), mods="offen sc1")
        I("s_mov_b64", "exec", -1)
        a.label(lab_noml)
        self.check_all_counters()
        self.stamp(18)
        I("v_lshrrev_b32", vr(vT7), 3, vr(vLane))
        a.label(lab_w4)
        I("s_waitcnt", "lgkmcnt(0)")
        I("s_barrier")
        self.stamp(7)
        lab_exit_wait = self.L("XW")
        I("s_cmp_lt_u32", sr(sW), 4)
        I("s_cbranch_scc0", lab_exit_wait)
        I("v_and_b32", vr(vT5), 7, vr(vLane)); I("v_lshlrev_b32", vr(vT5), 4, vr(vT5))
        I("v_lshlrev_b32", vr(vT6), 10, vr(vT7))
        I("v_add_u32", vr(vT5), vr(vT5), vr(vT6))
        I("s_lshl_b32", sr(sT0), sr(sW), 7)
        I("v_add_u32", vr(vT5), sr(sT0), vr(vT5))
        I("ds_read_b128", vr(20, 4), vr(vT5), mods=f"offset:{L_OP}")
        I("ds_read_b128", vr(24, 4), vr(vT5), mods=f"offset:{L_OP + 512}")
        I("s_waitcnt", "lgkmcnt(0)")
        for e in range(4):
            I("v_mul_f32", vr(20 + e), vr(20 + e), vr(12))
        for e in range(4):
            I("v_fmac_f32", vr(20 + e), vr(24 + e), vr(14))
        self.swap_add(32, 20, 21, 20); self.swap_add(32, 22, 23, 22)
        self.swap_add(16, 20, 22, 20)
        self.dpp("v_add_f32", 20, 20, 20, "row_ror:8")
        self.clamp(20)
        I("v_and_b32", vr(vT6), 1, vr(vG)); I("v_lshlrev_b32", vr(vT6), 1, vr(vT6))
        I("v_lshrrev_b32", vr(vT5), 1, vr(vG)); I("v_or_b32", vr(vT6), vr(vT6), vr(vT5))
        I("v_and_b32", vr(vT5), 7, vr(vLane))
        I("v_lshl_add_u32", vr(vT5), vr(vT5), 2, vr(vT6))
        I("v_lshlrev_b32", vr(vT5), 2, vr(vT5))
        I("s_lshl_b32", sr(sT1), sr(sBH), 2); I("s_add_u32", sr(sT1), sr(sT1), sr(sM)); I("s_lshl_b32", sr(sT1), sr(sT1), 9)
        I("s_add_u32", sr(sT1), sr(sT1), sr(sT0)); I("s_add_u32", sr(sT1), sr(sT1), hex(OPART))
        I("s_mov_b32", "exec_lo", "0x00ff00ff"); I("s_mov_b32", "exec_hi", "0x00ff00ff")
        I("buffer_store_dword", vr(20), vr(vT5), sr(rWS, 4), sr(sT1), mods="offen sc1")
        I("s_mov_b64", "exec", -1)
        self.stamp(8)
        if self.stop == "attn":
            I("s_branch", "L_FIN")
            a.label(lab_exit_wait)
            I("s_branch", "L_FIN")
            return self.finish()
        self.tail(lab_exit_wait)
        return self.finish()

    def weights_dma(self):
        I = self.I
        l0, l1 = self.L("DW"), self.L("DWJ")
        I("s_cmp_eq_u32", sr(sE), 0)
        I("s_cbranch_scc0", l0)
        I("s_lshl_b32", sr(sT0), sr(sW), 11)
        I("v_lshlrev_b32", vr(vT5), 4, vr(vLane)); I("v_add_u32", vr(vT5), sr(sT0), vr(vT5))
        I("v_add_u32", vr(vT6), 1024, vr(vT5))
        I("s_mul_i32", sr(sM0A), sr(sW), 2 * WROW); I("s_add_u32", sr(sM0A), sr(sM0A), L_WB)
        I("s_add_u32", sr(sM0B), sr(sM0A), WROW)
        I("s_branch", l1)
        self.a.label(l0)
        I("s_lshl_b32", sr(sT0), sr(sW), 5)
        I("v_lshrrev_b32", vr(vT5), 1, vr(vLane)); I("v_add_u32", vr(vT5), sr(sT0), vr(vT5))
        I("s_movk_i32", sr(sT1), 2752)
        I("v_mul_lo_u32", vr(vT5), vr(vT5), sr(sT1))
        I("v_and_b32", vr(vT6), 1, vr(vLane)); I("v_lshlrev_b32", vr(vT6), 4, vr(vT6))
        I("v_add_u32", vr(vT5), vr(vT5), vr(vT6))
        I("s_lshl_b32", sr(sT0), sr(sW), 10)
        I("v_lshlrev_b32", vr(vT6), 4, vr(vLane)); I("v_add_u32", vr(vT6), sr(sT0), vr(vT6))
        I("s_add_u32", sr(sM0A), sr(sT0), L_WB)
        I("s_mul_i32", sr(sM0B), sr(sW), WROW); I("s_add_u32", sr(sM0B), sr(sM0B), L_WB + 16384)
        self.a.label(l1)
        I("s_mov_b32", "m0", sr(sM0A))
        self.vm("WA", "buffer_load_dwordx4", vr(vT5), sr(rWA, 4), 0, mods="offen nt lds")
        I("s_mov_b32", "m0", sr(sM0B))
        self.vm("WB", "buffer_load_dwordx4", vr(vT6), sr(rWB, 4), 0, mods="offen nt lds")

    def tail(self, lab_exit_wait):
        a, I = self.a, self.I
        lab_norole = "L_FIN"
        I("s_waitcnt", "vmcnt(1)")
        I("s_barrier")
        lab_ffn = self.L("FFN")
        I("s_cmp_eq_u32", sr(sE), 0)
        I("s_cbranch_scc0", lab_ffn)
        self.wo_stage()
        a.label(lab_ffn)
        I("s_cmp_lt_u32", sr(sF), 86)
        I("s_cbranch_scc0", "L_FIN")
        self.ffn_stage()
        I("s_branch", "L_FIN")
        a.label(lab_exit_wait)
        I("s_waitcnt", "vmcnt(0)")
        I("s_barrier")
        I("s_branch", "L_FIN")

    def check_all_counters(self):
        a, I = self.a, self.I
        lp, ok = self.L("CA"), self.L("CAOK")
        I("s_mov_b32", sr(sSpin), SPIN_MAX)
        I("v_and_b32", vr(vT5), 31, vr(vLane)); I("v_lshlrev_b32", vr(vT5), 2, vr(vT5))
        a.label(lp)
        I("buffer_load_dword", vr(vT6), vr(vT5), sr(rDBG, 4), 0, mods="offen sc1")
        I("s_waitcnt", "vmcnt(0)")
        I("v_cmp_gt_u32", "vcc", 8, vr(vT6))
        I("s_cbranch_vccz", ok)
        self.spin_guard(lp, ok)
        a.label(ok)

    def wo_stage(self):
        a, I = self.a, self.I
        vI4, vI2 = 8, 9
        BW = 64
        I("v_lshrrev_b32", vr(vI4), 2, vr(vC)); I("v_and_b32", vr(vI2), 3, vr(vC))
        I("v_lshl_add_u32", vr(vT5), vr(vG), 3, vr(vI4))
        I("s_movk_i32", sr(sT0), WROW)
        I("v_mul_lo_u32", vr(vT5), vr(vT5), sr(sT0))
        I("v_lshl_add_u32", vr(vT5), vr(vI2), 3, vr(vT5))
        I("s_lshl_b32", sr(sT0), sr(sW), 8)
        I("v_add_u32", vr(vT5), sr(sT0), vr(vT5))
        for tt in range(8):
            I("ds_read_b64_tr_b16", vr(BW + 4 * tt, 2), vr(vT5), mods=f"offset:{L_WB + 32 * tt}")
            I("ds_read_b64_tr_b16", vr(BW + 4 * tt + 2, 2), vr(vT5), mods=f"offset:{L_WB + 4 * WROW + 32 * tt}")
        vBS, vMS = 10, 11
        I("v_bfe_u32", vr(vBS), vr(vC), 2, 1); I("v_and_b32", vr(vMS), 3, vr(vC))
        I("v_lshlrev_b32", vr(vT6), 10, vr(vBS))
        I("s_lshl_b32", sr(sT0), sr(sH), 5); I("s_add_u32", sr(sT0), sr(sT0), hex(ML))
        I("v_lshl_add_u32", vr(vT5), vr(vMS), 3, vr(vT6))
        def loads_ml():
            I("buffer_load_dwordx4", vr(12, 4), vr(vT6), sr(rWS, 4), sr(sT0), mods="offen sc1")
            I("buffer_load_dwordx4", vr(16, 4), vr(vT6), sr(rWS, 4), sr(sT0), mods="offen offset:16 sc1")
            I("buffer_load_dwordx2", vr(20, 2), vr(vT5), sr(rWS, 4), sr(sT0), mods="offen sc1")
        self.poll(loads_ml, range(12, 22))
        I("v_max3_f32", vr(22), vr(12), vr(14), vr(16)); I("v_max_f32", vr(22), vr(22), vr(18))
        for r in (12, 14, 16, 18, 20):
            I("v_sub_f32", vr(r), vr(r), vr(22)); I("v_mul_f32", vr(r), hex(LOG2E), vr(r))
        for r in (12, 14, 16, 18, 20):
            I("v_exp_f32", vr(r), vr(r))
        I("v_mul_f32", vr(23), vr(12), vr(13))
        I("v_fmac_f32", vr(23), vr(14), vr(15)); I("v_fmac_f32", vr(23), vr(16), vr(17)); I("v_fmac_f32", vr(23), vr(18), vr(19))
        I("v_rcp_f32", vr(23), vr(23))
        I("v_mul_f32", vr(23), vr(23), vr(20))
        self.stamp(9)
        I("v_lshlrev_b32", vr(vT6), 16, vr(vBS))
        I("v_lshl_add_u32", vr(vT6), vr(vMS), 9, vr(vT6))
        I("v_lshl_add_u32", vr(vT6), vr(vG), 5, vr(vT6))
        I("s_lshl_b32", sr(sT0), sr(sH), 11)
        I("s_and_b32", sr(sT1), sr(sF), 3); I("s_lshl_b32", sr(sT1), sr(sT1), 7)
        I("s_add_u32", sr(sT0), sr(sT0), sr(sT1)); I("s_add_u32", sr(sT0), sr(sT0), hex(OPART))
        def loads_o():
            I("buffer_load_dwordx4", vr(12, 4), vr(vT6), sr(rWS, 4), sr(sT0), mods="offen sc1")
            I("buffer_load_dwordx4", vr(16, 4), vr(vT6), sr(rWS, 4), sr(sT0), mods="offen offset:16 sc1")
        I("s_waitcnt", "lgkmcnt(0)")
        self.poll(loads_o, range(12, 20))
        self.stamp(10)
        for e in range(8): I("v_mul_f32", vr(12 + e), vr(12 + e), vr(23))
        for e in range(8): self.dpp("v_add_f32", 12 + e, 12 + e, 12 + e, "quad_perm:[1,0,3,2]")
        for e in range(8): self.dpp("v_add_f32", 12 + e, 12 + e, 12 + e, "quad_perm:[2,3,0,1]")
        for k in range(4): I("v_cvt_pk_bf16_f32", vr(24 + k), vr(12 + 2 * k), vr(13 + 2 * k))
        DD = 32
        for tt in range(8):
            I("v_mfma_f32_16x16x32_bf16", vr(DD + 4 * tt, 4), vr(24, 4), vr(BW + 4 * tt, 4), 0)
        I("v_and_b32", vr(vT5), 1, vr(vG)); I("v_lshlrev_b32", vr(vT5), 18, vr(vT5))
        I("v_lshrrev_b32", vr(vT6), 1, vr(vG)); I("v_lshlrev_b32", vr(vT6), 13, vr(vT6))
        I("v_add_u32", vr(vT5), vr(vT5), vr(vT6))
        I("v_lshl_add_u32", vr(vT5), vr(vC), 2, vr(vT5))
        I("s_lshl_b32", sr(sT0), sr(sW), 16)
        I("s_lshl_b32", sr(sT1), sr(sF), 6); I("s_add_u32", sr(sT0), sr(sT0), sr(sT1)); I("s_add_u32", sr(sT0), sr(sT0), hex(YPART))
        I("s_mov_b32", sr(sMask), 0); I("s_mov_b32", sr(sMask + 1), -1)
        for tt in range(0, 8, 2):
            I("v_cndmask_b32", vr(12 + tt), vr(DD + 4 * tt), vr(DD + 4 * tt + 4), sr(sMask, 2))
            self.clamp(12 + tt)
            I("buffer_store_dword", vr(12 + tt), vr(vT5), sr(rWS, 4), sr(sT0), mods="offen sc1")
            if tt < 6: I("s_add_u32", sr(sT0), sr(sT0), 16384)
        self.stamp(11)
        if self.stop == "y":
            I("s_branch", "L_FIN"); return
        I("s_or_b32", sr(sT0), sr(sHalf), sr(sW))
        I("s_cmp_eq_u32", sr(sT0), 0)
        I("s_cbranch_scc0", "L_FIN")
        self.reducer()
        I("s_branch", "L_FIN")

    def reduce16(self, r0, out):
        self.swap_add(32, r0, r0 + 1, r0); self.swap_add(32, r0 + 2, r0 + 3, r0 + 2)
        self.swap_add(16, r0, r0 + 2, out)
        self.dpp("v_add_f32", out, out, out, "row_ror:8")
        self.dpp("v_add_f32", out, out, out, "row_ror:4")

    def reducer(self):
        a, I = self.a, self.I
        vCol = 8
        I("v_and_b32", vr(vT6), 1, vr(vG)); I("v_lshlrev_b32", vr(vT6), 1, vr(vT6))
        I("v_lshrrev_b32", vr(vT7), 1, vr(vG)); I("v_or_b32", vr(vT6), vr(vT6), vr(vT7))
        I("v_and_b32", vr(vCol), 3, vr(vLane))
        I("v_lshl_add_u32", vr(vCol), vr(vCol), 2, vr(vT6))
        I("s_lshl_b32", sr(sT0), sr(sBH), 5)
        I("v_lshlrev_b32", vr(vT6), 1, vr(vCol))
        I("buffer_load_ushort", vr(9), vr(vT6), sr(rX, 4), sr(sT0), mods="offen")
        I("v_lshlrev_b32", vr(vT5), 4, vr(vLane))
        I("s_lshl_b32", sr(sT0), sr(sBH), 13); I("s_add_u32", sr(sT0), sr(sT0), hex(YPART))
        I("s_add_u32", sr(sT1), sr(sT0), 4096)
        def loads():
            for k in range(8):
                I("buffer_load_dwordx4", vr(32 + 4 * k, 4), vr(vT5), sr(rWS, 4), sr(sT0 if k < 4 else sT1), mods=f"offen offset:{(k % 4) * 1024} sc1")
        self.poll(loads, range(32, 64))
        self.stamp(12)
        for e in range(4):
            for k in (0, 2, 4, 6):
                I("v_add_f32", vr(32 + 4 * k + e), vr(32 + 4 * k + e), vr(36 + 4 * k + e))
            I("v_add_f32", vr(32 + e), vr(32 + e), vr(40 + e)); I("v_add_f32", vr(48 + e), vr(48 + e), vr(56 + e))
            I("v_add_f32", vr(32 + e), vr(32 + e), vr(48 + e))
        self.reduce16(32, 10)
        I("v_cvt_pk_bf16_f32", vr(10), vr(10), vr(10))
        I("v_lshlrev_b32", vr(10), 16, vr(10))
        I("v_lshlrev_b32", vr(9), 16, vr(9))
        I("v_add_f32", vr(10), vr(10), vr(9))
        I("v_cvt_pk_bf16_f32", vr(10), vr(10), vr(10))
        I("v_lshlrev_b32", vr(10), 16, vr(10))
        I("v_mov_b32", vr(11), vr(10))
        self.clamp(11)
        I("v_lshlrev_b32", vr(vT6), 2, vr(vCol))
        I("s_lshl_b32", sr(sT0), sr(sBH), 6); I("s_add_u32", sr(sT0), sr(sT0), hex(HBUF))
        I("s_mov_b32", "exec_lo", "0x000f000f"); I("s_mov_b32", "exec_hi", "0x000f000f")
        I("buffer_store_dword", vr(11), vr(vT6), sr(rWS, 4), sr(sT0), mods="offen sc1")
        I("s_mov_b64", "exec", -1)
        self.stamp(13)
        if self.stop == "h":
            return
        I("s_mul_i32", sr(sT0), sr(sBH), 6144); I("s_add_u32", sr(sT0), sr(sT0), hex(UPART))
        I("s_add_u32", sr(rWA), sr(pWS), sr(sT0)); I("s_addc_u32", sr(rWA + 1), sr(pWS + 1), 0)
        I("s_mov_b32", sr(rWA + 2), 86 * 64); I("s_mov_b32", sr(rWA + 3), "0x20000")
        I("s_movk_i32", sr(sT1), 4096)
        def loads3():
            for k in range(6):
                I("buffer_load_dwordx4", vr(32 + 4 * k, 4), vr(vT5), sr(rWA, 4), (0 if k < 4 else sr(sT1)), mods=f"offen offset:{(k % 4) * 1024} sc1")
        self.poll(loads3, range(32, 56))
        self.stamp(14)
        for e in range(4):
            for k in (0, 2, 4):
                I("v_add_f32", vr(32 + 4 * k + e), vr(32 + 4 * k + e), vr(36 + 4 * k + e))
            I("v_add_f32", vr(32 + e), vr(32 + e), vr(40 + e)); I("v_add_f32", vr(32 + e), vr(32 + e), vr(48 + e))
        self.reduce16(32, 12)
        I("v_cvt_pk_bf16_f32", vr(12), vr(12), vr(12))
        I("v_lshlrev_b32", vr(12), 16, vr(12))
        I("v_add_f32", vr(12), vr(12), vr(10))
        I("v_cvt_pk_bf16_f32", vr(12), vr(12), vr(12))
        I("v_lshlrev_b32", vr(vT6), 1, vr(vCol))
        I("s_lshl_b32", sr(sT0), sr(sBH), 5)
        I("s_mov_b32", "exec_lo", "0x000f000f"); I("s_mov_b32", "exec_hi", "0x000f000f")
        I("buffer_store_short", vr(12), vr(vT6), sr(rOUT, 4), sr(sT0), mods="offen")
        I("s_mov_b64", "exec", -1)
        self.stamp(15)

    def ffn_stage(self):
        a, I = self.a, self.I
        if self.stop in ("y", "h"):
            return
        vI4, vI2 = 8, 9
        B1, B2 = 64, 80
        I("v_lshrrev_b32", vr(vI4), 2, vr(vC)); I("v_and_b32", vr(vI2), 3, vr(vC))
        I("v_lshl_add_u32", vr(vT5), vr(vG), 3, vr(vI4)); I("v_lshlrev_b32", vr(vT5), 5, vr(vT5))
        I("v_lshl_add_u32", vr(vT5), vr(vI2), 3, vr(vT5))
        I("s_lshl_b32", sr(sT0), sr(sW), 12)
        I("v_add_u32", vr(vT5), sr(sT0), vr(vT5))
        for ks in range(4):
            I("ds_read_b64_tr_b16", vr(B1 + 4 * ks, 2), vr(vT5), mods=f"offset:{L_WB + ks * 1024}")
            I("ds_read_b64_tr_b16", vr(B1 + 4 * ks + 2, 2), vr(vT5), mods=f"offset:{L_WB + ks * 1024 + 128}")
        I("v_lshl_add_u32", vr(vT6), vr(vG), 2, vr(vI4))
        I("s_movk_i32", sr(sT0), WROW)
        I("v_mul_lo_u32", vr(vT6), vr(vT6), sr(sT0))
        I("v_lshl_add_u32", vr(vT6), vr(vI2), 3, vr(vT6))
        I("s_lshl_b32", sr(sT0), sr(sW), 8)
        I("v_add_u32", vr(vT6), sr(sT0), vr(vT6))
        for tt in range(8):
            I("ds_read_b64_tr_b16", vr(B2 + 2 * tt, 2), vr(vT6), mods=f"offset:{L_WB + 16384 + 32 * tt}")
        H0, H1 = 12, 20
        I("v_lshlrev_b32", vr(vT5), 5, vr(vLane))
        I("s_mov_b32", sr(sT0), hex(HBUF))
        def loads():
            I("buffer_load_dwordx4", vr(H0, 4), vr(vT5), sr(rWS, 4), sr(sT0), mods="offen sc1")
            I("buffer_load_dwordx4", vr(H0 + 4, 4), vr(vT5), sr(rWS, 4), sr(sT0), mods="offen offset:16 sc1")
            I("buffer_load_dwordx4", vr(H1, 4), vr(vT5), sr(rWS, 4), sr(sT0), mods="offen offset:2048 sc1")
            I("buffer_load_dwordx4", vr(H1 + 4, 4), vr(vT5), sr(rWS, 4), sr(sT0), mods="offen offset:2064 sc1")
        I("s_waitcnt", "lgkmcnt(0)")
        self.poll(loads, range(12, 28))
        self.stamp(9)
        A1, A2, B1s, B2s = 28, 29, 30, 31
        for (src, s1, s2) in ((H0, A1, A2), (H1, B1s, B2s)):
            I("v_add_f32", vr(s1), vr(src), vr(src + 1))
            I("v_mul_f32", vr(s2), vr(src), vr(src))
            I("v_fmac_f32", vr(s2), vr(src + 1), vr(src + 1))
            for e in range(2, 8):
                I("v_add_f32", vr(s1), vr(s1), vr(src + e))
                I("v_fmac_f32", vr(s2), vr(src + e), vr(src + e))
        self.wave_reduce63("v_add_f32", [A1, A2, B1s, B2s])
        for (r, s) in ((A1, sT0), (A2, sT1), (B1s, sT2), (B2s, sT3)):
            I("v_readlane_b32", sr(s), vr(r), 63)
        M0, M1, R0, R1, T0, T1 = 28, 29, 30, 31, 32, 33
        self.ln_scalars(sT0, sT1, sT2, sT3, M0, M1, R0, R1, T0, T1, None)
        for (src, m, r) in ((H0, M0, R0), (H1, M1, R1)):
            for e in range(8):
                I("v_sub_f32", vr(src + e), vr(src + e), vr(m))
            for e in range(8):
                I("v_mul_f32", vr(src + e), vr(src + e), vr(r))
        for k in range(4):
            I("v_cvt_pk_bf16_f32", vr(36 + k), vr(H0 + 2 * k), vr(H0 + 2 * k + 1))
            I("v_cvt_pk_bf16_f32", vr(40 + k), vr(H1 + 2 * k), vr(H1 + 2 * k + 1))
        I("v_lshlrev_b32", vr(vT5), 4, vr(vLane))
        I("s_lshl_b32", sr(sT0), sr(sW), 11)
        I("v_add_u32", vr(vT5), sr(sT0), vr(vT5))
        I("ds_write_b128", vr(vT5), vr(36, 4), mods=f"offset:{L_HN}")
        I("ds_write_b128", vr(vT5), vr(40, 4), mods=f"offset:{L_HN + 1024}")
        I("v_bfe_u32", vr(vT6), vr(vC), 2, 1)
        I("v_lshlrev_b32", vr(vT6), 10, vr(vT6))
        I("v_lshl_add_u32", vr(vT6), vr(vG), 4, vr(vT6))
        I("s_mul_i32", sr(sT0), sr(sW), 2048 + 256)
        I("v_add_u32", vr(vT6), sr(sT0), vr(vT6))
        I("s_waitcnt", "lgkmcnt(0)")
        for ks in range(4):
            I("ds_read_b128", vr(44 + 4 * ks, 4), vr(vT6), mods=f"offset:{L_HN + ks * 64}")
        I("s_waitcnt", "lgkmcnt(0)")
        for ks in range(4):
            I("v_mfma_f32_16x16x32_bf16", vr(32, 4), vr(44 + 4 * ks, 4), vr(B1 + 4 * ks, 4), (0 if ks == 0 else vr(32, 4)))
        I("v_and_b32", vr(vT5), 1, vr(vG)); I("v_lshlrev_b32", vr(vT5), 6, vr(vT5))
        I("v_lshl_add_u32", vr(vT5), vr(vC), 2, vr(vT5))
        I("s_lshl_b32", sr(sT0), sr(sW), 7)
        I("v_add_u32", vr(vT5), sr(sT0), vr(vT5))
        I("ds_write_b32", vr(vT5), vr(32), mods=f"offset:{L_UP}")
        I("s_waitcnt", "lgkmcnt(0)")
        I("s_barrier")
        I("v_bfe_u32", vr(vT6), vr(vC), 2, 1)
        I("v_lshlrev_b32", vr(vT6), 6, vr(vT6))
        I("v_lshl_add_u32", vr(vT6), vr(vG), 4, vr(vT6))
        for w in range(4):
            I("ds_read_b128", vr(12 + 4 * w, 4), vr(vT6), mods=f"offset:{L_UP + w * 128}")
        I("s_waitcnt", "lgkmcnt(0)")
        for e in range(4):
            I("v_add_f32", vr(12 + e), vr(12 + e), vr(16 + e)); I("v_add_f32", vr(20 + e), vr(20 + e), vr(24 + e))
        for e in range(4):
            I("v_add_f32", vr(12 + e), vr(12 + e), vr(20 + e))
        I("v_cvt_pk_bf16_f32", vr(16), vr(12), vr(13)); I("v_cvt_pk_bf16_f32", vr(17), vr(14), vr(15))
        self.unpack(12, 13, 16); self.unpack(14, 15, 17)
        for e in range(4): I("v_mul_f32", vr(16 + e), "0xbfb8aa3b", vr(12 + e))
        for e in range(4): I("v_exp_f32", vr(16 + e), vr(16 + e))
        for e in range(4): I("v_add_f32", vr(16 + e), 1.0, vr(16 + e))
        for e in range(4): I("v_rcp_f32", vr(16 + e), vr(16 + e))
        for e in range(4): I("v_mul_f32", vr(12 + e), vr(12 + e), vr(16 + e))
        I("v_cvt_pk_bf16_f32", vr(20), vr(12), vr(13)); I("v_cvt_pk_bf16_f32", vr(21), vr(14), vr(15))
        self.stamp(10)
        DD = 32
        for tt in range(8):
            I("v_mfma_f32_16x16x16_bf16", vr(DD + 4 * tt, 4), vr(20, 2), vr(B2 + 2 * tt, 2), 0)
        I("v_and_b32", vr(vT5), 1, vr(vG)); I("s_mov_b32", sr(sT0), 32 * 6144); I("v_mul_lo_u32", vr(vT5), vr(vT5), sr(sT0))
        I("v_lshrrev_b32", vr(vT6), 1, vr(vG)); I("s_movk_i32", sr(sT0), 6144); I("v_mul_lo_u32", vr(vT6), vr(vT6), sr(sT0))
        I("v_add_u32", vr(vT5), vr(vT5), vr(vT6))
        I("v_lshl_add_u32", vr(vT5), vr(vC), 2, vr(vT5))
        I("s_mul_i32", sr(sT0), sr(sW), 8 * 6144)
        I("s_lshl_b32", sr(sT1), sr(sF), 6); I("s_add_u32", sr(sT0), sr(sT0), sr(sT1)); I("s_add_u32", sr(sT0), sr(sT0), hex(UPART))
        I("s_mov_b32", sr(sMask), 0); I("s_mov_b32", sr(sMask + 1), -1)
        for tt in range(0, 8, 2):
            I("v_cndmask_b32", vr(12 + tt), vr(DD + 4 * tt), vr(DD + 4 * tt + 4), sr(sMask, 2))
            self.clamp(12 + tt)
            I("buffer_store_dword", vr(12 + tt), vr(vT5), sr(rWS, 4), sr(sT0), mods="offen sc1")
            if tt < 6: I("s_add_u32", sr(sT0), sr(sT0), 2 * 6144)
        self.stamp(11)

    def finish(self):
        a, I = self.a, self.I
        a.label("L_FIN")
        if self.stamps:
            self.stamp(20)
            I("s_mov_b64", "exec", -1)
            I("s_lshl_b32", sr(sT0), "s2", 4); I("s_add_u32", sr(sT0), sr(sT0), sr(sW)); I("s_lshl_b32", sr(sT0), sr(sT0), 8)
            I("s_add_u32", sr(sT0), sr(sT0), hex(STAMP))
            I("v_lshlrev_b32", vr(vT5), 2, vr(vLane))
            I("buffer_store_dword", "v0", vr(vT5), sr(rWS, 4), sr(sT0), mods="offen")
        a.label("L_END")
        return self.wrap()

    def wrap(self):
        body = self.a.text()
        hdr = open("sequential_preLN__mha_block_cached__dense_activation_silu__decode.s.ref").read().split("\n")
        top = [l for l in hdr if l.startswith(";") and "@launch" not in l and "Override" not in l and "grid=ceil" not in l]
        top = top[:12]
        out = "\n".join(top) + "\n"
        out += f"; @launch grid=(256,1,1) block=(1024,1,1) lds={LDS_SIZE}\n"
        out += f""".amdgcn_target "amdgcn-amd-amdhsa--gfx950"
.text
.globl {KN}
.p2align 8
.type {KN},@function
{KN}:
{body}  s_endpgm
.section .rodata,"a"
.p2align 6
.amdhsa_kernel {KN}
  .amdhsa_next_free_vgpr 128
  .amdhsa_next_free_sgpr 102
  .amdhsa_accum_offset 128
  .amdhsa_group_segment_fixed_size 0
  .amdhsa_kernarg_size 88
  .amdhsa_user_sgpr_count 2
  .amdhsa_user_sgpr_kernarg_segment_ptr 1
  .amdhsa_system_sgpr_workgroup_id_x 1
.end_amdhsa_kernel
"""
        return out

if __name__ == "__main__":
    kw = {}
    for x in sys.argv[2:]:
        k, v = x.split("=")
        kw[k] = int(v) if v.lstrip("-").isdigit() else v
    g = Gen(**kw)
    open(sys.argv[1], "w").write(g.build())
    print("nops inserted:", g.a.nops, "lines", len(g.a.lines))
```

```python
import sys
from asmlib import Asm, vr, sr

KN = "sequential_preLN__mha_block_cached__dense_activation_silu__decode_kernel"

QPART = 0x000000
ML    = 0x040000
OPART = 0x050000
YPART = 0x080000
HBUF  = 0x100000
UPART = 0x110000
STAMP = 0x200000
WSSZ  = 0x400000
L_QP = 0
L_OP = 0
L_QB = 16384
L_ML = 16384 + 256
L_CNT = 16384 + 256 + 128
L_QCNT = L_CNT + 4
L_FPUB = L_CNT + 8
L_FQ = L_CNT + 12
L_UP = 16384 + 512
L_HN = 16384 + 1024
L_WB = 16384 + 1024 + 8192
L_XN = L_WB
LDS_SIZE = L_WB + 33792 + 256
WROW = 1056

LOG2E = 0x3FB8AA3B
SCALE = 0x3DB504F3
PERM = [0, 2, 1, 3]
SPIN_MAX = 400000

sW, sE, sHalf, sBH, sB, sH, sM, sJ = 3, 4, 5, 6, 7, 8, 9, 10
sT0, sT1, sT2, sT3, sT4 = 11, 12, 13, 14, 15
pX, pK, pV, pWQ, pWO, pBX, pW1, pW2, pOUT, pDBG, pWS = 16, 18, 20, 22, 24, 26, 28, 30, 32, 34, 36
rK, rV, rWS, rX, rWQ, rWA, rWB, rOUT, rDBG = 40, 44, 48, 52, 56, 60, 64, 68, 72
sOFF = 76
sN = 93
sSpin = 94
sF = 95
sMask = 96
sA0, sA1 = 98, 99
sM0A, sM0B = 100, 101
sStamp0 = 38
sRB = 26
vLane, vC, vG, vKV = 1, 2, 3, 4
vT5, vT6, vT7 = 5, 6, 7
vQ = 8
vD = 12
vS, vS2 = 16, 17
vACC = 20
DATA0 = 28
def kslot(i): return DATA0 + 4 * i
def vslot(i):
    if i < 8: return DATA0 + 4 * (17 + i)
    return DATA0 + 4 * (i - 8)

class Gen:
    def __init__(self, stamps=False, stop=None, nact=16, skew=False, npre=4, kprio=0, dbgtime=0):
        self.a = Asm()
        self.stamps = stamps
        self.stop = stop
        self.nact = nact
        self.skew = skew
        self.npre = npre
        self.kprio = kprio
        self.dbgtime = dbgtime
        self.issued = []
        self.nstamp = 0
        self.lab = 0

    def L(self, p="L"):
        self.lab += 1
        return f"{p}_{self.lab}"

    def I(self, *a, **k): self.a.I(*a, **k)

    def stamp(self, k):
        if not self.stamps: return
        if k == 0:
            self.I("s_memrealtime", sr(sStamp0, 2)); return
        if k == 1:
            self.I("s_waitcnt", "lgkmcnt(0)")
            self.I("v_mov_b32", "v0", 0)
            self.I("v_writelane_b32", "v0", sr(sStamp0), 0)
        self.I("s_memrealtime", sr(sStamp0, 2))
        self.I("s_waitcnt", "lgkmcnt(0)")
        self.I("v_writelane_b32", "v0", sr(sStamp0), k)

    def csel(self, dst, x, y):
        self.I("s_mov_b32", sr(dst), x)
        self.I("s_cselect_b32", sr(dst), sr(dst), y)

    def exec63(self):
        self.I("s_mov_b32", "exec_lo", 0); self.I("s_mov_b32", "exec_hi", "0x80000000")

    def srd(self, r, plo, size, addoff=None):
        I = self.I
        if addoff is None:
            I("s_mov_b32", sr(r), sr(plo)); I("s_mov_b32", sr(r + 1), sr(plo + 1))
        else:
            I("s_add_u32", sr(r), sr(plo), addoff); I("s_addc_u32", sr(r + 1), sr(plo + 1), 0)
        I("s_mov_b32", sr(r + 2), size); I("s_mov_b32", sr(r + 3), "0x20000")

    def vm(self, tag, op, *ops, mods=""):
        self.I(op, *ops, mods=mods)
        self.issued.append(tag)

    def wait_vm(self, tag, extra=""):
        idx = self.issued.index(tag)
        n = len(self.issued) - 1 - idx
        self.I("s_waitcnt", f"vmcnt({min(n, 63)})" + extra)

    def dpp(self, op, d, s0, s1, ctrl, rm="0xf"):
        self.I(op + "_dpp", vr(d), vr(s0), vr(s1), mods=f"{ctrl} row_mask:{rm} bank_mask:0xf")

    def row_reduce(self, op, regs):
        for sh in (8, 4, 2, 1):
            for r in regs:
                self.dpp(op, r, r, r, f"row_ror:{sh}")

    def wave_reduce63(self, op, regs):
        self.row_reduce(op, regs)
        for r in regs: self.dpp(op, r, r, r, "row_bcast:15", "0xa")
        for r in regs: self.dpp(op, r, r, r, "row_bcast:31", "0xc")

    def swap_add(self, which, a, b, d, op="v_add_f32"):
        self.I(f"v_permlane{which}_swap_b32", vr(a), vr(b))
        self.I(op, vr(d), vr(a), vr(b))

    def unpack(self, lo, hi, src):
        self.I("v_lshlrev_b32", vr(lo), 16, vr(src))
        self.I("v_and_b32", vr(hi), "0xffff0000", vr(src))

    def spin_guard(self, lab_loop, lab_out):
        self.I("s_sub_u32", sr(sSpin), sr(sSpin), 1)
        self.I("s_cbranch_scc1", lab_out)
        self.I("s_branch", lab_loop)

    def poll(self, loads, regs, extra_check=None):
        I = self.I
        lp, ok = self.L("POLL"), self.L("POK")
        I("s_mov_b32", sr(sSpin), SPIN_MAX)
        self.a.label(lp)
        loads()
        I("s_waitcnt", "vmcnt(0)")
        rs = list(regs)
        t = vT7
        if len(rs) == 1:
            I("v_cmp_eq_u32", "vcc", -1, vr(rs[0]))
        else:
            first = True
            while rs:
                if first:
                    if len(rs) >= 3:
                        I("v_max3_u32", vr(t), vr(rs[0]), vr(rs[1]), vr(rs[2])); rs = rs[3:]
                    else:
                        I("v_max_u32", vr(t), vr(rs[0]), vr(rs[1])); rs = rs[2:]
                    first = False
                elif len(rs) >= 2:
                    I("v_max3_u32", vr(t), vr(t), vr(rs[0]), vr(rs[1])); rs = rs[2:]
                else:
                    I("v_max_u32", vr(t), vr(t), vr(rs[0])); rs = rs[1:]
            I("v_cmp_eq_u32", "vcc", -1, vr(t))
        I("s_cbranch_vccz", ok)
        self.spin_guard(lp, ok)
        self.a.label(ok)

    def clamp(self, r):
        self.I("v_min_u32", vr(r), -2, vr(r))

    def ln_scalars(self, s10, s20, s11, s21, vm0, vm1, vr0, vr1, t0, t1, t2):
        I = self.I
        inv = "0x3b000000"
        I("v_mov_b32", vr(vm0), sr(s10)); I("v_mov_b32", vr(vm1), sr(s11))
        I("v_mov_b32", vr(vr0), sr(s20)); I("v_mov_b32", vr(vr1), sr(s21))
        for r in (vm0, vm1, vr0, vr1): I("v_mul_f32", vr(r), inv, vr(r))
        I("v_fma_f32", vr(vr0), f"-{vr(vm0)}", vr(vm0), vr(vr0))
        I("v_fma_f32", vr(vr1), f"-{vr(vm1)}", vr(vm1), vr(vr1))
        I("v_max_f32", vr(vr0), 0, vr(vr0)); I("v_max_f32", vr(vr1), 0, vr(vr1))
        I("v_cvt_pk_bf16_f32", vr(t0), vr(vm0), vr(vm1))
        I("v_cvt_pk_bf16_f32", vr(t1), vr(vr0), vr(vr1))
        self.unpack(vm0, vm1, t0)
        self.unpack(vr0, vr1, t1)
        I("v_add_f32", vr(vr0), "0x3727c5ac", vr(vr0)); I("v_add_f32", vr(vr1), "0x3727c5ac", vr(vr1))
        I("v_cvt_pk_bf16_f32", vr(t1), vr(vr0), vr(vr1))
        self.unpack(vr0, vr1, t1)
        I("v_sqrt_f32", vr(vr0), vr(vr0)); I("v_sqrt_f32", vr(vr1), vr(vr1))
        I("v_cvt_pk_bf16_f32", vr(t1), vr(vr0), vr(vr1))
        self.unpack(vr0, vr1, t1)
        I("v_rcp_f32", vr(vr0), vr(vr0)); I("v_rcp_f32", vr(vr1), vr(vr1))

    def perm_g(self, d, t):
        I = self.I
        I("v_and_b32", vr(d), 1, vr(vG)); I("v_lshlrev_b32", vr(d), 1, vr(d))
        I("v_lshrrev_b32", vr(t), 1, vr(vG)); I("v_or_b32", vr(d), vr(d), vr(t))

    def ln_scalars1(self, s1, s2, vm0, vr0, t0):
        I = self.I
        inv = "0x3b000000"
        I("v_mov_b32", vr(vm0), sr(s1)); I("v_mov_b32", vr(vr0), sr(s2))
        I("v_mul_f32", vr(vm0), inv, vr(vm0)); I("v_mul_f32", vr(vr0), inv, vr(vr0))
        I("v_fma_f32", vr(vr0), f"-{vr(vm0)}", vr(vm0), vr(vr0))
        I("v_max_f32", vr(vr0), 0, vr(vr0))
        I("v_cvt_pk_bf16_f32", vr(t0), vr(vm0), vr(vr0))
        self.unpack(vm0, vr0, t0)
        I("v_add_f32", vr(vr0), "0x3727c5ac", vr(vr0))
        I("v_cvt_pk_bf16_f32", vr(t0), vr(vr0), vr(vr0))
        I("v_lshlrev_b32", vr(vr0), 16, vr(t0))
        I("v_sqrt_f32", vr(vr0), vr(vr0))
        I("v_cvt_pk_bf16_f32", vr(t0), vr(vr0), vr(vr0))
        I("v_lshlrev_b32", vr(vr0), 16, vr(t0))
        I("v_rcp_f32", vr(vr0), vr(vr0))

    def lds_add(self, off):
        I = self.I
        I("v_mov_b32", vr(vT6), off); I("v_mov_b32", vr(vT7), 1)
        I("s_mov_b64", "exec", 1)
        I("ds_add_u32", vr(vT6), vr(vT7))
        I("s_mov_b64", "exec", -1)

    def lds_wait(self, off, val, sleep=1):
        I = self.I
        lp = self.L("LW")
        ok = self.L("LWOK")
        I("v_mov_b32", vr(vT6), off)
        self.a.label(lp)
        I("ds_read_b32", vr(vT7), vr(vT6))
        I("s_waitcnt", "lgkmcnt(0)")
        I("v_readfirstlane_b32", sr(sT4), vr(vT7))
        I("s_cmp_ge_u32", sr(sT4), val)
        I("s_cbranch_scc1", ok)
        if sleep: I("s_sleep", sleep)
        I("s_branch", lp)
        self.a.label(ok)

    def invalidate(self):
        I = self.I
        for k in range(4): I("v_mov_b32", vr(8 + k), -1)
        I("v_lshlrev_b32", vr(vT5), 4, vr(vLane))
        I("s_lshl_b32", sr(sT0), sr(sBH), 2); I("s_add_u32", sr(sT0), sr(sT0), sr(sM))
        I("s_lshl_b32", sr(sT1), sr(sT0), 9); I("s_add_u32", sr(sT1), sr(sT1), hex(OPART))
        I("s_lshl_b32", sr(sT2), sr(sT0), 3); I("s_add_u32", sr(sT2), sr(sT2), hex(ML))
        I("s_mov_b32", "exec_lo", -1); I("s_mov_b32", "exec_hi", 0)
        I("buffer_store_dwordx4", vr(8, 4), vr(vT5), sr(rWS, 4), sr(sT1), mods="offen sc1")
        I("s_mov_b64", "exec", 1)
        I("buffer_store_dwordx2", vr(8, 2), vr(vT5), sr(rWS, 4), sr(sT2), mods="offen sc1")
        I("s_or_b32", sr(sT0), sr(sE), sr(sHalf))
        I("s_lshl_b32", sr(sT1), sr(sBH), 6); I("s_add_u32", sr(sT1), sr(sT1), hex(HBUF))
        I("s_cmp_eq_u32", sr(sT0), 0)
        I("s_cselect_b32", sr(sT1), sr(sT1), hex(0x40000000))
        I("s_mov_b64", "exec", 15)
        I("buffer_store_dwordx4", vr(8, 4), vr(vT5), sr(rWS, 4), sr(sT1), mods="offen sc1")
        I("s_mov_b64", "exec", -1)
        I("s_cmp_eq_u32", sr(sE), 0)
        self.csel(sT0, 8192, 6144)
        self.csel(sT1, hex(YPART), hex(UPART))
        I("s_lshl_b32", sr(sT2), sr(sF), 6); I("s_add_u32", sr(sT1), sr(sT1), sr(sT2))
        I("s_cmp_eq_u32", sr(sE), 0); self.csel(sT3, 128, 86)
        I("s_cmp_lt_u32", sr(sF), sr(sT3)); I("s_cselect_b32", sr(sT1), sr(sT1), hex(0x40000000))
        I("v_lshrrev_b32", vr(vT6), 2, vr(vLane))
        I("v_mul_lo_u32", vr(vT6), vr(vT6), sr(sT0))
        I("v_and_b32", vr(vT7), 3, vr(vLane)); I("v_lshlrev_b32", vr(vT7), 4, vr(vT7))
        I("v_add_u32", vr(vT6), vr(vT6), vr(vT7))
        I("s_lshl_b32", sr(sT0), sr(sT0), 4)
        for k in range(4):
            I("buffer_store_dwordx4", vr(8, 4), vr(vT6), sr(rWS, 4), sr(sT1), mods="offen sc1")
            if k < 3: I("s_add_u32", sr(sT1), sr(sT1), sr(sT0))

    def build(self):
        a, I = self.a, self.I
        self.stamp(0)
        if self.dbgtime: I("s_memrealtime", "s[38:39]")
        I("s_load_dwordx16", sr(16, 16), "s[0:1]", 0)
        I("s_load_dwordx4", sr(32, 4), "s[0:1]", 64)
        I("s_load_dwordx2", sr(36, 2), "s[0:1]", 80)
        I("s_cmp_ge_u32", "s2", 256)
        I("s_cbranch_scc1", "L_END")
        I("v_and_b32", vr(vLane), 63, "v0")
        I("v_lshrrev_b32", vr(vT5), 6, "v0")
        I("v_and_b32", vr(vC), 15, "v0")
        I("v_readfirstlane_b32", sr(sW), vr(vT5))
        I("v_bfe_u32", vr(vG), "v0", 4, 2)
        I("s_and_b32", sr(sT0), "s2", 7)
        I("s_lshr_b32", sr(sT1), "s2", 3)
        I("s_and_b32", sr(sE), sr(sT0), 1)
        I("s_lshr_b32", sr(sT0), sr(sT0), 1)
        I("s_and_b32", sr(sHalf), sr(sT1), 1)
        I("s_lshr_b32", sr(sT1), sr(sT1), 1)
        I("s_lshr_b32", sr(sB), sr(sT1), 3)
        I("s_and_b32", sr(sT1), sr(sT1), 7)
        I("s_lshl_b32", sr(sH), sr(sT0), 3); I("s_add_u32", sr(sH), sr(sH), sr(sT1))
        I("s_lshl_b32", sr(sBH), sr(sB), 5); I("s_add_u32", sr(sBH), sr(sBH), sr(sH))
        I("s_lshl_b32", sr(sM), sr(sHalf), 1); I("s_add_u32", sr(sM), sr(sM), sr(sE))
        I("s_lshl_b32", sr(sJ), sr(sB), 2); I("s_add_u32", sr(sJ), sr(sJ), sr(sM))
        I("v_lshlrev_b32", vr(vKV), 4, vr(vLane))
        I("s_lshl_b32", sr(sT0), sr(sW), 15)
        I("v_add_u32", vr(vKV), sr(sT0), vr(vKV))
        I("s_cmp_eq_u32", sr(sE), 0)
        self.csel(sT0, 1024, -1024)
        I("s_mul_i32", sr(sOFF), sr(sE), 31744)
        for i in range(1, 17):
            I("s_add_u32", sr(sOFF + i), sr(sOFF + i - 1), sr(sT0))
        I("s_mov_b32", sr(sN), self.nact)
        I("s_waitcnt", "lgkmcnt(0)")
        I("s_lshl_b32", sr(sT0), sr(sBH), 20); I("s_lshl_b32", sr(sT1), sr(sHalf), 19); I("s_add_u32", sr(sT0), sr(sT0), sr(sT1))
        self.srd(rK, pK, "0x80000", sr(sT0))
        self.srd(rV, pV, "0x80000", sr(sT0))
        self.srd(rWS, pWS, hex(WSSZ))
        self.srd(rX, pX, 2048)
        I("s_lshl_b32", sr(sT0), sr(sH), 8)
        I("s_sub_u32", sr(sT1), hex(512 * 8192), sr(sT0))
        self.srd(rWQ, pWQ, sr(sT1), sr(sT0))
        self.srd(rDBG, pDBG, 256)
        self.srd(rOUT, pOUT, 2048)
        lab_ffn, lab_roledone = self.L("RFFN"), self.L("RDONE")
        I("s_cmp_eq_u32", sr(sE), 0)
        I("s_cbranch_scc0", lab_ffn)
        I("s_lshl_b32", sr(sT0), sr(sB), 1); I("s_add_u32", sr(sT0), sr(sT0), sr(sHalf))
        I("s_lshl_b32", sr(sF), sr(sH), 2); I("s_add_u32", sr(sF), sr(sF), sr(sT0))
        I("s_lshl_b32", sr(sT0), sr(sF), 15)
        self.srd(rWA, pWO, 32768, sr(sT0))
        self.srd(rWB, pWO, 32768, sr(sT0))
        I("s_branch", lab_roledone)
        a.label(lab_ffn)
        I("s_lshl_b32", sr(sF), sr(sBH), 1); I("s_add_u32", sr(sF), sr(sF), sr(sHalf))
        I("s_lshl_b32", sr(sT0), sr(sF), 5)
        I("s_sub_u32", sr(sT1), hex(512 * 2752), sr(sT0))
        I("s_cmp_lt_u32", sr(sF), 86)
        I("s_cselect_b32", sr(sT1), sr(sT1), 0)
        I("s_cselect_b32", sr(sT0), sr(sT0), 0)
        self.srd(rWA, pW1, sr(sT1), sr(sT0))
        I("s_lshl_b32", sr(sT0), sr(sF), 14)
        I("s_cmp_lt_u32", sr(sF), 86)
        I("s_cselect_b32", sr(sT1), 16384, 0)
        I("s_cselect_b32", sr(sT0), sr(sT0), 0)
        self.srd(rWB, pW2, sr(sT1), sr(sT0))
        a.label(lab_roledone)

        I("s_setprio", 3)
        lab_noinv = self.L("NOINV")
        I("s_cmp_eq_u32", sr(sW), 15)
        I("s_cbranch_scc0", lab_noinv)
        self.invalidate()
        a.label(lab_noinv)
        NP = self.npre
        XF, WQ = 8, kslot(17)
        I("s_lshl_b32", sr(sT0), sr(sB), 1); I("s_add_u32", sr(sT0), sr(sT0), sr(sHalf)); I("s_lshl_b32", sr(sT0), sr(sT0), 2)
        I("s_add_u32", sr(sT0), sr(sT0), sr(sW)); I("s_and_b32", sr(sRB), sr(sT0), 15)
        I("v_lshlrev_b32", vr(vT5), 4, vr(vLane))
        I("s_lshl_b32", sr(sT1), sr(sB), 10)
        self.vm("xf", "buffer_load_dwordx4", vr(XF, 4), vr(vT5), sr(rX, 4), sr(sT1), mods="offen")
        I("s_lshl_b32", sr(sT0), sr(sRB), 5)
        I("v_lshl_add_u32", vr(vT6), vr(vG), 1, sr(sT0))
        I("v_lshlrev_b32", vr(vT7), 13, vr(vT6))
        I("v_lshl_add_u32", vr(vT7), vr(vC), 4, vr(vT7))
        kq = 0
        for i in range(8):
            off = (8 * (i >> 1) + (i & 1)) * 8192
            while kq < NP and kq * 8 <= i * NP:
                self.vm(f"K{kq}", "buffer_load_dwordx4", vr(kslot(kq), 4), vr(vKV), sr(rK, 4), sr(sOFF + kq), mods="offen nt")
                kq += 1
            I("s_mov_b32", sr(sT2), off)
            self.vm(f"wq{i}", "buffer_load_dwordx4", vr(WQ + 4 * i, 4), vr(vT7), sr(rWQ, 4), sr(sT2), mods="offen")
            if i == 1:
                I("v_lshlrev_b32", vr(vT5), 2, vr(vLane)); I("v_mov_b32", vr(vT6), 0)
                I("s_mov_b64", "exec", 15)
                I("ds_write_b32", vr(vT5), vr(vT6), mods=f"offset:{L_CNT}")
                I("s_mov_b64", "exec", -1)
                I("s_waitcnt", "lgkmcnt(0)")
                I("s_barrier")
        while kq < NP:
            self.vm(f"K{kq}", "buffer_load_dwordx4", vr(kslot(kq), 4), vr(vKV), sr(rK, 4), sr(sOFF + kq), mods="offen nt")
            kq += 1
        self.stamp(1)
        lab_noat = self.L("NOAT")
        I("s_cmp_eq_u32", sr(sW), 15)
        I("s_cbranch_scc0", lab_noat)
        I("s_waitcnt", f"vmcnt({len(self.issued)})")
        self.stamp(17)
        I("v_mov_b32", vr(vT5), 0); I("v_mov_b32", vr(vT6), 1)
        I("s_lshl_b32", sr(sT0), sr(sH), 2)
        I("s_mov_b64", "exec", 1)
        I("buffer_atomic_add", vr(vT6), vr(vT5), sr(rDBG, 4), sr(sT0), mods="offen sc1")
        I("s_mov_b64", "exec", -1)
        a.label(lab_noat)
        I("s_mov_b32", sr(sT4), "0x3f803f80")
        self.wait_vm("xf")
        A1, A2, T0, T1 = 22, 23, 26, 27
        for k in range(4):
            I("v_dot2_f32_bf16", vr(A1), vr(XF + k), sr(sT4), (0 if k == 0 else vr(A1)))
            I("v_dot2_f32_bf16", vr(A2), vr(XF + k), vr(XF + k), (0 if k == 0 else vr(A2)))
        self.wave_reduce63("v_add_f32", [A1, A2])
        I("v_readlane_b32", sr(sT0), vr(A1), 63); I("v_readlane_b32", sr(sT1), vr(A2), 63)
        M0, R0 = 22, 23
        self.ln_scalars1(sT0, sT1, M0, R0, T0)
        XU = 12
        for k in range(4): self.unpack(XU + 2 * k, XU + 2 * k + 1, XF + k)
        for e in range(8): I("v_sub_f32", vr(XU + e), vr(XU + e), vr(M0))
        for k in range(4): I("v_cvt_pk_bf16_f32", vr(XF + k), vr(XU + 2 * k), vr(XU + 2 * k + 1))
        for k in range(4): self.unpack(XU + 2 * k, XU + 2 * k + 1, XF + k)
        for e in range(8): I("v_mul_f32", vr(XU + e), vr(XU + e), vr(R0))
        for k in range(4): I("v_cvt_pk_bf16_f32", vr(XF + k), vr(XU + 2 * k), vr(XU + 2 * k + 1))
        I("v_lshlrev_b32", vr(vT5), 4, vr(vLane))
        I("s_lshl_b32", sr(sT0), sr(sW), 10)
        I("v_add_u32", vr(vT5), sr(sT0), vr(vT5))
        I("ds_write_b128", vr(vT5), vr(XF, 4), mods=f"offset:{L_XN}")
        I("s_lshl_b32", sr(sT1), sr(sRB), 6); I("s_add_u32", sr(sT0), sr(sT0), sr(sT1))
        I("v_lshlrev_b32", vr(vT5), 2, vr(vG))
        I("v_add_u32", vr(vT5), sr(sT0), vr(vT5))
        I("s_waitcnt", "lgkmcnt(0)")
        for ip in range(4):
            I("ds_read_b32", vr(12 + ip), vr(vT5), mods=f"offset:{L_XN + 16 * ip}")
        P = vACC
        PT = kslot(15)
        I("s_mov_b32", sr(sT2), "0x05040100"); I("s_mov_b32", sr(sT3), "0x07060302")
        I("s_waitcnt", "lgkmcnt(0)")
        for ip in range(4):
            self.wait_vm(f"wq{2 * ip + 1}")
            wa, wb = WQ + 8 * ip, WQ + 8 * ip + 4
            for k in range(4):
                I("v_perm_b32", vr(PT + 2 * k), vr(wb + k), vr(wa + k), sr(sT2))
                I("v_perm_b32", vr(PT + 2 * k + 1), vr(wb + k), vr(wa + k), sr(sT3))
            for e in range(8):
                I("v_dot2_f32_bf16", vr(P + e), vr(PT + e), vr(12 + ip), (0 if ip == 0 else vr(P + e)))
        for i in range(4): I("v_permlane32_swap_b32", vr(P + 2 * i), vr(P + 2 * i + 1))
        for i in range(4): I("v_add_f32", vr(P + 2 * i), vr(P + 2 * i), vr(P + 2 * i + 1))
        for i in range(2): I("v_permlane16_swap_b32", vr(P + 4 * i), vr(P + 4 * i + 2))
        for i in range(2): I("v_add_f32", vr(8 + i), vr(P + 4 * i), vr(P + 4 * i + 2))
        self.perm_g(vT6, vT7)
        I("v_lshl_add_u32", vr(vT5), vr(vC), 3, vr(vT6))
        I("v_lshlrev_b32", vr(vT5), 2, vr(vT5))
        I("s_lshl_b32", sr(sT0), sr(sW), 9)
        I("v_add_u32", vr(vT5), sr(sT0), vr(vT5))
        I("ds_write_b32", vr(vT5), vr(8), mods=f"offset:{L_QP}")
        I("ds_write_b32", vr(vT5), vr(9), mods=f"offset:{L_QP + 16}")
        I("s_waitcnt", "lgkmcnt(0)")
        I("v_mov_b32", vr(vT6), L_QCNT); I("v_mov_b32", vr(vT7), 1)
        I("s_mov_b64", "exec", 1)
        I("ds_add_rtn_u32", vr(vT5), vr(vT6), vr(vT7))
        I("s_mov_b64", "exec", -1)
        I("s_waitcnt", "lgkmcnt(0)")
        I("v_readfirstlane_b32", sr(sT0), vr(vT5))
        self.stamp(2)
        lab_notlast = self.L("NOTLAST")
        I("s_cmp_eq_u32", sr(sT0), 15)
        I("s_cbranch_scc0", lab_notlast)
        I("v_and_b32", vr(vT5), 31, vr(vLane)); I("v_lshlrev_b32", vr(vT5), 4, vr(vT5))
        I("v_lshrrev_b32", vr(vT6), 5, vr(vLane)); I("v_lshlrev_b32", vr(vT6), 12, vr(vT6))
        I("v_add_u32", vr(vT5), vr(vT5), vr(vT6))
        RB = WQ
        for k in range(8):
            I("ds_read_b128", vr(RB + 4 * k, 4), vr(vT5), mods=f"offset:{L_QP + 512 * k}")
        I("s_waitcnt", "lgkmcnt(0)")
        for e in range(4):
            for k in (0, 2, 4, 6): I("v_add_f32", vr(RB + 4 * k + e), vr(RB + 4 * k + e), vr(RB + 4 * k + 4 + e))
        for e in range(4):
            I("v_add_f32", vr(RB + e), vr(RB + e), vr(RB + 8 + e)); I("v_add_f32", vr(RB + 16 + e), vr(RB + 16 + e), vr(RB + 24 + e))
        for e in range(4): I("v_add_f32", vr(RB + e), vr(RB + e), vr(RB + 16 + e))
        for e in range(4): I("v_mov_b32", vr(RB + 4 + e), vr(RB + e))
        for e in range(4): I("v_permlane32_swap_b32", vr(RB + e), vr(RB + 4 + e))
        for e in range(4): I("v_add_f32", vr(RB + e), vr(RB + e), vr(RB + 4 + e))
        I("v_cvt_pk_bf16_f32", vr(RB + 8), vr(RB), vr(RB + 1)); I("v_cvt_pk_bf16_f32", vr(RB + 9), vr(RB + 2), vr(RB + 3))
        I("v_and_b32", vr(vT5), 31, vr(vLane)); I("v_lshlrev_b32", vr(vT5), 3, vr(vT5))
        I("ds_write_b64", vr(vT5), vr(RB + 8, 2), mods=f"offset:{L_QB}")
        I("s_waitcnt", "lgkmcnt(0)")
        self.lds_add(L_FQ)
        a.label(lab_notlast)
        I("s_setprio", 2)
        for i in (15, 16):
            I("s_cmp_gt_u32", sr(sN), i)
            I("s_cselect_b32", sr(sOFF + i), sr(sOFF + i), hex(0x40000000))
        for i in range(NP, 17):
            self.vm(f"K{i}", "buffer_load_dwordx4", vr(kslot(i), 4), vr(vKV), sr(rK, 4), sr(sOFF + i), mods="offen nt")
        I("s_setprio", 1)
        for i in range(8):
            self.vm(f"V{i}", "buffer_load_dwordx4", vr(vslot(i), 4), vr(vKV), sr(rV, 4), sr(sOFF + i), mods="offen nt")
        self.stamp(16)
        self.lds_wait(L_FQ, 1)
        I("s_setprio", 0)
        self.stamp(4)
        I("v_lshlrev_b32", vr(vT5), 4, vr(vC))
        I("ds_read_b128", vr(vQ, 4), vr(vT5), mods=f"offset:{L_QB}")
        I("s_mov_b32", sr(sMask), "0x00010001"); I("s_mov_b32", sr(sMask + 1), "0x00010001")
        I("v_mov_b32", vr(vS), 0)
        I("s_waitcnt", "lgkmcnt(0)")
        groups = [[0, 1, 2, 3], [4, 5, 6, 7], [8, 9, 10, 11], [12, 13, 14], [15, 16]]
        nextv = 8
        for grp in groups:
            self.wait_vm(f"K{grp[-1]}")
            for n, i in enumerate(grp):
                I("v_dot2_f32_bf16", vr(vD + n), vr(kslot(i)), vr(vQ), 0)
            for k in range(1, 4):
                for n, i in enumerate(grp):
                    I("v_dot2_f32_bf16", vr(vD + n), vr(kslot(i) + k), vr(vQ + k), vr(vD + n))
            for i in grp:
                if i <= 8 and nextv <= 16:
                    assert vslot(nextv) == kslot(i)
                    self.vm(f"V{nextv}", "buffer_load_dwordx4", vr(vslot(nextv), 4), vr(vKV), sr(rV, 4), sr(sOFF + nextv), mods="offen nt")
                    nextv += 1
            self.row_reduce("v_add_f32", [vD + n for n in range(len(grp))])
            for n, i in enumerate(grp):
                if i < 16:
                    I("v_cndmask_b32", vr(vS), vr(vS), vr(vD + n), sr(sMask, 2))
                    if i < 15: I("s_lshl_b64", sr(sMask, 2), sr(sMask, 2), 1)
                else:
                    I("v_mov_b32", vr(vS2), vr(vD + n))
            if nextv == 17 and "WA" not in self.issued:
                self.weights_dma()
        assert nextv == 17
        T0, T1 = 18, 19
        I("v_cvt_pk_bf16_f32", vr(T0), vr(vS), vr(vS2))
        self.unpack(vS, vS2, T0)
        I("v_mul_f32", vr(vS), hex(SCALE), vr(vS)); I("v_mul_f32", vr(vS2), hex(SCALE), vr(vS2))
        I("v_cvt_pk_bf16_f32", vr(T0), vr(vS), vr(vS2))
        self.unpack(vS, vS2, T0)
        I("v_mov_b32", vr(T1), "0xff800000")
        I("v_cmp_gt_u32", "vcc", sr(sN), vr(vC))
        I("v_cndmask_b32", vr(vS), vr(T1), vr(vS), "vcc")
        I("s_cmp_gt_u32", sr(sN), 16)
        self.csel(sT0, "0x7f800000", "0xff800000")
        I("v_min_f32", vr(vS2), sr(sT0), vr(vS2))
        I("v_max_f32", vr(T0), vr(vS), vr(vS2))
        self.wave_reduce63("v_max_f32", [T0])
        I("v_readlane_b32", sr(sT0), vr(T0), 63)
        I("v_subrev_f32", vr(vS), sr(sT0), vr(vS)); I("v_subrev_f32", vr(vS2), sr(sT0), vr(vS2))
        I("v_mul_f32", vr(vS), hex(LOG2E), vr(vS)); I("v_mul_f32", vr(vS2), hex(LOG2E), vr(vS2))
        I("v_exp_f32", vr(vS), vr(vS)); I("v_exp_f32", vr(vS2), vr(vS2))
        I("v_mov_b32", vr(T0), vr(vS))
        I("v_fmac_f32", vr(T0), "0x3d800000", vr(vS2))
        self.wave_reduce63("v_add_f32", [T0])
        I("v_mov_b32", vr(T1), vr(T0))
        I("v_mov_b32", vr(T0), sr(sT0))
        I("s_lshl_b32", sr(sT1), sr(sW), 3)
        I("v_mov_b32", vr(vT5), sr(sT1))
        self.exec63()
        I("ds_write_b64", vr(vT5), vr(T0, 2), mods=f"offset:{L_ML}")
        I("s_waitcnt", "lgkmcnt(0)")
        I("v_mov_b32", vr(vT5), L_CNT); I("v_mov_b32", vr(vT6), 1)
        I("ds_add_u32", vr(vT5), vr(vT6))
        I("s_mov_b64", "exec", -1)
        self.stamp(5)
        for e in range(8): I("v_mov_b32", vr(vACC + e), 0)
        for i in range(17):
            self.wait_vm(f"V{i}")
            for k in range(4):
                t = 8 + 2 * (k % 4)
                self.unpack(t, t + 1, vslot(i) + k)
            for k in range(4):
                t = 8 + 2 * (k % 4)
                if i < 16:
                    for hh in range(2):
                        I("v_fmac_f32_dpp", vr(vACC + 2 * k + hh), vr(vS), vr(t + hh), mods=f"row_newbcast:{i} row_mask:0xf bank_mask:0xf")
                else:
                    for hh in range(2):
                        I("v_fmac_f32", vr(vACC + 2 * k + hh), vr(vS2), vr(t + hh))
        self.stamp(6)
        for i in range(4):
            self.swap_add(32, vACC + 2 * i, vACC + 2 * i + 1, vACC + 2 * i)
        for i in range(2):
            self.swap_add(16, vACC + 4 * i, vACC + 4 * i + 2, 8 + i)
        I("v_and_b32", vr(vT6), 1, vr(vG)); I("v_lshlrev_b32", vr(vT6), 1, vr(vT6))
        I("v_lshrrev_b32", vr(vT7), 1, vr(vG)); I("v_or_b32", vr(vT6), vr(vT6), vr(vT7))
        I("v_lshl_add_u32", vr(vT5), vr(vC), 3, vr(vT6))
        I("v_lshlrev_b32", vr(vT5), 2, vr(vT5))
        I("s_lshl_b32", sr(sT0), sr(sW), 9)
        I("v_add_u32", vr(vT5), sr(sT0), vr(vT5))
        I("ds_write_b32", vr(vT5), vr(8), mods=f"offset:{L_OP}")
        I("ds_write_b32", vr(vT5), vr(9), mods=f"offset:{L_OP + 16}")
        lab_w4, lab_join = self.L("W4"), self.L("JOIN")
        I("s_cmp_lt_u32", sr(sW), 4)
        I("s_cbranch_scc0", lab_w4)
        lp, ok = self.L("LC"), self.L("LCOK")
        I("v_mov_b32", vr(vT7), L_CNT)
        a.label(lp)
        I("ds_read_b32", vr(12), vr(vT7))
        I("s_waitcnt", "lgkmcnt(0)")
        I("v_readfirstlane_b32", sr(sT0), vr(12))
        I("s_cmp_ge_u32", sr(sT0), 16)
        I("s_cbranch_scc0", lp)
        I("v_lshrrev_b32", vr(vT7), 3, vr(vLane))
        I("v_lshlrev_b32", vr(13), 4, vr(vT7))
        I("ds_read_b128", vr(12, 4), vr(13), mods=f"offset:{L_ML}")
        I("s_waitcnt", "lgkmcnt(0)")
        I("v_max_f32", vr(16), vr(12), vr(14))
        self.wave_reduce63("v_max_f32", [16])
        I("v_readlane_b32", sr(sT0), vr(16), 63)
        I("v_subrev_f32", vr(12), sr(sT0), vr(12)); I("v_subrev_f32", vr(14), sr(sT0), vr(14))
        I("v_mul_f32", vr(12), hex(LOG2E), vr(12)); I("v_mul_f32", vr(14), hex(LOG2E), vr(14))
        I("v_exp_f32", vr(12), vr(12)); I("v_exp_f32", vr(14), vr(14))
        I("v_mul_f32", vr(16), vr(12), vr(13)); I("v_fmac_f32", vr(16), vr(14), vr(15))
        I("v_mul_f32", vr(16), "0x3e000000", vr(16))
        self.wave_reduce63("v_add_f32", [16])
        lab_noml = self.L("NOML")
        I("s_cmp_eq_u32", sr(sW), 0)
        I("s_cbranch_scc0", lab_noml)
        I("v_mov_b32", vr(17), vr(16))
        I("v_mov_b32", vr(16), sr(sT0))
        self.clamp(16); self.clamp(17)
        I("s_lshl_b32", sr(sT1), sr(sBH), 2); I("s_add_u32", sr(sT1), sr(sT1), sr(sM)); I("s_lshl_b32", sr(sT1), sr(sT1), 3)
        I("s_add_u32", sr(sT1), sr(sT1), hex(ML))
        I("v_mov_b32", vr(vT5), 0)
        self.exec63()
        I("buffer_store_dwordx2", vr(16, 2), vr(vT5), sr(rWS, 4), sr(sT1), mods="offen sc1")
        I("s_mov_b64", "exec", -1)
        a.label(lab_noml)
        self.check_all_counters()
        self.stamp(18)
        I("v_lshrrev_b32", vr(vT7), 3, vr(vLane))
        a.label(lab_w4)
        I("s_waitcnt", "lgkmcnt(0)")
        I("s_barrier")
        self.stamp(7)
        lab_exit_wait = self.L("XW")
        I("s_cmp_lt_u32", sr(sW), 4)
        I("s_cbranch_scc0", lab_exit_wait)
        I("v_and_b32", vr(vT5), 7, vr(vLane)); I("v_lshlrev_b32", vr(vT5), 4, vr(vT5))
        I("v_lshlrev_b32", vr(vT6), 10, vr(vT7))
        I("v_add_u32", vr(vT5), vr(vT5), vr(vT6))
        I("s_lshl_b32", sr(sT0), sr(sW), 7)
        I("v_add_u32", vr(vT5), sr(sT0), vr(vT5))
        I("ds_read_b128", vr(20, 4), vr(vT5), mods=f"offset:{L_OP}")
        I("ds_read_b128", vr(24, 4), vr(vT5), mods=f"offset:{L_OP + 512}")
        I("s_waitcnt", "lgkmcnt(0)")
        for e in range(4):
            I("v_mul_f32", vr(20 + e), vr(20 + e), vr(12))
        for e in range(4):
            I("v_fmac_f32", vr(20 + e), vr(24 + e), vr(14))
        self.swap_add(32, 20, 21, 20); self.swap_add(32, 22, 23, 22)
        self.swap_add(16, 20, 22, 20)
        self.dpp("v_add_f32", 20, 20, 20, "row_ror:8")
        self.clamp(20)
        I("v_and_b32", vr(vT6), 1, vr(vG)); I("v_lshlrev_b32", vr(vT6), 1, vr(vT6))
        I("v_lshrrev_b32", vr(vT5), 1, vr(vG)); I("v_or_b32", vr(vT6), vr(vT6), vr(vT5))
        I("v_and_b32", vr(vT5), 7, vr(vLane))
        I("v_lshl_add_u32", vr(vT5), vr(vT5), 2, vr(vT6))
        I("v_lshlrev_b32", vr(vT5), 2, vr(vT5))
        I("s_lshl_b32", sr(sT1), sr(sBH), 2); I("s_add_u32", sr(sT1), sr(sT1), sr(sM)); I("s_lshl_b32", sr(sT1), sr(sT1), 9)
        I("s_add_u32", sr(sT1), sr(sT1), sr(sT0)); I("s_add_u32", sr(sT1), sr(sT1), hex(OPART))
        I("s_mov_b32", "exec_lo", "0x00ff00ff"); I("s_mov_b32", "exec_hi", "0x00ff00ff")
        I("buffer_store_dword", vr(20), vr(vT5), sr(rWS, 4), sr(sT1), mods="offen sc1")
        I("s_mov_b64", "exec", -1)
        self.stamp(8)
        if self.stop == "attn":
            I("s_branch", "L_FIN")
            a.label(lab_exit_wait)
            I("s_branch", "L_FIN")
            return self.finish()
        self.tail(lab_exit_wait)
        return self.finish()

    def weights_dma(self):
        I = self.I
        l0, l1 = self.L("DW"), self.L("DWJ")
        I("s_cmp_eq_u32", sr(sE), 0)
        I("s_cbranch_scc0", l0)
        I("s_lshl_b32", sr(sT0), sr(sW), 11)
        I("v_lshlrev_b32", vr(vT5), 4, vr(vLane)); I("v_add_u32", vr(vT5), sr(sT0), vr(vT5))
        I("v_add_u32", vr(vT6), 1024, vr(vT5))
        I("s_mul_i32", sr(sM0A), sr(sW), 2 * WROW); I("s_add_u32", sr(sM0A), sr(sM0A), L_WB)
        I("s_add_u32", sr(sM0B), sr(sM0A), WROW)
        I("s_branch", l1)
        self.a.label(l0)
        I("s_lshl_b32", sr(sT0), sr(sW), 5)
        I("v_lshrrev_b32", vr(vT5), 1, vr(vLane)); I("v_add_u32", vr(vT5), sr(sT0), vr(vT5))
        I("s_movk_i32", sr(sT1), 2752)
        I("v_mul_lo_u32", vr(vT5), vr(vT5), sr(sT1))
        I("v_and_b32", vr(vT6), 1, vr(vLane)); I("v_lshlrev_b32", vr(vT6), 4, vr(vT6))
        I("v_add_u32", vr(vT5), vr(vT5), vr(vT6))
        I("s_lshl_b32", sr(sT0), sr(sW), 10)
        I("v_lshlrev_b32", vr(vT6), 4, vr(vLane)); I("v_add_u32", vr(vT6), sr(sT0), vr(vT6))
        I("s_add_u32", sr(sM0A), sr(sT0), L_WB)
        I("s_mul_i32", sr(sM0B), sr(sW), WROW); I("s_add_u32", sr(sM0B), sr(sM0B), L_WB + 16384)
        self.a.label(l1)
        I("s_mov_b32", "m0", sr(sM0A))
        self.vm("WA", "buffer_load_dwordx4", vr(vT5), sr(rWA, 4), 0, mods="offen nt lds")
        I("s_mov_b32", "m0", sr(sM0B))
        self.vm("WB", "buffer_load_dwordx4", vr(vT6), sr(rWB, 4), 0, mods="offen nt lds")

    def tail(self, lab_exit_wait):
        a, I = self.a, self.I
        lab_norole = "L_FIN"
        I("s_waitcnt", "vmcnt(1)")
        I("s_barrier")
        lab_ffn = self.L("FFN")
        I("s_cmp_eq_u32", sr(sE), 0)
        I("s_cbranch_scc0", lab_ffn)
        self.wo_stage()
        a.label(lab_ffn)
        I("s_cmp_lt_u32", sr(sF), 86)
        I("s_cbranch_scc0", "L_FIN")
        self.ffn_stage()
        I("s_branch", "L_FIN")
        a.label(lab_exit_wait)
        I("s_waitcnt", "vmcnt(0)")
        I("s_barrier")
        I("s_branch", "L_FIN")

    def check_all_counters(self):
        a, I = self.a, self.I
        lp, ok = self.L("CA"), self.L("CAOK")
        I("s_mov_b32", sr(sSpin), SPIN_MAX)
        I("v_and_b32", vr(vT5), 31, vr(vLane)); I("v_lshlrev_b32", vr(vT5), 2, vr(vT5))
        a.label(lp)
        I("buffer_load_dword", vr(vT6), vr(vT5), sr(rDBG, 4), 0, mods="offen sc1")
        I("s_waitcnt", "vmcnt(0)")
        I("v_cmp_gt_u32", "vcc", 8, vr(vT6))
        I("s_cbranch_vccz", ok)
        self.spin_guard(lp, ok)
        a.label(ok)

    def wo_stage(self):
        a, I = self.a, self.I
        vI4, vI2 = 8, 9
        BW = 64
        I("v_lshrrev_b32", vr(vI4), 2, vr(vC)); I("v_and_b32", vr(vI2), 3, vr(vC))
        I("v_lshl_add_u32", vr(vT5), vr(vG), 3, vr(vI4))
        I("s_movk_i32", sr(sT0), WROW)
        I("v_mul_lo_u32", vr(vT5), vr(vT5), sr(sT0))
        I("v_lshl_add_u32", vr(vT5), vr(vI2), 3, vr(vT5))
        I("s_lshl_b32", sr(sT0), sr(sW), 8)
        I("v_add_u32", vr(vT5), sr(sT0), vr(vT5))
        for tt in range(8):
            I("ds_read_b64_tr_b16", vr(BW + 4 * tt, 2), vr(vT5), mods=f"offset:{L_WB + 32 * tt}")
            I("ds_read_b64_tr_b16", vr(BW + 4 * tt + 2, 2), vr(vT5), mods=f"offset:{L_WB + 4 * WROW + 32 * tt}")
        vBS, vMS = 10, 11
        I("v_bfe_u32", vr(vBS), vr(vC), 2, 1); I("v_and_b32", vr(vMS), 3, vr(vC))
        I("v_lshlrev_b32", vr(vT6), 10, vr(vBS))
        I("s_lshl_b32", sr(sT0), sr(sH), 5); I("s_add_u32", sr(sT0), sr(sT0), hex(ML))
        I("v_lshl_add_u32", vr(vT5), vr(vMS), 3, vr(vT6))
        def loads_ml():
            I("buffer_load_dwordx4", vr(12, 4), vr(vT6), sr(rWS, 4), sr(sT0), mods="offen sc1")
            I("buffer_load_dwordx4", vr(16, 4), vr(vT6), sr(rWS, 4), sr(sT0), mods="offen offset:16 sc1")
            I("buffer_load_dwordx2", vr(20, 2), vr(vT5), sr(rWS, 4), sr(sT0), mods="offen sc1")
        self.poll(loads_ml, range(12, 22))
        I("v_max3_f32", vr(22), vr(12), vr(14), vr(16)); I("v_max_f32", vr(22), vr(22), vr(18))
        for r in (12, 14, 16, 18, 20):
            I("v_sub_f32", vr(r), vr(r), vr(22)); I("v_mul_f32", vr(r), hex(LOG2E), vr(r))
        for r in (12, 14, 16, 18, 20):
            I("v_exp_f32", vr(r), vr(r))
        I("v_mul_f32", vr(23), vr(12), vr(13))
        I("v_fmac_f32", vr(23), vr(14), vr(15)); I("v_fmac_f32", vr(23), vr(16), vr(17)); I("v_fmac_f32", vr(23), vr(18), vr(19))
        I("v_rcp_f32", vr(23), vr(23))
        I("v_mul_f32", vr(23), vr(23), vr(20))
        self.stamp(9)
        I("v_lshlrev_b32", vr(vT6), 16, vr(vBS))
        I("v_lshl_add_u32", vr(vT6), vr(vMS), 9, vr(vT6))
        I("v_lshl_add_u32", vr(vT6), vr(vG), 5, vr(vT6))
        I("s_lshl_b32", sr(sT0), sr(sH), 11)
        I("s_and_b32", sr(sT1), sr(sF), 3); I("s_lshl_b32", sr(sT1), sr(sT1), 7)
        I("s_add_u32", sr(sT0), sr(sT0), sr(sT1)); I("s_add_u32", sr(sT0), sr(sT0), hex(OPART))
        def loads_o():
            I("buffer_load_dwordx4", vr(12, 4), vr(vT6), sr(rWS, 4), sr(sT0), mods="offen sc1")
            I("buffer_load_dwordx4", vr(16, 4), vr(vT6), sr(rWS, 4), sr(sT0), mods="offen offset:16 sc1")
        I("s_waitcnt", "lgkmcnt(0)")
        self.poll(loads_o, range(12, 20))
        self.stamp(10)
        for e in range(8): I("v_mul_f32", vr(12 + e), vr(12 + e), vr(23))
        for e in range(8): self.dpp("v_add_f32", 12 + e, 12 + e, 12 + e, "quad_perm:[1,0,3,2]")
        for e in range(8): self.dpp("v_add_f32", 12 + e, 12 + e, 12 + e, "quad_perm:[2,3,0,1]")
        for k in range(4): I("v_cvt_pk_bf16_f32", vr(24 + k), vr(12 + 2 * k), vr(13 + 2 * k))
        DD = 32
        for tt in range(8):
            I("v_mfma_f32_16x16x32_bf16", vr(DD + 4 * tt, 4), vr(24, 4), vr(BW + 4 * tt, 4), 0)
        I("v_and_b32", vr(vT5), 1, vr(vG)); I("v_lshlrev_b32", vr(vT5), 18, vr(vT5))
        I("v_lshrrev_b32", vr(vT6), 1, vr(vG)); I("v_lshlrev_b32", vr(vT6), 13, vr(vT6))
        I("v_add_u32", vr(vT5), vr(vT5), vr(vT6))
        I("v_lshl_add_u32", vr(vT5), vr(vC), 2, vr(vT5))
        I("s_lshl_b32", sr(sT0), sr(sW), 16)
        I("s_lshl_b32", sr(sT1), sr(sF), 6); I("s_add_u32", sr(sT0), sr(sT0), sr(sT1)); I("s_add_u32", sr(sT0), sr(sT0), hex(YPART))
        I("s_mov_b32", sr(sMask), 0); I("s_mov_b32", sr(sMask + 1), -1)
        for tt in range(0, 8, 2):
            I("v_cndmask_b32", vr(12 + tt), vr(DD + 4 * tt), vr(DD + 4 * tt + 4), sr(sMask, 2))
            self.clamp(12 + tt)
            I("buffer_store_dword", vr(12 + tt), vr(vT5), sr(rWS, 4), sr(sT0), mods="offen sc1")
            if tt < 6: I("s_add_u32", sr(sT0), sr(sT0), 16384)
        self.stamp(11)
        if self.stop == "y":
            I("s_branch", "L_FIN"); return
        I("s_or_b32", sr(sT0), sr(sHalf), sr(sW))
        I("s_cmp_eq_u32", sr(sT0), 0)
        I("s_cbranch_scc0", "L_FIN")
        self.reducer()
        I("s_branch", "L_FIN")

    def reduce16(self, r0, out):
        self.swap_add(32, r0, r0 + 1, r0); self.swap_add(32, r0 + 2, r0 + 3, r0 + 2)
        self.swap_add(16, r0, r0 + 2, out)
        self.dpp("v_add_f32", out, out, out, "row_ror:8")
        self.dpp("v_add_f32", out, out, out, "row_ror:4")

    def reducer(self):
        a, I = self.a, self.I
        vCol = 8
        I("v_and_b32", vr(vT6), 1, vr(vG)); I("v_lshlrev_b32", vr(vT6), 1, vr(vT6))
        I("v_lshrrev_b32", vr(vT7), 1, vr(vG)); I("v_or_b32", vr(vT6), vr(vT6), vr(vT7))
        I("v_and_b32", vr(vCol), 3, vr(vLane))
        I("v_lshl_add_u32", vr(vCol), vr(vCol), 2, vr(vT6))
        I("s_lshl_b32", sr(sT0), sr(sBH), 5)
        I("v_lshlrev_b32", vr(vT6), 1, vr(vCol))
        I("buffer_load_ushort", vr(9), vr(vT6), sr(rX, 4), sr(sT0), mods="offen")
        I("v_lshlrev_b32", vr(vT5), 4, vr(vLane))
        I("s_lshl_b32", sr(sT0), sr(sBH), 13); I("s_add_u32", sr(sT0), sr(sT0), hex(YPART))
        I("s_add_u32", sr(sT1), sr(sT0), 4096)
        def loads():
            for k in range(8):
                I("buffer_load_dwordx4", vr(32 + 4 * k, 4), vr(vT5), sr(rWS, 4), sr(sT0 if k < 4 else sT1), mods=f"offen offset:{(k % 4) * 1024} sc1")
        self.poll(loads, range(32, 64))
        self.stamp(12)
        for e in range(4):
            for k in (0, 2, 4, 6):
                I("v_add_f32", vr(32 + 4 * k + e), vr(32 + 4 * k + e), vr(36 + 4 * k + e))
            I("v_add_f32", vr(32 + e), vr(32 + e), vr(40 + e)); I("v_add_f32", vr(48 + e), vr(48 + e), vr(56 + e))
            I("v_add_f32", vr(32 + e), vr(32 + e), vr(48 + e))
        self.reduce16(32, 10)
        I("v_cvt_pk_bf16_f32", vr(10), vr(10), vr(10))
        I("v_lshlrev_b32", vr(10), 16, vr(10))
        I("v_lshlrev_b32", vr(9), 16, vr(9))
        I("v_add_f32", vr(10), vr(10), vr(9))
        I("v_cvt_pk_bf16_f32", vr(10), vr(10), vr(10))
        I("v_lshlrev_b32", vr(10), 16, vr(10))
        I("v_mov_b32", vr(11), vr(10))
        self.clamp(11)
        I("v_lshlrev_b32", vr(vT6), 2, vr(vCol))
        I("s_lshl_b32", sr(sT0), sr(sBH), 6); I("s_add_u32", sr(sT0), sr(sT0), hex(HBUF))
        I("s_mov_b32", "exec_lo", "0x000f000f"); I("s_mov_b32", "exec_hi", "0x000f000f")
        I("buffer_store_dword", vr(11), vr(vT6), sr(rWS, 4), sr(sT0), mods="offen sc1")
        I("s_mov_b64", "exec", -1)
        self.stamp(13)
        if self.stop == "h":
            return
        I("s_mul_i32", sr(sT0), sr(sBH), 6144); I("s_add_u32", sr(sT0), sr(sT0), hex(UPART))
        I("s_add_u32", sr(rWA), sr(pWS), sr(sT0)); I("s_addc_u32", sr(rWA + 1), sr(pWS + 1), 0)
        I("s_mov_b32", sr(rWA + 2), 86 * 64); I("s_mov_b32", sr(rWA + 3), "0x20000")
        I("s_movk_i32", sr(sT1), 4096)
        def loads3():
            for k in range(6):
                I("buffer_load_dwordx4", vr(32 + 4 * k, 4), vr(vT5), sr(rWA, 4), (0 if k < 4 else sr(sT1)), mods=f"offen offset:{(k % 4) * 1024} sc1")
        self.poll(loads3, range(32, 56))
        self.stamp(14)
        for e in range(4):
            for k in (0, 2, 4):
                I("v_add_f32", vr(32 + 4 * k + e), vr(32 + 4 * k + e), vr(36 + 4 * k + e))
            I("v_add_f32", vr(32 + e), vr(32 + e), vr(40 + e)); I("v_add_f32", vr(32 + e), vr(32 + e), vr(48 + e))
        self.reduce16(32, 12)
        I("v_cvt_pk_bf16_f32", vr(12), vr(12), vr(12))
        I("v_lshlrev_b32", vr(12), 16, vr(12))
        I("v_add_f32", vr(12), vr(12), vr(10))
        I("v_cvt_pk_bf16_f32", vr(12), vr(12), vr(12))
        I("v_lshlrev_b32", vr(vT6), 1, vr(vCol))
        I("s_lshl_b32", sr(sT0), sr(sBH), 5)
        I("s_mov_b32", "exec_lo", "0x000f000f"); I("s_mov_b32", "exec_hi", "0x000f000f")
        I("buffer_store_short", vr(12), vr(vT6), sr(rOUT, 4), sr(sT0), mods="offen")
        I("s_mov_b64", "exec", -1)
        if self.dbgtime:
            I("s_memrealtime", "s[12:13]")
            I("s_waitcnt", "lgkmcnt(0)")
            I("s_sub_u32", sr(sT1), sr(sT1), "s38")
            I("v_mov_b32", vr(12), sr(sT1))
            I("v_mov_b32", vr(vT6), 0)
            I("s_lshl_b32", sr(sT0), sr(sBH), 2)
            I("s_mov_b64", "exec", 1)
            I("buffer_store_dword", vr(12), vr(vT6), sr(rDBG, 4), sr(sT0), mods="offen")
            I("s_mov_b64", "exec", -1)
        self.stamp(15)

    def ffn_stage(self):
        a, I = self.a, self.I
        if self.stop in ("y", "h"):
            return
        vI4, vI2 = 8, 9
        B1, B2 = 64, 80
        I("v_lshrrev_b32", vr(vI4), 2, vr(vC)); I("v_and_b32", vr(vI2), 3, vr(vC))
        I("v_lshl_add_u32", vr(vT5), vr(vG), 3, vr(vI4)); I("v_lshlrev_b32", vr(vT5), 5, vr(vT5))
        I("v_lshl_add_u32", vr(vT5), vr(vI2), 3, vr(vT5))
        I("s_lshl_b32", sr(sT0), sr(sW), 12)
        I("v_add_u32", vr(vT5), sr(sT0), vr(vT5))
        for ks in range(4):
            I("ds_read_b64_tr_b16", vr(B1 + 4 * ks, 2), vr(vT5), mods=f"offset:{L_WB + ks * 1024}")
            I("ds_read_b64_tr_b16", vr(B1 + 4 * ks + 2, 2), vr(vT5), mods=f"offset:{L_WB + ks * 1024 + 128}")
        I("v_lshl_add_u32", vr(vT6), vr(vG), 2, vr(vI4))
        I("s_movk_i32", sr(sT0), WROW)
        I("v_mul_lo_u32", vr(vT6), vr(vT6), sr(sT0))
        I("v_lshl_add_u32", vr(vT6), vr(vI2), 3, vr(vT6))
        I("s_lshl_b32", sr(sT0), sr(sW), 8)
        I("v_add_u32", vr(vT6), sr(sT0), vr(vT6))
        for tt in range(8):
            I("ds_read_b64_tr_b16", vr(B2 + 2 * tt, 2), vr(vT6), mods=f"offset:{L_WB + 16384 + 32 * tt}")
        H0, H1 = 12, 20
        I("v_lshlrev_b32", vr(vT5), 5, vr(vLane))
        I("s_mov_b32", sr(sT0), hex(HBUF))
        def loads():
            I("buffer_load_dwordx4", vr(H0, 4), vr(vT5), sr(rWS, 4), sr(sT0), mods="offen sc1")
            I("buffer_load_dwordx4", vr(H0 + 4, 4), vr(vT5), sr(rWS, 4), sr(sT0), mods="offen offset:16 sc1")
            I("buffer_load_dwordx4", vr(H1, 4), vr(vT5), sr(rWS, 4), sr(sT0), mods="offen offset:2048 sc1")
            I("buffer_load_dwordx4", vr(H1 + 4, 4), vr(vT5), sr(rWS, 4), sr(sT0), mods="offen offset:2064 sc1")
        I("s_waitcnt", "lgkmcnt(0)")
        self.poll(loads, range(12, 28))
        self.stamp(9)
        A1, A2, B1s, B2s = 28, 29, 30, 31
        for (src, s1, s2) in ((H0, A1, A2), (H1, B1s, B2s)):
            I("v_add_f32", vr(s1), vr(src), vr(src + 1))
            I("v_mul_f32", vr(s2), vr(src), vr(src))
            I("v_fmac_f32", vr(s2), vr(src + 1), vr(src + 1))
            for e in range(2, 8):
                I("v_add_f32", vr(s1), vr(s1), vr(src + e))
                I("v_fmac_f32", vr(s2), vr(src + e), vr(src + e))
        self.wave_reduce63("v_add_f32", [A1, A2, B1s, B2s])
        for (r, s) in ((A1, sT0), (A2, sT1), (B1s, sT2), (B2s, sT3)):
            I("v_readlane_b32", sr(s), vr(r), 63)
        M0, M1, R0, R1, T0, T1 = 28, 29, 30, 31, 32, 33
        self.ln_scalars(sT0, sT1, sT2, sT3, M0, M1, R0, R1, T0, T1, None)
        for (src, m, r) in ((H0, M0, R0), (H1, M1, R1)):
            for e in range(8):
                I("v_sub_f32", vr(src + e), vr(src + e), vr(m))
            for e in range(8):
                I("v_mul_f32", vr(src + e), vr(src + e), vr(r))
        for k in range(4):
            I("v_cvt_pk_bf16_f32", vr(36 + k), vr(H0 + 2 * k), vr(H0 + 2 * k + 1))
            I("v_cvt_pk_bf16_f32", vr(40 + k), vr(H1 + 2 * k), vr(H1 + 2 * k + 1))
        I("v_lshlrev_b32", vr(vT5), 4, vr(vLane))
        I("s_lshl_b32", sr(sT0), sr(sW), 11)
        I("v_add_u32", vr(vT5), sr(sT0), vr(vT5))
        I("ds_write_b128", vr(vT5), vr(36, 4), mods=f"offset:{L_HN}")
        I("ds_write_b128", vr(vT5), vr(40, 4), mods=f"offset:{L_HN + 1024}")
        I("v_bfe_u32", vr(vT6), vr(vC), 2, 1)
        I("v_lshlrev_b32", vr(vT6), 10, vr(vT6))
        I("v_lshl_add_u32", vr(vT6), vr(vG), 4, vr(vT6))
        I("s_mul_i32", sr(sT0), sr(sW), 2048 + 256)
        I("v_add_u32", vr(vT6), sr(sT0), vr(vT6))
        I("s_waitcnt", "lgkmcnt(0)")
        for ks in range(4):
            I("ds_read_b128", vr(44 + 4 * ks, 4), vr(vT6), mods=f"offset:{L_HN + ks * 64}")
        I("s_waitcnt", "lgkmcnt(0)")
        for ks in range(4):
            I("v_mfma_f32_16x16x32_bf16", vr(32, 4), vr(44 + 4 * ks, 4), vr(B1 + 4 * ks, 4), (0 if ks == 0 else vr(32, 4)))
        I("v_and_b32", vr(vT5), 1, vr(vG)); I("v_lshlrev_b32", vr(vT5), 6, vr(vT5))
        I("v_lshl_add_u32", vr(vT5), vr(vC), 2, vr(vT5))
        I("s_lshl_b32", sr(sT0), sr(sW), 7)
        I("v_add_u32", vr(vT5), sr(sT0), vr(vT5))
        I("ds_write_b32", vr(vT5), vr(32), mods=f"offset:{L_UP}")
        I("s_waitcnt", "lgkmcnt(0)")
        I("s_barrier")
        I("v_bfe_u32", vr(vT6), vr(vC), 2, 1)
        I("v_lshlrev_b32", vr(vT6), 6, vr(vT6))
        I("v_lshl_add_u32", vr(vT6), vr(vG), 4, vr(vT6))
        for w in range(4):
            I("ds_read_b128", vr(12 + 4 * w, 4), vr(vT6), mods=f"offset:{L_UP + w * 128}")
        I("s_waitcnt", "lgkmcnt(0)")
        for e in range(4):
            I("v_add_f32", vr(12 + e), vr(12 + e), vr(16 + e)); I("v_add_f32", vr(20 + e), vr(20 + e), vr(24 + e))
        for e in range(4):
            I("v_add_f32", vr(12 + e), vr(12 + e), vr(20 + e))
        I("v_cvt_pk_bf16_f32", vr(16), vr(12), vr(13)); I("v_cvt_pk_bf16_f32", vr(17), vr(14), vr(15))
        self.unpack(12, 13, 16); self.unpack(14, 15, 17)
        for e in range(4): I("v_mul_f32", vr(16 + e), "0xbfb8aa3b", vr(12 + e))
        for e in range(4): I("v_exp_f32", vr(16 + e), vr(16 + e))
        for e in range(4): I("v_add_f32", vr(16 + e), 1.0, vr(16 + e))
        for e in range(4): I("v_rcp_f32", vr(16 + e), vr(16 + e))
        for e in range(4): I("v_mul_f32", vr(12 + e), vr(12 + e), vr(16 + e))
        I("v_cvt_pk_bf16_f32", vr(20), vr(12), vr(13)); I("v_cvt_pk_bf16_f32", vr(21), vr(14), vr(15))
        self.stamp(10)
        DD = 32
        for tt in range(8):
            I("v_mfma_f32_16x16x16_bf16", vr(DD + 4 * tt, 4), vr(20, 2), vr(B2 + 2 * tt, 2), 0)
        I("v_and_b32", vr(vT5), 1, vr(vG)); I("s_mov_b32", sr(sT0), 32 * 6144); I("v_mul_lo_u32", vr(vT5), vr(vT5), sr(sT0))
        I("v_lshrrev_b32", vr(vT6), 1, vr(vG)); I("s_movk_i32", sr(sT0), 6144); I("v_mul_lo_u32", vr(vT6), vr(vT6), sr(sT0))
        I("v_add_u32", vr(vT5), vr(vT5), vr(vT6))
        I("v_lshl_add_u32", vr(vT5), vr(vC), 2, vr(vT5))
        I("s_mul_i32", sr(sT0), sr(sW), 8 * 6144)
        I("s_lshl_b32", sr(sT1), sr(sF), 6); I("s_add_u32", sr(sT0), sr(sT0), sr(sT1)); I("s_add_u32", sr(sT0), sr(sT0), hex(UPART))
        I("s_mov_b32", sr(sMask), 0); I("s_mov_b32", sr(sMask + 1), -1)
        for tt in range(0, 8, 2):
            I("v_cndmask_b32", vr(12 + tt), vr(DD + 4 * tt), vr(DD + 4 * tt + 4), sr(sMask, 2))
            self.clamp(12 + tt)
            I("buffer_store_dword", vr(12 + tt), vr(vT5), sr(rWS, 4), sr(sT0), mods="offen sc1")
            if tt < 6: I("s_add_u32", sr(sT0), sr(sT0), 2 * 6144)
        self.stamp(11)

    def finish(self):
        a, I = self.a, self.I
        a.label("L_FIN")
        if self.stamps:
            self.stamp(20)
            I("s_mov_b64", "exec", -1)
            I("s_lshl_b32", sr(sT0), "s2", 4); I("s_add_u32", sr(sT0), sr(sT0), sr(sW)); I("s_lshl_b32", sr(sT0), sr(sT0), 8)
            I("s_add_u32", sr(sT0), sr(sT0), hex(STAMP))
            I("v_lshlrev_b32", vr(vT5), 2, vr(vLane))
            I("buffer_store_dword", "v0", vr(vT5), sr(rWS, 4), sr(sT0), mods="offen")
        a.label("L_END")
        return self.wrap()

    def wrap(self):
        body = self.a.text()
        hdr = open("sequential_preLN__mha_block_cached__dense_activation_silu__decode.s.ref").read().split("\n")
        top = [l for l in hdr if l.startswith(";") and "@launch" not in l and "Override" not in l and "grid=ceil" not in l]
        top = top[:12]
        out = "\n".join(top) + "\n"
        out += f"; @launch grid=(256,1,1) block=(1024,1,1) lds={LDS_SIZE}\n"
        out += f""".amdgcn_target "amdgcn-amd-amdhsa--gfx950"
.text
.globl {KN}
.p2align 8
.type {KN},@function
{KN}:
{body}  s_endpgm
.section .rodata,"a"
.p2align 6
.amdhsa_kernel {KN}
  .amdhsa_next_free_vgpr 128
  .amdhsa_next_free_sgpr 102
  .amdhsa_accum_offset 128
  .amdhsa_group_segment_fixed_size 0
  .amdhsa_kernarg_size 88
  .amdhsa_user_sgpr_count 2
  .amdhsa_user_sgpr_kernarg_segment_ptr 1
  .amdhsa_system_sgpr_workgroup_id_x 1
.end_amdhsa_kernel
"""
        return out

if __name__ == "__main__":
    kw = {}
    for x in sys.argv[2:]:
        k, v = x.split("=")
        kw[k] = int(v) if v.lstrip("-").isdigit() else v
    g = Gen(**kw)
    open(sys.argv[1], "w").write(g.build())
    print("nops inserted:", g.a.nops, "lines", len(g.a.lines))
```

```python
import sys
from asmlib import Asm, vr, sr

KN = "sequential_preLN__mha_block_cached__dense_activation_silu__decode_kernel"

ML    = 0x040000
OPART = 0x050000
YPART = 0x080000
HBUF  = 0x100000
UPART = 0x110000
USTR  = 48 * 64
NF    = 43
STAMP = 0x200000
WSSZ  = 0x400000
L_QP = 0
L_OP = 0
L_QB = 8192
L_ML = 8192 + 256
L_CNT = 8192 + 256 + 128
L_QCNT = L_CNT + 4
L_FQ = L_CNT + 8
L_UP = 8192 + 512
L_ACT = 8192 + 512 + 1024
L_HN = 8192 + 2048 + 1024
L_WB = 20480
L_W2 = L_WB + 32768
L_XN = L_WB
WROW = 1056
LDS_SIZE = L_WB + 64 * WROW + 256

LOG2E = 0x3FB8AA3B
SCALE = 0x3DB504F3
SPIN_MAX = 400000
OOB = 0x40000000

sW, sE, sHalf, sBH, sB, sH, sM = 3, 4, 5, 6, 7, 8, 9
sDry = 10
sT0, sT1, sT2, sT3, sT4 = 11, 12, 13, 14, 15
pX, pK, pV, pWQ, pWO, pBX, pW1, pW2, pOUT, pDBG, pWS = 16, 18, 20, 22, 24, 26, 28, 30, 32, 34, 36
sRB = 26
sRole = 27
sHW = 101
rK, rV, rWS, rX, rWQ, rWA, rWB, rOUT, rDBG = 40, 44, 48, 52, 56, 60, 64, 68, 72
sOFF = 76
sN = 93
sSpin = 94
sF = 95
sMask = 96
sU0, sU1, sU2, sU3 = 98, 99, 100, 101
sStamp0 = 38
vLane, vC, vG, vKV = 1, 2, 3, 4
vT5, vT6, vT7 = 5, 6, 7
vQ = 8
vD = 12
vS, vS2 = 16, 17
vACC = 20
DATA0 = 28
def kslot(i): return DATA0 + 4 * i
def vslot(i):
    if i < 8: return DATA0 + 4 * (17 + i)
    return DATA0 + 4 * (i - 8)

class Gen:
    def __init__(self, stamps=0, stop=None, skew=1, npre=2, dbgtime=0, nowq=0, prios="3210", nodma=0, noinv=0,
                 dry=0, pipe=0, wqflag="", late_wo=0, earlybar=1, npre2=15, hshift=8):
        self.a = Asm()
        self.stamps, self.stop, self.skew, self.npre, self.dbgtime = stamps, stop, skew, npre, dbgtime
        self.nowq, self.nodma, self.noinv, self.dry, self.pipe = nowq, nodma, noinv, dry, pipe
        self.prios = [int(c) for c in str(prios).zfill(4)]
        self.wqflag = wqflag
        self.late_wo = late_wo
        self.earlybar = earlybar
        self.npre2 = npre2
        self.hshift = hshift
        self.issued = []
        self.lab = 0
        self.wo_done = False

    def L(self, p="L"):
        self.lab += 1
        return f"{p}_{self.lab}"
    def I(self, *a, **k): self.a.I(*a, **k)

    def stamp(self, k):
        if not self.stamps: return
        if k == 0:
            self.I("s_memrealtime", sr(sStamp0, 2)); return
        if k == 1:
            self.I("s_waitcnt", "lgkmcnt(0)")
            self.I("v_mov_b32", "v0", 0)
            self.I("v_writelane_b32", "v0", sr(sStamp0), 0)
        self.I("s_memrealtime", sr(sStamp0, 2))
        self.I("s_waitcnt", "lgkmcnt(0)")
        self.I("v_writelane_b32", "v0", sr(sStamp0), k)

    def csel(self, dst, x, y):
        self.I("s_mov_b32", sr(dst), x)
        self.I("s_cselect_b32", sr(dst), sr(dst), y)
    def exec63(self):
        self.I("s_mov_b32", "exec_lo", 0); self.I("s_mov_b32", "exec_hi", "0x80000000")
    def execm(self, lo, hi):
        self.I("s_mov_b32", "exec_lo", lo); self.I("s_mov_b32", "exec_hi", hi)
    def execall(self): self.I("s_mov_b64", "exec", -1)

    def srd(self, r, plo, size, addoff=None):
        I = self.I
        if addoff is None:
            I("s_mov_b32", sr(r), sr(plo)); I("s_mov_b32", sr(r + 1), sr(plo + 1))
        else:
            I("s_add_u32", sr(r), sr(plo), addoff); I("s_addc_u32", sr(r + 1), sr(plo + 1), 0)
        I("s_mov_b32", sr(r + 2), size); I("s_mov_b32", sr(r + 3), "0x20000")

    def vm(self, tag, op, *ops, mods=""):
        self.I(op, *ops, mods=mods)
        self.issued.append(tag)
    def wait_vm(self, tag):
        idx = self.issued.index(tag)
        n = len(self.issued) - 1 - idx
        self.I("s_waitcnt", f"vmcnt({min(n, 63)})")

    def dpp(self, op, d, s0, s1, ctrl, rm="0xf"):
        self.I(op + "_dpp", vr(d), vr(s0), vr(s1), mods=f"{ctrl} row_mask:{rm} bank_mask:0xf")
    def row_reduce(self, op, regs):
        for sh in (8, 4, 2, 1):
            for r in regs: self.dpp(op, r, r, r, f"row_ror:{sh}")
    def wave_reduce63(self, op, regs):
        self.row_reduce(op, regs)
        for r in regs: self.dpp(op, r, r, r, "row_bcast:15", "0xa")
        for r in regs: self.dpp(op, r, r, r, "row_bcast:31", "0xc")
    def swap_add(self, which, a, b, d, op="v_add_f32"):
        self.I(f"v_permlane{which}_swap_b32", vr(a), vr(b))
        self.I(op, vr(d), vr(a), vr(b))
    def unpack(self, lo, hi, src):
        self.I("v_lshlrev_b32", vr(lo), 16, vr(src))
        self.I("v_and_b32", vr(hi), "0xffff0000", vr(src))
    def clamp(self, r): self.I("v_min_u32", vr(r), -2, vr(r))
    def perm_g(self, d, t):
        I = self.I
        I("v_and_b32", vr(d), 1, vr(vG)); I("v_lshlrev_b32", vr(d), 1, vr(d))
        I("v_lshrrev_b32", vr(t), 1, vr(vG)); I("v_or_b32", vr(d), vr(d), vr(t))

    def check_regs(self, regs, t):
        I = self.I
        rs = list(regs)
        if len(rs) == 1:
            I("v_cmp_eq_u32", "vcc", -1, vr(rs[0])); return
        first = True
        while rs:
            if first:
                if len(rs) >= 3:
                    I("v_max3_u32", vr(t), vr(rs[0]), vr(rs[1]), vr(rs[2])); rs = rs[3:]
                else:
                    I("v_max_u32", vr(t), vr(rs[0]), vr(rs[1])); rs = rs[2:]
                first = False
            elif len(rs) >= 2:
                I("v_max3_u32", vr(t), vr(t), vr(rs[0]), vr(rs[1])); rs = rs[2:]
            else:
                I("v_max_u32", vr(t), vr(t), vr(rs[0])); rs = rs[1:]
        I("v_cmp_eq_u32", "vcc", -1, vr(t))

    def poll(self, loads, nloads, regs, t=vT7):
        I = self.I
        lp, ok = self.L("POLL"), self.L("POK")
        I("s_mov_b32", sr(sSpin), SPIN_MAX)
        if self.pipe: loads()
        self.a.label(lp)
        loads()
        I("s_waitcnt", f"vmcnt({nloads if self.pipe else 0})")
        self.check_regs(regs, t)
        I("s_cbranch_vccz", ok)
        I("s_sub_u32", sr(sSpin), sr(sSpin), 1)
        I("s_cbranch_scc0", lp)
        self.a.label(ok)

    def ln_scalars(self, s10, s20, s11, s21, vm0, vm1, vr0, vr1, t0, t1):
        I = self.I
        inv = "0x3b000000"
        I("v_mov_b32", vr(vm0), sr(s10)); I("v_mov_b32", vr(vm1), sr(s11))
        I("v_mov_b32", vr(vr0), sr(s20)); I("v_mov_b32", vr(vr1), sr(s21))
        for r in (vm0, vm1, vr0, vr1): I("v_mul_f32", vr(r), inv, vr(r))
        I("v_fma_f32", vr(vr0), f"-{vr(vm0)}", vr(vm0), vr(vr0))
        I("v_fma_f32", vr(vr1), f"-{vr(vm1)}", vr(vm1), vr(vr1))
        I("v_max_f32", vr(vr0), 0, vr(vr0)); I("v_max_f32", vr(vr1), 0, vr(vr1))
        I("v_cvt_pk_bf16_f32", vr(t0), vr(vm0), vr(vm1))
        I("v_cvt_pk_bf16_f32", vr(t1), vr(vr0), vr(vr1))
        self.unpack(vm0, vm1, t0)
        self.unpack(vr0, vr1, t1)
        I("v_add_f32", vr(vr0), "0x3727c5ac", vr(vr0)); I("v_add_f32", vr(vr1), "0x3727c5ac", vr(vr1))
        I("v_cvt_pk_bf16_f32", vr(t1), vr(vr0), vr(vr1))
        self.unpack(vr0, vr1, t1)
        I("v_sqrt_f32", vr(vr0), vr(vr0)); I("v_sqrt_f32", vr(vr1), vr(vr1))
        I("v_cvt_pk_bf16_f32", vr(t1), vr(vr0), vr(vr1))
        self.unpack(vr0, vr1, t1)
        I("v_rcp_f32", vr(vr0), vr(vr0)); I("v_rcp_f32", vr(vr1), vr(vr1))

    def ln_scalars1(self, s1, s2, vm0, vr0, t0):
        I = self.I
        inv = "0x3b000000"
        I("v_mov_b32", vr(vm0), sr(s1)); I("v_mov_b32", vr(vr0), sr(s2))
        I("v_mul_f32", vr(vm0), inv, vr(vm0)); I("v_mul_f32", vr(vr0), inv, vr(vr0))
        I("v_fma_f32", vr(vr0), f"-{vr(vm0)}", vr(vm0), vr(vr0))
        I("v_max_f32", vr(vr0), 0, vr(vr0))
        I("v_cvt_pk_bf16_f32", vr(t0), vr(vm0), vr(vr0))
        self.unpack(vm0, vr0, t0)
        I("v_add_f32", vr(vr0), "0x3727c5ac", vr(vr0))
        I("v_cvt_pk_bf16_f32", vr(t0), vr(vr0), vr(vr0))
        I("v_lshlrev_b32", vr(vr0), 16, vr(t0))
        I("v_sqrt_f32", vr(vr0), vr(vr0))
        I("v_cvt_pk_bf16_f32", vr(t0), vr(vr0), vr(vr0))
        I("v_lshlrev_b32", vr(vr0), 16, vr(t0))
        I("v_rcp_f32", vr(vr0), vr(vr0))

    def lds_set(self, off, val_sgpr_or_imm):
        I = self.I
        I("v_mov_b32", vr(vT6), off); I("v_mov_b32", vr(vT7), val_sgpr_or_imm)
        I("ds_write_b32", vr(vT6), vr(vT7))

    def lds_wait(self, off, val, sleep=1):
        I = self.I
        lp, ok = self.L("LW"), self.L("LWOK")
        I("v_mov_b32", vr(vT6), off)
        self.a.label(lp)
        I("ds_read_b32", vr(vT7), vr(vT6))
        I("s_waitcnt", "lgkmcnt(0)")
        I("v_readfirstlane_b32", sr(sT4), vr(vT7))
        I("s_cmp_ge_u32", sr(sT4), val)
        I("s_cbranch_scc1", ok)
        if sleep: I("s_sleep", sleep)
        I("s_branch", lp)
        self.a.label(ok)

    def invalidate(self):
        I = self.I
        for k in range(4): I("v_mov_b32", vr(20 + k), -1)
        I("v_lshlrev_b32", vr(vT5), 4, vr(vLane))
        I("s_lshl_b32", sr(sT0), sr(sBH), 2); I("s_add_u32", sr(sT0), sr(sT0), sr(sM))
        I("s_lshl_b32", sr(sT1), sr(sT0), 9); I("s_add_u32", sr(sT1), sr(sT1), hex(OPART))
        I("s_lshl_b32", sr(sT2), sr(sT0), 3); I("s_add_u32", sr(sT2), sr(sT2), hex(ML))
        self.execm(-1, 0)
        I("buffer_store_dwordx4", vr(20, 4), vr(vT5), sr(rWS, 4), sr(sT1), mods="offen sc1")
        I("s_mov_b64", "exec", 1)
        I("buffer_store_dwordx2", vr(20, 2), vr(vT5), sr(rWS, 4), sr(sT2), mods="offen sc1")
        I("s_lshl_b32", sr(sT1), sr(sBH), 6); I("s_add_u32", sr(sT1), sr(sT1), hex(HBUF))
        I("s_cmp_eq_u32", sr(sRole), 3)
        I("s_cselect_b32", sr(sT1), sr(sT1), hex(OOB))
        I("s_mov_b64", "exec", 15)
        I("buffer_store_dwordx4", vr(20, 4), vr(vT5), sr(rWS, 4), sr(sT1), mods="offen sc1")
        self.execall()
        I("s_cmp_eq_u32", sr(sRole), 1)
        self.csel(sT0, 4096, USTR)
        self.csel(sT1, hex(YPART), hex(UPART))
        I("s_lshl_b32", sr(sT2), sr(sF), 6); I("s_add_u32", sr(sT1), sr(sT1), sr(sT2))
        I("s_cmp_eq_u32", sr(sRole), 0); I("s_cselect_b32", sr(sT1), hex(OOB), sr(sT1))
        I("s_cmp_eq_u32", sr(sRole), 3); I("s_cselect_b32", sr(sT1), hex(OOB), sr(sT1))
        I("v_lshrrev_b32", vr(vT6), 2, vr(vLane))
        I("v_mul_lo_u32", vr(vT6), vr(vT6), sr(sT0))
        I("v_and_b32", vr(vT7), 3, vr(vLane)); I("v_lshlrev_b32", vr(vT7), 4, vr(vT7))
        I("v_add_u32", vr(vT6), vr(vT6), vr(vT7))
        I("s_lshl_b32", sr(sT0), sr(sT0), 4)
        for k in range(4):
            I("buffer_store_dwordx4", vr(20, 4), vr(vT6), sr(rWS, 4), sr(sT1), mods="offen sc1")
            if k < 3: I("s_add_u32", sr(sT1), sr(sT1), sr(sT0))

    def roles(self):
        a, I = self.a, self.I
        self.srd(rWS, pWS, hex(WSSZ))
        self.srd(rDBG, pDBG, 256)
        self.srd(rOUT, pOUT, 2048)
        I("s_mov_b32", sr(sRole), 0)
        I("s_add_u32", sr(sHW), sr(sH), self.hshift); I("s_and_b32", sr(sHW), sr(sHW), 31)
        I("s_lshl_b32", sr(sF), sr(sHW), 1); I("s_add_u32", sr(sF), sr(sF), sr(sB))
        I("s_cmp_eq_u32", sr(sM), 0); I("s_cselect_b32", sr(sRole), 1, sr(sRole))
        I("s_cmp_eq_u32", sr(sM), 1); I("s_cselect_b32", sr(sRole), 3, sr(sRole))
        I("s_and_b32", sr(sT1), "s2", 7); I("s_lshr_b32", sr(sT1), sr(sT1), 1); I("s_lshl_b32", sr(sT1), sr(sT1), 4)
        I("s_lshr_b32", sr(sT2), "s2", 4); I("s_add_u32", sr(sT1), sr(sT1), sr(sT2))
        I("s_cmp_lt_u32", sr(sT1), NF); I("s_cselect_b32", sr(sT2), 2, 0)
        I("s_cmp_eq_u32", sr(sM), 2); I("s_cselect_b32", sr(sT2), sr(sT2), 0)
        I("s_cmp_eq_u32", sr(sT2), 2); I("s_cselect_b32", sr(sRole), 2, sr(sRole)); I("s_cselect_b32", sr(sF), sr(sT1), sr(sF))
        lab_f, lab_done = self.L("RF"), self.L("RDONE")
        I("s_cmp_eq_u32", sr(sRole), 2)
        I("s_cbranch_scc1", lab_f)
        I("s_lshl_b32", sr(sT0), sr(sF), 16)
        self.srd(rWA, pWO, (65536 if not self.nodma else 0), sr(sT0))
        self.srd(rWB, pWO, 0, sr(sT0))
        I("s_branch", lab_done)
        a.label(lab_f)
        I("s_lshl_b32", sr(sT0), sr(sF), 6)
        I("s_sub_u32", sr(sT1), hex(512 * 2752), sr(sT0))
        self.srd(rWA, pW1, sr(sT1), sr(sT0))
        I("s_lshl_b32", sr(sT0), sr(sF), 15)
        self.srd(rWB, pW2, 32768, sr(sT0))
        a.label(lab_done)

    def build(self):
        a, I = self.a, self.I
        self.stamp(0)
        if self.dbgtime: I("s_memrealtime", "s[38:39]")
        I("s_load_dwordx16", sr(16, 16), "s[0:1]", 0)
        I("s_load_dwordx4", sr(32, 4), "s[0:1]", 64)
        I("s_load_dwordx2", sr(36, 2), "s[0:1]", 80)
        I("s_cmp_ge_u32", "s2", 256)
        I("s_cbranch_scc1", "L_END")
        I("v_and_b32", vr(vLane), 63, "v0")
        I("v_lshrrev_b32", vr(vT5), 6, "v0")
        I("v_and_b32", vr(vC), 15, "v0")
        I("v_readfirstlane_b32", sr(sW), vr(vT5))
        I("v_bfe_u32", vr(vG), "v0", 4, 2)
        I("s_and_b32", sr(sT0), "s2", 7)
        I("s_lshr_b32", sr(sT1), "s2", 3)
        I("s_and_b32", sr(sE), sr(sT0), 1)
        I("s_lshr_b32", sr(sT0), sr(sT0), 1)
        I("s_and_b32", sr(sHalf), sr(sT1), 1)
        I("s_lshr_b32", sr(sT2), sr(sT1), 1)
        I("s_lshr_b32", sr(sB), sr(sT2), 3)
        I("s_and_b32", sr(sT2), sr(sT2), 7)
        I("s_lshl_b32", sr(sH), sr(sT0), 3); I("s_add_u32", sr(sH), sr(sH), sr(sT2))
        I("s_lshl_b32", sr(sBH), sr(sB), 5); I("s_add_u32", sr(sBH), sr(sBH), sr(sH))
        I("s_lshl_b32", sr(sM), sr(sHalf), 1); I("s_add_u32", sr(sM), sr(sM), sr(sE))
        I("v_lshlrev_b32", vr(vKV), 4, vr(vLane))
        I("s_lshl_b32", sr(sT0), sr(sW), 15)
        I("v_add_u32", vr(vKV), sr(sT0), vr(vKV))
        I("s_cmp_eq_u32", sr(sE), 0)
        self.csel(sT0, 1024, -1024)
        self.csel(sN, 16 + self.skew, 16 - self.skew)
        I("s_mul_i32", sr(sOFF), sr(sE), 31744)
        for i in range(1, 17):
            I("s_add_u32", sr(sOFF + i), sr(sOFF + i - 1), sr(sT0))
        for i in (15, 16):
            I("s_cmp_gt_u32", sr(sN), i)
            I("s_cselect_b32", sr(sOFF + i), sr(sOFF + i), hex(OOB))
        I("s_waitcnt", "lgkmcnt(0)")
        I("s_setprio", self.prios[0])
        lab_r1 = self.L("RL1")
        I("s_cmp_eq_u32", sr(sW), 0)
        I("s_cbranch_scc0", lab_r1)
        self.roles()
        if not self.noinv: self.invalidate()
        a.label(lab_r1)
        I("s_lshl_b32", sr(sT0), sr(sBH), 20); I("s_lshl_b32", sr(sT1), sr(sHalf), 19); I("s_add_u32", sr(sT0), sr(sT0), sr(sT1))
        self.srd(rK, pK, "0x80000", sr(sT0))
        self.srd(rV, pV, "0x80000", sr(sT0))
        self.srd(rX, pX, 2048)
        I("s_lshl_b32", sr(sT0), sr(sH), 8)
        I("s_sub_u32", sr(sT1), hex(512 * 8192), sr(sT0))
        self.srd(rWQ, pWQ, sr(sT1), sr(sT0))
        NP = self.npre
        XF, WQ = 8, kslot(17)
        I("s_lshl_b32", sr(sT0), sr(sB), 1); I("s_add_u32", sr(sT0), sr(sT0), sr(sHalf)); I("s_lshl_b32", sr(sT0), sr(sT0), 2)
        I("s_add_u32", sr(sT0), sr(sT0), sr(sW)); I("s_and_b32", sr(sRB), sr(sT0), 15)
        I("v_lshlrev_b32", vr(vT5), 4, vr(vLane))
        I("s_lshl_b32", sr(sT1), sr(sB), 10)
        self.vm("xf", "buffer_load_dwordx4", vr(XF, 4), vr(vT5), sr(rX, 4), sr(sT1), mods="offen")
        I("s_lshl_b32", sr(sT0), sr(sRB), 5)
        I("v_lshl_add_u32", vr(vT6), vr(vG), 1, sr(sT0))
        I("v_lshlrev_b32", vr(vT7), 13, vr(vT6))
        I("v_lshl_add_u32", vr(vT7), vr(vC), 4, vr(vT7))
        for kq in range(NP):
            self.vm(f"K{kq}", "buffer_load_dwordx4", vr(kslot(kq), 4), vr(vKV), sr(rK, 4), sr(sOFF + kq), mods="offen nt")
        for i in range(8):
            off = (8 * (i >> 1) + (i & 1)) * 8192
            I("s_mov_b32", sr(sT2), off if not self.nowq else OOB)
            self.vm(f"wq{i}", "buffer_load_dwordx4", vr(WQ + 4 * i, 4), vr(vT7), sr(rWQ, 4), sr(sT2), mods=("offen " + self.wqflag).strip())
            if i == 1:
                I("v_lshlrev_b32", vr(vT5), 2, vr(vLane)); I("v_mov_b32", vr(vT6), 0)
                I("s_mov_b64", "exec", 15)
                I("ds_write_b32", vr(vT5), vr(vT6), mods=f"offset:{L_CNT}")
                self.execall()
                I("s_waitcnt", "lgkmcnt(0)")
                I("s_barrier")
        I("s_setprio", self.prios[1])
        for kq in range(NP, self.npre2):
            self.vm(f"K{kq}", "buffer_load_dwordx4", vr(kslot(kq), 4), vr(vKV), sr(rK, 4), sr(sOFF + kq), mods="offen nt")
        self.stamp(1)
        lab_r2 = self.L("RL2")
        I("s_cmp_eq_u32", sr(sW), 0)
        I("s_cbranch_scc1", lab_r2)
        self.roles()
        a.label(lab_r2)
        I("s_mov_b32", sr(sT4), "0x3f803f80")
        self.wait_vm("xf")
        lab_noat = self.L("NOAT")
        I("s_cmp_eq_u32", sr(sW), 0)
        I("s_cbranch_scc0", lab_noat)
        self.stamp(17)
        I("v_mov_b32", vr(vT5), 0); I("v_mov_b32", vr(vT6), 1)
        I("s_lshl_b32", sr(sT0), sr(sH), 2)
        I("s_mov_b64", "exec", 1)
        I("buffer_atomic_add", vr(vT6), vr(vT5), sr(rDBG, 4), sr(sT0), mods="offen sc1")
        self.execall()
        a.label(lab_noat)
        I("s_mov_b32", sr(sT4), "0x3f803f80")
        A1, A2, T0 = 22, 23, 26
        for k in range(4):
            I("v_dot2_f32_bf16", vr(A1), vr(XF + k), sr(sT4), (0 if k == 0 else vr(A1)))
            I("v_dot2_f32_bf16", vr(A2), vr(XF + k), vr(XF + k), (0 if k == 0 else vr(A2)))
        self.wave_reduce63("v_add_f32", [A1, A2])
        I("v_readlane_b32", sr(sT0), vr(A1), 63); I("v_readlane_b32", sr(sT1), vr(A2), 63)
        M0, R0 = 22, 23
        self.ln_scalars1(sT0, sT1, M0, R0, T0)
        XU = 12
        for k in range(4): self.unpack(XU + 2 * k, XU + 2 * k + 1, XF + k)
        for e in range(8): I("v_sub_f32", vr(XU + e), vr(XU + e), vr(M0))
        for k in range(4): I("v_cvt_pk_bf16_f32", vr(XF + k), vr(XU + 2 * k), vr(XU + 2 * k + 1))
        for k in range(4): self.unpack(XU + 2 * k, XU + 2 * k + 1, XF + k)
        for e in range(8): I("v_mul_f32", vr(XU + e), vr(XU + e), vr(R0))
        for k in range(4): I("v_cvt_pk_bf16_f32", vr(XF + k), vr(XU + 2 * k), vr(XU + 2 * k + 1))
        I("v_lshlrev_b32", vr(vT5), 4, vr(vLane))
        I("s_lshl_b32", sr(sT0), sr(sW), 10)
        I("v_add_u32", vr(vT5), sr(sT0), vr(vT5))
        I("ds_write_b128", vr(vT5), vr(XF, 4), mods=f"offset:{L_XN}")
        I("s_lshl_b32", sr(sT1), sr(sRB), 6); I("s_add_u32", sr(sT0), sr(sT0), sr(sT1))
        I("v_lshlrev_b32", vr(vT5), 2, vr(vG))
        I("v_add_u32", vr(vT5), sr(sT0), vr(vT5))
        I("s_waitcnt", "lgkmcnt(0)")
        for ip in range(4):
            I("ds_read_b32", vr(12 + ip), vr(vT5), mods=f"offset:{L_XN + 16 * ip}")
        P = vACC
        PT = kslot(15)
        I("s_mov_b32", sr(sT2), "0x05040100"); I("s_mov_b32", sr(sT3), "0x07060302")
        I("s_waitcnt", "lgkmcnt(0)")
        for ip in range(4):
            self.wait_vm(f"wq{2 * ip + 1}")
            wa, wb = WQ + 8 * ip, WQ + 8 * ip + 4
            for k in range(4):
                I("v_perm_b32", vr(PT + 2 * k), vr(wb + k), vr(wa + k), sr(sT2))
                I("v_perm_b32", vr(PT + 2 * k + 1), vr(wb + k), vr(wa + k), sr(sT3))
            for e in range(8):
                I("v_dot2_f32_bf16", vr(P + e), vr(PT + e), vr(12 + ip), (0 if ip == 0 else vr(P + e)))
        for i in range(4): I("v_permlane32_swap_b32", vr(P + 2 * i), vr(P + 2 * i + 1))
        for i in range(4): I("v_add_f32", vr(P + 2 * i), vr(P + 2 * i), vr(P + 2 * i + 1))
        for i in range(2): I("v_permlane16_swap_b32", vr(P + 4 * i), vr(P + 4 * i + 2))
        for i in range(2): I("v_add_f32", vr(8 + i), vr(P + 4 * i), vr(P + 4 * i + 2))
        self.perm_g(vT6, vT7)
        I("v_lshl_add_u32", vr(vT5), vr(vC), 3, vr(vT6))
        I("v_lshlrev_b32", vr(vT5), 2, vr(vT5))
        I("s_lshl_b32", sr(sT0), sr(sW), 9)
        I("v_add_u32", vr(vT5), sr(sT0), vr(vT5))
        I("ds_write_b32", vr(vT5), vr(8), mods=f"offset:{L_QP}")
        I("ds_write_b32", vr(vT5), vr(9), mods=f"offset:{L_QP + 16}")
        I("s_waitcnt", "lgkmcnt(0)")
        I("v_mov_b32", vr(vT6), L_QCNT); I("v_mov_b32", vr(vT7), 1)
        I("s_mov_b64", "exec", 1)
        I("ds_add_rtn_u32", vr(vT5), vr(vT6), vr(vT7))
        self.execall()
        I("s_waitcnt", "lgkmcnt(0)")
        I("v_readfirstlane_b32", sr(sT0), vr(vT5))
        self.stamp(2)
        lab_notlast = self.L("NOTLAST")
        I("s_cmp_eq_u32", sr(sT0), 15)
        I("s_cbranch_scc0", lab_notlast)
        I("v_and_b32", vr(vT5), 31, vr(vLane)); I("v_lshlrev_b32", vr(vT5), 4, vr(vT5))
        I("v_lshrrev_b32", vr(vT6), 5, vr(vLane)); I("v_lshlrev_b32", vr(vT6), 12, vr(vT6))
        I("v_add_u32", vr(vT5), vr(vT5), vr(vT6))
        RB = WQ
        for k in range(8):
            I("ds_read_b128", vr(RB + 4 * k, 4), vr(vT5), mods=f"offset:{L_QP + 512 * k}")
        I("s_waitcnt", "lgkmcnt(0)")
        for e in range(4):
            for k in (0, 2, 4, 6): I("v_add_f32", vr(RB + 4 * k + e), vr(RB + 4 * k + e), vr(RB + 4 * k + 4 + e))
        for e in range(4):
            I("v_add_f32", vr(RB + e), vr(RB + e), vr(RB + 8 + e)); I("v_add_f32", vr(RB + 16 + e), vr(RB + 16 + e), vr(RB + 24 + e))
        for e in range(4): I("v_add_f32", vr(RB + e), vr(RB + e), vr(RB + 16 + e))
        for e in range(4): I("v_mov_b32", vr(RB + 4 + e), vr(RB + e))
        for e in range(4): I("v_permlane32_swap_b32", vr(RB + e), vr(RB + 4 + e))
        for e in range(4): I("v_add_f32", vr(RB + e), vr(RB + e), vr(RB + 4 + e))
        I("v_cvt_pk_bf16_f32", vr(RB + 8), vr(RB), vr(RB + 1)); I("v_cvt_pk_bf16_f32", vr(RB + 9), vr(RB + 2), vr(RB + 3))
        I("v_and_b32", vr(vT5), 31, vr(vLane)); I("v_lshlrev_b32", vr(vT5), 3, vr(vT5))
        I("ds_write_b64", vr(vT5), vr(RB + 8, 2), mods=f"offset:{L_QB}")
        I("s_waitcnt", "lgkmcnt(0)")
        self.lds_set(L_FQ, 1)
        a.label(lab_notlast)
        for i in range(self.npre2, 17):
            self.vm(f"K{i}", "buffer_load_dwordx4", vr(kslot(i), 4), vr(vKV), sr(rK, 4), sr(sOFF + i), mods="offen nt")
        I("s_setprio", self.prios[2])
        for i in range(8):
            self.vm(f"V{i}", "buffer_load_dwordx4", vr(vslot(i), 4), vr(vKV), sr(rV, 4), sr(sOFF + i), mods="offen nt")
        self.stamp(16)
        self.lds_wait(L_FQ, 1)
        I("s_setprio", self.prios[3])
        self.stamp(4)
        I("v_lshlrev_b32", vr(vT5), 4, vr(vC))
        I("ds_read_b128", vr(vQ, 4), vr(vT5), mods=f"offset:{L_QB}")
        I("s_mov_b32", sr(sMask), "0x00010001"); I("s_mov_b32", sr(sMask + 1), "0x00010001")
        I("v_mov_b32", vr(vS), 0)
        I("s_waitcnt", "lgkmcnt(0)")
        groups = [[0, 1, 2, 3], [4, 5, 6, 7], [8, 9, 10, 11], [12, 13, 14], [15, 16]]
        nextv = 8
        for grp in groups:
            self.wait_vm(f"K{grp[-1]}")
            for n, i in enumerate(grp):
                I("v_dot2_f32_bf16", vr(vD + n), vr(kslot(i)), vr(vQ), 0)
            for k in range(1, 4):
                for n, i in enumerate(grp):
                    I("v_dot2_f32_bf16", vr(vD + n), vr(kslot(i) + k), vr(vQ + k), vr(vD + n))
            for i in grp:
                if i <= 8 and nextv <= 16:
                    assert vslot(nextv) == kslot(i)
                    self.vm(f"V{nextv}", "buffer_load_dwordx4", vr(vslot(nextv), 4), vr(vKV), sr(rV, 4), sr(sOFF + nextv), mods="offen nt")
                    nextv += 1
            self.row_reduce("v_add_f32", [vD + n for n in range(len(grp))])
            for n, i in enumerate(grp):
                if i < 16:
                    I("v_cndmask_b32", vr(vS), vr(vS), vr(vD + n), sr(sMask, 2))
                    if i < 15: I("s_lshl_b64", sr(sMask, 2), sr(sMask, 2), 1)
                else:
                    I("v_mov_b32", vr(vS2), vr(vD + n))
            if nextv == 17 and not self.wo_done and not self.late_wo:
                self.wo_dma()
        T0, T1 = 18, 19
        I("v_cvt_pk_bf16_f32", vr(T0), vr(vS), vr(vS2))
        self.unpack(vS, vS2, T0)
        I("v_mul_f32", vr(vS), hex(SCALE), vr(vS)); I("v_mul_f32", vr(vS2), hex(SCALE), vr(vS2))
        I("v_cvt_pk_bf16_f32", vr(T0), vr(vS), vr(vS2))
        self.unpack(vS, vS2, T0)
        I("v_mov_b32", vr(T1), "0xff800000")
        I("v_cmp_gt_u32", "vcc", sr(sN), vr(vC))
        I("v_cndmask_b32", vr(vS), vr(T1), vr(vS), "vcc")
        I("s_cmp_gt_u32", sr(sN), 16)
        self.csel(sT0, "0x7f800000", "0xff800000")
        I("v_min_f32", vr(vS2), sr(sT0), vr(vS2))
        I("v_max_f32", vr(T0), vr(vS), vr(vS2))
        self.wave_reduce63("v_max_f32", [T0])
        I("v_readlane_b32", sr(sT0), vr(T0), 63)
        I("v_subrev_f32", vr(vS), sr(sT0), vr(vS)); I("v_subrev_f32", vr(vS2), sr(sT0), vr(vS2))
        I("v_mul_f32", vr(vS), hex(LOG2E), vr(vS)); I("v_mul_f32", vr(vS2), hex(LOG2E), vr(vS2))
        I("v_exp_f32", vr(vS), vr(vS)); I("v_exp_f32", vr(vS2), vr(vS2))
        I("v_mov_b32", vr(T0), vr(vS))
        I("v_fmac_f32", vr(T0), "0x3d800000", vr(vS2))
        self.wave_reduce63("v_add_f32", [T0])
        I("v_mov_b32", vr(T1), vr(T0))
        I("v_mov_b32", vr(T0), sr(sT0))
        I("s_lshl_b32", sr(sT1), sr(sW), 3)
        I("v_mov_b32", vr(vT5), sr(sT1))
        self.exec63()
        I("ds_write_b64", vr(vT5), vr(T0, 2), mods=f"offset:{L_ML}")
        I("s_waitcnt", "lgkmcnt(0)")
        I("v_mov_b32", vr(vT5), L_CNT); I("v_mov_b32", vr(vT6), 1)
        I("ds_add_u32", vr(vT5), vr(vT6))
        self.execall()
        self.stamp(5)
        for e in range(8): I("v_mov_b32", vr(vACC + e), 0)
        for i in range(17):
            self.wait_vm(f"V{i}")
            for k in range(4):
                self.unpack(8 + 2 * k, 9 + 2 * k, vslot(i) + k)
            for k in range(4):
                for hh in range(2):
                    if i < 16:
                        I("v_fmac_f32_dpp", vr(vACC + 2 * k + hh), vr(vS), vr(8 + 2 * k + hh), mods=f"row_newbcast:{i} row_mask:0xf bank_mask:0xf")
                    else:
                        I("v_fmac_f32", vr(vACC + 2 * k + hh), vr(vS2), vr(8 + 2 * k + hh))
            if self.late_wo and i == self.late_wo:
                self.wo_dma()
        self.stamp(6)
        for i in range(4): I("v_permlane32_swap_b32", vr(vACC + 2 * i), vr(vACC + 2 * i + 1))
        for i in range(4): I("v_add_f32", vr(vACC + 2 * i), vr(vACC + 2 * i), vr(vACC + 2 * i + 1))
        for i in range(2): I("v_permlane16_swap_b32", vr(vACC + 4 * i), vr(vACC + 4 * i + 2))
        for i in range(2): I("v_add_f32", vr(8 + i), vr(vACC + 4 * i), vr(vACC + 4 * i + 2))
        self.perm_g(vT6, vT7)
        I("v_lshl_add_u32", vr(vT5), vr(vC), 3, vr(vT6))
        I("v_lshlrev_b32", vr(vT5), 2, vr(vT5))
        I("s_lshl_b32", sr(sT0), sr(sW), 9)
        I("v_add_u32", vr(vT5), sr(sT0), vr(vT5))
        I("ds_write_b32", vr(vT5), vr(8), mods=f"offset:{L_OP}")
        I("ds_write_b32", vr(vT5), vr(9), mods=f"offset:{L_OP + 16}")
        lab_w4 = self.L("W4")
        I("s_cmp_lt_u32", sr(sW), 4)
        I("s_cbranch_scc0", lab_w4)
        self.lds_wait(L_CNT, 16, sleep=1)
        I("v_lshrrev_b32", vr(vT7), 3, vr(vLane))
        I("v_lshlrev_b32", vr(13), 4, vr(vT7))
        I("ds_read_b128", vr(12, 4), vr(13), mods=f"offset:{L_ML}")
        I("s_waitcnt", "lgkmcnt(0)")
        I("v_max_f32", vr(16), vr(12), vr(14))
        self.wave_reduce63("v_max_f32", [16])
        I("v_readlane_b32", sr(sT0), vr(16), 63)
        I("v_subrev_f32", vr(12), sr(sT0), vr(12)); I("v_subrev_f32", vr(14), sr(sT0), vr(14))
        I("v_mul_f32", vr(12), hex(LOG2E), vr(12)); I("v_mul_f32", vr(14), hex(LOG2E), vr(14))
        I("v_exp_f32", vr(12), vr(12)); I("v_exp_f32", vr(14), vr(14))
        I("v_mul_f32", vr(16), vr(12), vr(13)); I("v_fmac_f32", vr(16), vr(14), vr(15))
        I("v_mul_f32", vr(16), "0x3e000000", vr(16))
        self.wave_reduce63("v_add_f32", [16])
        lab_noml = self.L("NOML")
        I("s_cmp_eq_u32", sr(sW), 0)
        I("s_cbranch_scc0", lab_noml)
        I("v_mov_b32", vr(17), vr(16))
        I("v_mov_b32", vr(16), sr(sT0))
        self.clamp(16); self.clamp(17)
        I("s_lshl_b32", sr(sT1), sr(sBH), 2); I("s_add_u32", sr(sT1), sr(sT1), sr(sM)); I("s_lshl_b32", sr(sT1), sr(sT1), 3)
        I("s_add_u32", sr(sT1), sr(sT1), hex(ML))
        I("v_mov_b32", vr(vT5), 0)
        self.exec63()
        I("buffer_store_dwordx2", vr(16, 2), vr(vT5), sr(rWS, 4), sr(sT1), mods="offen sc1")
        self.execall()
        a.label(lab_noml)
        self.check_all_counters()
        self.stamp(18)
        I("v_and_b32", vr(vT5), 7, vr(vLane)); I("v_lshlrev_b32", vr(16), 4, vr(vT5))
        I("v_lshrrev_b32", vr(vT7), 3, vr(vLane)); I("v_lshlrev_b32", vr(vT6), 10, vr(vT7))
        I("v_add_u32", vr(16), vr(16), vr(vT6))
        I("s_lshl_b32", sr(sT0), sr(sW), 7)
        I("v_add_u32", vr(16), sr(sT0), vr(16))
        self.perm_g(vT6, vT7)
        I("v_lshl_add_u32", vr(17), vr(vT5), 2, vr(vT6))
        I("v_lshlrev_b32", vr(17), 2, vr(17))
        I("s_lshl_b32", sr(sU0), sr(sBH), 2); I("s_add_u32", sr(sU0), sr(sU0), sr(sM)); I("s_lshl_b32", sr(sU0), sr(sU0), 9)
        I("s_add_u32", sr(sU0), sr(sU0), sr(sT0)); I("s_add_u32", sr(sU0), sr(sU0), hex(OPART))
        a.label(lab_w4)
        I("s_waitcnt", "lgkmcnt(0)")
        I("s_barrier")
        self.stamp(7)
        lab_exit_wait = self.L("XW")
        I("s_cmp_lt_u32", sr(sW), 4)
        I("s_cbranch_scc0", lab_exit_wait)
        I("ds_read_b128", vr(20, 4), vr(16), mods=f"offset:{L_OP}")
        I("ds_read_b128", vr(24, 4), vr(16), mods=f"offset:{L_OP + 512}")
        I("s_waitcnt", "lgkmcnt(0)")
        for e in range(4): I("v_mul_f32", vr(20 + e), vr(20 + e), vr(12))
        for e in range(4): I("v_fmac_f32", vr(20 + e), vr(24 + e), vr(14))
        I("v_permlane32_swap_b32", vr(20), vr(21)); I("v_permlane32_swap_b32", vr(22), vr(23))
        I("v_add_f32", vr(20), vr(20), vr(21)); I("v_add_f32", vr(22), vr(22), vr(23))
        self.swap_add(16, 20, 22, 20)
        self.dpp("v_add_f32", 20, 20, 20, "row_ror:8")
        self.clamp(20)
        self.execm("0x00ff00ff", "0x00ff00ff")
        I("buffer_store_dword", vr(20), vr(17), sr(rWS, 4), sr(sU0), mods="offen sc1")
        self.execall()
        self.stamp(8)
        if self.stop == "attn":
            a.label(lab_exit_wait)
            return self.finish()
        self.tail(lab_exit_wait)
        return self.finish()

    def wo_dma(self):
        I = self.I
        skip = self.L("NWD")
        self.wo_done = True
        I("s_cmp_eq_u32", sr(sRole), 1)
        I("s_cbranch_scc0", skip)
        I("s_lshl_b32", sr(sT2), sr(sW), 12)
        I("v_lshlrev_b32", vr(vT5), 4, vr(vLane))
        I("s_mul_i32", sr(sT1), sr(sW), 4 * WROW); I("s_add_u32", sr(sT1), sr(sT1), L_WB)
        for k in range(4):
            I("s_mov_b32", "m0", sr(sT1))
            I("buffer_load_dwordx4", vr(vT5), sr(rWA, 4), sr(sT2), mods="offen nt lds")
            if k < 3:
                I("s_add_u32", sr(sT1), sr(sT1), WROW); I("s_add_u32", sr(sT2), sr(sT2), 1024)
        self.a.label(skip)

    def ffn_dma(self):
        I = self.I
        skip = self.L("NFD")
        I("s_cmp_eq_u32", sr(sRole), 2)
        I("s_cbranch_scc0", skip)
        I("s_lshl_b32", sr(sT0), sr(sW), 5)
        I("v_lshrrev_b32", vr(vT5), 2, vr(vLane)); I("v_add_u32", vr(vT5), sr(sT0), vr(vT5))
        I("s_movk_i32", sr(sT1), 2752)
        I("v_mul_lo_u32", vr(vT5), vr(vT5), sr(sT1))
        I("v_and_b32", vr(vT6), 3, vr(vLane))
        I("v_lshl_add_u32", vr(vT5), vr(vT6), 4, vr(vT5))
        I("s_lshl_b32", sr(sT0), sr(sW), 11); I("s_add_u32", sr(sT1), sr(sT0), L_WB)
        I("s_mov_b32", "m0", sr(sT1))
        I("buffer_load_dwordx4", vr(vT5), sr(rWA, 4), 0, mods="offen lds")
        I("s_add_u32", sr(sT1), sr(sT1), 1024)
        I("s_mov_b32", sr(sT2), 16 * 2752)
        I("s_mov_b32", "m0", sr(sT1))
        I("buffer_load_dwordx4", vr(vT5), sr(rWA, 4), sr(sT2), mods="offen lds")
        I("v_lshlrev_b32", vr(vT6), 4, vr(vLane)); I("v_add_u32", vr(vT6), sr(sT0), vr(vT6))
        I("s_mul_i32", sr(sT1), sr(sW), 2 * WROW); I("s_add_u32", sr(sT1), sr(sT1), L_W2)
        I("s_mov_b32", "m0", sr(sT1))
        I("buffer_load_dwordx4", vr(vT6), sr(rWB, 4), 0, mods="offen nt lds")
        I("s_add_u32", sr(sT1), sr(sT1), WROW)
        I("s_movk_i32", sr(sT2), 1024)
        I("s_mov_b32", "m0", sr(sT1))
        I("buffer_load_dwordx4", vr(vT6), sr(rWB, 4), sr(sT2), mods="offen nt lds")
        self.a.label(skip)

    def check_all_counters(self):
        a, I = self.a, self.I
        lp, ok = self.L("CA"), self.L("CAOK")
        I("s_mov_b32", sr(sSpin), SPIN_MAX)
        I("v_and_b32", vr(vT5), 31, vr(vLane)); I("v_lshlrev_b32", vr(vT5), 2, vr(vT5))
        a.label(lp)
        I("buffer_load_dword", vr(vT6), vr(vT5), sr(rDBG, 4), 0, mods="offen sc1")
        I("s_waitcnt", "vmcnt(0)")
        I("v_cmp_gt_u32", "vcc", 8, vr(vT6))
        I("s_cbranch_vccz", ok)
        I("s_sub_u32", sr(sSpin), sr(sSpin), 1)
        I("s_cbranch_scc0", lp)
        a.label(ok)

    def tail(self, lab_exit_wait):
        a, I = self.a, self.I
        self.ffn_dma()
        lab_ffn, lab_red = self.L("FFN"), self.L("RED")
        I("s_cmp_eq_u32", sr(sRole), 0)
        I("s_cbranch_scc1", "L_FIN")
        I("s_cmp_eq_u32", sr(sRole), 3)
        I("s_cbranch_scc1", lab_red)
        I("s_cmp_eq_u32", sr(sRole), 1)
        I("s_cbranch_scc0", lab_ffn)
        self.wo_stage()
        a.label(lab_ffn)
        self.ffn_stage()
        I("s_branch", "L_FIN")
        a.label(lab_red)
        I("s_cmp_eq_u32", sr(sW), 0)
        I("s_cbranch_scc0", "L_FIN")
        self.reducer()
        I("s_branch", "L_FIN")
        a.label(lab_exit_wait)
        self.ffn_dma()
        I("s_cmp_eq_u32", sr(sRole), 0)
        I("s_cbranch_scc1", "L_FIN")
        I("s_cmp_eq_u32", sr(sRole), 3)
        I("s_cbranch_scc1", "L_FIN")
        I("s_waitcnt", "vmcnt(0)")
        I("s_barrier")
        I("s_branch", "L_FIN")

    def dry_top(self):
        top = self.L("TOP")
        self.I("s_mov_b32", sr(sDry), 1 if self.dry else 0)
        self.a.label(top)
        return top
    def skip_if_dry(self):
        lab = self.L("SK")
        self.I("s_cmp_eq_u32", sr(sDry), 1)
        self.I("s_cbranch_scc1", lab)
        return lab
    def dry_end(self, top):
        lab = self.L("REAL")
        self.I("s_cmp_eq_u32", sr(sDry), 0)
        self.I("s_cbranch_scc1", lab)
        self.I("s_mov_b32", sr(sDry), 0)
        self.I("s_branch", top)
        self.a.label(lab)

    def wo_stage(self):
        a, I = self.a, self.I
        vI4, vI2 = 8, 9
        BW = 64
        I("s_waitcnt", "vmcnt(1)")
        I("s_barrier")
        I("v_lshrrev_b32", vr(vI4), 2, vr(vC)); I("v_and_b32", vr(vI2), 3, vr(vC))
        I("v_lshl_add_u32", vr(vT5), vr(vG), 3, vr(vI4))
        I("s_movk_i32", sr(sT0), WROW)
        I("v_mul_lo_u32", vr(vT5), vr(vT5), sr(sT0))
        I("v_lshl_add_u32", vr(vT5), vr(vI2), 3, vr(vT5))
        I("s_lshl_b32", sr(sT0), sr(sW), 8)
        I("v_add_u32", vr(vT5), sr(sT0), vr(vT5))
        I("v_add_u32", vr(vT5), L_WB, vr(vT5))
        vBS, vMS = 10, 11
        vAml, vAown, vAo, vAy = 40, 41, 42, 43
        ML0, O0 = 12, 44
        I("v_bfe_u32", vr(vBS), vr(vC), 2, 1); I("v_and_b32", vr(vMS), 3, vr(vC))
        I("v_lshlrev_b32", vr(vAml), 10, vr(vBS))
        I("v_lshl_add_u32", vr(vAown), vr(vMS), 3, vr(vAml))
        I("s_lshl_b32", sr(sU0), sr(sHW), 5); I("s_add_u32", sr(sU0), sr(sU0), hex(ML))
        I("v_lshlrev_b32", vr(vAo), 16, vr(vBS))
        I("v_lshl_add_u32", vr(vAo), vr(vMS), 9, vr(vAo))
        I("v_lshl_add_u32", vr(vAo), vr(vG), 5, vr(vAo))
        I("s_lshl_b32", sr(sU1), sr(sHW), 11)
        I("s_lshl_b32", sr(sT1), sr(sB), 8)
        I("s_add_u32", sr(sU1), sr(sU1), sr(sT1)); I("s_add_u32", sr(sU1), sr(sU1), hex(OPART))
        def loads():
            for k in range(4):
                I("buffer_load_dwordx4", vr(O0 + 4 * k, 4), vr(vAo), sr(rWS, 4), sr(sU1), mods=f"offen offset:{(k >> 1) * 128 + (k & 1) * 16} sc1")
            I("buffer_load_dwordx4", vr(ML0, 4), vr(vAml), sr(rWS, 4), sr(sU0), mods="offen sc1")
            I("buffer_load_dwordx4", vr(ML0 + 4, 4), vr(vAml), sr(rWS, 4), sr(sU0), mods="offen offset:16 sc1")
            I("buffer_load_dwordx2", vr(ML0 + 8, 2), vr(vAown), sr(rWS, 4), sr(sU0), mods="offen sc1")
        loads()
        for ks in range(2):
            for tt in range(8):
                I("ds_read_b64_tr_b16", vr(BW + 32 * ks + 4 * tt, 2), vr(vT5), mods=f"offset:{32 * ks * WROW + 32 * tt}")
                I("ds_read_b64_tr_b16", vr(BW + 32 * ks + 4 * tt + 2, 2), vr(vT5), mods=f"offset:{(32 * ks + 4) * WROW + 32 * tt}")
        I("v_and_b32", vr(vAy), 1, vr(vG)); I("v_lshlrev_b32", vr(vAy), 17, vr(vAy))
        I("v_lshrrev_b32", vr(vT6), 1, vr(vG)); I("v_lshlrev_b32", vr(vT6), 12, vr(vT6))
        I("v_add_u32", vr(vAy), vr(vAy), vr(vT6))
        I("v_lshl_add_u32", vr(vAy), vr(vC), 2, vr(vAy))
        I("s_lshl_b32", sr(sU2), sr(sW), 15)
        I("s_lshl_b32", sr(sT1), sr(sF), 6); I("s_add_u32", sr(sU2), sr(sU2), sr(sT1)); I("s_add_u32", sr(sU2), sr(sU2), hex(YPART))
        I("s_mov_b32", sr(sMask), 0); I("s_mov_b32", sr(sMask + 1), -1)
        regs = list(range(ML0, ML0 + 10)) + list(range(O0, O0 + 16))
        lp, ok = self.L("POLL"), self.L("POK")
        I("s_mov_b32", sr(sSpin), SPIN_MAX)
        I("s_waitcnt", "vmcnt(0)")
        self.check_regs(regs, vT7)
        I("s_cbranch_vccz", ok)
        a.label(lp)
        loads()
        I("s_waitcnt", "vmcnt(0)")
        self.check_regs(regs, vT7)
        I("s_cbranch_vccz", ok)
        I("s_sub_u32", sr(sSpin), sr(sSpin), 1)
        I("s_cbranch_scc0", lp)
        a.label(ok)
        self.stamp(10)
        T = 22
        I("v_max3_f32", vr(T), vr(ML0), vr(ML0 + 2), vr(ML0 + 4)); I("v_max_f32", vr(T), vr(T), vr(ML0 + 6))
        for n in range(5): I("v_sub_f32", vr(T + 1 + n), vr(ML0 + 2 * n), vr(T))
        for n in range(5): I("v_mul_f32", vr(T + 1 + n), hex(LOG2E), vr(T + 1 + n))
        for n in range(5): I("v_exp_f32", vr(T + 1 + n), vr(T + 1 + n))
        I("v_mul_f32", vr(T), vr(T + 1), vr(ML0 + 1))
        I("v_fmac_f32", vr(T), vr(T + 2), vr(ML0 + 3)); I("v_fmac_f32", vr(T), vr(T + 3), vr(ML0 + 5)); I("v_fmac_f32", vr(T), vr(T + 4), vr(ML0 + 7))
        I("v_rcp_f32", vr(T), vr(T))
        I("v_mul_f32", vr(T), vr(T), vr(T + 5))
        for e in range(16): I("v_mul_f32", vr(O0 + e), vr(O0 + e), vr(T))
        for e in range(16): self.dpp("v_add_f32", O0 + e, O0 + e, O0 + e, "quad_perm:[1,0,3,2]")
        for e in range(16): self.dpp("v_add_f32", O0 + e, O0 + e, O0 + e, "quad_perm:[2,3,0,1]")
        AO = 28
        for k in range(8): I("v_cvt_pk_bf16_f32", vr(AO + k), vr(O0 + 2 * k), vr(O0 + 2 * k + 1))
        I("s_waitcnt", "lgkmcnt(0)")
        Dr = [44, 48, 52, 56, 12, 16, 20, 24]
        for tt in range(8):
            I("v_mfma_f32_16x16x32_bf16", vr(Dr[tt], 4), vr(AO, 4), vr(BW + 4 * tt, 4), 0)
        for tt in range(8):
            I("v_mfma_f32_16x16x32_bf16", vr(Dr[tt], 4), vr(AO + 4, 4), vr(BW + 32 + 4 * tt, 4), vr(Dr[tt], 4))
        for tt in range(0, 8, 2):
            I("v_cndmask_b32", vr(36 + tt // 2), vr(Dr[tt]), vr(Dr[tt + 1]), sr(sMask, 2))
        for tt in range(4): self.clamp(36 + tt)
        for tt in range(4):
            I("buffer_store_dword", vr(36 + tt), vr(vAy), sr(rWS, 4), sr(sU2), mods="offen sc1")
            if tt < 3: I("s_add_u32", sr(sU2), sr(sU2), 8192)
        self.stamp(11)
        I("s_branch", "L_FIN")

    def reduce16(self, r0, out):
        I = self.I
        I("v_permlane32_swap_b32", vr(r0), vr(r0 + 1)); I("v_permlane32_swap_b32", vr(r0 + 2), vr(r0 + 3))
        I("v_add_f32", vr(r0), vr(r0), vr(r0 + 1)); I("v_add_f32", vr(r0 + 2), vr(r0 + 2), vr(r0 + 3))
        self.swap_add(16, r0, r0 + 2, out)
        self.dpp("v_add_f32", out, out, out, "row_ror:8")
        self.dpp("v_add_f32", out, out, out, "row_ror:4")

    def reducer(self):
        a, I = self.a, self.I
        vCol, vX, vAo, vH, vA, vAh = 60, 61, 62, 63, 8, 9
        Y, S, U3 = 64, 96, 112
        self.perm_g(vT6, vT7)
        I("v_and_b32", vr(vCol), 3, vr(vLane))
        I("v_lshl_add_u32", vr(vCol), vr(vCol), 2, vr(vT6))
        I("v_lshlrev_b32", vr(vAo), 1, vr(vCol))
        I("s_lshl_b32", sr(sT0), sr(sBH), 5)
        I("buffer_load_ushort", vr(vX), vr(vAo), sr(rX, 4), sr(sT0), mods="offen")
        I("v_lshlrev_b32", vr(vA), 4, vr(vLane))
        I("v_lshlrev_b32", vr(vAh), 2, vr(vCol))
        I("s_lshl_b32", sr(sU0), sr(sBH), 12); I("s_add_u32", sr(sU0), sr(sU0), hex(YPART))
        I("s_lshl_b32", sr(sU2), sr(sBH), 6); I("s_add_u32", sr(sU2), sr(sU2), hex(HBUF))
        I("s_lshl_b32", sr(sU3), sr(sBH), 5)
        I("s_mul_i32", sr(sT0), sr(sBH), USTR); I("s_add_u32", sr(sT0), sr(sT0), hex(UPART))
        I("s_add_u32", sr(rWA), sr(pWS), sr(sT0)); I("s_addc_u32", sr(rWA + 1), sr(pWS + 1), 0)
        I("s_mov_b32", sr(rWA + 2), NF * 64); I("s_mov_b32", sr(rWA + 3), "0x20000")
        def loads():
            for k in range(4):
                I("buffer_load_dwordx4", vr(Y + 4 * k, 4), vr(vA), sr(rWS, 4), sr(sU0), mods=f"offen offset:{k * 1024} sc1")
        self.poll(loads, 4, range(Y, Y + 16))
        self.stamp(12)
        I("s_waitcnt", "vmcnt(0)")
        I("v_lshlrev_b32", vr(vX), 16, vr(vX))
        for e in range(4):
            I("v_add_f32", vr(S + e), vr(Y + e), vr(Y + 4 + e)); I("v_add_f32", vr(S + 4 + e), vr(Y + 8 + e), vr(Y + 12 + e))
        for e in range(4): I("v_add_f32", vr(S + e), vr(S + e), vr(S + 4 + e))
        self.reduce16(S, vH)
        I("v_cvt_pk_bf16_f32", vr(vH), vr(vH), vr(vH))
        I("v_lshlrev_b32", vr(vH), 16, vr(vH))
        I("v_add_f32", vr(vH), vr(vH), vr(vX))
        I("v_cvt_pk_bf16_f32", vr(vH), vr(vH), vr(vH))
        I("v_lshlrev_b32", vr(vH), 16, vr(vH))
        I("v_min_u32", vr(12), -2, vr(vH))
        self.execm("0x000f000f", "0x000f000f")
        I("buffer_store_dword", vr(12), vr(vAh), sr(rWS, 4), sr(sU2), mods="offen sc1")
        self.execall()
        self.stamp(13)
        def loads3():
            for k in range(3):
                I("buffer_load_dwordx4", vr(U3 + 4 * k, 4), vr(vA), sr(rWA, 4), 0, mods=f"offen offset:{k * 1024} sc1")
        self.poll(loads3, 3, range(U3, U3 + 12))
        self.stamp(14)
        for e in range(4):
            I("v_add_f32", vr(S + e), vr(U3 + e), vr(U3 + 4 + e))
        for e in range(4): I("v_add_f32", vr(S + e), vr(S + e), vr(U3 + 8 + e))
        self.reduce16(S, 12)
        I("v_cvt_pk_bf16_f32", vr(12), vr(12), vr(12))
        I("v_lshlrev_b32", vr(12), 16, vr(12))
        I("v_add_f32", vr(12), vr(12), vr(vH))
        I("v_cvt_pk_bf16_f32", vr(12), vr(12), vr(12))
        self.execm("0x000f000f", "0x000f000f")
        I("buffer_store_short", vr(12), vr(vAo), sr(rOUT, 4), sr(sU3), mods="offen")
        self.execall()
        if self.dbgtime:
            I("s_memrealtime", "s[12:13]")
            I("s_waitcnt", "lgkmcnt(0)")
            I("s_sub_u32", sr(sT1), sr(sT1), "s38")
            I("v_mov_b32", vr(12), sr(sT1)); I("v_mov_b32", vr(vT6), 0)
            I("s_lshl_b32", sr(sT0), sr(sBH), 2)
            I("s_mov_b64", "exec", 1)
            I("buffer_store_dword", vr(12), vr(vT6), sr(rDBG, 4), sr(sT0), mods="offen")
            self.execall()
        self.stamp(15)

    def ffn_stage(self):
        a, I = self.a, self.I
        if self.stop in ("y", "h"):
            I("s_waitcnt", "vmcnt(0)"); I("s_barrier"); return
        vI4, vI2 = 8, 9
        B1, B2 = 64, 96
        I("s_waitcnt", "vmcnt(0)")
        I("s_barrier")
        I("v_lshrrev_b32", vr(vI4), 2, vr(vC)); I("v_and_b32", vr(vI2), 3, vr(vC))
        I("v_lshl_add_u32", vr(vT5), vr(vG), 3, vr(vI4)); I("v_lshlrev_b32", vr(vT5), 6, vr(vT5))
        I("v_lshl_add_u32", vr(vT5), vr(vI2), 3, vr(vT5))
        I("s_lshl_b32", sr(sT0), sr(sW), 13)
        I("v_add_u32", vr(vT5), sr(sT0), vr(vT5))
        for ks in range(4):
            for nt in range(2):
                o = L_WB + ks * 2048 + nt * 32
                I("ds_read_b64_tr_b16", vr(B1 + 8 * ks + 4 * nt, 2), vr(vT5), mods=f"offset:{o}")
                I("ds_read_b64_tr_b16", vr(B1 + 8 * ks + 4 * nt + 2, 2), vr(vT5), mods=f"offset:{o + 256}")
        I("v_lshl_add_u32", vr(vT6), vr(vG), 3, vr(vI4))
        I("s_movk_i32", sr(sT0), WROW)
        I("v_mul_lo_u32", vr(vT6), vr(vT6), sr(sT0))
        I("v_lshl_add_u32", vr(vT6), vr(vI2), 3, vr(vT6))
        I("s_lshl_b32", sr(sT0), sr(sW), 8)
        I("v_add_u32", vr(vT6), sr(sT0), vr(vT6))
        I("v_add_u32", vr(vT6), L_W2, vr(vT6))
        for tt in range(8):
            I("ds_read_b64_tr_b16", vr(B2 + 4 * tt, 2), vr(vT6), mods=f"offset:{32 * tt}")
            I("ds_read_b64_tr_b16", vr(B2 + 4 * tt + 2, 2), vr(vT6), mods=f"offset:{4 * WROW + 32 * tt}")
        vAh, vAhw, vAhr, vAuw, vAur, vAaw, vAar, vAo = 10, 11, 52, 53, 54, 55, 56, 57
        I("v_lshlrev_b32", vr(vAh), 5, vr(vLane))
        I("s_mov_b32", sr(sU0), hex(HBUF))
        I("v_lshlrev_b32", vr(vAhw), 4, vr(vLane)); I("s_lshl_b32", sr(sT0), sr(sW), 11); I("v_add_u32", vr(vAhw), sr(sT0), vr(vAhw))
        I("v_bfe_u32", vr(vT7), vr(vC), 2, 1)
        I("v_lshlrev_b32", vr(vAhr), 10, vr(vT7)); I("v_lshl_add_u32", vr(vAhr), vr(vG), 4, vr(vAhr))
        I("s_mul_i32", sr(sT0), sr(sW), 2048 + 256); I("v_add_u32", vr(vAhr), sr(sT0), vr(vAhr))
        I("v_and_b32", vr(vAuw), 1, vr(vG)); I("v_lshlrev_b32", vr(vAuw), 7, vr(vAuw))
        I("v_lshrrev_b32", vr(vT5), 1, vr(vG)); I("v_lshl_add_u32", vr(vAuw), vr(vT5), 6, vr(vAuw))
        I("v_lshl_add_u32", vr(vAuw), vr(vC), 2, vr(vAuw))
        I("s_lshl_b32", sr(sT0), sr(sW), 8); I("v_add_u32", vr(vAuw), sr(sT0), vr(vAuw))
        I("v_lshlrev_b32", vr(vAur), 2, vr(vLane))
        I("s_lshl_b32", sr(sT0), sr(sW), 7)
        I("v_lshlrev_b32", vr(vAaw), 1, vr(vLane)); I("v_add_u32", vr(vAaw), sr(sT0), vr(vAaw))
        I("v_lshlrev_b32", vr(vAar), 6, vr(vT7)); I("v_lshl_add_u32", vr(vAar), vr(vG), 4, vr(vAar)); I("v_add_u32", vr(vAar), sr(sT0), vr(vAar))
        I("v_and_b32", vr(vAo), 1, vr(vG)); I("s_mov_b32", sr(sT0), 32 * USTR); I("v_mul_lo_u32", vr(vAo), vr(vAo), sr(sT0))
        I("v_lshrrev_b32", vr(vT6), 1, vr(vG)); I("s_movk_i32", sr(sT0), USTR); I("v_mul_lo_u32", vr(vT6), vr(vT6), sr(sT0))
        I("v_add_u32", vr(vAo), vr(vAo), vr(vT6))
        I("v_lshl_add_u32", vr(vAo), vr(vC), 2, vr(vAo))
        I("s_mul_i32", sr(sU1), sr(sW), 8 * USTR)
        I("s_lshl_b32", sr(sT1), sr(sF), 6); I("s_add_u32", sr(sU1), sr(sU1), sr(sT1)); I("s_add_u32", sr(sU1), sr(sU1), hex(UPART))
        I("s_mov_b32", sr(sMask), 0); I("s_mov_b32", sr(sMask + 1), -1)
        I("s_waitcnt", "lgkmcnt(0)")
        H0, H1 = 12, 20
        top = self.dry_top()
        sk = self.skip_if_dry()
        def loads():
            I("buffer_load_dwordx4", vr(H0, 4), vr(vAh), sr(rWS, 4), sr(sU0), mods="offen sc1")
            I("buffer_load_dwordx4", vr(H0 + 4, 4), vr(vAh), sr(rWS, 4), sr(sU0), mods="offen offset:16 sc1")
            I("buffer_load_dwordx4", vr(H1, 4), vr(vAh), sr(rWS, 4), sr(sU0), mods="offen offset:2048 sc1")
            I("buffer_load_dwordx4", vr(H1 + 4, 4), vr(vAh), sr(rWS, 4), sr(sU0), mods="offen offset:2064 sc1")
        self.poll(loads, 4, range(12, 28))
        a.label(sk)
        self.stamp(9)
        A1, A2, B1s, B2s = 28, 29, 30, 31
        I("v_add_f32", vr(A1), vr(H0), vr(H0 + 1)); I("v_add_f32", vr(B1s), vr(H1), vr(H1 + 1))
        I("v_mul_f32", vr(A2), vr(H0), vr(H0)); I("v_mul_f32", vr(B2s), vr(H1), vr(H1))
        I("v_fmac_f32", vr(A2), vr(H0 + 1), vr(H0 + 1)); I("v_fmac_f32", vr(B2s), vr(H1 + 1), vr(H1 + 1))
        for e in range(2, 8):
            I("v_add_f32", vr(A1), vr(A1), vr(H0 + e)); I("v_add_f32", vr(B1s), vr(B1s), vr(H1 + e))
            I("v_fmac_f32", vr(A2), vr(H0 + e), vr(H0 + e)); I("v_fmac_f32", vr(B2s), vr(H1 + e), vr(H1 + e))
        self.wave_reduce63("v_add_f32", [A1, A2, B1s, B2s])
        for (r, s) in ((A1, sT0), (A2, sT1), (B1s, sT2), (B2s, sT3)):
            I("v_readlane_b32", sr(s), vr(r), 63)
        M0, M1, R0, R1, T0, T1 = 28, 29, 30, 31, 32, 33
        self.ln_scalars(sT0, sT1, sT2, sT3, M0, M1, R0, R1, T0, T1)
        I("v_mul_f32", vr(M0), vr(M0), vr(R0)); I("v_mul_f32", vr(M1), vr(M1), vr(R1))
        HN = 36
        for e in range(8):
            I("v_fma_f32", vr(HN + e), vr(H0 + e), vr(R0), f"-{vr(M0)}")
            I("v_fma_f32", vr(HN + 8 + e), vr(H1 + e), vr(R1), f"-{vr(M1)}")
        for k in range(8):
            I("v_cvt_pk_bf16_f32", vr(HN + k), vr(HN + 2 * k), vr(HN + 2 * k + 1))
        I("ds_write_b128", vr(vAhw), vr(HN, 4), mods=f"offset:{L_HN}")
        I("ds_write_b128", vr(vAhw), vr(HN + 4, 4), mods=f"offset:{L_HN + 1024}")
        I("s_waitcnt", "lgkmcnt(0)")
        for ks in range(4):
            I("ds_read_b128", vr(HN + 4 * ks, 4), vr(vAhr), mods=f"offset:{L_HN + ks * 64}")
        I("s_waitcnt", "lgkmcnt(0)")
        D0, D1 = 28, 32
        for ks in range(4):
            I("v_mfma_f32_16x16x32_bf16", vr(D0, 4), vr(HN + 4 * ks, 4), vr(B1 + 8 * ks, 4), (0 if ks == 0 else vr(D0, 4)))
            I("v_mfma_f32_16x16x32_bf16", vr(D1, 4), vr(HN + 4 * ks, 4), vr(B1 + 8 * ks + 4, 4), (0 if ks == 0 else vr(D1, 4)))
        I("v_cndmask_b32", vr(D0), vr(D0), vr(D1), sr(sMask, 2))
        I("ds_write_b32", vr(vAuw), vr(D0), mods=f"offset:{L_UP}")
        I("s_waitcnt", "lgkmcnt(0)")
        I("s_barrier")
        for w in range(4):
            I("ds_read_b32", vr(28 + w), vr(vAur), mods=f"offset:{L_UP + w * 256}")
        I("s_waitcnt", "lgkmcnt(0)")
        I("v_add_f32", vr(28), vr(28), vr(29)); I("v_add_f32", vr(30), vr(30), vr(31))
        I("v_add_f32", vr(28), vr(28), vr(30))
        I("v_cvt_pk_bf16_f32", vr(29), vr(28), vr(28))
        I("v_lshlrev_b32", vr(28), 16, vr(29))
        I("v_mul_f32", vr(29), "0xbfb8aa3b", vr(28))
        I("v_exp_f32", vr(29), vr(29))
        I("v_add_f32", vr(29), 1.0, vr(29))
        I("v_rcp_f32", vr(29), vr(29))
        I("v_mul_f32", vr(28), vr(28), vr(29))
        I("v_cvt_pk_bf16_f32", vr(28), vr(28), vr(28))
        I("ds_write_b16", vr(vAaw), vr(28), mods=f"offset:{L_ACT}")
        I("s_waitcnt", "lgkmcnt(0)")
        I("ds_read_b128", vr(28, 4), vr(vAar), mods=f"offset:{L_ACT}")
        I("s_waitcnt", "lgkmcnt(0)")
        self.stamp(10)
        DD = 32
        assert DD + 20 <= vAhr
        I("s_waitcnt", "vmcnt(0)")
        Dregs = [12, 16, 20, 24, 36, 40, 44, 48]
        for tt in range(8):
            I("v_mfma_f32_16x16x32_bf16", vr(Dregs[tt], 4), vr(28, 4), vr(B2 + 4 * tt, 4), 0)
        for tt in range(0, 8, 2):
            I("v_cndmask_b32", vr(32 + tt // 2), vr(Dregs[tt]), vr(Dregs[tt + 1]), sr(sMask, 2))
        for tt in range(4): self.clamp(32 + tt)
        lab_nb = self.L("NB")
        I("s_cmp_eq_u32", sr(sDry), 0)
        I("s_cbranch_scc1", lab_nb)
        I("s_barrier")
        a.label(lab_nb)
        self.dry_end(top)
        for tt in range(4):
            I("buffer_store_dword", vr(32 + tt), vr(vAo), sr(rWS, 4), sr(sU1), mods="offen sc1")
            if tt < 3: I("s_add_u32", sr(sU1), sr(sU1), 2 * USTR)
        self.stamp(11)

    def finish(self):
        a, I = self.a, self.I
        a.label("L_FIN")
        if self.stamps:
            self.stamp(20)
            self.execall()
            I("s_lshl_b32", sr(sT0), "s2", 4); I("s_add_u32", sr(sT0), sr(sT0), sr(sW)); I("s_lshl_b32", sr(sT0), sr(sT0), 8)
            I("s_add_u32", sr(sT0), sr(sT0), hex(STAMP))
            I("v_lshlrev_b32", vr(vT5), 2, vr(vLane))
            I("buffer_store_dword", "v0", vr(vT5), sr(rWS, 4), sr(sT0), mods="offen")
        a.label("L_END")
        return self.wrap()

    def wrap(self):
        body = self.a.text()
        hdr = open("sequential_preLN__mha_block_cached__dense_activation_silu__decode.s.ref").read().split("\n")
        top = [l for l in hdr if l.startswith(";") and "@launch" not in l and "Override" not in l and "grid=ceil" not in l][:12]
        out = "\n".join(top) + "\n"
        out += f"; @launch grid=(256,1,1) block=(1024,1,1) lds={LDS_SIZE}\n"
        out += f""".amdgcn_target "amdgcn-amd-amdhsa--gfx950"
.text
.globl {KN}
.p2align 8
.type {KN},@function
{KN}:
{body}  s_endpgm
.section .rodata,"a"
.p2align 6
.amdhsa_kernel {KN}
  .amdhsa_next_free_vgpr 128
  .amdhsa_next_free_sgpr 102
  .amdhsa_accum_offset 128
  .amdhsa_group_segment_fixed_size 0
  .amdhsa_kernarg_size 88
  .amdhsa_user_sgpr_count 2
  .amdhsa_user_sgpr_kernarg_segment_ptr 1
  .amdhsa_system_sgpr_workgroup_id_x 1
.end_amdhsa_kernel
"""
        return out

if __name__ == "__main__":
    kw = {}
    for x in sys.argv[2:]:
        k, v = x.split("=")
        kw[k] = int(v) if v.lstrip("-").isdigit() and k != "prios" else v
    g = Gen(**kw)
    open(sys.argv[1], "w").write(g.build())
    print("nops inserted:", g.a.nops, "lines", len(g.a.lines))
```

```python
import sys
from asmlib import Asm, vr, sr

KN = "sequential_preLN__mha_block_cached__dense_activation_silu__decode_kernel"

ML    = 0x040000
OPART = 0x050000
YPART = 0x080000
HBUF  = 0x100000
UPART = 0x110000
USTR  = 48 * 64
NF    = 43
STAMP = 0x200000
WSSZ  = 0x400000
L_QP = 0
L_OP = 0
L_QB = 8192
L_ML = 8192 + 256
L_CNT = 8192 + 256 + 128
L_QCNT = L_CNT + 4
L_FQ = L_CNT + 8
L_UP = 8192 + 512
L_ACT = 8192 + 512 + 1024
L_HN = 8192 + 2048 + 1024
L_WB = 20480
L_W2 = L_WB + 32768
L_XN = L_WB
WROW = 1056
LDS_SIZE = L_WB + 64 * WROW + 256

LOG2E = 0x3FB8AA3B
SCALE = 0x3DB504F3
SPIN_MAX = 400000
OOB = 0x40000000

sW, sE, sHalf, sBH, sB, sH, sM = 3, 4, 5, 6, 7, 8, 9
sDry = 10
sT0, sT1, sT2, sT3, sT4 = 11, 12, 13, 14, 15
pX, pK, pV, pWQ, pWO, pBX, pW1, pW2, pOUT, pDBG, pWS = 16, 18, 20, 22, 24, 26, 28, 30, 32, 34, 36
sRB = 26
sRole = 27
sHW = 101
rK, rV, rWS, rX, rWQ, rWA, rWB, rOUT, rDBG = 40, 44, 48, 52, 56, 60, 64, 68, 72
sOFF = 76
sN = 93
sSpin = 94
sF = 95
sMask = 96
sU0, sU1, sU2, sU3 = 98, 99, 100, 101
sStamp0 = 38
rT1 = 16
vLane, vC, vG, vKV = 1, 2, 3, 4
vT5, vT6, vT7 = 5, 6, 7
vQ = 8
vD = 12
vS, vS2 = 16, 17
vACC = 20
DATA0 = 28
def kslot(i): return DATA0 + 4 * i
def vslot(i):
    if i < 8: return DATA0 + 4 * (17 + i)
    return DATA0 + 4 * (i - 8)

class Gen:
    def __init__(self, stamps=0, stop=None, skew=0, npre=2, dbgtime=0, nowq=0, prios="32211", nodma=0, noinv=0,
                 dry=0, pipe=0, wqflag="", late_wo=0, earlybar=1, npre2=15, hshift=8, map=0, pat=1, kfirst=0, t1test=0):
        self.a = Asm()
        self.stamps, self.stop, self.skew, self.npre, self.dbgtime = stamps, stop, skew, npre, dbgtime
        self.nowq, self.nodma, self.noinv, self.dry, self.pipe = nowq, nodma, noinv, dry, pipe
        self.prios = [int(c) for c in str(prios).zfill(5)]
        self.wqflag = wqflag
        self.late_wo = late_wo
        self.earlybar = earlybar
        self.npre2 = npre2
        self.hshift = hshift
        self.map = map
        self.pat = pat
        self.kfirst = kfirst
        self.t1test = t1test
        self.issued = []
        self.lab = 0
        self.wo_done = False

    def L(self, p="L"):
        self.lab += 1
        return f"{p}_{self.lab}"
    def I(self, *a, **k): self.a.I(*a, **k)

    def stamp(self, k):
        if not self.stamps: return
        if k == 0:
            self.I("s_memrealtime", sr(sStamp0, 2)); return
        if k == 1:
            self.I("s_waitcnt", "lgkmcnt(0)")
            self.I("v_mov_b32", "v0", 0)
            self.I("v_writelane_b32", "v0", sr(sStamp0), 0)
        self.I("s_memrealtime", sr(sStamp0, 2))
        self.I("s_waitcnt", "lgkmcnt(0)")
        self.I("v_writelane_b32", "v0", sr(sStamp0), k)

    def csel(self, dst, x, y):
        self.I("s_mov_b32", sr(dst), x)
        self.I("s_cselect_b32", sr(dst), sr(dst), y)
    def exec63(self):
        self.I("s_mov_b32", "exec_lo", 0); self.I("s_mov_b32", "exec_hi", "0x80000000")
    def execm(self, lo, hi):
        self.I("s_mov_b32", "exec_lo", lo); self.I("s_mov_b32", "exec_hi", hi)
    def execall(self): self.I("s_mov_b64", "exec", -1)

    def srd(self, r, plo, size, addoff=None):
        I = self.I
        if addoff is None:
            I("s_mov_b32", sr(r), sr(plo)); I("s_mov_b32", sr(r + 1), sr(plo + 1))
        else:
            I("s_add_u32", sr(r), sr(plo), addoff); I("s_addc_u32", sr(r + 1), sr(plo + 1), 0)
        I("s_mov_b32", sr(r + 2), size); I("s_mov_b32", sr(r + 3), "0x20000")

    def vm(self, tag, op, *ops, mods=""):
        self.I(op, *ops, mods=mods)
        self.issued.append(tag)
    def wait_vm(self, tag):
        idx = self.issued.index(tag)
        n = len(self.issued) - 1 - idx
        self.I("s_waitcnt", f"vmcnt({min(n, 63)})")

    def dpp(self, op, d, s0, s1, ctrl, rm="0xf"):
        self.I(op + "_dpp", vr(d), vr(s0), vr(s1), mods=f"{ctrl} row_mask:{rm} bank_mask:0xf")
    def row_reduce(self, op, regs):
        for sh in (8, 4, 2, 1):
            for r in regs: self.dpp(op, r, r, r, f"row_ror:{sh}")
    def wave_reduce63(self, op, regs):
        self.row_reduce(op, regs)
        for r in regs: self.dpp(op, r, r, r, "row_bcast:15", "0xa")
        for r in regs: self.dpp(op, r, r, r, "row_bcast:31", "0xc")
    def swap_add(self, which, a, b, d, op="v_add_f32"):
        self.I(f"v_permlane{which}_swap_b32", vr(a), vr(b))
        self.I(op, vr(d), vr(a), vr(b))
    def unpack(self, lo, hi, src):
        self.I("v_lshlrev_b32", vr(lo), 16, vr(src))
        self.I("v_and_b32", vr(hi), "0xffff0000", vr(src))
    def clamp(self, r): self.I("v_min_u32", vr(r), -2, vr(r))
    def perm_g(self, d, t):
        I = self.I
        I("v_and_b32", vr(d), 1, vr(vG)); I("v_lshlrev_b32", vr(d), 1, vr(d))
        I("v_lshrrev_b32", vr(t), 1, vr(vG)); I("v_or_b32", vr(d), vr(d), vr(t))

    def check_regs(self, regs, t):
        I = self.I
        rs = list(regs)
        if len(rs) == 1:
            I("v_cmp_eq_u32", "vcc", -1, vr(rs[0])); return
        first = True
        while rs:
            if first:
                if len(rs) >= 3:
                    I("v_max3_u32", vr(t), vr(rs[0]), vr(rs[1]), vr(rs[2])); rs = rs[3:]
                else:
                    I("v_max_u32", vr(t), vr(rs[0]), vr(rs[1])); rs = rs[2:]
                first = False
            elif len(rs) >= 2:
                I("v_max3_u32", vr(t), vr(t), vr(rs[0]), vr(rs[1])); rs = rs[2:]
            else:
                I("v_max_u32", vr(t), vr(t), vr(rs[0])); rs = rs[1:]
        I("v_cmp_eq_u32", "vcc", -1, vr(t))

    def poll(self, loads, nloads, regs, t=vT7):
        I = self.I
        lp, ok = self.L("POLL"), self.L("POK")
        I("s_mov_b32", sr(sSpin), SPIN_MAX)
        if self.pipe: loads()
        self.a.label(lp)
        loads()
        I("s_waitcnt", f"vmcnt({nloads if self.pipe else 0})")
        self.check_regs(regs, t)
        I("s_cbranch_vccz", ok)
        I("s_sub_u32", sr(sSpin), sr(sSpin), 1)
        I("s_cbranch_scc0", lp)
        self.a.label(ok)

    def ln_scalars(self, s10, s20, s11, s21, vm0, vm1, vr0, vr1, t0, t1):
        I = self.I
        inv = "0x3b000000"
        I("v_mov_b32", vr(vm0), sr(s10)); I("v_mov_b32", vr(vm1), sr(s11))
        I("v_mov_b32", vr(vr0), sr(s20)); I("v_mov_b32", vr(vr1), sr(s21))
        for r in (vm0, vm1, vr0, vr1): I("v_mul_f32", vr(r), inv, vr(r))
        I("v_fma_f32", vr(vr0), f"-{vr(vm0)}", vr(vm0), vr(vr0))
        I("v_fma_f32", vr(vr1), f"-{vr(vm1)}", vr(vm1), vr(vr1))
        I("v_max_f32", vr(vr0), 0, vr(vr0)); I("v_max_f32", vr(vr1), 0, vr(vr1))
        I("v_cvt_pk_bf16_f32", vr(t0), vr(vm0), vr(vm1))
        I("v_cvt_pk_bf16_f32", vr(t1), vr(vr0), vr(vr1))
        self.unpack(vm0, vm1, t0)
        self.unpack(vr0, vr1, t1)
        I("v_add_f32", vr(vr0), "0x3727c5ac", vr(vr0)); I("v_add_f32", vr(vr1), "0x3727c5ac", vr(vr1))
        I("v_cvt_pk_bf16_f32", vr(t1), vr(vr0), vr(vr1))
        self.unpack(vr0, vr1, t1)
        I("v_sqrt_f32", vr(vr0), vr(vr0)); I("v_sqrt_f32", vr(vr1), vr(vr1))
        I("v_cvt_pk_bf16_f32", vr(t1), vr(vr0), vr(vr1))
        self.unpack(vr0, vr1, t1)
        I("v_rcp_f32", vr(vr0), vr(vr0)); I("v_rcp_f32", vr(vr1), vr(vr1))

    def ln_scalars1(self, s1, s2, vm0, vr0, t0):
        I = self.I
        inv = "0x3b000000"
        I("v_mov_b32", vr(vm0), sr(s1)); I("v_mov_b32", vr(vr0), sr(s2))
        I("v_mul_f32", vr(vm0), inv, vr(vm0)); I("v_mul_f32", vr(vr0), inv, vr(vr0))
        I("v_fma_f32", vr(vr0), f"-{vr(vm0)}", vr(vm0), vr(vr0))
        I("v_max_f32", vr(vr0), 0, vr(vr0))
        I("v_cvt_pk_bf16_f32", vr(t0), vr(vm0), vr(vr0))
        self.unpack(vm0, vr0, t0)
        I("v_add_f32", vr(vr0), "0x3727c5ac", vr(vr0))
        I("v_cvt_pk_bf16_f32", vr(t0), vr(vr0), vr(vr0))
        I("v_lshlrev_b32", vr(vr0), 16, vr(t0))
        I("v_sqrt_f32", vr(vr0), vr(vr0))
        I("v_cvt_pk_bf16_f32", vr(t0), vr(vr0), vr(vr0))
        I("v_lshlrev_b32", vr(vr0), 16, vr(t0))
        I("v_rcp_f32", vr(vr0), vr(vr0))

    def lds_set(self, off, val_sgpr_or_imm):
        I = self.I
        I("v_mov_b32", vr(vT6), off); I("v_mov_b32", vr(vT7), val_sgpr_or_imm)
        I("ds_write_b32", vr(vT6), vr(vT7))

    def lds_wait(self, off, val, sleep=1):
        I = self.I
        lp, ok = self.L("LW"), self.L("LWOK")
        I("v_mov_b32", vr(vT6), off)
        self.a.label(lp)
        I("ds_read_b32", vr(vT7), vr(vT6))
        I("s_waitcnt", "lgkmcnt(0)")
        I("v_readfirstlane_b32", sr(sT4), vr(vT7))
        I("s_cmp_ge_u32", sr(sT4), val)
        I("s_cbranch_scc1", ok)
        if sleep: I("s_sleep", sleep)
        I("s_branch", lp)
        self.a.label(ok)

    def invalidate(self):
        I = self.I
        for k in range(4): I("v_mov_b32", vr(20 + k), -1)
        I("v_lshlrev_b32", vr(vT5), 4, vr(vLane))
        I("s_lshl_b32", sr(sT0), sr(sBH), 2); I("s_add_u32", sr(sT0), sr(sT0), sr(sM))
        I("s_lshl_b32", sr(sT1), sr(sT0), 9); I("s_add_u32", sr(sT1), sr(sT1), hex(OPART))
        I("s_lshl_b32", sr(sT2), sr(sT0), 3); I("s_add_u32", sr(sT2), sr(sT2), hex(ML))
        self.execm(-1, 0)
        I("buffer_store_dwordx4", vr(20, 4), vr(vT5), sr(rWS, 4), sr(sT1), mods="offen sc1")
        I("s_mov_b64", "exec", 1)
        I("buffer_store_dwordx2", vr(20, 2), vr(vT5), sr(rWS, 4), sr(sT2), mods="offen sc1")
        I("s_lshl_b32", sr(sT1), sr(sBH), 6); I("s_add_u32", sr(sT1), sr(sT1), hex(HBUF))
        I("s_cmp_eq_u32", sr(sRole), 3)
        I("s_cselect_b32", sr(sT1), sr(sT1), hex(OOB))
        I("s_mov_b64", "exec", 15)
        I("buffer_store_dwordx4", vr(20, 4), vr(vT5), sr(rWS, 4), sr(sT1), mods="offen sc1")
        self.execall()
        I("s_cmp_eq_u32", sr(sRole), 1)
        self.csel(sT0, 4096, USTR)
        self.csel(sT1, hex(YPART), hex(UPART))
        I("s_lshl_b32", sr(sT2), sr(sF), 6); I("s_add_u32", sr(sT1), sr(sT1), sr(sT2))
        I("s_cmp_eq_u32", sr(sRole), 0); I("s_cselect_b32", sr(sT1), hex(OOB), sr(sT1))
        I("s_cmp_eq_u32", sr(sRole), 3); I("s_cselect_b32", sr(sT1), hex(OOB), sr(sT1))
        I("v_lshrrev_b32", vr(vT6), 2, vr(vLane))
        I("v_mul_lo_u32", vr(vT6), vr(vT6), sr(sT0))
        I("v_and_b32", vr(vT7), 3, vr(vLane)); I("v_lshlrev_b32", vr(vT7), 4, vr(vT7))
        I("v_add_u32", vr(vT6), vr(vT6), vr(vT7))
        I("s_lshl_b32", sr(sT0), sr(sT0), 4)
        for k in range(4):
            I("buffer_store_dwordx4", vr(20, 4), vr(vT6), sr(rWS, 4), sr(sT1), mods="offen sc1")
            if k < 3: I("s_add_u32", sr(sT1), sr(sT1), sr(sT0))

    def roles(self):
        a, I = self.a, self.I
        self.srd(rWS, pWS, hex(WSSZ))
        self.srd(rDBG, pDBG, 256)
        self.srd(rOUT, pOUT, 2048)
        I("s_mov_b32", sr(sRole), 0)
        I("s_add_u32", sr(sHW), sr(sH), self.hshift); I("s_and_b32", sr(sHW), sr(sHW), 31)
        I("s_lshl_b32", sr(sF), sr(sHW), 1); I("s_add_u32", sr(sF), sr(sF), sr(sB))
        I("s_cmp_eq_u32", sr(sM), 0); I("s_cselect_b32", sr(sRole), 1, sr(sRole))
        I("s_cmp_eq_u32", sr(sM), 1); I("s_cselect_b32", sr(sRole), 3, sr(sRole))
        I("s_and_b32", sr(sT1), "s2", 7); I("s_lshr_b32", sr(sT1), sr(sT1), 1); I("s_lshl_b32", sr(sT1), sr(sT1), 4)
        I("s_lshr_b32", sr(sT2), "s2", 4); I("s_add_u32", sr(sT1), sr(sT1), sr(sT2))
        I("s_cmp_lt_u32", sr(sT1), NF); I("s_cselect_b32", sr(sT2), 2, 0)
        I("s_cmp_eq_u32", sr(sM), 2); I("s_cselect_b32", sr(sT2), sr(sT2), 0)
        I("s_cmp_eq_u32", sr(sT2), 2); I("s_cselect_b32", sr(sRole), 2, sr(sRole)); I("s_cselect_b32", sr(sF), sr(sT1), sr(sF))
        lab_f, lab_done = self.L("RF"), self.L("RDONE")
        I("s_cmp_eq_u32", sr(sRole), 2)
        I("s_cbranch_scc1", lab_f)
        I("s_lshl_b32", sr(sT0), sr(sF), 16)
        self.srd(rWA, pWO, (65536 if not self.nodma else 0), sr(sT0))
        self.srd(rWB, pWO, 0, sr(sT0))
        I("s_branch", lab_done)
        a.label(lab_f)
        I("s_lshl_b32", sr(sT0), sr(sF), 6)
        I("s_sub_u32", sr(sT1), hex(512 * 2752), sr(sT0))
        self.srd(rWA, pW1, sr(sT1), sr(sT0))
        I("s_lshl_b32", sr(sT0), sr(sF), 15)
        self.srd(rWB, pW2, 32768, sr(sT0))
        a.label(lab_done)

    def build(self):
        a, I = self.a, self.I
        self.stamp(0)
        if self.dbgtime: I("s_memrealtime", "s[38:39]")
        I("s_load_dwordx16", sr(16, 16), "s[0:1]", 0)
        I("s_load_dwordx4", sr(32, 4), "s[0:1]", 64)
        I("s_load_dwordx2", sr(36, 2), "s[0:1]", 80)
        I("s_cmp_ge_u32", "s2", 256)
        I("s_cbranch_scc1", "L_END")
        I("v_and_b32", vr(vLane), 63, "v0")
        I("v_lshrrev_b32", vr(vT5), 6, "v0")
        I("v_and_b32", vr(vC), 15, "v0")
        I("v_readfirstlane_b32", sr(sW), vr(vT5))
        I("v_bfe_u32", vr(vG), "v0", 4, 2)
        I("s_and_b32", sr(sT0), "s2", 7)
        I("s_lshr_b32", sr(sT1), "s2", 3)
        if self.map == 0:
            I("s_and_b32", sr(sE), sr(sT0), 1)
            I("s_lshr_b32", sr(sT0), sr(sT0), 1)
            I("s_and_b32", sr(sHalf), sr(sT1), 1)
            I("s_lshr_b32", sr(sT2), sr(sT1), 1)
            I("s_lshr_b32", sr(sB), sr(sT2), 3)
            I("s_and_b32", sr(sT2), sr(sT2), 7)
            I("s_lshl_b32", sr(sH), sr(sT0), 3); I("s_add_u32", sr(sH), sr(sH), sr(sT2))
        else:
            I("s_and_b32", sr(sE), sr(sT1), 1)
            I("s_bfe_u32", sr(sHalf), sr(sT1), "0x10001")
            I("s_bfe_u32", sr(sB), sr(sT1), "0x10002")
            I("s_lshr_b32", sr(sT2), sr(sT1), 3)
            I("s_lshl_b32", sr(sH), sr(sT0), 2); I("s_add_u32", sr(sH), sr(sH), sr(sT2))
        I("s_lshl_b32", sr(sBH), sr(sB), 5); I("s_add_u32", sr(sBH), sr(sBH), sr(sH))
        I("s_lshl_b32", sr(sM), sr(sHalf), 1); I("s_add_u32", sr(sM), sr(sM), sr(sE))
        I("v_lshlrev_b32", vr(vKV), 4, vr(vLane))
        if self.pat == 1:
            I("s_lshl_b32", sr(sT0), sr(sW), 15)
            I("v_add_u32", vr(vKV), sr(sT0), vr(vKV))
            I("s_cmp_eq_u32", sr(sE), 0)
            self.csel(sT0, 1024, -1024)
            self.csel(sN, 16 + self.skew, 16 - self.skew)
            I("s_mul_i32", sr(sOFF), sr(sE), 31744)
        else:
            I("s_cmp_eq_u32", sr(sE), 0)
            self.csel(sN, 16 + self.skew, 16 - self.skew)
            I("s_mul_i32", sr(sT0), sr(sN), sr(sW)); I("s_lshl_b32", sr(sT0), sr(sT0), 10)
            I("v_add_u32", vr(vKV), sr(sT0), vr(vKV))
            I("s_movk_i32", sr(sT0), 1024)
            I("s_mul_i32", sr(sOFF), sr(sE), 16 * (16 + self.skew) * 1024)
        for i in range(1, 17):
            I("s_add_u32", sr(sOFF + i), sr(sOFF + i - 1), sr(sT0))
        for i in (15, 16):
            I("s_cmp_gt_u32", sr(sN), i)
            I("s_cselect_b32", sr(sOFF + i), sr(sOFF + i), hex(OOB))
        I("s_waitcnt", "lgkmcnt(0)")
        I("s_setprio", self.prios[0])
        lab_r1 = self.L("RL1")
        I("s_cmp_eq_u32", sr(sW), 0)
        I("s_cbranch_scc0", lab_r1)
        self.roles()
        if not self.noinv: self.invalidate()
        a.label(lab_r1)
        I("s_lshl_b32", sr(sT0), sr(sBH), 20); I("s_lshl_b32", sr(sT1), sr(sHalf), 19); I("s_add_u32", sr(sT0), sr(sT0), sr(sT1))
        self.srd(rK, pK, "0x80000", sr(sT0))
        self.srd(rV, pV, "0x80000", sr(sT0))
        self.srd(rX, pX, 2048)
        I("s_lshl_b32", sr(sT0), sr(sH), 8)
        I("s_sub_u32", sr(sT1), hex(512 * 8192), sr(sT0))
        self.srd(rWQ, pWQ, sr(sT1), sr(sT0))
        if self.t1test:
            I("s_lshl_b32", sr(sT0), sr(sH), 17)
            self.srd(rT1, pWO, 131072, sr(sT0))
        NP = self.npre
        XF, WQ = 8, kslot(17)
        if self.map == 0:
            I("s_lshl_b32", sr(sT0), sr(sB), 1); I("s_add_u32", sr(sT0), sr(sT0), sr(sHalf)); I("s_lshl_b32", sr(sT0), sr(sT0), 2)
        else:
            I("s_lshr_b32", sr(sT0), "s2", 3); I("s_and_b32", sr(sT0), sr(sT0), 7); I("s_lshl_b32", sr(sT0), sr(sT0), 1)
        I("s_add_u32", sr(sT0), sr(sT0), sr(sW)); I("s_and_b32", sr(sRB), sr(sT0), 15)
        I("v_lshlrev_b32", vr(vT5), 4, vr(vLane))
        I("s_lshl_b32", sr(sT1), sr(sB), 10)
        self.vm("xf", "buffer_load_dwordx4", vr(XF, 4), vr(vT5), sr(rX, 4), sr(sT1), mods="offen")
        I("s_lshl_b32", sr(sT0), sr(sRB), 5)
        I("v_lshl_add_u32", vr(vT6), vr(vG), 1, sr(sT0))
        I("v_lshlrev_b32", vr(vT7), 13, vr(vT6))
        I("v_lshl_add_u32", vr(vT7), vr(vC), 4, vr(vT7))
        for kq in range(NP):
            self.vm(f"K{kq}", "buffer_load_dwordx4", vr(kslot(kq), 4), vr(vKV), sr(rK, 4), sr(sOFF + kq), mods="offen nt")
        for i in range(8):
            off = (8 * (i >> 1) + (i & 1)) * 8192
            I("s_mov_b32", sr(sT2), off if not self.nowq else OOB)
            self.vm(f"wq{i}", "buffer_load_dwordx4", vr(WQ + 4 * i, 4), vr(vT7), sr(rWQ, 4), sr(sT2), mods=("offen " + self.wqflag).strip())
            if i == 1:
                I("v_lshlrev_b32", vr(vT5), 2, vr(vLane)); I("v_mov_b32", vr(vT6), 0)
                I("s_mov_b64", "exec", 15)
                I("ds_write_b32", vr(vT5), vr(vT6), mods=f"offset:{L_CNT}")
                self.execall()
                I("s_waitcnt", "lgkmcnt(0)")
                I("s_barrier")
        I("s_setprio", self.prios[1])
        for kq in range(NP, self.npre2):
            self.vm(f"K{kq}", "buffer_load_dwordx4", vr(kslot(kq), 4), vr(vKV), sr(rK, 4), sr(sOFF + kq), mods="offen nt")
        self.stamp(1)
        lab_r2 = self.L("RL2")
        I("s_cmp_eq_u32", sr(sW), 0)
        I("s_cbranch_scc1", lab_r2)
        self.roles()
        a.label(lab_r2)
        I("s_mov_b32", sr(sT4), "0x3f803f80")
        self.wait_vm("xf")
        lab_noat = self.L("NOAT")
        I("s_cmp_eq_u32", sr(sW), 0)
        I("s_cbranch_scc0", lab_noat)
        self.stamp(17)
        I("v_mov_b32", vr(vT5), 0); I("v_mov_b32", vr(vT6), 1)
        I("s_lshl_b32", sr(sT0), sr(sH), 2)
        I("s_mov_b64", "exec", 1)
        I("buffer_atomic_add", vr(vT6), vr(vT5), sr(rDBG, 4), sr(sT0), mods="offen sc1")
        self.execall()
        a.label(lab_noat)
        I("s_mov_b32", sr(sT4), "0x3f803f80")
        A1, A2, T0 = 22, 23, 26
        for k in range(4):
            I("v_dot2_f32_bf16", vr(A1), vr(XF + k), sr(sT4), (0 if k == 0 else vr(A1)))
            I("v_dot2_f32_bf16", vr(A2), vr(XF + k), vr(XF + k), (0 if k == 0 else vr(A2)))
        self.wave_reduce63("v_add_f32", [A1, A2])
        I("v_readlane_b32", sr(sT0), vr(A1), 63); I("v_readlane_b32", sr(sT1), vr(A2), 63)
        M0, R0 = 22, 23
        self.ln_scalars1(sT0, sT1, M0, R0, T0)
        XU = 12
        for k in range(4): self.unpack(XU + 2 * k, XU + 2 * k + 1, XF + k)
        for e in range(8): I("v_sub_f32", vr(XU + e), vr(XU + e), vr(M0))
        for k in range(4): I("v_cvt_pk_bf16_f32", vr(XF + k), vr(XU + 2 * k), vr(XU + 2 * k + 1))
        for k in range(4): self.unpack(XU + 2 * k, XU + 2 * k + 1, XF + k)
        for e in range(8): I("v_mul_f32", vr(XU + e), vr(XU + e), vr(R0))
        for k in range(4): I("v_cvt_pk_bf16_f32", vr(XF + k), vr(XU + 2 * k), vr(XU + 2 * k + 1))
        I("v_lshlrev_b32", vr(vT5), 4, vr(vLane))
        I("s_lshl_b32", sr(sT0), sr(sW), 10)
        I("v_add_u32", vr(vT5), sr(sT0), vr(vT5))
        I("ds_write_b128", vr(vT5), vr(XF, 4), mods=f"offset:{L_XN}")
        I("s_lshl_b32", sr(sT1), sr(sRB), 6); I("s_add_u32", sr(sT0), sr(sT0), sr(sT1))
        I("v_lshlrev_b32", vr(vT5), 2, vr(vG))
        I("v_add_u32", vr(vT5), sr(sT0), vr(vT5))
        I("s_waitcnt", "lgkmcnt(0)")
        for ip in range(4):
            I("ds_read_b32", vr(12 + ip), vr(vT5), mods=f"offset:{L_XN + 16 * ip}")
        P = vACC
        PT = kslot(15)
        I("s_mov_b32", sr(sT2), "0x05040100"); I("s_mov_b32", sr(sT3), "0x07060302")
        I("s_waitcnt", "lgkmcnt(0)")
        for ip in range(4):
            self.wait_vm(f"wq{2 * ip + 1}")
            wa, wb = WQ + 8 * ip, WQ + 8 * ip + 4
            for k in range(4):
                I("v_perm_b32", vr(PT + 2 * k), vr(wb + k), vr(wa + k), sr(sT2))
                I("v_perm_b32", vr(PT + 2 * k + 1), vr(wb + k), vr(wa + k), sr(sT3))
            for e in range(8):
                I("v_dot2_f32_bf16", vr(P + e), vr(PT + e), vr(12 + ip), (0 if ip == 0 else vr(P + e)))
        for i in range(4): I("v_permlane32_swap_b32", vr(P + 2 * i), vr(P + 2 * i + 1))
        for i in range(4): I("v_add_f32", vr(P + 2 * i), vr(P + 2 * i), vr(P + 2 * i + 1))
        for i in range(2): I("v_permlane16_swap_b32", vr(P + 4 * i), vr(P + 4 * i + 2))
        for i in range(2): I("v_add_f32", vr(8 + i), vr(P + 4 * i), vr(P + 4 * i + 2))
        self.perm_g(vT6, vT7)
        I("v_lshl_add_u32", vr(vT5), vr(vC), 3, vr(vT6))
        I("v_lshlrev_b32", vr(vT5), 2, vr(vT5))
        I("s_lshl_b32", sr(sT0), sr(sW), 9)
        I("v_add_u32", vr(vT5), sr(sT0), vr(vT5))
        I("ds_write_b32", vr(vT5), vr(8), mods=f"offset:{L_QP}")
        I("ds_write_b32", vr(vT5), vr(9), mods=f"offset:{L_QP + 16}")
        I("s_waitcnt", "lgkmcnt(0)")
        I("v_mov_b32", vr(vT6), L_QCNT); I("v_mov_b32", vr(vT7), 1)
        I("s_mov_b64", "exec", 1)
        I("ds_add_rtn_u32", vr(vT5), vr(vT6), vr(vT7))
        self.execall()
        I("s_waitcnt", "lgkmcnt(0)")
        I("v_readfirstlane_b32", sr(sT0), vr(vT5))
        self.stamp(2)
        lab_notlast = self.L("NOTLAST")
        I("s_cmp_eq_u32", sr(sT0), 15)
        I("s_cbranch_scc0", lab_notlast)
        I("v_and_b32", vr(vT5), 31, vr(vLane)); I("v_lshlrev_b32", vr(vT5), 4, vr(vT5))
        I("v_lshrrev_b32", vr(vT6), 5, vr(vLane)); I("v_lshlrev_b32", vr(vT6), 12, vr(vT6))
        I("v_add_u32", vr(vT5), vr(vT5), vr(vT6))
        RB = WQ
        for k in range(8):
            I("ds_read_b128", vr(RB + 4 * k, 4), vr(vT5), mods=f"offset:{L_QP + 512 * k}")
        I("s_waitcnt", "lgkmcnt(0)")
        for e in range(4):
            for k in (0, 2, 4, 6): I("v_add_f32", vr(RB + 4 * k + e), vr(RB + 4 * k + e), vr(RB + 4 * k + 4 + e))
        for e in range(4):
            I("v_add_f32", vr(RB + e), vr(RB + e), vr(RB + 8 + e)); I("v_add_f32", vr(RB + 16 + e), vr(RB + 16 + e), vr(RB + 24 + e))
        for e in range(4): I("v_add_f32", vr(RB + e), vr(RB + e), vr(RB + 16 + e))
        for e in range(4): I("v_mov_b32", vr(RB + 4 + e), vr(RB + e))
        for e in range(4): I("v_permlane32_swap_b32", vr(RB + e), vr(RB + 4 + e))
        for e in range(4): I("v_add_f32", vr(RB + e), vr(RB + e), vr(RB + 4 + e))
        I("v_cvt_pk_bf16_f32", vr(RB + 8), vr(RB), vr(RB + 1)); I("v_cvt_pk_bf16_f32", vr(RB + 9), vr(RB + 2), vr(RB + 3))
        I("v_and_b32", vr(vT5), 31, vr(vLane)); I("v_lshlrev_b32", vr(vT5), 3, vr(vT5))
        I("ds_write_b64", vr(vT5), vr(RB + 8, 2), mods=f"offset:{L_QB}")
        I("s_waitcnt", "lgkmcnt(0)")
        self.lds_set(L_FQ, 1)
        a.label(lab_notlast)
        I("s_setprio", self.prios[2])
        for i in range(self.npre2, 17):
            self.vm(f"K{i}", "buffer_load_dwordx4", vr(kslot(i), 4), vr(vKV), sr(rK, 4), sr(sOFF + i), mods="offen nt")
        if self.t1test:
            I("s_lshl_b32", sr(sT0), sr(sH), 17)
            I("s_add_u32", "s84", sr(pWO), sr(sT0)) if False else None
            I("v_lshrrev_b32", vr(vT5), 2, vr(vLane)); I("v_lshlrev_b32", vr(vT5), 10, vr(vT5))
            I("v_and_b32", vr(vT6), 3, vr(vLane)); I("v_lshl_add_u32", vr(vT5), vr(vT6), 4, vr(vT5))
            I("s_lshl_b32", sr(sT1), sr(sW), 6); I("v_add_u32", vr(vT5), sr(sT1), vr(vT5))
            I("s_mov_b32", sr(sT2), 0)
            I("s_lshl_b32", sr(sT1), sr(sW), 12); I("s_add_u32", sr(sT1), sr(sT1), 20480)
            for k in range(8):
                I("s_mov_b32", "m0", sr(sT1))
                self.vm(f"T1_{k}", "buffer_load_dwordx4", vr(vT5), sr(rT1, 4), sr(sT2), mods=("offen lds" if self.t1test == 1 else "offen nt lds"))
                I("s_add_u32", sr(sT2), sr(sT2), 16 * 1024)
        if not self.kfirst:
            I("s_setprio", self.prios[3])
            for i in range(8):
                self.vm(f"V{i}", "buffer_load_dwordx4", vr(vslot(i), 4), vr(vKV), sr(rV, 4), sr(sOFF + i), mods="offen nt")
            self.stamp(16)
            self.lds_wait(L_FQ, 1)
            I("s_setprio", self.prios[4])
            self.stamp(4)
            I("v_lshlrev_b32", vr(vT5), 4, vr(vC))
            I("ds_read_b128", vr(vQ, 4), vr(vT5), mods=f"offset:{L_QB}")
            I("s_mov_b32", sr(sMask), "0x00010001"); I("s_mov_b32", sr(sMask + 1), "0x00010001")
            I("v_mov_b32", vr(vS), 0)
            I("s_waitcnt", "lgkmcnt(0)")
            groups = [[0, 1, 2, 3], [4, 5, 6, 7], [8, 9, 10, 11], [12, 13, 14], [15, 16]]
            nextv = 8
            for grp in groups:
                self.wait_vm(f"K{grp[-1]}")
                for n, i in enumerate(grp):
                    I("v_dot2_f32_bf16", vr(vD + n), vr(kslot(i)), vr(vQ), 0)
                for k in range(1, 4):
                    for n, i in enumerate(grp):
                        I("v_dot2_f32_bf16", vr(vD + n), vr(kslot(i) + k), vr(vQ + k), vr(vD + n))
                for i in grp:
                    if i <= 8 and nextv <= 16:
                        assert vslot(nextv) == kslot(i)
                        self.vm(f"V{nextv}", "buffer_load_dwordx4", vr(vslot(nextv), 4), vr(vKV), sr(rV, 4), sr(sOFF + nextv), mods="offen nt")
                        nextv += 1
                self.row_reduce("v_add_f32", [vD + n for n in range(len(grp))])
                for n, i in enumerate(grp):
                    if i < 16:
                        I("v_cndmask_b32", vr(vS), vr(vS), vr(vD + n), sr(sMask, 2))
                        if i < 15: I("s_lshl_b64", sr(sMask, 2), sr(sMask, 2), 1)
                    else:
                        I("v_mov_b32", vr(vS2), vr(vD + n))
                if nextv == 17 and not self.wo_done and not self.late_wo:
                    self.wo_dma()
        else:
            lab_qok, lab_kph, lab_vdone = self.L("QOK"), self.L("KPH"), self.L("VD")
            I("s_setprio", self.prios[3])
            I("v_mov_b32", vr(vT6), L_FQ)
            I("ds_read_b32", vr(vT7), vr(vT6))
            I("s_waitcnt", "lgkmcnt(0)")
            I("v_readfirstlane_b32", sr(sU3 - 1), vr(vT7))
            I("s_cmp_ge_u32", sr(sU3 - 1), 1)
            I("s_cbranch_scc1", lab_kph)
            for i in range(8):
                I("buffer_load_dwordx4", vr(vslot(i), 4), vr(vKV), sr(rV, 4), sr(sOFF + i), mods="offen nt")
            self.stamp(16)
            self.lds_wait(L_FQ, 1)
            a.label(lab_kph)
            I("s_setprio", self.prios[4])
            self.stamp(4)
            I("v_lshlrev_b32", vr(vT5), 4, vr(vC))
            I("ds_read_b128", vr(vQ, 4), vr(vT5), mods=f"offset:{L_QB}")
            I("s_mov_b32", sr(sMask), "0x00010001"); I("s_mov_b32", sr(sMask + 1), "0x00010001")
            I("v_mov_b32", vr(vS), 0)
            I("s_waitcnt", "lgkmcnt(0)")
            groups = [[0, 1, 2, 3], [4, 5, 6, 7], [8, 9, 10, 11], [12, 13, 14], [15, 16]]
            for grp in groups:
                self.wait_vm(f"K{grp[-1]}")
                for n, i in enumerate(grp):
                    I("v_dot2_f32_bf16", vr(vD + n), vr(kslot(i)), vr(vQ), 0)
                for k in range(1, 4):
                    for n, i in enumerate(grp):
                        I("v_dot2_f32_bf16", vr(vD + n), vr(kslot(i) + k), vr(vQ + k), vr(vD + n))
                if grp[-1] == 16:
                    I("s_cmp_ge_u32", sr(sU3 - 1), 1)
                    I("s_cbranch_scc0", lab_vdone)
                    for i in range(8):
                        I("buffer_load_dwordx4", vr(vslot(i), 4), vr(vKV), sr(rV, 4), sr(sOFF + i), mods="offen nt")
                    a.label(lab_vdone)
                    for i in range(8): self.issued.append(f"V{i}")
                    for i in range(8, 17):
                        self.vm(f"V{i}", "buffer_load_dwordx4", vr(vslot(i), 4), vr(vKV), sr(rV, 4), sr(sOFF + i), mods="offen nt")
                self.row_reduce("v_add_f32", [vD + n for n in range(len(grp))])
                for n, i in enumerate(grp):
                    if i < 16:
                        I("v_cndmask_b32", vr(vS), vr(vS), vr(vD + n), sr(sMask, 2))
                        if i < 15: I("s_lshl_b64", sr(sMask, 2), sr(sMask, 2), 1)
                    else:
                        I("v_mov_b32", vr(vS2), vr(vD + n))
            if not self.wo_done and not self.late_wo:
                self.wo_dma()
        T0, T1 = 18, 19
        I("v_cvt_pk_bf16_f32", vr(T0), vr(vS), vr(vS2))
        self.unpack(vS, vS2, T0)
        I("v_mul_f32", vr(vS), hex(SCALE), vr(vS)); I("v_mul_f32", vr(vS2), hex(SCALE), vr(vS2))
        I("v_cvt_pk_bf16_f32", vr(T0), vr(vS), vr(vS2))
        self.unpack(vS, vS2, T0)
        I("v_mov_b32", vr(T1), "0xff800000")
        I("v_cmp_gt_u32", "vcc", sr(sN), vr(vC))
        I("v_cndmask_b32", vr(vS), vr(T1), vr(vS), "vcc")
        I("s_cmp_gt_u32", sr(sN), 16)
        self.csel(sT0, "0x7f800000", "0xff800000")
        I("v_min_f32", vr(vS2), sr(sT0), vr(vS2))
        I("v_max_f32", vr(T0), vr(vS), vr(vS2))
        self.wave_reduce63("v_max_f32", [T0])
        I("v_readlane_b32", sr(sT0), vr(T0), 63)
        I("v_subrev_f32", vr(vS), sr(sT0), vr(vS)); I("v_subrev_f32", vr(vS2), sr(sT0), vr(vS2))
        I("v_mul_f32", vr(vS), hex(LOG2E), vr(vS)); I("v_mul_f32", vr(vS2), hex(LOG2E), vr(vS2))
        I("v_exp_f32", vr(vS), vr(vS)); I("v_exp_f32", vr(vS2), vr(vS2))
        I("v_mov_b32", vr(T0), vr(vS))
        I("v_fmac_f32", vr(T0), "0x3d800000", vr(vS2))
        self.wave_reduce63("v_add_f32", [T0])
        I("v_mov_b32", vr(T1), vr(T0))
        I("v_mov_b32", vr(T0), sr(sT0))
        I("s_lshl_b32", sr(sT1), sr(sW), 3)
        I("v_mov_b32", vr(vT5), sr(sT1))
        self.exec63()
        I("ds_write_b64", vr(vT5), vr(T0, 2), mods=f"offset:{L_ML}")
        I("s_waitcnt", "lgkmcnt(0)")
        I("v_mov_b32", vr(vT5), L_CNT); I("v_mov_b32", vr(vT6), 1)
        I("ds_add_u32", vr(vT5), vr(vT6))
        self.execall()
        self.stamp(5)
        for e in range(8): I("v_mov_b32", vr(vACC + e), 0)
        for i in range(17):
            self.wait_vm(f"V{i}")
            for k in range(4):
                self.unpack(8 + 2 * k, 9 + 2 * k, vslot(i) + k)
            for k in range(4):
                for hh in range(2):
                    if i < 16:
                        I("v_fmac_f32_dpp", vr(vACC + 2 * k + hh), vr(vS), vr(8 + 2 * k + hh), mods=f"row_newbcast:{i} row_mask:0xf bank_mask:0xf")
                    else:
                        I("v_fmac_f32", vr(vACC + 2 * k + hh), vr(vS2), vr(8 + 2 * k + hh))
            if self.late_wo and i == self.late_wo:
                self.wo_dma()
        self.stamp(6)
        for i in range(4): I("v_permlane32_swap_b32", vr(vACC + 2 * i), vr(vACC + 2 * i + 1))
        for i in range(4): I("v_add_f32", vr(vACC + 2 * i), vr(vACC + 2 * i), vr(vACC + 2 * i + 1))
        for i in range(2): I("v_permlane16_swap_b32", vr(vACC + 4 * i), vr(vACC + 4 * i + 2))
        for i in range(2): I("v_add_f32", vr(8 + i), vr(vACC + 4 * i), vr(vACC + 4 * i + 2))
        self.perm_g(vT6, vT7)
        I("v_lshl_add_u32", vr(vT5), vr(vC), 3, vr(vT6))
        I("v_lshlrev_b32", vr(vT5), 2, vr(vT5))
        I("s_lshl_b32", sr(sT0), sr(sW), 9)
        I("v_add_u32", vr(vT5), sr(sT0), vr(vT5))
        I("ds_write_b32", vr(vT5), vr(8), mods=f"offset:{L_OP}")
        I("ds_write_b32", vr(vT5), vr(9), mods=f"offset:{L_OP + 16}")
        lab_w4 = self.L("W4")
        I("s_cmp_lt_u32", sr(sW), 4)
        I("s_cbranch_scc0", lab_w4)
        self.lds_wait(L_CNT, 16, sleep=1)
        I("v_lshrrev_b32", vr(vT7), 3, vr(vLane))
        I("v_lshlrev_b32", vr(13), 4, vr(vT7))
        I("ds_read_b128", vr(12, 4), vr(13), mods=f"offset:{L_ML}")
        I("s_waitcnt", "lgkmcnt(0)")
        I("v_max_f32", vr(16), vr(12), vr(14))
        self.wave_reduce63("v_max_f32", [16])
        I("v_readlane_b32", sr(sT0), vr(16), 63)
        I("v_subrev_f32", vr(12), sr(sT0), vr(12)); I("v_subrev_f32", vr(14), sr(sT0), vr(14))
        I("v_mul_f32", vr(12), hex(LOG2E), vr(12)); I("v_mul_f32", vr(14), hex(LOG2E), vr(14))
        I("v_exp_f32", vr(12), vr(12)); I("v_exp_f32", vr(14), vr(14))
        I("v_mul_f32", vr(16), vr(12), vr(13)); I("v_fmac_f32", vr(16), vr(14), vr(15))
        I("v_mul_f32", vr(16), "0x3e000000", vr(16))
        self.wave_reduce63("v_add_f32", [16])
        lab_noml = self.L("NOML")
        I("s_cmp_eq_u32", sr(sW), 0)
        I("s_cbranch_scc0", lab_noml)
        I("v_mov_b32", vr(17), vr(16))
        I("v_mov_b32", vr(16), sr(sT0))
        self.clamp(16); self.clamp(17)
        I("s_lshl_b32", sr(sT1), sr(sBH), 2); I("s_add_u32", sr(sT1), sr(sT1), sr(sM)); I("s_lshl_b32", sr(sT1), sr(sT1), 3)
        I("s_add_u32", sr(sT1), sr(sT1), hex(ML))
        I("v_mov_b32", vr(vT5), 0)
        self.exec63()
        I("buffer_store_dwordx2", vr(16, 2), vr(vT5), sr(rWS, 4), sr(sT1), mods="offen sc1")
        self.execall()
        a.label(lab_noml)
        self.check_all_counters()
        self.stamp(18)
        I("v_and_b32", vr(vT5), 7, vr(vLane)); I("v_lshlrev_b32", vr(16), 4, vr(vT5))
        I("v_lshrrev_b32", vr(vT7), 3, vr(vLane)); I("v_lshlrev_b32", vr(vT6), 10, vr(vT7))
        I("v_add_u32", vr(16), vr(16), vr(vT6))
        I("s_lshl_b32", sr(sT0), sr(sW), 7)
        I("v_add_u32", vr(16), sr(sT0), vr(16))
        self.perm_g(vT6, vT7)
        I("v_lshl_add_u32", vr(17), vr(vT5), 2, vr(vT6))
        I("v_lshlrev_b32", vr(17), 2, vr(17))
        I("s_lshl_b32", sr(sU0), sr(sBH), 2); I("s_add_u32", sr(sU0), sr(sU0), sr(sM)); I("s_lshl_b32", sr(sU0), sr(sU0), 9)
        I("s_add_u32", sr(sU0), sr(sU0), sr(sT0)); I("s_add_u32", sr(sU0), sr(sU0), hex(OPART))
        a.label(lab_w4)
        I("s_waitcnt", "lgkmcnt(0)")
        I("s_barrier")
        self.stamp(7)
        lab_exit_wait = self.L("XW")
        I("s_cmp_lt_u32", sr(sW), 4)
        I("s_cbranch_scc0", lab_exit_wait)
        I("ds_read_b128", vr(20, 4), vr(16), mods=f"offset:{L_OP}")
        I("ds_read_b128", vr(24, 4), vr(16), mods=f"offset:{L_OP + 512}")
        I("s_waitcnt", "lgkmcnt(0)")
        for e in range(4): I("v_mul_f32", vr(20 + e), vr(20 + e), vr(12))
        for e in range(4): I("v_fmac_f32", vr(20 + e), vr(24 + e), vr(14))
        I("v_permlane32_swap_b32", vr(20), vr(21)); I("v_permlane32_swap_b32", vr(22), vr(23))
        I("v_add_f32", vr(20), vr(20), vr(21)); I("v_add_f32", vr(22), vr(22), vr(23))
        self.swap_add(16, 20, 22, 20)
        self.dpp("v_add_f32", 20, 20, 20, "row_ror:8")
        self.clamp(20)
        self.execm("0x00ff00ff", "0x00ff00ff")
        I("buffer_store_dword", vr(20), vr(17), sr(rWS, 4), sr(sU0), mods="offen sc1")
        self.execall()
        self.stamp(8)
        if self.stop == "attn":
            a.label(lab_exit_wait)
            return self.finish()
        self.tail(lab_exit_wait)
        return self.finish()

    def wo_dma(self):
        I = self.I
        skip = self.L("NWD")
        self.wo_done = True
        I("s_cmp_eq_u32", sr(sRole), 1)
        I("s_cbranch_scc0", skip)
        I("s_lshl_b32", sr(sT2), sr(sW), 12)
        I("v_lshlrev_b32", vr(vT5), 4, vr(vLane))
        I("s_mul_i32", sr(sT1), sr(sW), 4 * WROW); I("s_add_u32", sr(sT1), sr(sT1), L_WB)
        for k in range(4):
            I("s_mov_b32", "m0", sr(sT1))
            I("buffer_load_dwordx4", vr(vT5), sr(rWA, 4), sr(sT2), mods="offen nt lds")
            if k < 3:
                I("s_add_u32", sr(sT1), sr(sT1), WROW); I("s_add_u32", sr(sT2), sr(sT2), 1024)
        self.a.label(skip)

    def ffn_dma(self):
        I = self.I
        skip = self.L("NFD")
        I("s_cmp_eq_u32", sr(sRole), 2)
        I("s_cbranch_scc0", skip)
        I("s_lshl_b32", sr(sT0), sr(sW), 5)
        I("v_lshrrev_b32", vr(vT5), 2, vr(vLane)); I("v_add_u32", vr(vT5), sr(sT0), vr(vT5))
        I("s_movk_i32", sr(sT1), 2752)
        I("v_mul_lo_u32", vr(vT5), vr(vT5), sr(sT1))
        I("v_and_b32", vr(vT6), 3, vr(vLane))
        I("v_lshl_add_u32", vr(vT5), vr(vT6), 4, vr(vT5))
        I("s_lshl_b32", sr(sT0), sr(sW), 11); I("s_add_u32", sr(sT1), sr(sT0), L_WB)
        I("s_mov_b32", "m0", sr(sT1))
        I("buffer_load_dwordx4", vr(vT5), sr(rWA, 4), 0, mods="offen lds")
        I("s_add_u32", sr(sT1), sr(sT1), 1024)
        I("s_mov_b32", sr(sT2), 16 * 2752)
        I("s_mov_b32", "m0", sr(sT1))
        I("buffer_load_dwordx4", vr(vT5), sr(rWA, 4), sr(sT2), mods="offen lds")
        I("v_lshlrev_b32", vr(vT6), 4, vr(vLane)); I("v_add_u32", vr(vT6), sr(sT0), vr(vT6))
        I("s_mul_i32", sr(sT1), sr(sW), 2 * WROW); I("s_add_u32", sr(sT1), sr(sT1), L_W2)
        I("s_mov_b32", "m0", sr(sT1))
        I("buffer_load_dwordx4", vr(vT6), sr(rWB, 4), 0, mods="offen nt lds")
        I("s_add_u32", sr(sT1), sr(sT1), WROW)
        I("s_movk_i32", sr(sT2), 1024)
        I("s_mov_b32", "m0", sr(sT1))
        I("buffer_load_dwordx4", vr(vT6), sr(rWB, 4), sr(sT2), mods="offen nt lds")
        self.a.label(skip)

    def check_all_counters(self):
        a, I = self.a, self.I
        lp, ok = self.L("CA"), self.L("CAOK")
        I("s_mov_b32", sr(sSpin), SPIN_MAX)
        I("v_and_b32", vr(vT5), 31, vr(vLane)); I("v_lshlrev_b32", vr(vT5), 2, vr(vT5))
        a.label(lp)
        I("buffer_load_dword", vr(vT6), vr(vT5), sr(rDBG, 4), 0, mods="offen sc1")
        I("s_waitcnt", "vmcnt(0)")
        I("v_cmp_gt_u32", "vcc", 8, vr(vT6))
        I("s_cbranch_vccz", ok)
        I("s_sub_u32", sr(sSpin), sr(sSpin), 1)
        I("s_cbranch_scc0", lp)
        a.label(ok)

    def tail(self, lab_exit_wait):
        a, I = self.a, self.I
        if self.late_wo == 99: self.wo_dma()
        self.ffn_dma()
        lab_ffn, lab_red = self.L("FFN"), self.L("RED")
        I("s_cmp_eq_u32", sr(sRole), 0)
        I("s_cbranch_scc1", "L_FIN")
        I("s_cmp_eq_u32", sr(sRole), 3)
        I("s_cbranch_scc1", lab_red)
        I("s_cmp_eq_u32", sr(sRole), 1)
        I("s_cbranch_scc0", lab_ffn)
        self.wo_stage()
        a.label(lab_ffn)
        self.ffn_stage()
        I("s_branch", "L_FIN")
        a.label(lab_red)
        I("s_cmp_eq_u32", sr(sW), 0)
        I("s_cbranch_scc0", "L_FIN")
        self.reducer()
        I("s_branch", "L_FIN")
        a.label(lab_exit_wait)
        if self.late_wo == 99: self.wo_dma()
        self.ffn_dma()
        I("s_cmp_eq_u32", sr(sRole), 0)
        I("s_cbranch_scc1", "L_FIN")
        I("s_cmp_eq_u32", sr(sRole), 3)
        I("s_cbranch_scc1", "L_FIN")
        I("s_waitcnt", "vmcnt(0)")
        I("s_barrier")
        I("s_branch", "L_FIN")

    def dry_top(self):
        top = self.L("TOP")
        self.I("s_mov_b32", sr(sDry), 1 if self.dry else 0)
        self.a.label(top)
        return top
    def skip_if_dry(self):
        lab = self.L("SK")
        self.I("s_cmp_eq_u32", sr(sDry), 1)
        self.I("s_cbranch_scc1", lab)
        return lab
    def dry_end(self, top):
        lab = self.L("REAL")
        self.I("s_cmp_eq_u32", sr(sDry), 0)
        self.I("s_cbranch_scc1", lab)
        self.I("s_mov_b32", sr(sDry), 0)
        self.I("s_branch", top)
        self.a.label(lab)

    def wo_stage(self):
        a, I = self.a, self.I
        vI4, vI2 = 8, 9
        BW = 64
        I("s_waitcnt", "vmcnt(0)" if self.late_wo == 99 else "vmcnt(1)")
        I("s_barrier")
        I("v_lshrrev_b32", vr(vI4), 2, vr(vC)); I("v_and_b32", vr(vI2), 3, vr(vC))
        I("v_lshl_add_u32", vr(vT5), vr(vG), 3, vr(vI4))
        I("s_movk_i32", sr(sT0), WROW)
        I("v_mul_lo_u32", vr(vT5), vr(vT5), sr(sT0))
        I("v_lshl_add_u32", vr(vT5), vr(vI2), 3, vr(vT5))
        I("s_lshl_b32", sr(sT0), sr(sW), 8)
        I("v_add_u32", vr(vT5), sr(sT0), vr(vT5))
        I("v_add_u32", vr(vT5), L_WB, vr(vT5))
        vBS, vMS = 10, 11
        vAml, vAown, vAo, vAy = 40, 41, 42, 43
        ML0, O0 = 12, 44
        I("v_bfe_u32", vr(vBS), vr(vC), 2, 1); I("v_and_b32", vr(vMS), 3, vr(vC))
        I("v_lshlrev_b32", vr(vAml), 10, vr(vBS))
        I("v_lshl_add_u32", vr(vAown), vr(vMS), 3, vr(vAml))
        I("s_lshl_b32", sr(sU0), sr(sHW), 5); I("s_add_u32", sr(sU0), sr(sU0), hex(ML))
        I("v_lshlrev_b32", vr(vAo), 16, vr(vBS))
        I("v_lshl_add_u32", vr(vAo), vr(vMS), 9, vr(vAo))
        I("v_lshl_add_u32", vr(vAo), vr(vG), 5, vr(vAo))
        I("s_lshl_b32", sr(sU1), sr(sHW), 11)
        I("s_lshl_b32", sr(sT1), sr(sB), 8)
        I("s_add_u32", sr(sU1), sr(sU1), sr(sT1)); I("s_add_u32", sr(sU1), sr(sU1), hex(OPART))
        def loads():
            for k in range(4):
                I("buffer_load_dwordx4", vr(O0 + 4 * k, 4), vr(vAo), sr(rWS, 4), sr(sU1), mods=f"offen offset:{(k >> 1) * 128 + (k & 1) * 16} sc1")
            I("buffer_load_dwordx4", vr(ML0, 4), vr(vAml), sr(rWS, 4), sr(sU0), mods="offen sc1")
            I("buffer_load_dwordx4", vr(ML0 + 4, 4), vr(vAml), sr(rWS, 4), sr(sU0), mods="offen offset:16 sc1")
            I("buffer_load_dwordx2", vr(ML0 + 8, 2), vr(vAown), sr(rWS, 4), sr(sU0), mods="offen sc1")
        loads()
        for ks in range(2):
            for tt in range(8):
                I("ds_read_b64_tr_b16", vr(BW + 32 * ks + 4 * tt, 2), vr(vT5), mods=f"offset:{32 * ks * WROW + 32 * tt}")
                I("ds_read_b64_tr_b16", vr(BW + 32 * ks + 4 * tt + 2, 2), vr(vT5), mods=f"offset:{(32 * ks + 4) * WROW + 32 * tt}")
        I("v_and_b32", vr(vAy), 1, vr(vG)); I("v_lshlrev_b32", vr(vAy), 17, vr(vAy))
        I("v_lshrrev_b32", vr(vT6), 1, vr(vG)); I("v_lshlrev_b32", vr(vT6), 12, vr(vT6))
        I("v_add_u32", vr(vAy), vr(vAy), vr(vT6))
        I("v_lshl_add_u32", vr(vAy), vr(vC), 2, vr(vAy))
        I("s_lshl_b32", sr(sU2), sr(sW), 15)
        I("s_lshl_b32", sr(sT1), sr(sF), 6); I("s_add_u32", sr(sU2), sr(sU2), sr(sT1)); I("s_add_u32", sr(sU2), sr(sU2), hex(YPART))
        I("s_mov_b32", sr(sMask), 0); I("s_mov_b32", sr(sMask + 1), -1)
        regs = list(range(ML0, ML0 + 10)) + list(range(O0, O0 + 16))
        lp, ok = self.L("POLL"), self.L("POK")
        I("s_mov_b32", sr(sSpin), SPIN_MAX)
        I("s_waitcnt", "vmcnt(0)")
        self.check_regs(regs, vT7)
        I("s_cbranch_vccz", ok)
        a.label(lp)
        loads()
        I("s_waitcnt", "vmcnt(0)")
        self.check_regs(regs, vT7)
        I("s_cbranch_vccz", ok)
        I("s_sub_u32", sr(sSpin), sr(sSpin), 1)
        I("s_cbranch_scc0", lp)
        a.label(ok)
        self.stamp(10)
        T = 22
        I("v_max3_f32", vr(T), vr(ML0), vr(ML0 + 2), vr(ML0 + 4)); I("v_max_f32", vr(T), vr(T), vr(ML0 + 6))
        for n in range(5): I("v_sub_f32", vr(T + 1 + n), vr(ML0 + 2 * n), vr(T))
        for n in range(5): I("v_mul_f32", vr(T + 1 + n), hex(LOG2E), vr(T + 1 + n))
        for n in range(5): I("v_exp_f32", vr(T + 1 + n), vr(T + 1 + n))
        I("v_mul_f32", vr(T), vr(T + 1), vr(ML0 + 1))
        I("v_fmac_f32", vr(T), vr(T + 2), vr(ML0 + 3)); I("v_fmac_f32", vr(T), vr(T + 3), vr(ML0 + 5)); I("v_fmac_f32", vr(T), vr(T + 4), vr(ML0 + 7))
        I("v_rcp_f32", vr(T), vr(T))
        I("v_mul_f32", vr(T), vr(T), vr(T + 5))
        for e in range(16): I("v_mul_f32", vr(O0 + e), vr(O0 + e), vr(T))
        for e in range(16): self.dpp("v_add_f32", O0 + e, O0 + e, O0 + e, "quad_perm:[1,0,3,2]")
        for e in range(16): self.dpp("v_add_f32", O0 + e, O0 + e, O0 + e, "quad_perm:[2,3,0,1]")
        AO = 28
        for k in range(8): I("v_cvt_pk_bf16_f32", vr(AO + k), vr(O0 + 2 * k), vr(O0 + 2 * k + 1))
        I("s_waitcnt", "lgkmcnt(0)")
        Dr = [44, 48, 52, 56, 12, 16, 20, 24]
        for tt in range(8):
            I("v_mfma_f32_16x16x32_bf16", vr(Dr[tt], 4), vr(AO, 4), vr(BW + 4 * tt, 4), 0)
        for tt in range(8):
            I("v_mfma_f32_16x16x32_bf16", vr(Dr[tt], 4), vr(AO + 4, 4), vr(BW + 32 + 4 * tt, 4), vr(Dr[tt], 4))
        for tt in range(0, 8, 2):
            I("v_cndmask_b32", vr(36 + tt // 2), vr(Dr[tt]), vr(Dr[tt + 1]), sr(sMask, 2))
        for tt in range(4): self.clamp(36 + tt)
        for tt in range(4):
            I("buffer_store_dword", vr(36 + tt), vr(vAy), sr(rWS, 4), sr(sU2), mods="offen sc1")
            if tt < 3: I("s_add_u32", sr(sU2), sr(sU2), 8192)
        self.stamp(11)
        I("s_branch", "L_FIN")

    def reduce16(self, r0, out):
        I = self.I
        I("v_permlane32_swap_b32", vr(r0), vr(r0 + 1)); I("v_permlane32_swap_b32", vr(r0 + 2), vr(r0 + 3))
        I("v_add_f32", vr(r0), vr(r0), vr(r0 + 1)); I("v_add_f32", vr(r0 + 2), vr(r0 + 2), vr(r0 + 3))
        self.swap_add(16, r0, r0 + 2, out)
        self.dpp("v_add_f32", out, out, out, "row_ror:8")
        self.dpp("v_add_f32", out, out, out, "row_ror:4")

    def reducer(self):
        a, I = self.a, self.I
        vCol, vX, vAo, vH, vA, vAh = 60, 61, 62, 63, 8, 9
        Y, S, U3 = 64, 96, 112
        self.perm_g(vT6, vT7)
        I("v_and_b32", vr(vCol), 3, vr(vLane))
        I("v_lshl_add_u32", vr(vCol), vr(vCol), 2, vr(vT6))
        I("v_lshlrev_b32", vr(vAo), 1, vr(vCol))
        I("s_lshl_b32", sr(sT0), sr(sBH), 5)
        I("buffer_load_ushort", vr(vX), vr(vAo), sr(rX, 4), sr(sT0), mods="offen")
        I("v_lshlrev_b32", vr(vA), 4, vr(vLane))
        I("v_lshlrev_b32", vr(vAh), 2, vr(vCol))
        I("s_lshl_b32", sr(sU0), sr(sBH), 12); I("s_add_u32", sr(sU0), sr(sU0), hex(YPART))
        I("s_lshl_b32", sr(sU2), sr(sBH), 6); I("s_add_u32", sr(sU2), sr(sU2), hex(HBUF))
        I("s_lshl_b32", sr(sU3), sr(sBH), 5)
        I("s_mul_i32", sr(sT0), sr(sBH), USTR); I("s_add_u32", sr(sT0), sr(sT0), hex(UPART))
        I("s_add_u32", sr(rWA), sr(pWS), sr(sT0)); I("s_addc_u32", sr(rWA + 1), sr(pWS + 1), 0)
        I("s_mov_b32", sr(rWA + 2), NF * 64); I("s_mov_b32", sr(rWA + 3), "0x20000")
        def loads():
            for k in range(4):
                I("buffer_load_dwordx4", vr(Y + 4 * k, 4), vr(vA), sr(rWS, 4), sr(sU0), mods=f"offen offset:{k * 1024} sc1")
        self.poll(loads, 4, range(Y, Y + 16))
        self.stamp(12)
        I("s_waitcnt", "vmcnt(0)")
        I("v_lshlrev_b32", vr(vX), 16, vr(vX))
        for e in range(4):
            I("v_add_f32", vr(S + e), vr(Y + e), vr(Y + 4 + e)); I("v_add_f32", vr(S + 4 + e), vr(Y + 8 + e), vr(Y + 12 + e))
        for e in range(4): I("v_add_f32", vr(S + e), vr(S + e), vr(S + 4 + e))
        self.reduce16(S, vH)
        I("v_cvt_pk_bf16_f32", vr(vH), vr(vH), vr(vH))
        I("v_lshlrev_b32", vr(vH), 16, vr(vH))
        I("v_add_f32", vr(vH), vr(vH), vr(vX))
        I("v_cvt_pk_bf16_f32", vr(vH), vr(vH), vr(vH))
        I("v_lshlrev_b32", vr(vH), 16, vr(vH))
        I("v_min_u32", vr(12), -2, vr(vH))
        self.execm("0x000f000f", "0x000f000f")
        I("buffer_store_dword", vr(12), vr(vAh), sr(rWS, 4), sr(sU2), mods="offen sc1")
        self.execall()
        self.stamp(13)
        def loads3():
            for k in range(3):
                I("buffer_load_dwordx4", vr(U3 + 4 * k, 4), vr(vA), sr(rWA, 4), 0, mods=f"offen offset:{k * 1024} sc1")
        self.poll(loads3, 3, range(U3, U3 + 12))
        self.stamp(14)
        for e in range(4):
            I("v_add_f32", vr(S + e), vr(U3 + e), vr(U3 + 4 + e))
        for e in range(4): I("v_add_f32", vr(S + e), vr(S + e), vr(U3 + 8 + e))
        self.reduce16(S, 12)
        I("v_cvt_pk_bf16_f32", vr(12), vr(12), vr(12))
        I("v_lshlrev_b32", vr(12), 16, vr(12))
        I("v_add_f32", vr(12), vr(12), vr(vH))
        I("v_cvt_pk_bf16_f32", vr(12), vr(12), vr(12))
        self.execm("0x000f000f", "0x000f000f")
        I("buffer_store_short", vr(12), vr(vAo), sr(rOUT, 4), sr(sU3), mods="offen")
        self.execall()
        if self.dbgtime:
            I("s_memrealtime", "s[12:13]")
            I("s_waitcnt", "lgkmcnt(0)")
            I("s_sub_u32", sr(sT1), sr(sT1), "s38")
            I("v_mov_b32", vr(12), sr(sT1)); I("v_mov_b32", vr(vT6), 0)
            I("s_lshl_b32", sr(sT0), sr(sBH), 2)
            I("s_mov_b64", "exec", 1)
            I("buffer_store_dword", vr(12), vr(vT6), sr(rDBG, 4), sr(sT0), mods="offen")
            self.execall()
        self.stamp(15)

    def ffn_stage(self):
        a, I = self.a, self.I
        if self.stop in ("y", "h"):
            I("s_waitcnt", "vmcnt(0)"); I("s_barrier"); return
        vI4, vI2 = 8, 9
        B1, B2 = 64, 96
        I("s_waitcnt", "vmcnt(0)")
        I("s_barrier")
        I("v_lshrrev_b32", vr(vI4), 2, vr(vC)); I("v_and_b32", vr(vI2), 3, vr(vC))
        I("v_lshl_add_u32", vr(vT5), vr(vG), 3, vr(vI4)); I("v_lshlrev_b32", vr(vT5), 6, vr(vT5))
        I("v_lshl_add_u32", vr(vT5), vr(vI2), 3, vr(vT5))
        I("s_lshl_b32", sr(sT0), sr(sW), 13)
        I("v_add_u32", vr(vT5), sr(sT0), vr(vT5))
        for ks in range(4):
            for nt in range(2):
                o = L_WB + ks * 2048 + nt * 32
                I("ds_read_b64_tr_b16", vr(B1 + 8 * ks + 4 * nt, 2), vr(vT5), mods=f"offset:{o}")
                I("ds_read_b64_tr_b16", vr(B1 + 8 * ks + 4 * nt + 2, 2), vr(vT5), mods=f"offset:{o + 256}")
        I("v_lshl_add_u32", vr(vT6), vr(vG), 3, vr(vI4))
        I("s_movk_i32", sr(sT0), WROW)
        I("v_mul_lo_u32", vr(vT6), vr(vT6), sr(sT0))
        I("v_lshl_add_u32", vr(vT6), vr(vI2), 3, vr(vT6))
        I("s_lshl_b32", sr(sT0), sr(sW), 8)
        I("v_add_u32", vr(vT6), sr(sT0), vr(vT6))
        I("v_add_u32", vr(vT6), L_W2, vr(vT6))
        for tt in range(8):
            I("ds_read_b64_tr_b16", vr(B2 + 4 * tt, 2), vr(vT6), mods=f"offset:{32 * tt}")
            I("ds_read_b64_tr_b16", vr(B2 + 4 * tt + 2, 2), vr(vT6), mods=f"offset:{4 * WROW + 32 * tt}")
        vAh, vAhw, vAhr, vAuw, vAur, vAaw, vAar, vAo = 10, 11, 52, 53, 54, 55, 56, 57
        I("v_lshlrev_b32", vr(vAh), 5, vr(vLane))
        I("s_mov_b32", sr(sU0), hex(HBUF))
        I("v_lshlrev_b32", vr(vAhw), 4, vr(vLane)); I("s_lshl_b32", sr(sT0), sr(sW), 11); I("v_add_u32", vr(vAhw), sr(sT0), vr(vAhw))
        I("v_bfe_u32", vr(vT7), vr(vC), 2, 1)
        I("v_lshlrev_b32", vr(vAhr), 10, vr(vT7)); I("v_lshl_add_u32", vr(vAhr), vr(vG), 4, vr(vAhr))
        I("s_mul_i32", sr(sT0), sr(sW), 2048 + 256); I("v_add_u32", vr(vAhr), sr(sT0), vr(vAhr))
        I("v_and_b32", vr(vAuw), 1, vr(vG)); I("v_lshlrev_b32", vr(vAuw), 7, vr(vAuw))
        I("v_lshrrev_b32", vr(vT5), 1, vr(vG)); I("v_lshl_add_u32", vr(vAuw), vr(vT5), 6, vr(vAuw))
        I("v_lshl_add_u32", vr(vAuw), vr(vC), 2, vr(vAuw))
        I("s_lshl_b32", sr(sT0), sr(sW), 8); I("v_add_u32", vr(vAuw), sr(sT0), vr(vAuw))
        I("v_lshlrev_b32", vr(vAur), 2, vr(vLane))
        I("s_lshl_b32", sr(sT0), sr(sW), 7)
        I("v_lshlrev_b32", vr(vAaw), 1, vr(vLane)); I("v_add_u32", vr(vAaw), sr(sT0), vr(vAaw))
        I("v_lshlrev_b32", vr(vAar), 6, vr(vT7)); I("v_lshl_add_u32", vr(vAar), vr(vG), 4, vr(vAar)); I("v_add_u32", vr(vAar), sr(sT0), vr(vAar))
        I("v_and_b32", vr(vAo), 1, vr(vG)); I("s_mov_b32", sr(sT0), 32 * USTR); I("v_mul_lo_u32", vr(vAo), vr(vAo), sr(sT0))
        I("v_lshrrev_b32", vr(vT6), 1, vr(vG)); I("s_movk_i32", sr(sT0), USTR); I("v_mul_lo_u32", vr(vT6), vr(vT6), sr(sT0))
        I("v_add_u32", vr(vAo), vr(vAo), vr(vT6))
        I("v_lshl_add_u32", vr(vAo), vr(vC), 2, vr(vAo))
        I("s_mul_i32", sr(sU1), sr(sW), 8 * USTR)
        I("s_lshl_b32", sr(sT1), sr(sF), 6); I("s_add_u32", sr(sU1), sr(sU1), sr(sT1)); I("s_add_u32", sr(sU1), sr(sU1), hex(UPART))
        I("s_mov_b32", sr(sMask), 0); I("s_mov_b32", sr(sMask + 1), -1)
        I("s_waitcnt", "lgkmcnt(0)")
        H0, H1 = 12, 20
        top = self.dry_top()
        sk = self.skip_if_dry()
        def loads():
            I("buffer_load_dwordx4", vr(H0, 4), vr(vAh), sr(rWS, 4), sr(sU0), mods="offen sc1")
            I("buffer_load_dwordx4", vr(H0 + 4, 4), vr(vAh), sr(rWS, 4), sr(sU0), mods="offen offset:16 sc1")
            I("buffer_load_dwordx4", vr(H1, 4), vr(vAh), sr(rWS, 4), sr(sU0), mods="offen offset:2048 sc1")
            I("buffer_load_dwordx4", vr(H1 + 4, 4), vr(vAh), sr(rWS, 4), sr(sU0), mods="offen offset:2064 sc1")
        self.poll(loads, 4, range(12, 28))
        a.label(sk)
        self.stamp(9)
        A1, A2, B1s, B2s = 28, 29, 30, 31
        I("v_add_f32", vr(A1), vr(H0), vr(H0 + 1)); I("v_add_f32", vr(B1s), vr(H1), vr(H1 + 1))
        I("v_mul_f32", vr(A2), vr(H0), vr(H0)); I("v_mul_f32", vr(B2s), vr(H1), vr(H1))
        I("v_fmac_f32", vr(A2), vr(H0 + 1), vr(H0 + 1)); I("v_fmac_f32", vr(B2s), vr(H1 + 1), vr(H1 + 1))
        for e in range(2, 8):
            I("v_add_f32", vr(A1), vr(A1), vr(H0 + e)); I("v_add_f32", vr(B1s), vr(B1s), vr(H1 + e))
            I("v_fmac_f32", vr(A2), vr(H0 + e), vr(H0 + e)); I("v_fmac_f32", vr(B2s), vr(H1 + e), vr(H1 + e))
        self.wave_reduce63("v_add_f32", [A1, A2, B1s, B2s])
        for (r, s) in ((A1, sT0), (A2, sT1), (B1s, sT2), (B2s, sT3)):
            I("v_readlane_b32", sr(s), vr(r), 63)
        M0, M1, R0, R1, T0, T1 = 28, 29, 30, 31, 32, 33
        self.ln_scalars(sT0, sT1, sT2, sT3, M0, M1, R0, R1, T0, T1)
        I("v_mul_f32", vr(M0), vr(M0), vr(R0)); I("v_mul_f32", vr(M1), vr(M1), vr(R1))
        HN = 36
        for e in range(8):
            I("v_fma_f32", vr(HN + e), vr(H0 + e), vr(R0), f"-{vr(M0)}")
            I("v_fma_f32", vr(HN + 8 + e), vr(H1 + e), vr(R1), f"-{vr(M1)}")
        for k in range(8):
            I("v_cvt_pk_bf16_f32", vr(HN + k), vr(HN + 2 * k), vr(HN + 2 * k + 1))
        I("ds_write_b128", vr(vAhw), vr(HN, 4), mods=f"offset:{L_HN}")
        I("ds_write_b128", vr(vAhw), vr(HN + 4, 4), mods=f"offset:{L_HN + 1024}")
        I("s_waitcnt", "lgkmcnt(0)")
        for ks in range(4):
            I("ds_read_b128", vr(HN + 4 * ks, 4), vr(vAhr), mods=f"offset:{L_HN + ks * 64}")
        I("s_waitcnt", "lgkmcnt(0)")
        D0, D1 = 28, 32
        for ks in range(4):
            I("v_mfma_f32_16x16x32_bf16", vr(D0, 4), vr(HN + 4 * ks, 4), vr(B1 + 8 * ks, 4), (0 if ks == 0 else vr(D0, 4)))
            I("v_mfma_f32_16x16x32_bf16", vr(D1, 4), vr(HN + 4 * ks, 4), vr(B1 + 8 * ks + 4, 4), (0 if ks == 0 else vr(D1, 4)))
        I("v_cndmask_b32", vr(D0), vr(D0), vr(D1), sr(sMask, 2))
        I("ds_write_b32", vr(vAuw), vr(D0), mods=f"offset:{L_UP}")
        I("s_waitcnt", "lgkmcnt(0)")
        I("s_barrier")
        for w in range(4):
            I("ds_read_b32", vr(28 + w), vr(vAur), mods=f"offset:{L_UP + w * 256}")
        I("s_waitcnt", "lgkmcnt(0)")
        I("v_add_f32", vr(28), vr(28), vr(29)); I("v_add_f32", vr(30), vr(30), vr(31))
        I("v_add_f32", vr(28), vr(28), vr(30))
        I("v_cvt_pk_bf16_f32", vr(29), vr(28), vr(28))
        I("v_lshlrev_b32", vr(28), 16, vr(29))
        I("v_mul_f32", vr(29), "0xbfb8aa3b", vr(28))
        I("v_exp_f32", vr(29), vr(29))
        I("v_add_f32", vr(29), 1.0, vr(29))
        I("v_rcp_f32", vr(29), vr(29))
        I("v_mul_f32", vr(28), vr(28), vr(29))
        I("v_cvt_pk_bf16_f32", vr(28), vr(28), vr(28))
        I("ds_write_b16", vr(vAaw), vr(28), mods=f"offset:{L_ACT}")
        I("s_waitcnt", "lgkmcnt(0)")
        I("ds_read_b128", vr(28, 4), vr(vAar), mods=f"offset:{L_ACT}")
        I("s_waitcnt", "lgkmcnt(0)")
        self.stamp(10)
        DD = 32
        assert DD + 20 <= vAhr
        I("s_waitcnt", "vmcnt(0)")
        Dregs = [12, 16, 20, 24, 36, 40, 44, 48]
        for tt in range(8):
            I("v_mfma_f32_16x16x32_bf16", vr(Dregs[tt], 4), vr(28, 4), vr(B2 + 4 * tt, 4), 0)
        for tt in range(0, 8, 2):
            I("v_cndmask_b32", vr(32 + tt // 2), vr(Dregs[tt]), vr(Dregs[tt + 1]), sr(sMask, 2))
        for tt in range(4): self.clamp(32 + tt)
        lab_nb = self.L("NB")
        I("s_cmp_eq_u32", sr(sDry), 0)
        I("s_cbranch_scc1", lab_nb)
        I("s_barrier")
        a.label(lab_nb)
        self.dry_end(top)
        for tt in range(4):
            I("buffer_store_dword", vr(32 + tt), vr(vAo), sr(rWS, 4), sr(sU1), mods="offen sc1")
            if tt < 3: I("s_add_u32", sr(sU1), sr(sU1), 2 * USTR)
        self.stamp(11)

    def finish(self):
        a, I = self.a, self.I
        a.label("L_FIN")
        if self.stamps:
            self.stamp(20)
            self.execall()
            I("s_lshl_b32", sr(sT0), "s2", 4); I("s_add_u32", sr(sT0), sr(sT0), sr(sW)); I("s_lshl_b32", sr(sT0), sr(sT0), 8)
            I("s_add_u32", sr(sT0), sr(sT0), hex(STAMP))
            I("v_lshlrev_b32", vr(vT5), 2, vr(vLane))
            I("buffer_store_dword", "v0", vr(vT5), sr(rWS, 4), sr(sT0), mods="offen")
        a.label("L_END")
        return self.wrap()

    def wrap(self):
        body = self.a.text()
        hdr = open("sequential_preLN__mha_block_cached__dense_activation_silu__decode.s.ref").read().split("\n")
        top = [l for l in hdr if l.startswith(";") and "@launch" not in l and "Override" not in l and "grid=ceil" not in l][:12]
        out = "\n".join(top) + "\n"
        out += f"; @launch grid=(256,1,1) block=(1024,1,1) lds={LDS_SIZE}\n"
        out += f""".amdgcn_target "amdgcn-amd-amdhsa--gfx950"
.text
.globl {KN}
.p2align 8
.type {KN},@function
{KN}:
{body}  s_endpgm
.section .rodata,"a"
.p2align 6
.amdhsa_kernel {KN}
  .amdhsa_next_free_vgpr 128
  .amdhsa_next_free_sgpr 102
  .amdhsa_accum_offset 128
  .amdhsa_group_segment_fixed_size 0
  .amdhsa_kernarg_size 88
  .amdhsa_user_sgpr_count 2
  .amdhsa_user_sgpr_kernarg_segment_ptr 1
  .amdhsa_system_sgpr_workgroup_id_x 1
.end_amdhsa_kernel
"""
        return out

if __name__ == "__main__":
    kw = {}
    for x in sys.argv[2:]:
        k, v = x.split("=")
        kw[k] = int(v) if v.lstrip("-").isdigit() and k != "prios" else v
    g = Gen(**kw)
    open(sys.argv[1], "w").write(g.build())
    print("nops inserted:", g.a.nops, "lines", len(g.a.lines))
```

```python
import sys
from asmlib import Asm, vr, sr

KN = "sequential_preLN__mha_block_cached__dense_activation_silu__decode_kernel"

ML    = 0x040000
OPART = 0x050000
YPART = 0x080000
HBUF  = 0x100000
UPART = 0x110000
USTR  = 48 * 64
NF    = 43
STAMP = 0x200000
WSSZ  = 0x400000
L_QP = 0
L_OP = 0
L_QB = 8192
L_ML = 8192 + 256
L_CNT = 8192 + 256 + 128
L_QCNT = L_CNT + 4
L_FQ = L_CNT + 8
L_UP = 8192 + 512
L_ACT = 8192 + 512 + 1024
L_HN = 8192 + 2048 + 1024
L_WB = 20480
L_W2 = L_WB + 32768
L_XN = L_WB
WROW = 1056
LDS_SIZE = L_WB + 64 * WROW + 256

LOG2E = 0x3FB8AA3B
SCALE = 0x3DB504F3
SPIN_MAX = 400000
OOB = 0x40000000

sW, sE, sHalf, sBH, sB, sH, sM = 3, 4, 5, 6, 7, 8, 9
sDry = 10
sT0, sT1, sT2, sT3, sT4 = 11, 12, 13, 14, 15
pX, pK, pV, pWQ, pWO, pBX, pW1, pW2, pOUT, pDBG, pWS = 16, 18, 20, 22, 24, 26, 28, 30, 32, 34, 36
sRB = 26
sRole = 27
sHW = 101
rK, rV, rWS, rX, rWQ, rWA, rWB, rOUT, rDBG = 40, 44, 48, 52, 56, 60, 64, 68, 72
sOFF = 76
sN = 93
sSpin = 94
sF = 95
sMask = 96
sU0, sU1, sU2, sU3 = 98, 99, 100, 101
sStamp0 = 38
rT1 = 16
vLane, vC, vG, vKV = 1, 2, 3, 4
vT5, vT6, vT7 = 5, 6, 7
vQ = 8
vD = 12
vS, vS2 = 16, 17
vACC = 20
DATA0 = 28
def kslot(i): return DATA0 + 4 * i
def vslot(i):
    if i < 8: return DATA0 + 4 * (17 + i)
    return DATA0 + 4 * (i - 8)

class Gen:
    def __init__(self, stamps=0, stop=None, skew=0, npre=2, dbgtime=0, nowq=0, prios="32211", nodma=0, noinv=0,
                 dry=0, pipe=0, wqflag="", late_wo=0, earlybar=1, npre2=15, hshift=8, map=0, pat=1, kfirst=0, t1test=0, touch=0):
        self.a = Asm()
        self.stamps, self.stop, self.skew, self.npre, self.dbgtime = stamps, stop, skew, npre, dbgtime
        self.nowq, self.nodma, self.noinv, self.dry, self.pipe = nowq, nodma, noinv, dry, pipe
        self.prios = [int(c) for c in str(prios).zfill(5)]
        self.wqflag = wqflag
        self.late_wo = late_wo
        self.earlybar = earlybar
        self.npre2 = npre2
        self.hshift = hshift
        self.map = map
        self.pat = pat
        self.kfirst = kfirst
        self.t1test = t1test
        self.touch = touch
        self.issued = []
        self.lab = 0
        self.wo_done = False

    def L(self, p="L"):
        self.lab += 1
        return f"{p}_{self.lab}"
    def I(self, *a, **k): self.a.I(*a, **k)

    def stamp(self, k):
        if not self.stamps: return
        if k == 0:
            self.I("s_memrealtime", sr(sStamp0, 2)); return
        if k == 1:
            self.I("s_waitcnt", "lgkmcnt(0)")
            self.I("v_mov_b32", "v0", 0)
            self.I("v_writelane_b32", "v0", sr(sStamp0), 0)
        self.I("s_memrealtime", sr(sStamp0, 2))
        self.I("s_waitcnt", "lgkmcnt(0)")
        self.I("v_writelane_b32", "v0", sr(sStamp0), k)

    def csel(self, dst, x, y):
        self.I("s_mov_b32", sr(dst), x)
        self.I("s_cselect_b32", sr(dst), sr(dst), y)
    def exec63(self):
        self.I("s_mov_b32", "exec_lo", 0); self.I("s_mov_b32", "exec_hi", "0x80000000")
    def execm(self, lo, hi):
        self.I("s_mov_b32", "exec_lo", lo); self.I("s_mov_b32", "exec_hi", hi)
    def execall(self): self.I("s_mov_b64", "exec", -1)

    def srd(self, r, plo, size, addoff=None):
        I = self.I
        if addoff is None:
            I("s_mov_b32", sr(r), sr(plo)); I("s_mov_b32", sr(r + 1), sr(plo + 1))
        else:
            I("s_add_u32", sr(r), sr(plo), addoff); I("s_addc_u32", sr(r + 1), sr(plo + 1), 0)
        I("s_mov_b32", sr(r + 2), size); I("s_mov_b32", sr(r + 3), "0x20000")

    def vm(self, tag, op, *ops, mods=""):
        self.I(op, *ops, mods=mods)
        self.issued.append(tag)
    def wait_vm(self, tag):
        idx = self.issued.index(tag)
        n = len(self.issued) - 1 - idx
        self.I("s_waitcnt", f"vmcnt({min(n, 63)})")

    def dpp(self, op, d, s0, s1, ctrl, rm="0xf"):
        self.I(op + "_dpp", vr(d), vr(s0), vr(s1), mods=f"{ctrl} row_mask:{rm} bank_mask:0xf")
    def row_reduce(self, op, regs):
        for sh in (8, 4, 2, 1):
            for r in regs: self.dpp(op, r, r, r, f"row_ror:{sh}")
    def wave_reduce63(self, op, regs):
        self.row_reduce(op, regs)
        for r in regs: self.dpp(op, r, r, r, "row_bcast:15", "0xa")
        for r in regs: self.dpp(op, r, r, r, "row_bcast:31", "0xc")
    def swap_add(self, which, a, b, d, op="v_add_f32"):
        self.I(f"v_permlane{which}_swap_b32", vr(a), vr(b))
        self.I(op, vr(d), vr(a), vr(b))
    def unpack(self, lo, hi, src):
        self.I("v_lshlrev_b32", vr(lo), 16, vr(src))
        self.I("v_and_b32", vr(hi), "0xffff0000", vr(src))
    def clamp(self, r): self.I("v_min_u32", vr(r), -2, vr(r))
    def perm_g(self, d, t):
        I = self.I
        I("v_and_b32", vr(d), 1, vr(vG)); I("v_lshlrev_b32", vr(d), 1, vr(d))
        I("v_lshrrev_b32", vr(t), 1, vr(vG)); I("v_or_b32", vr(d), vr(d), vr(t))

    def check_regs(self, regs, t):
        I = self.I
        rs = list(regs)
        if len(rs) == 1:
            I("v_cmp_eq_u32", "vcc", -1, vr(rs[0])); return
        first = True
        while rs:
            if first:
                if len(rs) >= 3:
                    I("v_max3_u32", vr(t), vr(rs[0]), vr(rs[1]), vr(rs[2])); rs = rs[3:]
                else:
                    I("v_max_u32", vr(t), vr(rs[0]), vr(rs[1])); rs = rs[2:]
                first = False
            elif len(rs) >= 2:
                I("v_max3_u32", vr(t), vr(t), vr(rs[0]), vr(rs[1])); rs = rs[2:]
            else:
                I("v_max_u32", vr(t), vr(t), vr(rs[0])); rs = rs[1:]
        I("v_cmp_eq_u32", "vcc", -1, vr(t))

    def poll(self, loads, nloads, regs, t=vT7):
        I = self.I
        lp, ok = self.L("POLL"), self.L("POK")
        I("s_mov_b32", sr(sSpin), SPIN_MAX)
        if self.pipe: loads()
        self.a.label(lp)
        loads()
        I("s_waitcnt", f"vmcnt({nloads if self.pipe else 0})")
        self.check_regs(regs, t)
        I("s_cbranch_vccz", ok)
        I("s_sub_u32", sr(sSpin), sr(sSpin), 1)
        I("s_cbranch_scc0", lp)
        self.a.label(ok)

    def ln_scalars(self, s10, s20, s11, s21, vm0, vm1, vr0, vr1, t0, t1):
        I = self.I
        inv = "0x3b000000"
        I("v_mov_b32", vr(vm0), sr(s10)); I("v_mov_b32", vr(vm1), sr(s11))
        I("v_mov_b32", vr(vr0), sr(s20)); I("v_mov_b32", vr(vr1), sr(s21))
        for r in (vm0, vm1, vr0, vr1): I("v_mul_f32", vr(r), inv, vr(r))
        I("v_fma_f32", vr(vr0), f"-{vr(vm0)}", vr(vm0), vr(vr0))
        I("v_fma_f32", vr(vr1), f"-{vr(vm1)}", vr(vm1), vr(vr1))
        I("v_max_f32", vr(vr0), 0, vr(vr0)); I("v_max_f32", vr(vr1), 0, vr(vr1))
        I("v_cvt_pk_bf16_f32", vr(t0), vr(vm0), vr(vm1))
        I("v_cvt_pk_bf16_f32", vr(t1), vr(vr0), vr(vr1))
        self.unpack(vm0, vm1, t0)
        self.unpack(vr0, vr1, t1)
        I("v_add_f32", vr(vr0), "0x3727c5ac", vr(vr0)); I("v_add_f32", vr(vr1), "0x3727c5ac", vr(vr1))
        I("v_cvt_pk_bf16_f32", vr(t1), vr(vr0), vr(vr1))
        self.unpack(vr0, vr1, t1)
        I("v_sqrt_f32", vr(vr0), vr(vr0)); I("v_sqrt_f32", vr(vr1), vr(vr1))
        I("v_cvt_pk_bf16_f32", vr(t1), vr(vr0), vr(vr1))
        self.unpack(vr0, vr1, t1)
        I("v_rcp_f32", vr(vr0), vr(vr0)); I("v_rcp_f32", vr(vr1), vr(vr1))

    def ln_scalars1(self, s1, s2, vm0, vr0, t0):
        I = self.I
        inv = "0x3b000000"
        I("v_mov_b32", vr(vm0), sr(s1)); I("v_mov_b32", vr(vr0), sr(s2))
        I("v_mul_f32", vr(vm0), inv, vr(vm0)); I("v_mul_f32", vr(vr0), inv, vr(vr0))
        I("v_fma_f32", vr(vr0), f"-{vr(vm0)}", vr(vm0), vr(vr0))
        I("v_max_f32", vr(vr0), 0, vr(vr0))
        I("v_cvt_pk_bf16_f32", vr(t0), vr(vm0), vr(vr0))
        self.unpack(vm0, vr0, t0)
        I("v_add_f32", vr(vr0), "0x3727c5ac", vr(vr0))
        I("v_cvt_pk_bf16_f32", vr(t0), vr(vr0), vr(vr0))
        I("v_lshlrev_b32", vr(vr0), 16, vr(t0))
        I("v_sqrt_f32", vr(vr0), vr(vr0))
        I("v_cvt_pk_bf16_f32", vr(t0), vr(vr0), vr(vr0))
        I("v_lshlrev_b32", vr(vr0), 16, vr(t0))
        I("v_rcp_f32", vr(vr0), vr(vr0))

    def lds_set(self, off, val_sgpr_or_imm):
        I = self.I
        I("v_mov_b32", vr(vT6), off); I("v_mov_b32", vr(vT7), val_sgpr_or_imm)
        I("ds_write_b32", vr(vT6), vr(vT7))

    def lds_wait(self, off, val, sleep=1):
        I = self.I
        lp, ok = self.L("LW"), self.L("LWOK")
        I("v_mov_b32", vr(vT6), off)
        self.a.label(lp)
        I("ds_read_b32", vr(vT7), vr(vT6))
        I("s_waitcnt", "lgkmcnt(0)")
        I("v_readfirstlane_b32", sr(sT4), vr(vT7))
        I("s_cmp_ge_u32", sr(sT4), val)
        I("s_cbranch_scc1", ok)
        if sleep: I("s_sleep", sleep)
        I("s_branch", lp)
        self.a.label(ok)

    def invalidate(self):
        I = self.I
        for k in range(4): I("v_mov_b32", vr(20 + k), -1)
        I("v_lshlrev_b32", vr(vT5), 4, vr(vLane))
        I("s_lshl_b32", sr(sT0), sr(sBH), 2); I("s_add_u32", sr(sT0), sr(sT0), sr(sM))
        I("s_lshl_b32", sr(sT1), sr(sT0), 9); I("s_add_u32", sr(sT1), sr(sT1), hex(OPART))
        I("s_lshl_b32", sr(sT2), sr(sT0), 3); I("s_add_u32", sr(sT2), sr(sT2), hex(ML))
        self.execm(-1, 0)
        I("buffer_store_dwordx4", vr(20, 4), vr(vT5), sr(rWS, 4), sr(sT1), mods="offen sc1")
        I("s_mov_b64", "exec", 1)
        I("buffer_store_dwordx2", vr(20, 2), vr(vT5), sr(rWS, 4), sr(sT2), mods="offen sc1")
        I("s_lshl_b32", sr(sT1), sr(sBH), 6); I("s_add_u32", sr(sT1), sr(sT1), hex(HBUF))
        I("s_cmp_eq_u32", sr(sRole), 3)
        I("s_cselect_b32", sr(sT1), sr(sT1), hex(OOB))
        I("s_mov_b64", "exec", 15)
        I("buffer_store_dwordx4", vr(20, 4), vr(vT5), sr(rWS, 4), sr(sT1), mods="offen sc1")
        self.execall()
        I("s_cmp_eq_u32", sr(sRole), 1)
        self.csel(sT0, 4096, USTR)
        self.csel(sT1, hex(YPART), hex(UPART))
        I("s_lshl_b32", sr(sT2), sr(sF), 6); I("s_add_u32", sr(sT1), sr(sT1), sr(sT2))
        I("s_cmp_eq_u32", sr(sRole), 0); I("s_cselect_b32", sr(sT1), hex(OOB), sr(sT1))
        I("s_cmp_eq_u32", sr(sRole), 3); I("s_cselect_b32", sr(sT1), hex(OOB), sr(sT1))
        I("v_lshrrev_b32", vr(vT6), 2, vr(vLane))
        I("v_mul_lo_u32", vr(vT6), vr(vT6), sr(sT0))
        I("v_and_b32", vr(vT7), 3, vr(vLane)); I("v_lshlrev_b32", vr(vT7), 4, vr(vT7))
        I("v_add_u32", vr(vT6), vr(vT6), vr(vT7))
        I("s_lshl_b32", sr(sT0), sr(sT0), 4)
        for k in range(4):
            I("buffer_store_dwordx4", vr(20, 4), vr(vT6), sr(rWS, 4), sr(sT1), mods="offen sc1")
            if k < 3: I("s_add_u32", sr(sT1), sr(sT1), sr(sT0))

    def roles(self):
        a, I = self.a, self.I
        self.srd(rWS, pWS, hex(WSSZ))
        self.srd(rDBG, pDBG, 256)
        self.srd(rOUT, pOUT, 2048)
        I("s_mov_b32", sr(sRole), 0)
        I("s_add_u32", sr(sHW), sr(sH), self.hshift); I("s_and_b32", sr(sHW), sr(sHW), 31)
        I("s_lshl_b32", sr(sF), sr(sHW), 1); I("s_add_u32", sr(sF), sr(sF), sr(sB))
        I("s_cmp_eq_u32", sr(sM), 0); I("s_cselect_b32", sr(sRole), 1, sr(sRole))
        I("s_cmp_eq_u32", sr(sM), 1); I("s_cselect_b32", sr(sRole), 3, sr(sRole))
        I("s_and_b32", sr(sT1), "s2", 7); I("s_lshr_b32", sr(sT1), sr(sT1), 1); I("s_lshl_b32", sr(sT1), sr(sT1), 4)
        I("s_lshr_b32", sr(sT2), "s2", 4); I("s_add_u32", sr(sT1), sr(sT1), sr(sT2))
        I("s_cmp_lt_u32", sr(sT1), NF); I("s_cselect_b32", sr(sT2), 2, 0)
        I("s_cmp_eq_u32", sr(sM), 2); I("s_cselect_b32", sr(sT2), sr(sT2), 0)
        I("s_cmp_eq_u32", sr(sT2), 2); I("s_cselect_b32", sr(sRole), 2, sr(sRole)); I("s_cselect_b32", sr(sF), sr(sT1), sr(sF))
        lab_f, lab_done = self.L("RF"), self.L("RDONE")
        I("s_cmp_eq_u32", sr(sRole), 2)
        I("s_cbranch_scc1", lab_f)
        I("s_lshl_b32", sr(sT0), sr(sF), 16)
        self.srd(rWA, pWO, (65536 if not self.nodma else 0), sr(sT0))
        self.srd(rWB, pWO, 0, sr(sT0))
        I("s_branch", lab_done)
        a.label(lab_f)
        I("s_lshl_b32", sr(sT0), sr(sF), 6)
        I("s_sub_u32", sr(sT1), hex(512 * 2752), sr(sT0))
        self.srd(rWA, pW1, sr(sT1), sr(sT0))
        I("s_lshl_b32", sr(sT0), sr(sF), 15)
        self.srd(rWB, pW2, 32768, sr(sT0))
        a.label(lab_done)

    def build(self):
        a, I = self.a, self.I
        self.stamp(0)
        if self.dbgtime: I("s_memrealtime", "s[38:39]")
        I("s_load_dwordx16", sr(16, 16), "s[0:1]", 0)
        I("s_load_dwordx4", sr(32, 4), "s[0:1]", 64)
        I("s_load_dwordx2", sr(36, 2), "s[0:1]", 80)
        I("s_cmp_ge_u32", "s2", 256)
        I("s_cbranch_scc1", "L_END")
        I("v_and_b32", vr(vLane), 63, "v0")
        I("v_lshrrev_b32", vr(vT5), 6, "v0")
        I("v_and_b32", vr(vC), 15, "v0")
        I("v_readfirstlane_b32", sr(sW), vr(vT5))
        I("v_bfe_u32", vr(vG), "v0", 4, 2)
        I("s_and_b32", sr(sT0), "s2", 7)
        I("s_lshr_b32", sr(sT1), "s2", 3)
        if self.map == 0:
            I("s_and_b32", sr(sE), sr(sT0), 1)
            I("s_lshr_b32", sr(sT0), sr(sT0), 1)
            I("s_and_b32", sr(sHalf), sr(sT1), 1)
            I("s_lshr_b32", sr(sT2), sr(sT1), 1)
            I("s_lshr_b32", sr(sB), sr(sT2), 3)
            I("s_and_b32", sr(sT2), sr(sT2), 7)
            I("s_lshl_b32", sr(sH), sr(sT0), 3); I("s_add_u32", sr(sH), sr(sH), sr(sT2))
        else:
            I("s_and_b32", sr(sE), sr(sT1), 1)
            I("s_bfe_u32", sr(sHalf), sr(sT1), "0x10001")
            I("s_bfe_u32", sr(sB), sr(sT1), "0x10002")
            I("s_lshr_b32", sr(sT2), sr(sT1), 3)
            I("s_lshl_b32", sr(sH), sr(sT0), 2); I("s_add_u32", sr(sH), sr(sH), sr(sT2))
        I("s_lshl_b32", sr(sBH), sr(sB), 5); I("s_add_u32", sr(sBH), sr(sBH), sr(sH))
        I("s_lshl_b32", sr(sM), sr(sHalf), 1); I("s_add_u32", sr(sM), sr(sM), sr(sE))
        I("v_lshlrev_b32", vr(vKV), 4, vr(vLane))
        if self.pat == 1:
            I("s_lshl_b32", sr(sT0), sr(sW), 15)
            I("v_add_u32", vr(vKV), sr(sT0), vr(vKV))
            I("s_cmp_eq_u32", sr(sE), 0)
            self.csel(sT0, 1024, -1024)
            self.csel(sN, 16 + self.skew, 16 - self.skew)
            I("s_mul_i32", sr(sOFF), sr(sE), 31744)
        else:
            I("s_cmp_eq_u32", sr(sE), 0)
            self.csel(sN, 16 + self.skew, 16 - self.skew)
            I("s_mul_i32", sr(sT0), sr(sN), sr(sW)); I("s_lshl_b32", sr(sT0), sr(sT0), 10)
            I("v_add_u32", vr(vKV), sr(sT0), vr(vKV))
            I("s_movk_i32", sr(sT0), 1024)
            I("s_mul_i32", sr(sOFF), sr(sE), 16 * (16 + self.skew) * 1024)
        for i in range(1, 17):
            I("s_add_u32", sr(sOFF + i), sr(sOFF + i - 1), sr(sT0))
        for i in (15, 16):
            I("s_cmp_gt_u32", sr(sN), i)
            I("s_cselect_b32", sr(sOFF + i), sr(sOFF + i), hex(OOB))
        I("s_waitcnt", "lgkmcnt(0)")
        I("s_setprio", self.prios[0])
        lab_r1 = self.L("RL1")
        I("s_cmp_eq_u32", sr(sW), 0)
        I("s_cbranch_scc0", lab_r1)
        self.roles()
        if self.touch:
            I("v_mov_b32", vr(vT5), 0)
            I("s_mov_b64", "exec", 1)
            I("buffer_load_dword", vr(24), vr(vT5), sr(rWA, 4), 0, mods="offen nt")
            I("buffer_load_dword", vr(25), vr(vT5), sr(rWB, 4), 0, mods="offen nt")
            I("buffer_load_dword", vr(26), vr(vT5), sr(rOUT, 4), 0, mods="offen nt")
            I("s_mov_b32", sr(sT0), 511 * 2752)
            I("buffer_load_dword", vr(27), vr(vT5), sr(rWA, 4), sr(sT0), mods="offen nt")
            self.execall()
        if not self.noinv: self.invalidate()
        a.label(lab_r1)
        I("s_lshl_b32", sr(sT0), sr(sBH), 20); I("s_lshl_b32", sr(sT1), sr(sHalf), 19); I("s_add_u32", sr(sT0), sr(sT0), sr(sT1))
        self.srd(rK, pK, "0x80000", sr(sT0))
        self.srd(rV, pV, "0x80000", sr(sT0))
        self.srd(rX, pX, 2048)
        I("s_lshl_b32", sr(sT0), sr(sH), 8)
        I("s_sub_u32", sr(sT1), hex(512 * 8192), sr(sT0))
        self.srd(rWQ, pWQ, sr(sT1), sr(sT0))
        if self.t1test:
            I("s_lshl_b32", sr(sT0), sr(sH), 17)
            self.srd(rT1, pWO, 131072, sr(sT0))
        NP = self.npre
        XF, WQ = 8, kslot(17)
        if self.map == 0:
            I("s_lshl_b32", sr(sT0), sr(sB), 1); I("s_add_u32", sr(sT0), sr(sT0), sr(sHalf)); I("s_lshl_b32", sr(sT0), sr(sT0), 2)
        else:
            I("s_lshr_b32", sr(sT0), "s2", 3); I("s_and_b32", sr(sT0), sr(sT0), 7); I("s_lshl_b32", sr(sT0), sr(sT0), 1)
        I("s_add_u32", sr(sT0), sr(sT0), sr(sW)); I("s_and_b32", sr(sRB), sr(sT0), 15)
        I("v_lshlrev_b32", vr(vT5), 4, vr(vLane))
        I("s_lshl_b32", sr(sT1), sr(sB), 10)
        self.vm("xf", "buffer_load_dwordx4", vr(XF, 4), vr(vT5), sr(rX, 4), sr(sT1), mods="offen")
        I("s_lshl_b32", sr(sT0), sr(sRB), 5)
        I("v_lshl_add_u32", vr(vT6), vr(vG), 1, sr(sT0))
        I("v_lshlrev_b32", vr(vT7), 13, vr(vT6))
        I("v_lshl_add_u32", vr(vT7), vr(vC), 4, vr(vT7))
        for kq in range(NP):
            self.vm(f"K{kq}", "buffer_load_dwordx4", vr(kslot(kq), 4), vr(vKV), sr(rK, 4), sr(sOFF + kq), mods="offen nt")
        for i in range(8):
            off = (8 * (i >> 1) + (i & 1)) * 8192
            I("s_mov_b32", sr(sT2), off if not self.nowq else OOB)
            self.vm(f"wq{i}", "buffer_load_dwordx4", vr(WQ + 4 * i, 4), vr(vT7), sr(rWQ, 4), sr(sT2), mods=("offen " + self.wqflag).strip())
            if i == 1:
                I("v_lshlrev_b32", vr(vT5), 2, vr(vLane)); I("v_mov_b32", vr(vT6), 0)
                I("s_mov_b64", "exec", 15)
                I("ds_write_b32", vr(vT5), vr(vT6), mods=f"offset:{L_CNT}")
                self.execall()
                I("s_waitcnt", "lgkmcnt(0)")
                I("s_barrier")
        I("s_setprio", self.prios[1])
        for kq in range(NP, self.npre2):
            self.vm(f"K{kq}", "buffer_load_dwordx4", vr(kslot(kq), 4), vr(vKV), sr(rK, 4), sr(sOFF + kq), mods="offen nt")
        self.stamp(1)
        lab_r2 = self.L("RL2")
        I("s_cmp_eq_u32", sr(sW), 0)
        I("s_cbranch_scc1", lab_r2)
        self.roles()
        a.label(lab_r2)
        I("s_mov_b32", sr(sT4), "0x3f803f80")
        self.wait_vm("xf")
        lab_noat = self.L("NOAT")
        I("s_cmp_eq_u32", sr(sW), 0)
        I("s_cbranch_scc0", lab_noat)
        self.stamp(17)
        I("v_mov_b32", vr(vT5), 0); I("v_mov_b32", vr(vT6), 1)
        I("s_lshl_b32", sr(sT0), sr(sH), 2)
        I("s_mov_b64", "exec", 1)
        I("buffer_atomic_add", vr(vT6), vr(vT5), sr(rDBG, 4), sr(sT0), mods="offen sc1")
        self.execall()
        a.label(lab_noat)
        I("s_mov_b32", sr(sT4), "0x3f803f80")
        A1, A2, T0 = 22, 23, 26
        for k in range(4):
            I("v_dot2_f32_bf16", vr(A1), vr(XF + k), sr(sT4), (0 if k == 0 else vr(A1)))
            I("v_dot2_f32_bf16", vr(A2), vr(XF + k), vr(XF + k), (0 if k == 0 else vr(A2)))
        self.wave_reduce63("v_add_f32", [A1, A2])
        I("v_readlane_b32", sr(sT0), vr(A1), 63); I("v_readlane_b32", sr(sT1), vr(A2), 63)
        M0, R0 = 22, 23
        self.ln_scalars1(sT0, sT1, M0, R0, T0)
        XU = 12
        for k in range(4): self.unpack(XU + 2 * k, XU + 2 * k + 1, XF + k)
        for e in range(8): I("v_sub_f32", vr(XU + e), vr(XU + e), vr(M0))
        for k in range(4): I("v_cvt_pk_bf16_f32", vr(XF + k), vr(XU + 2 * k), vr(XU + 2 * k + 1))
        for k in range(4): self.unpack(XU + 2 * k, XU + 2 * k + 1, XF + k)
        for e in range(8): I("v_mul_f32", vr(XU + e), vr(XU + e), vr(R0))
        for k in range(4): I("v_cvt_pk_bf16_f32", vr(XF + k), vr(XU + 2 * k), vr(XU + 2 * k + 1))
        I("v_lshlrev_b32", vr(vT5), 4, vr(vLane))
        I("s_lshl_b32", sr(sT0), sr(sW), 10)
        I("v_add_u32", vr(vT5), sr(sT0), vr(vT5))
        I("ds_write_b128", vr(vT5), vr(XF, 4), mods=f"offset:{L_XN}")
        I("s_lshl_b32", sr(sT1), sr(sRB), 6); I("s_add_u32", sr(sT0), sr(sT0), sr(sT1))
        I("v_lshlrev_b32", vr(vT5), 2, vr(vG))
        I("v_add_u32", vr(vT5), sr(sT0), vr(vT5))
        I("s_waitcnt", "lgkmcnt(0)")
        for ip in range(4):
            I("ds_read_b32", vr(12 + ip), vr(vT5), mods=f"offset:{L_XN + 16 * ip}")
        P = vACC
        PT = kslot(15)
        I("s_mov_b32", sr(sT2), "0x05040100"); I("s_mov_b32", sr(sT3), "0x07060302")
        I("s_waitcnt", "lgkmcnt(0)")
        for ip in range(4):
            self.wait_vm(f"wq{2 * ip + 1}")
            wa, wb = WQ + 8 * ip, WQ + 8 * ip + 4
            for k in range(4):
                I("v_perm_b32", vr(PT + 2 * k), vr(wb + k), vr(wa + k), sr(sT2))
                I("v_perm_b32", vr(PT + 2 * k + 1), vr(wb + k), vr(wa + k), sr(sT3))
            for e in range(8):
                I("v_dot2_f32_bf16", vr(P + e), vr(PT + e), vr(12 + ip), (0 if ip == 0 else vr(P + e)))
        for i in range(4): I("v_permlane32_swap_b32", vr(P + 2 * i), vr(P + 2 * i + 1))
        for i in range(4): I("v_add_f32", vr(P + 2 * i), vr(P + 2 * i), vr(P + 2 * i + 1))
        for i in range(2): I("v_permlane16_swap_b32", vr(P + 4 * i), vr(P + 4 * i + 2))
        for i in range(2): I("v_add_f32", vr(8 + i), vr(P + 4 * i), vr(P + 4 * i + 2))
        self.perm_g(vT6, vT7)
        I("v_lshl_add_u32", vr(vT5), vr(vC), 3, vr(vT6))
        I("v_lshlrev_b32", vr(vT5), 2, vr(vT5))
        I("s_lshl_b32", sr(sT0), sr(sW), 9)
        I("v_add_u32", vr(vT5), sr(sT0), vr(vT5))
        I("ds_write_b32", vr(vT5), vr(8), mods=f"offset:{L_QP}")
        I("ds_write_b32", vr(vT5), vr(9), mods=f"offset:{L_QP + 16}")
        I("s_waitcnt", "lgkmcnt(0)")
        I("v_mov_b32", vr(vT6), L_QCNT); I("v_mov_b32", vr(vT7), 1)
        I("s_mov_b64", "exec", 1)
        I("ds_add_rtn_u32", vr(vT5), vr(vT6), vr(vT7))
        self.execall()
        I("s_waitcnt", "lgkmcnt(0)")
        I("v_readfirstlane_b32", sr(sT0), vr(vT5))
        self.stamp(2)
        lab_notlast = self.L("NOTLAST")
        I("s_cmp_eq_u32", sr(sT0), 15)
        I("s_cbranch_scc0", lab_notlast)
        I("v_and_b32", vr(vT5), 31, vr(vLane)); I("v_lshlrev_b32", vr(vT5), 4, vr(vT5))
        I("v_lshrrev_b32", vr(vT6), 5, vr(vLane)); I("v_lshlrev_b32", vr(vT6), 12, vr(vT6))
        I("v_add_u32", vr(vT5), vr(vT5), vr(vT6))
        RB = WQ
        for k in range(8):
            I("ds_read_b128", vr(RB + 4 * k, 4), vr(vT5), mods=f"offset:{L_QP + 512 * k}")
        I("s_waitcnt", "lgkmcnt(0)")
        for e in range(4):
            for k in (0, 2, 4, 6): I("v_add_f32", vr(RB + 4 * k + e), vr(RB + 4 * k + e), vr(RB + 4 * k + 4 + e))
        for e in range(4):
            I("v_add_f32", vr(RB + e), vr(RB + e), vr(RB + 8 + e)); I("v_add_f32", vr(RB + 16 + e), vr(RB + 16 + e), vr(RB + 24 + e))
        for e in range(4): I("v_add_f32", vr(RB + e), vr(RB + e), vr(RB + 16 + e))
        for e in range(4): I("v_mov_b32", vr(RB + 4 + e), vr(RB + e))
        for e in range(4): I("v_permlane32_swap_b32", vr(RB + e), vr(RB + 4 + e))
        for e in range(4): I("v_add_f32", vr(RB + e), vr(RB + e), vr(RB + 4 + e))
        I("v_cvt_pk_bf16_f32", vr(RB + 8), vr(RB), vr(RB + 1)); I("v_cvt_pk_bf16_f32", vr(RB + 9), vr(RB + 2), vr(RB + 3))
        I("v_and_b32", vr(vT5), 31, vr(vLane)); I("v_lshlrev_b32", vr(vT5), 3, vr(vT5))
        I("ds_write_b64", vr(vT5), vr(RB + 8, 2), mods=f"offset:{L_QB}")
        I("s_waitcnt", "lgkmcnt(0)")
        self.lds_set(L_FQ, 1)
        a.label(lab_notlast)
        I("s_setprio", self.prios[2])
        for i in range(self.npre2, 17):
            self.vm(f"K{i}", "buffer_load_dwordx4", vr(kslot(i), 4), vr(vKV), sr(rK, 4), sr(sOFF + i), mods="offen nt")
        if self.t1test:
            I("s_lshl_b32", sr(sT0), sr(sH), 17)
            I("s_add_u32", "s84", sr(pWO), sr(sT0)) if False else None
            I("v_lshrrev_b32", vr(vT5), 2, vr(vLane)); I("v_lshlrev_b32", vr(vT5), 10, vr(vT5))
            I("v_and_b32", vr(vT6), 3, vr(vLane)); I("v_lshl_add_u32", vr(vT5), vr(vT6), 4, vr(vT5))
            I("s_lshl_b32", sr(sT1), sr(sW), 6); I("v_add_u32", vr(vT5), sr(sT1), vr(vT5))
            I("s_mov_b32", sr(sT2), 0)
            I("s_lshl_b32", sr(sT1), sr(sW), 12); I("s_add_u32", sr(sT1), sr(sT1), 20480)
            for k in range(8):
                I("s_mov_b32", "m0", sr(sT1))
                self.vm(f"T1_{k}", "buffer_load_dwordx4", vr(vT5), sr(rT1, 4), sr(sT2), mods=("offen lds" if self.t1test == 1 else "offen nt lds"))
                I("s_add_u32", sr(sT2), sr(sT2), 16 * 1024)
        if not self.kfirst:
            I("s_setprio", self.prios[3])
            for i in range(8):
                self.vm(f"V{i}", "buffer_load_dwordx4", vr(vslot(i), 4), vr(vKV), sr(rV, 4), sr(sOFF + i), mods="offen nt")
            self.stamp(16)
            self.lds_wait(L_FQ, 1)
            I("s_setprio", self.prios[4])
            self.stamp(4)
            I("v_lshlrev_b32", vr(vT5), 4, vr(vC))
            I("ds_read_b128", vr(vQ, 4), vr(vT5), mods=f"offset:{L_QB}")
            I("s_mov_b32", sr(sMask), "0x00010001"); I("s_mov_b32", sr(sMask + 1), "0x00010001")
            I("v_mov_b32", vr(vS), 0)
            I("s_waitcnt", "lgkmcnt(0)")
            groups = [[0, 1, 2, 3], [4, 5, 6, 7], [8, 9, 10, 11], [12, 13, 14], [15, 16]]
            nextv = 8
            for grp in groups:
                self.wait_vm(f"K{grp[-1]}")
                for n, i in enumerate(grp):
                    I("v_dot2_f32_bf16", vr(vD + n), vr(kslot(i)), vr(vQ), 0)
                for k in range(1, 4):
                    for n, i in enumerate(grp):
                        I("v_dot2_f32_bf16", vr(vD + n), vr(kslot(i) + k), vr(vQ + k), vr(vD + n))
                for i in grp:
                    if i <= 8 and nextv <= 16:
                        assert vslot(nextv) == kslot(i)
                        self.vm(f"V{nextv}", "buffer_load_dwordx4", vr(vslot(nextv), 4), vr(vKV), sr(rV, 4), sr(sOFF + nextv), mods="offen nt")
                        nextv += 1
                self.row_reduce("v_add_f32", [vD + n for n in range(len(grp))])
                for n, i in enumerate(grp):
                    if i < 16:
                        I("v_cndmask_b32", vr(vS), vr(vS), vr(vD + n), sr(sMask, 2))
                        if i < 15: I("s_lshl_b64", sr(sMask, 2), sr(sMask, 2), 1)
                    else:
                        I("v_mov_b32", vr(vS2), vr(vD + n))
                if nextv == 17 and not self.wo_done and not self.late_wo:
                    self.wo_dma()
        else:
            lab_qok, lab_kph, lab_vdone = self.L("QOK"), self.L("KPH"), self.L("VD")
            I("s_setprio", self.prios[3])
            I("v_mov_b32", vr(vT6), L_FQ)
            I("ds_read_b32", vr(vT7), vr(vT6))
            I("s_waitcnt", "lgkmcnt(0)")
            I("v_readfirstlane_b32", sr(sU3 - 1), vr(vT7))
            I("s_cmp_ge_u32", sr(sU3 - 1), 1)
            I("s_cbranch_scc1", lab_kph)
            for i in range(8):
                I("buffer_load_dwordx4", vr(vslot(i), 4), vr(vKV), sr(rV, 4), sr(sOFF + i), mods="offen nt")
            self.stamp(16)
            self.lds_wait(L_FQ, 1)
            a.label(lab_kph)
            I("s_setprio", self.prios[4])
            self.stamp(4)
            I("v_lshlrev_b32", vr(vT5), 4, vr(vC))
            I("ds_read_b128", vr(vQ, 4), vr(vT5), mods=f"offset:{L_QB}")
            I("s_mov_b32", sr(sMask), "0x00010001"); I("s_mov_b32", sr(sMask + 1), "0x00010001")
            I("v_mov_b32", vr(vS), 0)
            I("s_waitcnt", "lgkmcnt(0)")
            groups = [[0, 1, 2, 3], [4, 5, 6, 7], [8, 9, 10, 11], [12, 13, 14], [15, 16]]
            for grp in groups:
                self.wait_vm(f"K{grp[-1]}")
                for n, i in enumerate(grp):
                    I("v_dot2_f32_bf16", vr(vD + n), vr(kslot(i)), vr(vQ), 0)
                for k in range(1, 4):
                    for n, i in enumerate(grp):
                        I("v_dot2_f32_bf16", vr(vD + n), vr(kslot(i) + k), vr(vQ + k), vr(vD + n))
                if grp[-1] == 16:
                    I("s_cmp_ge_u32", sr(sU3 - 1), 1)
                    I("s_cbranch_scc0", lab_vdone)
                    for i in range(8):
                        I("buffer_load_dwordx4", vr(vslot(i), 4), vr(vKV), sr(rV, 4), sr(sOFF + i), mods="offen nt")
                    a.label(lab_vdone)
                    for i in range(8): self.issued.append(f"V{i}")
                    for i in range(8, 17):
                        self.vm(f"V{i}", "buffer_load_dwordx4", vr(vslot(i), 4), vr(vKV), sr(rV, 4), sr(sOFF + i), mods="offen nt")
                self.row_reduce("v_add_f32", [vD + n for n in range(len(grp))])
                for n, i in enumerate(grp):
                    if i < 16:
                        I("v_cndmask_b32", vr(vS), vr(vS), vr(vD + n), sr(sMask, 2))
                        if i < 15: I("s_lshl_b64", sr(sMask, 2), sr(sMask, 2), 1)
                    else:
                        I("v_mov_b32", vr(vS2), vr(vD + n))
            if not self.wo_done and not self.late_wo:
                self.wo_dma()
        T0, T1 = 18, 19
        I("v_cvt_pk_bf16_f32", vr(T0), vr(vS), vr(vS2))
        self.unpack(vS, vS2, T0)
        I("v_mul_f32", vr(vS), hex(SCALE), vr(vS)); I("v_mul_f32", vr(vS2), hex(SCALE), vr(vS2))
        I("v_cvt_pk_bf16_f32", vr(T0), vr(vS), vr(vS2))
        self.unpack(vS, vS2, T0)
        I("v_mov_b32", vr(T1), "0xff800000")
        I("v_cmp_gt_u32", "vcc", sr(sN), vr(vC))
        I("v_cndmask_b32", vr(vS), vr(T1), vr(vS), "vcc")
        I("s_cmp_gt_u32", sr(sN), 16)
        self.csel(sT0, "0x7f800000", "0xff800000")
        I("v_min_f32", vr(vS2), sr(sT0), vr(vS2))
        I("v_max_f32", vr(T0), vr(vS), vr(vS2))
        self.wave_reduce63("v_max_f32", [T0])
        I("v_readlane_b32", sr(sT0), vr(T0), 63)
        I("v_subrev_f32", vr(vS), sr(sT0), vr(vS)); I("v_subrev_f32", vr(vS2), sr(sT0), vr(vS2))
        I("v_mul_f32", vr(vS), hex(LOG2E), vr(vS)); I("v_mul_f32", vr(vS2), hex(LOG2E), vr(vS2))
        I("v_exp_f32", vr(vS), vr(vS)); I("v_exp_f32", vr(vS2), vr(vS2))
        I("v_mov_b32", vr(T0), vr(vS))
        I("v_fmac_f32", vr(T0), "0x3d800000", vr(vS2))
        self.wave_reduce63("v_add_f32", [T0])
        I("v_mov_b32", vr(T1), vr(T0))
        I("v_mov_b32", vr(T0), sr(sT0))
        I("s_lshl_b32", sr(sT1), sr(sW), 3)
        I("v_mov_b32", vr(vT5), sr(sT1))
        self.exec63()
        I("ds_write_b64", vr(vT5), vr(T0, 2), mods=f"offset:{L_ML}")
        I("s_waitcnt", "lgkmcnt(0)")
        I("v_mov_b32", vr(vT5), L_CNT); I("v_mov_b32", vr(vT6), 1)
        I("ds_add_u32", vr(vT5), vr(vT6))
        self.execall()
        self.stamp(5)
        for e in range(8): I("v_mov_b32", vr(vACC + e), 0)
        for i in range(17):
            self.wait_vm(f"V{i}")
            for k in range(4):
                self.unpack(8 + 2 * k, 9 + 2 * k, vslot(i) + k)
            for k in range(4):
                for hh in range(2):
                    if i < 16:
                        I("v_fmac_f32_dpp", vr(vACC + 2 * k + hh), vr(vS), vr(8 + 2 * k + hh), mods=f"row_newbcast:{i} row_mask:0xf bank_mask:0xf")
                    else:
                        I("v_fmac_f32", vr(vACC + 2 * k + hh), vr(vS2), vr(8 + 2 * k + hh))
            if self.late_wo and i == self.late_wo:
                self.wo_dma()
        self.stamp(6)
        for i in range(4): I("v_permlane32_swap_b32", vr(vACC + 2 * i), vr(vACC + 2 * i + 1))
        for i in range(4): I("v_add_f32", vr(vACC + 2 * i), vr(vACC + 2 * i), vr(vACC + 2 * i + 1))
        for i in range(2): I("v_permlane16_swap_b32", vr(vACC + 4 * i), vr(vACC + 4 * i + 2))
        for i in range(2): I("v_add_f32", vr(8 + i), vr(vACC + 4 * i), vr(vACC + 4 * i + 2))
        self.perm_g(vT6, vT7)
        I("v_lshl_add_u32", vr(vT5), vr(vC), 3, vr(vT6))
        I("v_lshlrev_b32", vr(vT5), 2, vr(vT5))
        I("s_lshl_b32", sr(sT0), sr(sW), 9)
        I("v_add_u32", vr(vT5), sr(sT0), vr(vT5))
        I("ds_write_b32", vr(vT5), vr(8), mods=f"offset:{L_OP}")
        I("ds_write_b32", vr(vT5), vr(9), mods=f"offset:{L_OP + 16}")
        lab_w4 = self.L("W4")
        I("s_cmp_lt_u32", sr(sW), 4)
        I("s_cbranch_scc0", lab_w4)
        self.lds_wait(L_CNT, 16, sleep=1)
        I("v_lshrrev_b32", vr(vT7), 3, vr(vLane))
        I("v_lshlrev_b32", vr(13), 4, vr(vT7))
        I("ds_read_b128", vr(12, 4), vr(13), mods=f"offset:{L_ML}")
        I("s_waitcnt", "lgkmcnt(0)")
        I("v_max_f32", vr(16), vr(12), vr(14))
        self.wave_reduce63("v_max_f32", [16])
        I("v_readlane_b32", sr(sT0), vr(16), 63)
        I("v_subrev_f32", vr(12), sr(sT0), vr(12)); I("v_subrev_f32", vr(14), sr(sT0), vr(14))
        I("v_mul_f32", vr(12), hex(LOG2E), vr(12)); I("v_mul_f32", vr(14), hex(LOG2E), vr(14))
        I("v_exp_f32", vr(12), vr(12)); I("v_exp_f32", vr(14), vr(14))
        I("v_mul_f32", vr(16), vr(12), vr(13)); I("v_fmac_f32", vr(16), vr(14), vr(15))
        I("v_mul_f32", vr(16), "0x3e000000", vr(16))
        self.wave_reduce63("v_add_f32", [16])
        lab_noml = self.L("NOML")
        I("s_cmp_eq_u32", sr(sW), 0)
        I("s_cbranch_scc0", lab_noml)
        I("v_mov_b32", vr(17), vr(16))
        I("v_mov_b32", vr(16), sr(sT0))
        self.clamp(16); self.clamp(17)
        I("s_lshl_b32", sr(sT1), sr(sBH), 2); I("s_add_u32", sr(sT1), sr(sT1), sr(sM)); I("s_lshl_b32", sr(sT1), sr(sT1), 3)
        I("s_add_u32", sr(sT1), sr(sT1), hex(ML))
        I("v_mov_b32", vr(vT5), 0)
        self.exec63()
        I("buffer_store_dwordx2", vr(16, 2), vr(vT5), sr(rWS, 4), sr(sT1), mods="offen sc1")
        self.execall()
        a.label(lab_noml)
        self.check_all_counters()
        self.stamp(18)
        I("v_and_b32", vr(vT5), 7, vr(vLane)); I("v_lshlrev_b32", vr(16), 4, vr(vT5))
        I("v_lshrrev_b32", vr(vT7), 3, vr(vLane)); I("v_lshlrev_b32", vr(vT6), 10, vr(vT7))
        I("v_add_u32", vr(16), vr(16), vr(vT6))
        I("s_lshl_b32", sr(sT0), sr(sW), 7)
        I("v_add_u32", vr(16), sr(sT0), vr(16))
        self.perm_g(vT6, vT7)
        I("v_lshl_add_u32", vr(17), vr(vT5), 2, vr(vT6))
        I("v_lshlrev_b32", vr(17), 2, vr(17))
        I("s_lshl_b32", sr(sU0), sr(sBH), 2); I("s_add_u32", sr(sU0), sr(sU0), sr(sM)); I("s_lshl_b32", sr(sU0), sr(sU0), 9)
        I("s_add_u32", sr(sU0), sr(sU0), sr(sT0)); I("s_add_u32", sr(sU0), sr(sU0), hex(OPART))
        a.label(lab_w4)
        I("s_waitcnt", "lgkmcnt(0)")
        I("s_barrier")
        self.stamp(7)
        lab_exit_wait = self.L("XW")
        I("s_cmp_lt_u32", sr(sW), 4)
        I("s_cbranch_scc0", lab_exit_wait)
        I("ds_read_b128", vr(20, 4), vr(16), mods=f"offset:{L_OP}")
        I("ds_read_b128", vr(24, 4), vr(16), mods=f"offset:{L_OP + 512}")
        I("s_waitcnt", "lgkmcnt(0)")
        for e in range(4): I("v_mul_f32", vr(20 + e), vr(20 + e), vr(12))
        for e in range(4): I("v_fmac_f32", vr(20 + e), vr(24 + e), vr(14))
        I("v_permlane32_swap_b32", vr(20), vr(21)); I("v_permlane32_swap_b32", vr(22), vr(23))
        I("v_add_f32", vr(20), vr(20), vr(21)); I("v_add_f32", vr(22), vr(22), vr(23))
        self.swap_add(16, 20, 22, 20)
        self.dpp("v_add_f32", 20, 20, 20, "row_ror:8")
        self.clamp(20)
        self.execm("0x00ff00ff", "0x00ff00ff")
        I("buffer_store_dword", vr(20), vr(17), sr(rWS, 4), sr(sU0), mods="offen sc1")
        self.execall()
        self.stamp(8)
        if self.stop == "attn":
            a.label(lab_exit_wait)
            return self.finish()
        self.tail(lab_exit_wait)
        return self.finish()

    def wo_dma(self):
        I = self.I
        skip = self.L("NWD")
        self.wo_done = True
        I("s_cmp_eq_u32", sr(sRole), 1)
        I("s_cbranch_scc0", skip)
        I("s_lshl_b32", sr(sT2), sr(sW), 12)
        I("v_lshlrev_b32", vr(vT5), 4, vr(vLane))
        I("s_mul_i32", sr(sT1), sr(sW), 4 * WROW); I("s_add_u32", sr(sT1), sr(sT1), L_WB)
        for k in range(4):
            I("s_mov_b32", "m0", sr(sT1))
            I("buffer_load_dwordx4", vr(vT5), sr(rWA, 4), sr(sT2), mods="offen nt lds")
            if k < 3:
                I("s_add_u32", sr(sT1), sr(sT1), WROW); I("s_add_u32", sr(sT2), sr(sT2), 1024)
        self.a.label(skip)

    def ffn_dma(self):
        I = self.I
        skip = self.L("NFD")
        I("s_cmp_eq_u32", sr(sRole), 2)
        I("s_cbranch_scc0", skip)
        I("s_lshl_b32", sr(sT0), sr(sW), 5)
        I("v_lshrrev_b32", vr(vT5), 2, vr(vLane)); I("v_add_u32", vr(vT5), sr(sT0), vr(vT5))
        I("s_movk_i32", sr(sT1), 2752)
        I("v_mul_lo_u32", vr(vT5), vr(vT5), sr(sT1))
        I("v_and_b32", vr(vT6), 3, vr(vLane))
        I("v_lshl_add_u32", vr(vT5), vr(vT6), 4, vr(vT5))
        I("s_lshl_b32", sr(sT0), sr(sW), 11); I("s_add_u32", sr(sT1), sr(sT0), L_WB)
        I("s_mov_b32", "m0", sr(sT1))
        I("buffer_load_dwordx4", vr(vT5), sr(rWA, 4), 0, mods="offen lds")
        I("s_add_u32", sr(sT1), sr(sT1), 1024)
        I("s_mov_b32", sr(sT2), 16 * 2752)
        I("s_mov_b32", "m0", sr(sT1))
        I("buffer_load_dwordx4", vr(vT5), sr(rWA, 4), sr(sT2), mods="offen lds")
        I("v_lshlrev_b32", vr(vT6), 4, vr(vLane)); I("v_add_u32", vr(vT6), sr(sT0), vr(vT6))
        I("s_mul_i32", sr(sT1), sr(sW), 2 * WROW); I("s_add_u32", sr(sT1), sr(sT1), L_W2)
        I("s_mov_b32", "m0", sr(sT1))
        I("buffer_load_dwordx4", vr(vT6), sr(rWB, 4), 0, mods="offen nt lds")
        I("s_add_u32", sr(sT1), sr(sT1), WROW)
        I("s_movk_i32", sr(sT2), 1024)
        I("s_mov_b32", "m0", sr(sT1))
        I("buffer_load_dwordx4", vr(vT6), sr(rWB, 4), sr(sT2), mods="offen nt lds")
        self.a.label(skip)

    def check_all_counters(self):
        a, I = self.a, self.I
        lp, ok = self.L("CA"), self.L("CAOK")
        I("s_mov_b32", sr(sSpin), SPIN_MAX)
        I("v_and_b32", vr(vT5), 31, vr(vLane)); I("v_lshlrev_b32", vr(vT5), 2, vr(vT5))
        a.label(lp)
        I("buffer_load_dword", vr(vT6), vr(vT5), sr(rDBG, 4), 0, mods="offen sc1")
        I("s_waitcnt", "vmcnt(0)")
        I("v_cmp_gt_u32", "vcc", 8, vr(vT6))
        I("s_cbranch_vccz", ok)
        I("s_sub_u32", sr(sSpin), sr(sSpin), 1)
        I("s_cbranch_scc0", lp)
        a.label(ok)

    def tail(self, lab_exit_wait):
        a, I = self.a, self.I
        if self.late_wo == 99: self.wo_dma()
        self.ffn_dma()
        lab_ffn, lab_red = self.L("FFN"), self.L("RED")
        I("s_cmp_eq_u32", sr(sRole), 0)
        I("s_cbranch_scc1", "L_FIN")
        I("s_cmp_eq_u32", sr(sRole), 3)
        I("s_cbranch_scc1", lab_red)
        I("s_cmp_eq_u32", sr(sRole), 1)
        I("s_cbranch_scc0", lab_ffn)
        self.wo_stage()
        a.label(lab_ffn)
        self.ffn_stage()
        I("s_branch", "L_FIN")
        a.label(lab_red)
        I("s_cmp_eq_u32", sr(sW), 0)
        I("s_cbranch_scc0", "L_FIN")
        self.reducer()
        I("s_branch", "L_FIN")
        a.label(lab_exit_wait)
        if self.late_wo == 99: self.wo_dma()
        self.ffn_dma()
        I("s_cmp_eq_u32", sr(sRole), 0)
        I("s_cbranch_scc1", "L_FIN")
        I("s_cmp_eq_u32", sr(sRole), 3)
        I("s_cbranch_scc1", "L_FIN")
        I("s_waitcnt", "vmcnt(0)")
        I("s_barrier")
        I("s_branch", "L_FIN")

    def dry_top(self):
        top = self.L("TOP")
        self.I("s_mov_b32", sr(sDry), 1 if self.dry else 0)
        self.a.label(top)
        return top
    def skip_if_dry(self):
        lab = self.L("SK")
        self.I("s_cmp_eq_u32", sr(sDry), 1)
        self.I("s_cbranch_scc1", lab)
        return lab
    def dry_end(self, top):
        lab = self.L("REAL")
        self.I("s_cmp_eq_u32", sr(sDry), 0)
        self.I("s_cbranch_scc1", lab)
        self.I("s_mov_b32", sr(sDry), 0)
        self.I("s_branch", top)
        self.a.label(lab)

    def wo_stage(self):
        a, I = self.a, self.I
        vI4, vI2 = 8, 9
        BW = 64
        I("s_waitcnt", "vmcnt(0)" if self.late_wo == 99 else "vmcnt(1)")
        I("s_barrier")
        I("v_lshrrev_b32", vr(vI4), 2, vr(vC)); I("v_and_b32", vr(vI2), 3, vr(vC))
        I("v_lshl_add_u32", vr(vT5), vr(vG), 3, vr(vI4))
        I("s_movk_i32", sr(sT0), WROW)
        I("v_mul_lo_u32", vr(vT5), vr(vT5), sr(sT0))
        I("v_lshl_add_u32", vr(vT5), vr(vI2), 3, vr(vT5))
        I("s_lshl_b32", sr(sT0), sr(sW), 8)
        I("v_add_u32", vr(vT5), sr(sT0), vr(vT5))
        I("v_add_u32", vr(vT5), L_WB, vr(vT5))
        vBS, vMS = 10, 11
        vAml, vAown, vAo, vAy = 40, 41, 42, 43
        ML0, O0 = 12, 44
        I("v_bfe_u32", vr(vBS), vr(vC), 2, 1); I("v_and_b32", vr(vMS), 3, vr(vC))
        I("v_lshlrev_b32", vr(vAml), 10, vr(vBS))
        I("v_lshl_add_u32", vr(vAown), vr(vMS), 3, vr(vAml))
        I("s_lshl_b32", sr(sU0), sr(sHW), 5); I("s_add_u32", sr(sU0), sr(sU0), hex(ML))
        I("v_lshlrev_b32", vr(vAo), 16, vr(vBS))
        I("v_lshl_add_u32", vr(vAo), vr(vMS), 9, vr(vAo))
        I("v_lshl_add_u32", vr(vAo), vr(vG), 5, vr(vAo))
        I("s_lshl_b32", sr(sU1), sr(sHW), 11)
        I("s_lshl_b32", sr(sT1), sr(sB), 8)
        I("s_add_u32", sr(sU1), sr(sU1), sr(sT1)); I("s_add_u32", sr(sU1), sr(sU1), hex(OPART))
        def loads():
            for k in range(4):
                I("buffer_load_dwordx4", vr(O0 + 4 * k, 4), vr(vAo), sr(rWS, 4), sr(sU1), mods=f"offen offset:{(k >> 1) * 128 + (k & 1) * 16} sc1")
            I("buffer_load_dwordx4", vr(ML0, 4), vr(vAml), sr(rWS, 4), sr(sU0), mods="offen sc1")
            I("buffer_load_dwordx4", vr(ML0 + 4, 4), vr(vAml), sr(rWS, 4), sr(sU0), mods="offen offset:16 sc1")
            I("buffer_load_dwordx2", vr(ML0 + 8, 2), vr(vAown), sr(rWS, 4), sr(sU0), mods="offen sc1")
        loads()
        for ks in range(2):
            for tt in range(8):
                I("ds_read_b64_tr_b16", vr(BW + 32 * ks + 4 * tt, 2), vr(vT5), mods=f"offset:{32 * ks * WROW + 32 * tt}")
                I("ds_read_b64_tr_b16", vr(BW + 32 * ks + 4 * tt + 2, 2), vr(vT5), mods=f"offset:{(32 * ks + 4) * WROW + 32 * tt}")
        I("v_and_b32", vr(vAy), 1, vr(vG)); I("v_lshlrev_b32", vr(vAy), 17, vr(vAy))
        I("v_lshrrev_b32", vr(vT6), 1, vr(vG)); I("v_lshlrev_b32", vr(vT6), 12, vr(vT6))
        I("v_add_u32", vr(vAy), vr(vAy), vr(vT6))
        I("v_lshl_add_u32", vr(vAy), vr(vC), 2, vr(vAy))
        I("s_lshl_b32", sr(sU2), sr(sW), 15)
        I("s_lshl_b32", sr(sT1), sr(sF), 6); I("s_add_u32", sr(sU2), sr(sU2), sr(sT1)); I("s_add_u32", sr(sU2), sr(sU2), hex(YPART))
        I("s_mov_b32", sr(sMask), 0); I("s_mov_b32", sr(sMask + 1), -1)
        regs = list(range(ML0, ML0 + 10)) + list(range(O0, O0 + 16))
        lp, ok = self.L("POLL"), self.L("POK")
        I("s_mov_b32", sr(sSpin), SPIN_MAX)
        I("s_waitcnt", "vmcnt(0)")
        self.check_regs(regs, vT7)
        I("s_cbranch_vccz", ok)
        a.label(lp)
        loads()
        I("s_waitcnt", "vmcnt(0)")
        self.check_regs(regs, vT7)
        I("s_cbranch_vccz", ok)
        I("s_sub_u32", sr(sSpin), sr(sSpin), 1)
        I("s_cbranch_scc0", lp)
        a.label(ok)
        self.stamp(10)
        T = 22
        I("v_max3_f32", vr(T), vr(ML0), vr(ML0 + 2), vr(ML0 + 4)); I("v_max_f32", vr(T), vr(T), vr(ML0 + 6))
        for n in range(5): I("v_sub_f32", vr(T + 1 + n), vr(ML0 + 2 * n), vr(T))
        for n in range(5): I("v_mul_f32", vr(T + 1 + n), hex(LOG2E), vr(T + 1 + n))
        for n in range(5): I("v_exp_f32", vr(T + 1 + n), vr(T + 1 + n))
        I("v_mul_f32", vr(T), vr(T + 1), vr(ML0 + 1))
        I("v_fmac_f32", vr(T), vr(T + 2), vr(ML0 + 3)); I("v_fmac_f32", vr(T), vr(T + 3), vr(ML0 + 5)); I("v_fmac_f32", vr(T), vr(T + 4), vr(ML0 + 7))
        I("v_rcp_f32", vr(T), vr(T))
        I("v_mul_f32", vr(T), vr(T), vr(T + 5))
        for e in range(16): I("v_mul_f32", vr(O0 + e), vr(O0 + e), vr(T))
        for e in range(16): self.dpp("v_add_f32", O0 + e, O0 + e, O0 + e, "quad_perm:[1,0,3,2]")
        for e in range(16): self.dpp("v_add_f32", O0 + e, O0 + e, O0 + e, "quad_perm:[2,3,0,1]")
        AO = 28
        for k in range(8): I("v_cvt_pk_bf16_f32", vr(AO + k), vr(O0 + 2 * k), vr(O0 + 2 * k + 1))
        I("s_waitcnt", "lgkmcnt(0)")
        Dr = [44, 48, 52, 56, 12, 16, 20, 24]
        for tt in range(8):
            I("v_mfma_f32_16x16x32_bf16", vr(Dr[tt], 4), vr(AO, 4), vr(BW + 4 * tt, 4), 0)
        for tt in range(8):
            I("v_mfma_f32_16x16x32_bf16", vr(Dr[tt], 4), vr(AO + 4, 4), vr(BW + 32 + 4 * tt, 4), vr(Dr[tt], 4))
        for tt in range(0, 8, 2):
            I("v_cndmask_b32", vr(36 + tt // 2), vr(Dr[tt]), vr(Dr[tt + 1]), sr(sMask, 2))
        for tt in range(4): self.clamp(36 + tt)
        for tt in range(4):
            I("buffer_store_dword", vr(36 + tt), vr(vAy), sr(rWS, 4), sr(sU2), mods="offen sc1")
            if tt < 3: I("s_add_u32", sr(sU2), sr(sU2), 8192)
        self.stamp(11)
        I("s_branch", "L_FIN")

    def reduce16(self, r0, out):
        I = self.I
        I("v_permlane32_swap_b32", vr(r0), vr(r0 + 1)); I("v_permlane32_swap_b32", vr(r0 + 2), vr(r0 + 3))
        I("v_add_f32", vr(r0), vr(r0), vr(r0 + 1)); I("v_add_f32", vr(r0 + 2), vr(r0 + 2), vr(r0 + 3))
        self.swap_add(16, r0, r0 + 2, out)
        self.dpp("v_add_f32", out, out, out, "row_ror:8")
        self.dpp("v_add_f32", out, out, out, "row_ror:4")

    def reducer(self):
        a, I = self.a, self.I
        vCol, vX, vAo, vH, vA, vAh = 60, 61, 62, 63, 8, 9
        Y, S, U3 = 64, 96, 112
        self.perm_g(vT6, vT7)
        I("v_and_b32", vr(vCol), 3, vr(vLane))
        I("v_lshl_add_u32", vr(vCol), vr(vCol), 2, vr(vT6))
        I("v_lshlrev_b32", vr(vAo), 1, vr(vCol))
        I("s_lshl_b32", sr(sT0), sr(sBH), 5)
        I("buffer_load_ushort", vr(vX), vr(vAo), sr(rX, 4), sr(sT0), mods="offen")
        I("v_lshlrev_b32", vr(vA), 4, vr(vLane))
        I("v_lshlrev_b32", vr(vAh), 2, vr(vCol))
        I("s_lshl_b32", sr(sU0), sr(sBH), 12); I("s_add_u32", sr(sU0), sr(sU0), hex(YPART))
        I("s_lshl_b32", sr(sU2), sr(sBH), 6); I("s_add_u32", sr(sU2), sr(sU2), hex(HBUF))
        I("s_lshl_b32", sr(sU3), sr(sBH), 5)
        I("s_mul_i32", sr(sT0), sr(sBH), USTR); I("s_add_u32", sr(sT0), sr(sT0), hex(UPART))
        I("s_add_u32", sr(rWA), sr(pWS), sr(sT0)); I("s_addc_u32", sr(rWA + 1), sr(pWS + 1), 0)
        I("s_mov_b32", sr(rWA + 2), NF * 64); I("s_mov_b32", sr(rWA + 3), "0x20000")
        def loads():
            for k in range(4):
                I("buffer_load_dwordx4", vr(Y + 4 * k, 4), vr(vA), sr(rWS, 4), sr(sU0), mods=f"offen offset:{k * 1024} sc1")
        self.poll(loads, 4, range(Y, Y + 16))
        self.stamp(12)
        I("s_waitcnt", "vmcnt(0)")
        I("v_lshlrev_b32", vr(vX), 16, vr(vX))
        for e in range(4):
            I("v_add_f32", vr(S + e), vr(Y + e), vr(Y + 4 + e)); I("v_add_f32", vr(S + 4 + e), vr(Y + 8 + e), vr(Y + 12 + e))
        for e in range(4): I("v_add_f32", vr(S + e), vr(S + e), vr(S + 4 + e))
        self.reduce16(S, vH)
        I("v_cvt_pk_bf16_f32", vr(vH), vr(vH), vr(vH))
        I("v_lshlrev_b32", vr(vH), 16, vr(vH))
        I("v_add_f32", vr(vH), vr(vH), vr(vX))
        I("v_cvt_pk_bf16_f32", vr(vH), vr(vH), vr(vH))
        I("v_lshlrev_b32", vr(vH), 16, vr(vH))
        I("v_min_u32", vr(12), -2, vr(vH))
        self.execm("0x000f000f", "0x000f000f")
        I("buffer_store_dword", vr(12), vr(vAh), sr(rWS, 4), sr(sU2), mods="offen sc1")
        self.execall()
        self.stamp(13)
        def loads3():
            for k in range(3):
                I("buffer_load_dwordx4", vr(U3 + 4 * k, 4), vr(vA), sr(rWA, 4), 0, mods=f"offen offset:{k * 1024} sc1")
        self.poll(loads3, 3, range(U3, U3 + 12))
        self.stamp(14)
        for e in range(4):
            I("v_add_f32", vr(S + e), vr(U3 + e), vr(U3 + 4 + e))
        for e in range(4): I("v_add_f32", vr(S + e), vr(S + e), vr(U3 + 8 + e))
        self.reduce16(S, 12)
        I("v_cvt_pk_bf16_f32", vr(12), vr(12), vr(12))
        I("v_lshlrev_b32", vr(12), 16, vr(12))
        I("v_add_f32", vr(12), vr(12), vr(vH))
        I("v_cvt_pk_bf16_f32", vr(12), vr(12), vr(12))
        self.execm("0x000f000f", "0x000f000f")
        I("buffer_store_short", vr(12), vr(vAo), sr(rOUT, 4), sr(sU3), mods="offen")
        self.execall()
        if self.dbgtime:
            I("s_memrealtime", "s[12:13]")
            I("s_waitcnt", "lgkmcnt(0)")
            I("s_sub_u32", sr(sT1), sr(sT1), "s38")
            I("v_mov_b32", vr(12), sr(sT1)); I("v_mov_b32", vr(vT6), 0)
            I("s_lshl_b32", sr(sT0), sr(sBH), 2)
            I("s_mov_b64", "exec", 1)
            I("buffer_store_dword", vr(12), vr(vT6), sr(rDBG, 4), sr(sT0), mods="offen")
            self.execall()
        self.stamp(15)

    def ffn_stage(self):
        a, I = self.a, self.I
        if self.stop in ("y", "h"):
            I("s_waitcnt", "vmcnt(0)"); I("s_barrier"); return
        vI4, vI2 = 8, 9
        B1, B2 = 64, 96
        I("s_waitcnt", "vmcnt(0)")
        I("s_barrier")
        I("v_lshrrev_b32", vr(vI4), 2, vr(vC)); I("v_and_b32", vr(vI2), 3, vr(vC))
        I("v_lshl_add_u32", vr(vT5), vr(vG), 3, vr(vI4)); I("v_lshlrev_b32", vr(vT5), 6, vr(vT5))
        I("v_lshl_add_u32", vr(vT5), vr(vI2), 3, vr(vT5))
        I("s_lshl_b32", sr(sT0), sr(sW), 13)
        I("v_add_u32", vr(vT5), sr(sT0), vr(vT5))
        for ks in range(4):
            for nt in range(2):
                o = L_WB + ks * 2048 + nt * 32
                I("ds_read_b64_tr_b16", vr(B1 + 8 * ks + 4 * nt, 2), vr(vT5), mods=f"offset:{o}")
                I("ds_read_b64_tr_b16", vr(B1 + 8 * ks + 4 * nt + 2, 2), vr(vT5), mods=f"offset:{o + 256}")
        I("v_lshl_add_u32", vr(vT6), vr(vG), 3, vr(vI4))
        I("s_movk_i32", sr(sT0), WROW)
        I("v_mul_lo_u32", vr(vT6), vr(vT6), sr(sT0))
        I("v_lshl_add_u32", vr(vT6), vr(vI2), 3, vr(vT6))
        I("s_lshl_b32", sr(sT0), sr(sW), 8)
        I("v_add_u32", vr(vT6), sr(sT0), vr(vT6))
        I("v_add_u32", vr(vT6), L_W2, vr(vT6))
        for tt in range(8):
            I("ds_read_b64_tr_b16", vr(B2 + 4 * tt, 2), vr(vT6), mods=f"offset:{32 * tt}")
            I("ds_read_b64_tr_b16", vr(B2 + 4 * tt + 2, 2), vr(vT6), mods=f"offset:{4 * WROW + 32 * tt}")
        vAh, vAhw, vAhr, vAuw, vAur, vAaw, vAar, vAo = 10, 11, 52, 53, 54, 55, 56, 57
        I("v_lshlrev_b32", vr(vAh), 5, vr(vLane))
        I("s_mov_b32", sr(sU0), hex(HBUF))
        I("v_lshlrev_b32", vr(vAhw), 4, vr(vLane)); I("s_lshl_b32", sr(sT0), sr(sW), 11); I("v_add_u32", vr(vAhw), sr(sT0), vr(vAhw))
        I("v_bfe_u32", vr(vT7), vr(vC), 2, 1)
        I("v_lshlrev_b32", vr(vAhr), 10, vr(vT7)); I("v_lshl_add_u32", vr(vAhr), vr(vG), 4, vr(vAhr))
        I("s_mul_i32", sr(sT0), sr(sW), 2048 + 256); I("v_add_u32", vr(vAhr), sr(sT0), vr(vAhr))
        I("v_and_b32", vr(vAuw), 1, vr(vG)); I("v_lshlrev_b32", vr(vAuw), 7, vr(vAuw))
        I("v_lshrrev_b32", vr(vT5), 1, vr(vG)); I("v_lshl_add_u32", vr(vAuw), vr(vT5), 6, vr(vAuw))
        I("v_lshl_add_u32", vr(vAuw), vr(vC), 2, vr(vAuw))
        I("s_lshl_b32", sr(sT0), sr(sW), 8); I("v_add_u32", vr(vAuw), sr(sT0), vr(vAuw))
        I("v_lshlrev_b32", vr(vAur), 2, vr(vLane))
        I("s_lshl_b32", sr(sT0), sr(sW), 7)
        I("v_lshlrev_b32", vr(vAaw), 1, vr(vLane)); I("v_add_u32", vr(vAaw), sr(sT0), vr(vAaw))
        I("v_lshlrev_b32", vr(vAar), 6, vr(vT7)); I("v_lshl_add_u32", vr(vAar), vr(vG), 4, vr(vAar)); I("v_add_u32", vr(vAar), sr(sT0), vr(vAar))
        I("v_and_b32", vr(vAo), 1, vr(vG)); I("s_mov_b32", sr(sT0), 32 * USTR); I("v_mul_lo_u32", vr(vAo), vr(vAo), sr(sT0))
        I("v_lshrrev_b32", vr(vT6), 1, vr(vG)); I("s_movk_i32", sr(sT0), USTR); I("v_mul_lo_u32", vr(vT6), vr(vT6), sr(sT0))
        I("v_add_u32", vr(vAo), vr(vAo), vr(vT6))
        I("v_lshl_add_u32", vr(vAo), vr(vC), 2, vr(vAo))
        I("s_mul_i32", sr(sU1), sr(sW), 8 * USTR)
        I("s_lshl_b32", sr(sT1), sr(sF), 6); I("s_add_u32", sr(sU1), sr(sU1), sr(sT1)); I("s_add_u32", sr(sU1), sr(sU1), hex(UPART))
        I("s_mov_b32", sr(sMask), 0); I("s_mov_b32", sr(sMask + 1), -1)
        I("s_waitcnt", "lgkmcnt(0)")
        H0, H1 = 12, 20
        top = self.dry_top()
        sk = self.skip_if_dry()
        def loads():
            I("buffer_load_dwordx4", vr(H0, 4), vr(vAh), sr(rWS, 4), sr(sU0), mods="offen sc1")
            I("buffer_load_dwordx4", vr(H0 + 4, 4), vr(vAh), sr(rWS, 4), sr(sU0), mods="offen offset:16 sc1")
            I("buffer_load_dwordx4", vr(H1, 4), vr(vAh), sr(rWS, 4), sr(sU0), mods="offen offset:2048 sc1")
            I("buffer_load_dwordx4", vr(H1 + 4, 4), vr(vAh), sr(rWS, 4), sr(sU0), mods="offen offset:2064 sc1")
        self.poll(loads, 4, range(12, 28))
        a.label(sk)
        self.stamp(9)
        A1, A2, B1s, B2s = 28, 29, 30, 31
        I("v_add_f32", vr(A1), vr(H0), vr(H0 + 1)); I("v_add_f32", vr(B1s), vr(H1), vr(H1 + 1))
        I("v_mul_f32", vr(A2), vr(H0), vr(H0)); I("v_mul_f32", vr(B2s), vr(H1), vr(H1))
        I("v_fmac_f32", vr(A2), vr(H0 + 1), vr(H0 + 1)); I("v_fmac_f32", vr(B2s), vr(H1 + 1), vr(H1 + 1))
        for e in range(2, 8):
            I("v_add_f32", vr(A1), vr(A1), vr(H0 + e)); I("v_add_f32", vr(B1s), vr(B1s), vr(H1 + e))
            I("v_fmac_f32", vr(A2), vr(H0 + e), vr(H0 + e)); I("v_fmac_f32", vr(B2s), vr(H1 + e), vr(H1 + e))
        self.wave_reduce63("v_add_f32", [A1, A2, B1s, B2s])
        for (r, s) in ((A1, sT0), (A2, sT1), (B1s, sT2), (B2s, sT3)):
            I("v_readlane_b32", sr(s), vr(r), 63)
        M0, M1, R0, R1, T0, T1 = 28, 29, 30, 31, 32, 33
        self.ln_scalars(sT0, sT1, sT2, sT3, M0, M1, R0, R1, T0, T1)
        I("v_mul_f32", vr(M0), vr(M0), vr(R0)); I("v_mul_f32", vr(M1), vr(M1), vr(R1))
        HN = 36
        for e in range(8):
            I("v_fma_f32", vr(HN + e), vr(H0 + e), vr(R0), f"-{vr(M0)}")
            I("v_fma_f32", vr(HN + 8 + e), vr(H1 + e), vr(R1), f"-{vr(M1)}")
        for k in range(8):
            I("v_cvt_pk_bf16_f32", vr(HN + k), vr(HN + 2 * k), vr(HN + 2 * k + 1))
        I("ds_write_b128", vr(vAhw), vr(HN, 4), mods=f"offset:{L_HN}")
        I("ds_write_b128", vr(vAhw), vr(HN + 4, 4), mods=f"offset:{L_HN + 1024}")
        I("s_waitcnt", "lgkmcnt(0)")
        for ks in range(4):
            I("ds_read_b128", vr(HN + 4 * ks, 4), vr(vAhr), mods=f"offset:{L_HN + ks * 64}")
        I("s_waitcnt", "lgkmcnt(0)")
        D0, D1 = 28, 32
        for ks in range(4):
            I("v_mfma_f32_16x16x32_bf16", vr(D0, 4), vr(HN + 4 * ks, 4), vr(B1 + 8 * ks, 4), (0 if ks == 0 else vr(D0, 4)))
            I("v_mfma_f32_16x16x32_bf16", vr(D1, 4), vr(HN + 4 * ks, 4), vr(B1 + 8 * ks + 4, 4), (0 if ks == 0 else vr(D1, 4)))
        I("v_cndmask_b32", vr(D0), vr(D0), vr(D1), sr(sMask, 2))
        I("ds_write_b32", vr(vAuw), vr(D0), mods=f"offset:{L_UP}")
        I("s_waitcnt", "lgkmcnt(0)")
        I("s_barrier")
        for w in range(4):
            I("ds_read_b32", vr(28 + w), vr(vAur), mods=f"offset:{L_UP + w * 256}")
        I("s_waitcnt", "lgkmcnt(0)")
        I("v_add_f32", vr(28), vr(28), vr(29)); I("v_add_f32", vr(30), vr(30), vr(31))
        I("v_add_f32", vr(28), vr(28), vr(30))
        I("v_cvt_pk_bf16_f32", vr(29), vr(28), vr(28))
        I("v_lshlrev_b32", vr(28), 16, vr(29))
        I("v_mul_f32", vr(29), "0xbfb8aa3b", vr(28))
        I("v_exp_f32", vr(29), vr(29))
        I("v_add_f32", vr(29), 1.0, vr(29))
        I("v_rcp_f32", vr(29), vr(29))
        I("v_mul_f32", vr(28), vr(28), vr(29))
        I("v_cvt_pk_bf16_f32", vr(28), vr(28), vr(28))
        I("ds_write_b16", vr(vAaw), vr(28), mods=f"offset:{L_ACT}")
        I("s_waitcnt", "lgkmcnt(0)")
        I("ds_read_b128", vr(28, 4), vr(vAar), mods=f"offset:{L_ACT}")
        I("s_waitcnt", "lgkmcnt(0)")
        self.stamp(10)
        DD = 32
        assert DD + 20 <= vAhr
        I("s_waitcnt", "vmcnt(0)")
        Dregs = [12, 16, 20, 24, 36, 40, 44, 48]
        for tt in range(8):
            I("v_mfma_f32_16x16x32_bf16", vr(Dregs[tt], 4), vr(28, 4), vr(B2 + 4 * tt, 4), 0)
        for tt in range(0, 8, 2):
            I("v_cndmask_b32", vr(32 + tt // 2), vr(Dregs[tt]), vr(Dregs[tt + 1]), sr(sMask, 2))
        for tt in range(4): self.clamp(32 + tt)
        lab_nb = self.L("NB")
        I("s_cmp_eq_u32", sr(sDry), 0)
        I("s_cbranch_scc1", lab_nb)
        I("s_barrier")
        a.label(lab_nb)
        self.dry_end(top)
        for tt in range(4):
            I("buffer_store_dword", vr(32 + tt), vr(vAo), sr(rWS, 4), sr(sU1), mods="offen sc1")
            if tt < 3: I("s_add_u32", sr(sU1), sr(sU1), 2 * USTR)
        self.stamp(11)

    def finish(self):
        a, I = self.a, self.I
        a.label("L_FIN")
        if self.stamps:
            self.stamp(20)
            self.execall()
            I("s_lshl_b32", sr(sT0), "s2", 4); I("s_add_u32", sr(sT0), sr(sT0), sr(sW)); I("s_lshl_b32", sr(sT0), sr(sT0), 8)
            I("s_add_u32", sr(sT0), sr(sT0), hex(STAMP))
            I("v_lshlrev_b32", vr(vT5), 2, vr(vLane))
            I("buffer_store_dword", "v0", vr(vT5), sr(rWS, 4), sr(sT0), mods="offen")
        a.label("L_END")
        return self.wrap()

    def wrap(self):
        body = self.a.text()
        hdr = open("sequential_preLN__mha_block_cached__dense_activation_silu__decode.s.ref").read().split("\n")
        top = [l for l in hdr if l.startswith(";") and "@launch" not in l and "Override" not in l and "grid=ceil" not in l][:12]
        out = "\n".join(top) + "\n"
        out += f"; @launch grid=(256,1,1) block=(1024,1,1) lds={LDS_SIZE}\n"
        out += f""".amdgcn_target "amdgcn-amd-amdhsa--gfx950"
.text
.globl {KN}
.p2align 8
.type {KN},@function
{KN}:
{body}  s_endpgm
.section .rodata,"a"
.p2align 6
.amdhsa_kernel {KN}
  .amdhsa_next_free_vgpr 128
  .amdhsa_next_free_sgpr 102
  .amdhsa_accum_offset 128
  .amdhsa_group_segment_fixed_size 0
  .amdhsa_kernarg_size 88
  .amdhsa_user_sgpr_count 2
  .amdhsa_user_sgpr_kernarg_segment_ptr 1
  .amdhsa_system_sgpr_workgroup_id_x 1
.end_amdhsa_kernel
"""
        return out

if __name__ == "__main__":
    kw = {}
    for x in sys.argv[2:]:
        k, v = x.split("=")
        kw[k] = int(v) if v.lstrip("-").isdigit() and k != "prios" else v
    g = Gen(**kw)
    open(sys.argv[1], "w").write(g.build())
    print("nops inserted:", g.a.nops, "lines", len(g.a.lines))
```

```python
import sys
from asmlib import Asm, vr, sr

KN = "sequential_preLN__mha_block_cached__dense_activation_silu__decode_kernel"

ML    = 0x040000
OPART = 0x050000
YPART = 0x080000
HBUF  = 0x100000
UPART = 0x110000
USTR  = 48 * 64
NF    = 43
EPOCH = 0x030000
TAGM = 0x3FF
STAMP = 0x200000
WSSZ  = 0x400000
L_QP = 0
L_OP = 0
L_QB = 8192
L_ML = 8192 + 256
L_CNT = 8192 + 256 + 128
L_QCNT = L_CNT + 4
L_FQ = L_CNT + 8
L_UP = 8192 + 512
L_ACT = 8192 + 512 + 1024
L_HN = 8192 + 2048 + 1024
L_WB = 20480
L_W2 = L_WB + 32768
L_XN = L_WB
WROW = 1056
LDS_SIZE = L_WB + 64 * WROW + 256

LOG2E = 0x3FB8AA3B
SCALE = 0x3DB504F3
SPIN_MAX = 400000
OOB = 0x40000000

sW, sE, sHalf, sBH, sB, sH, sM = 3, 4, 5, 6, 7, 8, 9
sDry = 10
sT0, sT1, sT2, sT3, sT4 = 11, 12, 13, 14, 15
pX, pK, pV, pWQ, pWO, pBX, pW1, pW2, pOUT, pDBG, pWS = 16, 18, 20, 22, 24, 26, 28, 30, 32, 34, 36
sRB = 26
sRole = 27
sHW = 101
rK, rV, rWS, rX, rWQ, rWA, rWB, rOUT, rDBG = 40, 44, 48, 52, 56, 60, 64, 68, 72
sOFF = 76
sN = 93
sSpin = 94
sF = 95
sMask = 96
sU0, sU1, sU2, sU3 = 98, 99, 100, 101
sStamp0 = 38
sEp = 10
sTagM = 76
rT1 = 16
vLane, vC, vG, vKV = 1, 2, 3, 4
vT5, vT6, vT7 = 5, 6, 7
vTag = 4
vCk0, vCk1 = 5, 6
vQ = 8
vD = 12
vS, vS2 = 16, 17
vACC = 20
DATA0 = 28
def kslot(i): return DATA0 + 4 * i
def vslot(i):
    if i < 8: return DATA0 + 4 * (17 + i)
    return DATA0 + 4 * (i - 8)

class Gen:
    def __init__(self, stamps=0, stop=None, skew=0, npre=2, dbgtime=0, nowq=0, prios="32211", nodma=0, noinv=0,
                 dry=0, pipe=0, wqflag="", late_wo=99, earlybar=1, npre2=15, hshift=8, map=0, pat=1, kfirst=1, t1test=0, touch=0, noq=0, bw=4, tags=1):
        self.a = Asm()
        self.stamps, self.stop, self.skew, self.npre, self.dbgtime = stamps, stop, skew, npre, dbgtime
        self.nowq, self.nodma, self.noinv, self.dry, self.pipe = nowq, nodma, noinv, dry, pipe
        self.prios = [int(c) for c in str(prios).zfill(5)]
        self.wqflag = wqflag
        self.late_wo = late_wo
        self.earlybar = earlybar
        self.npre2 = npre2
        self.hshift = hshift
        self.map = map
        self.pat = pat
        self.kfirst = kfirst
        self.t1test = t1test
        self.touch = touch
        self.noq = noq
        self.bw = bw
        self.tags = tags
        self.issued = []
        self.lab = 0
        self.wo_done = False

    def L(self, p="L"):
        self.lab += 1
        return f"{p}_{self.lab}"
    def I(self, *a, **k): self.a.I(*a, **k)

    def stamp(self, k):
        if not self.stamps: return
        if k == 0:
            self.I("s_memrealtime", sr(sStamp0, 2)); return
        if k == 1:
            self.I("s_waitcnt", "lgkmcnt(0)")
            self.I("v_mov_b32", "v0", 0)
            self.I("v_writelane_b32", "v0", sr(sStamp0), 0)
        self.I("s_memrealtime", sr(sStamp0, 2))
        self.I("s_waitcnt", "lgkmcnt(0)")
        self.I("v_writelane_b32", "v0", sr(sStamp0), k)

    def csel(self, dst, x, y):
        self.I("s_mov_b32", sr(dst), x)
        self.I("s_cselect_b32", sr(dst), sr(dst), y)
    def exec63(self):
        self.I("s_mov_b32", "exec_lo", 0); self.I("s_mov_b32", "exec_hi", "0x80000000")
    def execm(self, lo, hi):
        self.I("s_mov_b32", "exec_lo", lo); self.I("s_mov_b32", "exec_hi", hi)
    def execall(self): self.I("s_mov_b64", "exec", -1)

    def srd(self, r, plo, size, addoff=None):
        I = self.I
        if addoff is None:
            I("s_mov_b32", sr(r), sr(plo)); I("s_mov_b32", sr(r + 1), sr(plo + 1))
        else:
            I("s_add_u32", sr(r), sr(plo), addoff); I("s_addc_u32", sr(r + 1), sr(plo + 1), 0)
        I("s_mov_b32", sr(r + 2), size); I("s_mov_b32", sr(r + 3), "0x20000")

    def vm(self, tag, op, *ops, mods=""):
        self.I(op, *ops, mods=mods)
        self.issued.append(tag)
    def wait_vm(self, tag):
        idx = self.issued.index(tag)
        n = len(self.issued) - 1 - idx
        self.I("s_waitcnt", f"vmcnt({min(n, 63)})")

    def dpp(self, op, d, s0, s1, ctrl, rm="0xf"):
        self.I(op + "_dpp", vr(d), vr(s0), vr(s1), mods=f"{ctrl} row_mask:{rm} bank_mask:0xf")
    def row_reduce(self, op, regs):
        for sh in (8, 4, 2, 1):
            for r in regs: self.dpp(op, r, r, r, f"row_ror:{sh}")
    def wave_reduce63(self, op, regs):
        self.row_reduce(op, regs)
        for r in regs: self.dpp(op, r, r, r, "row_bcast:15", "0xa")
        for r in regs: self.dpp(op, r, r, r, "row_bcast:31", "0xc")
    def swap_add(self, which, a, b, d, op="v_add_f32"):
        self.I(f"v_permlane{which}_swap_b32", vr(a), vr(b))
        self.I(op, vr(d), vr(a), vr(b))
    def unpack(self, lo, hi, src):
        self.I("v_lshlrev_b32", vr(lo), 16, vr(src))
        self.I("v_and_b32", vr(hi), "0xffff0000", vr(src))
    def clamp(self, r, src=None):
        src = r if src is None else src
        if self.tags:
            self.I("v_and_or_b32", vr(r), vr(src), sr(sTagM), vr(vTag))
        else:
            self.I("v_min_u32", vr(r), -2, vr(src))
    def perm_g(self, d, t):
        I = self.I
        I("v_and_b32", vr(d), 1, vr(vG)); I("v_lshlrev_b32", vr(d), 1, vr(d))
        I("v_lshrrev_b32", vr(t), 1, vr(vG)); I("v_or_b32", vr(d), vr(d), vr(t))

    def check_regs(self, regs, t, t2=None):
        I = self.I
        rs = list(regs)
        if self.tags:
            for r in rs: I("v_xor_b32", vr(r), vr(vTag), vr(r))
            first = True
            while rs:
                if first:
                    if len(rs) >= 3:
                        I("v_or3_b32", vr(t), vr(rs[0]), vr(rs[1]), vr(rs[2])); rs = rs[3:]
                    elif len(rs) == 2:
                        I("v_or_b32", vr(t), vr(rs[0]), vr(rs[1])); rs = rs[2:]
                    else:
                        I("v_mov_b32", vr(t), vr(rs[0])); rs = rs[1:]
                    first = False
                elif len(rs) >= 2:
                    I("v_or3_b32", vr(t), vr(t), vr(rs[0]), vr(rs[1])); rs = rs[2:]
                else:
                    I("v_or_b32", vr(t), vr(t), vr(rs[0])); rs = rs[1:]
            I("v_and_b32", vr(t), hex(TAGM), vr(t))
            I("v_cmp_ne_u32", "vcc", 0, vr(t))
            return
        if len(rs) == 1:
            I("v_cmp_eq_u32", "vcc", -1, vr(rs[0])); return
        first = True
        while rs:
            if first:
                if len(rs) >= 3:
                    I("v_max3_u32", vr(t), vr(rs[0]), vr(rs[1]), vr(rs[2])); rs = rs[3:]
                else:
                    I("v_max_u32", vr(t), vr(rs[0]), vr(rs[1])); rs = rs[2:]
                first = False
            elif len(rs) >= 2:
                I("v_max3_u32", vr(t), vr(t), vr(rs[0]), vr(rs[1])); rs = rs[2:]
            else:
                I("v_max_u32", vr(t), vr(t), vr(rs[0])); rs = rs[1:]
        I("v_cmp_eq_u32", "vcc", -1, vr(t))

    def poll(self, loads, nloads, regs, t=vT7):
        I = self.I
        lp, ok = self.L("POLL"), self.L("POK")
        I("s_mov_b32", sr(sSpin), SPIN_MAX)
        if self.pipe: loads()
        self.a.label(lp)
        loads()
        I("s_waitcnt", f"vmcnt({nloads if self.pipe else 0})")
        self.check_regs(regs, t)
        I("s_cbranch_vccz", ok)
        I("s_sub_u32", sr(sSpin), sr(sSpin), 1)
        I("s_cbranch_scc0", lp)
        self.a.label(ok)

    def ln_scalars(self, s10, s20, s11, s21, vm0, vm1, vr0, vr1, t0, t1):
        I = self.I
        inv = "0x3b000000"
        I("v_mov_b32", vr(vm0), sr(s10)); I("v_mov_b32", vr(vm1), sr(s11))
        I("v_mov_b32", vr(vr0), sr(s20)); I("v_mov_b32", vr(vr1), sr(s21))
        for r in (vm0, vm1, vr0, vr1): I("v_mul_f32", vr(r), inv, vr(r))
        I("v_fma_f32", vr(vr0), f"-{vr(vm0)}", vr(vm0), vr(vr0))
        I("v_fma_f32", vr(vr1), f"-{vr(vm1)}", vr(vm1), vr(vr1))
        I("v_max_f32", vr(vr0), 0, vr(vr0)); I("v_max_f32", vr(vr1), 0, vr(vr1))
        I("v_cvt_pk_bf16_f32", vr(t0), vr(vm0), vr(vm1))
        I("v_cvt_pk_bf16_f32", vr(t1), vr(vr0), vr(vr1))
        self.unpack(vm0, vm1, t0)
        self.unpack(vr0, vr1, t1)
        I("v_add_f32", vr(vr0), "0x3727c5ac", vr(vr0)); I("v_add_f32", vr(vr1), "0x3727c5ac", vr(vr1))
        I("v_cvt_pk_bf16_f32", vr(t1), vr(vr0), vr(vr1))
        self.unpack(vr0, vr1, t1)
        I("v_sqrt_f32", vr(vr0), vr(vr0)); I("v_sqrt_f32", vr(vr1), vr(vr1))
        I("v_cvt_pk_bf16_f32", vr(t1), vr(vr0), vr(vr1))
        self.unpack(vr0, vr1, t1)
        I("v_rcp_f32", vr(vr0), vr(vr0)); I("v_rcp_f32", vr(vr1), vr(vr1))

    def ln_scalars1(self, s1, s2, vm0, vr0, t0):
        I = self.I
        inv = "0x3b000000"
        I("v_mov_b32", vr(vm0), sr(s1)); I("v_mov_b32", vr(vr0), sr(s2))
        I("v_mul_f32", vr(vm0), inv, vr(vm0)); I("v_mul_f32", vr(vr0), inv, vr(vr0))
        I("v_fma_f32", vr(vr0), f"-{vr(vm0)}", vr(vm0), vr(vr0))
        I("v_max_f32", vr(vr0), 0, vr(vr0))
        I("v_cvt_pk_bf16_f32", vr(t0), vr(vm0), vr(vr0))
        self.unpack(vm0, vr0, t0)
        I("v_add_f32", vr(vr0), "0x3727c5ac", vr(vr0))
        I("v_cvt_pk_bf16_f32", vr(t0), vr(vr0), vr(vr0))
        I("v_lshlrev_b32", vr(vr0), 16, vr(t0))
        I("v_sqrt_f32", vr(vr0), vr(vr0))
        I("v_cvt_pk_bf16_f32", vr(t0), vr(vr0), vr(vr0))
        I("v_lshlrev_b32", vr(vr0), 16, vr(t0))
        I("v_rcp_f32", vr(vr0), vr(vr0))

    def lds_set(self, off, val_sgpr_or_imm):
        I = self.I
        I("v_mov_b32", vr(vT6), off); I("v_mov_b32", vr(vT7), val_sgpr_or_imm)
        I("ds_write_b32", vr(vT6), vr(vT7))

    def lds_wait(self, off, val, sleep=1):
        I = self.I
        lp, ok = self.L("LW"), self.L("LWOK")
        I("v_mov_b32", vr(vT6), off)
        self.a.label(lp)
        I("ds_read_b32", vr(vT7), vr(vT6))
        I("s_waitcnt", "lgkmcnt(0)")
        I("v_readfirstlane_b32", sr(sT4), vr(vT7))
        I("s_cmp_ge_u32", sr(sT4), val)
        I("s_cbranch_scc1", ok)
        if sleep: I("s_sleep", sleep)
        I("s_branch", lp)
        self.a.label(ok)

    def invalidate(self):
        I = self.I
        for k in range(4): I("v_mov_b32", vr(20 + k), -1)
        I("v_lshlrev_b32", vr(vT5), 4, vr(vLane))
        I("s_lshl_b32", sr(sT0), sr(sBH), 2); I("s_add_u32", sr(sT0), sr(sT0), sr(sM))
        I("s_lshl_b32", sr(sT1), sr(sT0), 9); I("s_add_u32", sr(sT1), sr(sT1), hex(OPART))
        I("s_lshl_b32", sr(sT2), sr(sT0), 3); I("s_add_u32", sr(sT2), sr(sT2), hex(ML))
        self.execm(-1, 0)
        I("buffer_store_dwordx4", vr(20, 4), vr(vT5), sr(rWS, 4), sr(sT1), mods="offen sc1")
        I("s_mov_b64", "exec", 1)
        I("buffer_store_dwordx2", vr(20, 2), vr(vT5), sr(rWS, 4), sr(sT2), mods="offen sc1")
        I("s_lshl_b32", sr(sT1), sr(sBH), 6); I("s_add_u32", sr(sT1), sr(sT1), hex(HBUF))
        I("s_cmp_eq_u32", sr(sRole), 3)
        I("s_cselect_b32", sr(sT1), sr(sT1), hex(OOB))
        I("s_mov_b64", "exec", 15)
        I("buffer_store_dwordx4", vr(20, 4), vr(vT5), sr(rWS, 4), sr(sT1), mods="offen sc1")
        self.execall()
        I("s_cmp_eq_u32", sr(sRole), 1)
        self.csel(sT0, 4096, USTR)
        self.csel(sT1, hex(YPART), hex(UPART))
        I("s_lshl_b32", sr(sT2), sr(sF), 6); I("s_add_u32", sr(sT1), sr(sT1), sr(sT2))
        I("s_cmp_eq_u32", sr(sRole), 0); I("s_cselect_b32", sr(sT1), hex(OOB), sr(sT1))
        I("s_cmp_eq_u32", sr(sRole), 3); I("s_cselect_b32", sr(sT1), hex(OOB), sr(sT1))
        I("v_lshrrev_b32", vr(vT6), 2, vr(vLane))
        I("v_mul_lo_u32", vr(vT6), vr(vT6), sr(sT0))
        I("v_and_b32", vr(vT7), 3, vr(vLane)); I("v_lshlrev_b32", vr(vT7), 4, vr(vT7))
        I("v_add_u32", vr(vT6), vr(vT6), vr(vT7))
        I("s_lshl_b32", sr(sT0), sr(sT0), 4)
        for k in range(4):
            I("buffer_store_dwordx4", vr(20, 4), vr(vT6), sr(rWS, 4), sr(sT1), mods="offen sc1")
            if k < 3: I("s_add_u32", sr(sT1), sr(sT1), sr(sT0))

    def roles(self):
        a, I = self.a, self.I
        self.srd(rWS, pWS, hex(WSSZ))
        self.srd(rDBG, pDBG, 256)
        self.srd(rOUT, pOUT, 2048)
        I("s_mov_b32", sr(sRole), 0)
        I("s_add_u32", sr(sHW), sr(sH), self.hshift); I("s_and_b32", sr(sHW), sr(sHW), 31)
        I("s_lshl_b32", sr(sF), sr(sHW), 1); I("s_add_u32", sr(sF), sr(sF), sr(sB))
        I("s_cmp_eq_u32", sr(sM), 0); I("s_cselect_b32", sr(sRole), 1, sr(sRole))
        I("s_cmp_eq_u32", sr(sM), 1); I("s_cselect_b32", sr(sRole), 3, sr(sRole))
        I("s_and_b32", sr(sT1), "s2", 7); I("s_lshr_b32", sr(sT1), sr(sT1), 1); I("s_lshl_b32", sr(sT1), sr(sT1), 4)
        I("s_lshr_b32", sr(sT2), "s2", 4); I("s_add_u32", sr(sT1), sr(sT1), sr(sT2))
        I("s_cmp_lt_u32", sr(sT1), NF); I("s_cselect_b32", sr(sT2), 2, 0)
        I("s_cmp_eq_u32", sr(sM), 2); I("s_cselect_b32", sr(sT2), sr(sT2), 0)
        I("s_cmp_eq_u32", sr(sT2), 2); I("s_cselect_b32", sr(sRole), 2, sr(sRole)); I("s_cselect_b32", sr(sF), sr(sT1), sr(sF))
        lab_f, lab_done = self.L("RF"), self.L("RDONE")
        I("s_cmp_eq_u32", sr(sRole), 2)
        I("s_cbranch_scc1", lab_f)
        I("s_lshl_b32", sr(sT0), sr(sF), 16)
        self.srd(rWA, pWO, (65536 if not self.nodma else 0), sr(sT0))
        self.srd(rWB, pWO, 0, sr(sT0))
        I("s_branch", lab_done)
        a.label(lab_f)
        I("s_lshl_b32", sr(sT0), sr(sF), 6)
        I("s_sub_u32", sr(sT1), hex(512 * 2752), sr(sT0))
        self.srd(rWA, pW1, sr(sT1), sr(sT0))
        I("s_lshl_b32", sr(sT0), sr(sF), 15)
        self.srd(rWB, pW2, 32768, sr(sT0))
        a.label(lab_done)

    def build(self):
        a, I = self.a, self.I
        self.stamp(0)
        if self.dbgtime: I("s_memrealtime", "s[38:39]")
        I("s_load_dwordx16", sr(16, 16), "s[0:1]", 0)
        I("s_load_dwordx4", sr(32, 4), "s[0:1]", 64)
        I("s_load_dwordx2", sr(36, 2), "s[0:1]", 80)
        I("s_cmp_ge_u32", "s2", 256)
        I("s_cbranch_scc1", "L_END")
        I("v_and_b32", vr(vLane), 63, "v0")
        I("v_lshrrev_b32", vr(vT5), 6, "v0")
        I("v_and_b32", vr(vC), 15, "v0")
        I("v_readfirstlane_b32", sr(sW), vr(vT5))
        I("v_bfe_u32", vr(vG), "v0", 4, 2)
        I("s_and_b32", sr(sT0), "s2", 7)
        I("s_lshr_b32", sr(sT1), "s2", 3)
        if self.map == 0:
            I("s_and_b32", sr(sE), sr(sT0), 1)
            I("s_lshr_b32", sr(sT0), sr(sT0), 1)
            I("s_and_b32", sr(sHalf), sr(sT1), 1)
            I("s_lshr_b32", sr(sT2), sr(sT1), 1)
            I("s_lshr_b32", sr(sB), sr(sT2), 3)
            I("s_and_b32", sr(sT2), sr(sT2), 7)
            I("s_lshl_b32", sr(sH), sr(sT0), 3); I("s_add_u32", sr(sH), sr(sH), sr(sT2))
        else:
            I("s_and_b32", sr(sE), sr(sT1), 1)
            I("s_bfe_u32", sr(sHalf), sr(sT1), "0x10001")
            I("s_bfe_u32", sr(sB), sr(sT1), "0x10002")
            I("s_lshr_b32", sr(sT2), sr(sT1), 3)
            I("s_lshl_b32", sr(sH), sr(sT0), 2); I("s_add_u32", sr(sH), sr(sH), sr(sT2))
        I("s_lshl_b32", sr(sBH), sr(sB), 5); I("s_add_u32", sr(sBH), sr(sBH), sr(sH))
        I("s_lshl_b32", sr(sM), sr(sHalf), 1); I("s_add_u32", sr(sM), sr(sM), sr(sE))
        I("v_lshlrev_b32", vr(vKV), 4, vr(vLane))
        if self.pat == 1:
            I("s_lshl_b32", sr(sT0), sr(sW), 15)
            I("v_add_u32", vr(vKV), sr(sT0), vr(vKV))
            I("s_cmp_eq_u32", sr(sE), 0)
            self.csel(sT0, 1024, -1024)
            self.csel(sN, 16 + self.skew, 16 - self.skew)
            I("s_mul_i32", sr(sOFF), sr(sE), 31744)
        else:
            I("s_cmp_eq_u32", sr(sE), 0)
            self.csel(sN, 16 + self.skew, 16 - self.skew)
            I("s_mul_i32", sr(sT0), sr(sN), sr(sW)); I("s_lshl_b32", sr(sT0), sr(sT0), 10)
            I("v_add_u32", vr(vKV), sr(sT0), vr(vKV))
            I("s_movk_i32", sr(sT0), 1024)
            I("s_mul_i32", sr(sOFF), sr(sE), 16 * (16 + self.skew) * 1024)
        for i in range(1, 17):
            I("s_add_u32", sr(sOFF + i), sr(sOFF + i - 1), sr(sT0))
        for i in (15, 16):
            I("s_cmp_gt_u32", sr(sN), i)
            I("s_cselect_b32", sr(sOFF + i), sr(sOFF + i), hex(OOB))
        I("s_waitcnt", "lgkmcnt(0)")
        if self.tags: I("s_load_dword", sr(sEp), sr(pWS, 2), hex(EPOCH))
        I("s_setprio", self.prios[0])
        lab_r1 = self.L("RL1")
        I("s_cmp_eq_u32", sr(sW), 0 if not self.tags else 99)
        I("s_cbranch_scc0", lab_r1)
        self.roles()
        if self.touch:
            I("v_mov_b32", vr(vT5), 0)
            I("s_mov_b64", "exec", 1)
            I("buffer_load_dword", vr(24), vr(vT5), sr(rWA, 4), 0, mods="offen nt")
            I("buffer_load_dword", vr(25), vr(vT5), sr(rWB, 4), 0, mods="offen nt")
            I("buffer_load_dword", vr(26), vr(vT5), sr(rOUT, 4), 0, mods="offen nt")
            I("s_mov_b32", sr(sT0), 511 * 2752)
            I("buffer_load_dword", vr(27), vr(vT5), sr(rWA, 4), sr(sT0), mods="offen nt")
            self.execall()
        if not self.noinv: self.invalidate()
        a.label(lab_r1)
        I("s_lshl_b32", sr(sT0), sr(sBH), 20); I("s_lshl_b32", sr(sT1), sr(sHalf), 19); I("s_add_u32", sr(sT0), sr(sT0), sr(sT1))
        self.srd(rK, pK, "0x80000", sr(sT0))
        self.srd(rV, pV, "0x80000", sr(sT0))
        self.srd(rX, pX, 2048)
        I("s_lshl_b32", sr(sT0), sr(sH), 8)
        I("s_sub_u32", sr(sT1), hex(512 * 8192), sr(sT0))
        self.srd(rWQ, pWQ, sr(sT1), sr(sT0))
        if self.t1test:
            I("s_lshl_b32", sr(sT0), sr(sH), 17)
            self.srd(rT1, pWO, 131072, sr(sT0))
        NP = self.npre
        XF, WQ = 8, kslot(17)
        if self.map == 0:
            I("s_lshl_b32", sr(sT0), sr(sB), 1); I("s_add_u32", sr(sT0), sr(sT0), sr(sHalf)); I("s_lshl_b32", sr(sT0), sr(sT0), 2)
        else:
            I("s_lshr_b32", sr(sT0), "s2", 3); I("s_and_b32", sr(sT0), sr(sT0), 7); I("s_lshl_b32", sr(sT0), sr(sT0), 1)
        I("s_add_u32", sr(sT0), sr(sT0), sr(sW)); I("s_and_b32", sr(sRB), sr(sT0), 15)
        I("v_lshlrev_b32", vr(vT5), 4, vr(vLane))
        I("s_lshl_b32", sr(sT1), sr(sB), 10)
        self.vm("xf", "buffer_load_dwordx4", vr(XF, 4), vr(vT5), sr(rX, 4), sr(sT1), mods="offen")
        I("s_lshl_b32", sr(sT0), sr(sRB), 5)
        I("v_lshl_add_u32", vr(vT6), vr(vG), 1, sr(sT0))
        I("v_lshlrev_b32", vr(vT7), 13, vr(vT6))
        I("v_lshl_add_u32", vr(vT7), vr(vC), 4, vr(vT7))
        for kq in range(NP):
            self.vm(f"K{kq}", "buffer_load_dwordx4", vr(kslot(kq), 4), vr(vKV), sr(rK, 4), sr(sOFF + kq), mods="offen nt")
        for i in range(8):
            off = (8 * (i >> 1) + (i & 1)) * 8192
            I("s_mov_b32", sr(sT2), off if not self.nowq else OOB)
            self.vm(f"wq{i}", "buffer_load_dwordx4", vr(WQ + 4 * i, 4), vr(vT7), sr(rWQ, 4), sr(sT2), mods=("offen " + self.wqflag).strip())
            if i == 1:
                I("v_lshlrev_b32", vr(vT5), 2, vr(vLane)); I("v_mov_b32", vr(vT6), 0)
                I("s_mov_b64", "exec", 15)
                I("ds_write_b32", vr(vT5), vr(vT6), mods=f"offset:{L_CNT}")
                self.execall()
                I("s_waitcnt", "lgkmcnt(0)")
                I("s_barrier")
        I("s_setprio", self.prios[1])
        nK2 = self.npre2 - NP
        if self.bw:
            lab_b = self.L("BW")
            I("s_cmp_ge_u32", sr(sW), self.bw)
            I("s_cbranch_scc1", lab_b)
        for kq in range(NP, self.npre2):
            self.vm(f"K{kq}", "buffer_load_dwordx4", vr(kslot(kq), 4), vr(vKV), sr(rK, 4), sr(sOFF + kq), mods="offen nt")
        if self.bw:
            a.label(lab_b)
        def wait_dual(tag):
            if not self.bw:
                self.wait_vm(tag); return
            idx = self.issued.index(tag)
            n = len(self.issued) - 1 - idx
            l0, l1 = self.L("WD"), self.L("WDJ")
            I("s_cmp_ge_u32", sr(sW), self.bw)
            I("s_cbranch_scc1", l0)
            I("s_waitcnt", f"vmcnt({n})")
            I("s_branch", l1)
            a.label(l0)
            I("s_waitcnt", f"vmcnt({n - nK2})")
            a.label(l1)
        self.stamp(1)
        self.roles()
        if self.noq:
            I("s_branch", "L_NOQ")
        I("s_mov_b32", sr(sT4), "0x3f803f80")
        wait_dual("xf")
        lab_noat = self.L("NOAT")
        I("s_cmp_eq_u32", sr(sW), 0 if not self.tags else 99)
        I("s_cbranch_scc0", lab_noat)
        self.stamp(17)
        I("v_mov_b32", vr(vT5), 0); I("v_mov_b32", vr(vT6), 1)
        I("s_lshl_b32", sr(sT0), sr(sH), 2)
        I("s_mov_b64", "exec", 1)
        I("buffer_atomic_add", vr(vT6), vr(vT5), sr(rDBG, 4), sr(sT0), mods="offen sc1")
        self.execall()
        a.label(lab_noat)
        I("s_mov_b32", sr(sT4), "0x3f803f80")
        A1, A2, T0 = 22, 23, 26
        for k in range(4):
            I("v_dot2_f32_bf16", vr(A1), vr(XF + k), sr(sT4), (0 if k == 0 else vr(A1)))
            I("v_dot2_f32_bf16", vr(A2), vr(XF + k), vr(XF + k), (0 if k == 0 else vr(A2)))
        self.wave_reduce63("v_add_f32", [A1, A2])
        I("v_readlane_b32", sr(sT0), vr(A1), 63); I("v_readlane_b32", sr(sT1), vr(A2), 63)
        M0, R0 = 22, 23
        self.ln_scalars1(sT0, sT1, M0, R0, T0)
        XU = 12
        for k in range(4): self.unpack(XU + 2 * k, XU + 2 * k + 1, XF + k)
        for e in range(8): I("v_sub_f32", vr(XU + e), vr(XU + e), vr(M0))
        for k in range(4): I("v_cvt_pk_bf16_f32", vr(XF + k), vr(XU + 2 * k), vr(XU + 2 * k + 1))
        for k in range(4): self.unpack(XU + 2 * k, XU + 2 * k + 1, XF + k)
        for e in range(8): I("v_mul_f32", vr(XU + e), vr(XU + e), vr(R0))
        for k in range(4): I("v_cvt_pk_bf16_f32", vr(XF + k), vr(XU + 2 * k), vr(XU + 2 * k + 1))
        I("v_lshlrev_b32", vr(vT5), 4, vr(vLane))
        I("s_lshl_b32", sr(sT0), sr(sW), 10)
        I("v_add_u32", vr(vT5), sr(sT0), vr(vT5))
        I("ds_write_b128", vr(vT5), vr(XF, 4), mods=f"offset:{L_XN}")
        I("s_lshl_b32", sr(sT1), sr(sRB), 6); I("s_add_u32", sr(sT0), sr(sT0), sr(sT1))
        I("v_lshlrev_b32", vr(vT5), 2, vr(vG))
        I("v_add_u32", vr(vT5), sr(sT0), vr(vT5))
        I("s_waitcnt", "lgkmcnt(0)")
        for ip in range(4):
            I("ds_read_b32", vr(12 + ip), vr(vT5), mods=f"offset:{L_XN + 16 * ip}")
        P = vACC
        PT = kslot(15)
        I("s_mov_b32", sr(sT2), "0x05040100"); I("s_mov_b32", sr(sT3), "0x07060302")
        I("s_waitcnt", "lgkmcnt(0)")
        for ip in range(4):
            wait_dual(f"wq{2 * ip + 1}")
            wa, wb = WQ + 8 * ip, WQ + 8 * ip + 4
            for k in range(4):
                I("v_perm_b32", vr(PT + 2 * k), vr(wb + k), vr(wa + k), sr(sT2))
                I("v_perm_b32", vr(PT + 2 * k + 1), vr(wb + k), vr(wa + k), sr(sT3))
            for e in range(8):
                I("v_dot2_f32_bf16", vr(P + e), vr(PT + e), vr(12 + ip), (0 if ip == 0 else vr(P + e)))
        for i in range(4): I("v_permlane32_swap_b32", vr(P + 2 * i), vr(P + 2 * i + 1))
        for i in range(4): I("v_add_f32", vr(P + 2 * i), vr(P + 2 * i), vr(P + 2 * i + 1))
        for i in range(2): I("v_permlane16_swap_b32", vr(P + 4 * i), vr(P + 4 * i + 2))
        for i in range(2): I("v_add_f32", vr(8 + i), vr(P + 4 * i), vr(P + 4 * i + 2))
        self.perm_g(vT6, vT7)
        I("v_lshl_add_u32", vr(vT5), vr(vC), 3, vr(vT6))
        I("v_lshlrev_b32", vr(vT5), 2, vr(vT5))
        I("s_lshl_b32", sr(sT0), sr(sW), 9)
        I("v_add_u32", vr(vT5), sr(sT0), vr(vT5))
        I("ds_write_b32", vr(vT5), vr(8), mods=f"offset:{L_QP}")
        I("ds_write_b32", vr(vT5), vr(9), mods=f"offset:{L_QP + 16}")
        I("s_waitcnt", "lgkmcnt(0)")
        I("v_mov_b32", vr(vT6), L_QCNT); I("v_mov_b32", vr(vT7), 1)
        I("s_mov_b64", "exec", 1)
        I("ds_add_rtn_u32", vr(vT5), vr(vT6), vr(vT7))
        self.execall()
        I("s_waitcnt", "lgkmcnt(0)")
        I("v_readfirstlane_b32", sr(sT0), vr(vT5))
        self.stamp(2)
        lab_notlast = self.L("NOTLAST")
        I("s_cmp_eq_u32", sr(sT0), 15)
        I("s_cbranch_scc0", lab_notlast)
        I("v_and_b32", vr(vT5), 31, vr(vLane)); I("v_lshlrev_b32", vr(vT5), 4, vr(vT5))
        I("v_lshrrev_b32", vr(vT6), 5, vr(vLane)); I("v_lshlrev_b32", vr(vT6), 12, vr(vT6))
        I("v_add_u32", vr(vT5), vr(vT5), vr(vT6))
        RB = WQ
        for k in range(8):
            I("ds_read_b128", vr(RB + 4 * k, 4), vr(vT5), mods=f"offset:{L_QP + 512 * k}")
        I("s_waitcnt", "lgkmcnt(0)")
        for e in range(4):
            for k in (0, 2, 4, 6): I("v_add_f32", vr(RB + 4 * k + e), vr(RB + 4 * k + e), vr(RB + 4 * k + 4 + e))
        for e in range(4):
            I("v_add_f32", vr(RB + e), vr(RB + e), vr(RB + 8 + e)); I("v_add_f32", vr(RB + 16 + e), vr(RB + 16 + e), vr(RB + 24 + e))
        for e in range(4): I("v_add_f32", vr(RB + e), vr(RB + e), vr(RB + 16 + e))
        for e in range(4): I("v_mov_b32", vr(RB + 4 + e), vr(RB + e))
        for e in range(4): I("v_permlane32_swap_b32", vr(RB + e), vr(RB + 4 + e))
        for e in range(4): I("v_add_f32", vr(RB + e), vr(RB + e), vr(RB + 4 + e))
        I("v_cvt_pk_bf16_f32", vr(RB + 8), vr(RB), vr(RB + 1)); I("v_cvt_pk_bf16_f32", vr(RB + 9), vr(RB + 2), vr(RB + 3))
        I("v_and_b32", vr(vT5), 31, vr(vLane)); I("v_lshlrev_b32", vr(vT5), 3, vr(vT5))
        I("ds_write_b64", vr(vT5), vr(RB + 8, 2), mods=f"offset:{L_QB}")
        I("s_waitcnt", "lgkmcnt(0)")
        self.lds_set(L_FQ, 1)
        a.label(lab_notlast)
        if self.noq:
            a.label("L_NOQ")
            self.lds_set(L_FQ, 1)
        if self.bw:
            lab_b2 = self.L("BW2")
            I("s_cmp_ge_u32", sr(sW), self.bw)
            I("s_cbranch_scc0", lab_b2)
            I("s_setprio", self.prios[1])
            for kq in range(NP, self.npre2):
                I("buffer_load_dwordx4", vr(kslot(kq), 4), vr(vKV), sr(rK, 4), sr(sOFF + kq), mods="offen nt")
            a.label(lab_b2)
        I("s_setprio", self.prios[2])
        for i in range(self.npre2, 17):
            self.vm(f"K{i}", "buffer_load_dwordx4", vr(kslot(i), 4), vr(vKV), sr(rK, 4), sr(sOFF + i), mods="offen nt")
        if self.t1test:
            I("s_lshl_b32", sr(sT0), sr(sH), 17)
            I("s_add_u32", "s84", sr(pWO), sr(sT0)) if False else None
            I("v_lshrrev_b32", vr(vT5), 2, vr(vLane)); I("v_lshlrev_b32", vr(vT5), 10, vr(vT5))
            I("v_and_b32", vr(vT6), 3, vr(vLane)); I("v_lshl_add_u32", vr(vT5), vr(vT6), 4, vr(vT5))
            I("s_lshl_b32", sr(sT1), sr(sW), 6); I("v_add_u32", vr(vT5), sr(sT1), vr(vT5))
            I("s_mov_b32", sr(sT2), 0)
            I("s_lshl_b32", sr(sT1), sr(sW), 12); I("s_add_u32", sr(sT1), sr(sT1), 20480)
            for k in range(8):
                I("s_mov_b32", "m0", sr(sT1))
                self.vm(f"T1_{k}", "buffer_load_dwordx4", vr(vT5), sr(rT1, 4), sr(sT2), mods=("offen lds" if self.t1test == 1 else "offen nt lds"))
                I("s_add_u32", sr(sT2), sr(sT2), 16 * 1024)
        if not self.kfirst:
            I("s_setprio", self.prios[3])
            for i in range(8):
                self.vm(f"V{i}", "buffer_load_dwordx4", vr(vslot(i), 4), vr(vKV), sr(rV, 4), sr(sOFF + i), mods="offen nt")
            self.stamp(16)
            self.lds_wait(L_FQ, 1)
            I("s_setprio", self.prios[4])
            self.stamp(4)
            I("v_lshlrev_b32", vr(vT5), 4, vr(vC))
            I("ds_read_b128", vr(vQ, 4), vr(vT5), mods=f"offset:{L_QB}")
            I("s_mov_b32", sr(sMask), "0x00010001"); I("s_mov_b32", sr(sMask + 1), "0x00010001")
            I("v_mov_b32", vr(vS), 0)
            I("s_waitcnt", "lgkmcnt(0)")
            groups = [[0, 1, 2, 3], [4, 5, 6, 7], [8, 9, 10, 11], [12, 13, 14], [15, 16]]
            nextv = 8
            for grp in groups:
                self.wait_vm(f"K{grp[-1]}")
                for n, i in enumerate(grp):
                    I("v_dot2_f32_bf16", vr(vD + n), vr(kslot(i)), vr(vQ), 0)
                for k in range(1, 4):
                    for n, i in enumerate(grp):
                        I("v_dot2_f32_bf16", vr(vD + n), vr(kslot(i) + k), vr(vQ + k), vr(vD + n))
                for i in grp:
                    if i <= 8 and nextv <= 16:
                        assert vslot(nextv) == kslot(i)
                        self.vm(f"V{nextv}", "buffer_load_dwordx4", vr(vslot(nextv), 4), vr(vKV), sr(rV, 4), sr(sOFF + nextv), mods="offen nt")
                        nextv += 1
                self.row_reduce("v_add_f32", [vD + n for n in range(len(grp))])
                for n, i in enumerate(grp):
                    if i < 16:
                        I("v_cndmask_b32", vr(vS), vr(vS), vr(vD + n), sr(sMask, 2))
                        if i < 15: I("s_lshl_b64", sr(sMask, 2), sr(sMask, 2), 1)
                    else:
                        I("v_mov_b32", vr(vS2), vr(vD + n))
                if nextv == 17 and not self.wo_done and not self.late_wo:
                    self.wo_dma()
        else:
            lab_qok, lab_kph, lab_vdone = self.L("QOK"), self.L("KPH"), self.L("VD")
            I("s_setprio", self.prios[3])
            I("v_mov_b32", vr(vT6), L_FQ)
            I("ds_read_b32", vr(vT7), vr(vT6))
            I("s_waitcnt", "lgkmcnt(0)")
            I("v_readfirstlane_b32", sr(sU3 - 1), vr(vT7))
            I("s_cmp_ge_u32", sr(sU3 - 1), 1)
            I("s_cbranch_scc1", lab_kph)
            for i in range(8):
                I("buffer_load_dwordx4", vr(vslot(i), 4), vr(vKV), sr(rV, 4), sr(sOFF + i), mods="offen nt")
            self.stamp(16)
            self.lds_wait(L_FQ, 1)
            a.label(lab_kph)
            I("s_setprio", self.prios[4])
            self.stamp(4)
            I("v_lshlrev_b32", vr(vT5), 4, vr(vC))
            I("ds_read_b128", vr(vQ, 4), vr(vT5), mods=f"offset:{L_QB}")
            I("s_mov_b32", sr(sMask), "0x00010001"); I("s_mov_b32", sr(sMask + 1), "0x00010001")
            I("v_mov_b32", vr(vS), 0)
            I("s_waitcnt", "lgkmcnt(0)")
            groups = [[0, 1, 2, 3], [4, 5, 6, 7], [8, 9, 10, 11], [12, 13, 14], [15, 16]]
            for grp in groups:
                self.wait_vm(f"K{grp[-1]}")
                for n, i in enumerate(grp):
                    I("v_dot2_f32_bf16", vr(vD + n), vr(kslot(i)), vr(vQ), 0)
                for k in range(1, 4):
                    for n, i in enumerate(grp):
                        I("v_dot2_f32_bf16", vr(vD + n), vr(kslot(i) + k), vr(vQ + k), vr(vD + n))
                if grp[-1] == 16:
                    I("s_cmp_ge_u32", sr(sU3 - 1), 1)
                    I("s_cbranch_scc0", lab_vdone)
                    for i in range(8):
                        I("buffer_load_dwordx4", vr(vslot(i), 4), vr(vKV), sr(rV, 4), sr(sOFF + i), mods="offen nt")
                    a.label(lab_vdone)
                    for i in range(8): self.issued.append(f"V{i}")
                    for i in range(8, 17):
                        self.vm(f"V{i}", "buffer_load_dwordx4", vr(vslot(i), 4), vr(vKV), sr(rV, 4), sr(sOFF + i), mods="offen nt")
                self.row_reduce("v_add_f32", [vD + n for n in range(len(grp))])
                for n, i in enumerate(grp):
                    if i < 16:
                        I("v_cndmask_b32", vr(vS), vr(vS), vr(vD + n), sr(sMask, 2))
                        if i < 15: I("s_lshl_b64", sr(sMask, 2), sr(sMask, 2), 1)
                    else:
                        I("v_mov_b32", vr(vS2), vr(vD + n))
            if not self.wo_done and not self.late_wo:
                self.wo_dma()
        T0, T1 = 18, 19
        I("v_cvt_pk_bf16_f32", vr(T0), vr(vS), vr(vS2))
        self.unpack(vS, vS2, T0)
        I("v_mul_f32", vr(vS), hex(SCALE), vr(vS)); I("v_mul_f32", vr(vS2), hex(SCALE), vr(vS2))
        I("v_cvt_pk_bf16_f32", vr(T0), vr(vS), vr(vS2))
        self.unpack(vS, vS2, T0)
        I("v_mov_b32", vr(T1), "0xff800000")
        I("v_cmp_gt_u32", "vcc", sr(sN), vr(vC))
        I("v_cndmask_b32", vr(vS), vr(T1), vr(vS), "vcc")
        I("s_cmp_gt_u32", sr(sN), 16)
        self.csel(sT0, "0x7f800000", "0xff800000")
        I("v_min_f32", vr(vS2), sr(sT0), vr(vS2))
        I("v_max_f32", vr(T0), vr(vS), vr(vS2))
        self.wave_reduce63("v_max_f32", [T0])
        I("v_readlane_b32", sr(sT0), vr(T0), 63)
        I("v_subrev_f32", vr(vS), sr(sT0), vr(vS)); I("v_subrev_f32", vr(vS2), sr(sT0), vr(vS2))
        I("v_mul_f32", vr(vS), hex(LOG2E), vr(vS)); I("v_mul_f32", vr(vS2), hex(LOG2E), vr(vS2))
        I("v_exp_f32", vr(vS), vr(vS)); I("v_exp_f32", vr(vS2), vr(vS2))
        I("v_mov_b32", vr(T0), vr(vS))
        I("v_fmac_f32", vr(T0), "0x3d800000", vr(vS2))
        self.wave_reduce63("v_add_f32", [T0])
        I("v_mov_b32", vr(T1), vr(T0))
        I("v_mov_b32", vr(T0), sr(sT0))
        I("s_lshl_b32", sr(sT1), sr(sW), 3)
        I("v_mov_b32", vr(vT5), sr(sT1))
        self.exec63()
        I("ds_write_b64", vr(vT5), vr(T0, 2), mods=f"offset:{L_ML}")
        I("s_waitcnt", "lgkmcnt(0)")
        I("v_mov_b32", vr(vT5), L_CNT); I("v_mov_b32", vr(vT6), 1)
        I("ds_add_u32", vr(vT5), vr(vT6))
        self.execall()
        self.stamp(5)
        for e in range(8): I("v_mov_b32", vr(vACC + e), 0)
        for i in range(17):
            self.wait_vm(f"V{i}")
            for k in range(4):
                self.unpack(8 + 2 * k, 9 + 2 * k, vslot(i) + k)
            for k in range(4):
                for hh in range(2):
                    if i < 16:
                        I("v_fmac_f32_dpp", vr(vACC + 2 * k + hh), vr(vS), vr(8 + 2 * k + hh), mods=f"row_newbcast:{i} row_mask:0xf bank_mask:0xf")
                    else:
                        I("v_fmac_f32", vr(vACC + 2 * k + hh), vr(vS2), vr(8 + 2 * k + hh))
            if self.late_wo and i == self.late_wo:
                self.wo_dma()
        self.stamp(6)
        if self.tags:
            I("s_add_u32", sr(sEp), sr(sEp), 1)
            I("s_and_b32", sr(sT0), sr(sEp), hex(TAGM))
            I("v_mov_b32", vr(vTag), sr(sT0))
            I("s_mov_b32", sr(sTagM), hex(0xFFFFFFFF ^ TAGM))
        for i in range(4): I("v_permlane32_swap_b32", vr(vACC + 2 * i), vr(vACC + 2 * i + 1))
        for i in range(4): I("v_add_f32", vr(vACC + 2 * i), vr(vACC + 2 * i), vr(vACC + 2 * i + 1))
        for i in range(2): I("v_permlane16_swap_b32", vr(vACC + 4 * i), vr(vACC + 4 * i + 2))
        for i in range(2): I("v_add_f32", vr(8 + i), vr(vACC + 4 * i), vr(vACC + 4 * i + 2))
        self.perm_g(vT6, vT7)
        I("v_lshl_add_u32", vr(vT5), vr(vC), 3, vr(vT6))
        I("v_lshlrev_b32", vr(vT5), 2, vr(vT5))
        I("s_lshl_b32", sr(sT0), sr(sW), 9)
        I("v_add_u32", vr(vT5), sr(sT0), vr(vT5))
        I("ds_write_b32", vr(vT5), vr(8), mods=f"offset:{L_OP}")
        I("ds_write_b32", vr(vT5), vr(9), mods=f"offset:{L_OP + 16}")
        lab_w4 = self.L("W4")
        I("s_cmp_lt_u32", sr(sW), 4)
        I("s_cbranch_scc0", lab_w4)
        self.lds_wait(L_CNT, 16, sleep=1)
        I("v_lshrrev_b32", vr(vT7), 3, vr(vLane))
        I("v_lshlrev_b32", vr(13), 4, vr(vT7))
        I("ds_read_b128", vr(12, 4), vr(13), mods=f"offset:{L_ML}")
        I("s_waitcnt", "lgkmcnt(0)")
        I("v_max_f32", vr(16), vr(12), vr(14))
        self.wave_reduce63("v_max_f32", [16])
        I("v_readlane_b32", sr(sT0), vr(16), 63)
        I("v_subrev_f32", vr(12), sr(sT0), vr(12)); I("v_subrev_f32", vr(14), sr(sT0), vr(14))
        I("v_mul_f32", vr(12), hex(LOG2E), vr(12)); I("v_mul_f32", vr(14), hex(LOG2E), vr(14))
        I("v_exp_f32", vr(12), vr(12)); I("v_exp_f32", vr(14), vr(14))
        I("v_mul_f32", vr(16), vr(12), vr(13)); I("v_fmac_f32", vr(16), vr(14), vr(15))
        I("v_mul_f32", vr(16), "0x3e000000", vr(16))
        self.wave_reduce63("v_add_f32", [16])
        lab_noml = self.L("NOML")
        I("s_cmp_eq_u32", sr(sW), 0)
        I("s_cbranch_scc0", lab_noml)
        I("v_mov_b32", vr(17), vr(16))
        I("v_mov_b32", vr(16), sr(sT0))
        self.clamp(16); self.clamp(17)
        I("s_lshl_b32", sr(sT1), sr(sBH), 2); I("s_add_u32", sr(sT1), sr(sT1), sr(sM)); I("s_lshl_b32", sr(sT1), sr(sT1), 3)
        I("s_add_u32", sr(sT1), sr(sT1), hex(ML))
        I("v_mov_b32", vr(vT5), 0)
        self.exec63()
        I("buffer_store_dwordx2", vr(16, 2), vr(vT5), sr(rWS, 4), sr(sT1), mods="offen sc1")
        self.execall()
        a.label(lab_noml)
        if not self.tags: self.check_all_counters()
        self.stamp(18)
        I("v_and_b32", vr(vT5), 7, vr(vLane)); I("v_lshlrev_b32", vr(16), 4, vr(vT5))
        I("v_lshrrev_b32", vr(vT7), 3, vr(vLane)); I("v_lshlrev_b32", vr(vT6), 10, vr(vT7))
        I("v_add_u32", vr(16), vr(16), vr(vT6))
        I("s_lshl_b32", sr(sT0), sr(sW), 7)
        I("v_add_u32", vr(16), sr(sT0), vr(16))
        self.perm_g(vT6, vT7)
        I("v_lshl_add_u32", vr(17), vr(vT5), 2, vr(vT6))
        I("v_lshlrev_b32", vr(17), 2, vr(17))
        I("s_lshl_b32", sr(sU0), sr(sBH), 2); I("s_add_u32", sr(sU0), sr(sU0), sr(sM)); I("s_lshl_b32", sr(sU0), sr(sU0), 9)
        I("s_add_u32", sr(sU0), sr(sU0), sr(sT0)); I("s_add_u32", sr(sU0), sr(sU0), hex(OPART))
        a.label(lab_w4)
        I("s_waitcnt", "lgkmcnt(0)")
        I("s_barrier")
        self.stamp(7)
        lab_exit_wait = self.L("XW")
        I("s_cmp_lt_u32", sr(sW), 4)
        I("s_cbranch_scc0", lab_exit_wait)
        I("ds_read_b128", vr(20, 4), vr(16), mods=f"offset:{L_OP}")
        I("ds_read_b128", vr(24, 4), vr(16), mods=f"offset:{L_OP + 512}")
        I("s_waitcnt", "lgkmcnt(0)")
        for e in range(4): I("v_mul_f32", vr(20 + e), vr(20 + e), vr(12))
        for e in range(4): I("v_fmac_f32", vr(20 + e), vr(24 + e), vr(14))
        I("v_permlane32_swap_b32", vr(20), vr(21)); I("v_permlane32_swap_b32", vr(22), vr(23))
        I("v_add_f32", vr(20), vr(20), vr(21)); I("v_add_f32", vr(22), vr(22), vr(23))
        self.swap_add(16, 20, 22, 20)
        self.dpp("v_add_f32", 20, 20, 20, "row_ror:8")
        self.clamp(20)
        self.execm("0x00ff00ff", "0x00ff00ff")
        I("buffer_store_dword", vr(20), vr(17), sr(rWS, 4), sr(sU0), mods="offen sc1")
        self.execall()
        self.stamp(8)
        if self.stop == "attn":
            a.label(lab_exit_wait)
            return self.finish()
        self.tail(lab_exit_wait)
        return self.finish()

    def wo_dma(self):
        I = self.I
        skip = self.L("NWD")
        self.wo_done = True
        I("s_cmp_eq_u32", sr(sRole), 1)
        I("s_cbranch_scc0", skip)
        I("s_lshl_b32", sr(sT2), sr(sW), 12)
        I("v_lshlrev_b32", vr(vT5), 4, vr(vLane))
        I("s_mul_i32", sr(sT1), sr(sW), 4 * WROW); I("s_add_u32", sr(sT1), sr(sT1), L_WB)
        for k in range(4):
            I("s_mov_b32", "m0", sr(sT1))
            I("buffer_load_dwordx4", vr(vT5), sr(rWA, 4), sr(sT2), mods="offen nt lds")
            if k < 3:
                I("s_add_u32", sr(sT1), sr(sT1), WROW); I("s_add_u32", sr(sT2), sr(sT2), 1024)
        self.a.label(skip)

    def ffn_dma(self):
        I = self.I
        skip = self.L("NFD")
        I("s_cmp_eq_u32", sr(sRole), 2)
        I("s_cbranch_scc0", skip)
        I("s_lshl_b32", sr(sT0), sr(sW), 5)
        I("v_lshrrev_b32", vr(vT5), 2, vr(vLane)); I("v_add_u32", vr(vT5), sr(sT0), vr(vT5))
        I("s_movk_i32", sr(sT1), 2752)
        I("v_mul_lo_u32", vr(vT5), vr(vT5), sr(sT1))
        I("v_and_b32", vr(vT6), 3, vr(vLane))
        I("v_lshl_add_u32", vr(vT5), vr(vT6), 4, vr(vT5))
        I("s_lshl_b32", sr(sT0), sr(sW), 11); I("s_add_u32", sr(sT1), sr(sT0), L_WB)
        I("s_mov_b32", "m0", sr(sT1))
        I("buffer_load_dwordx4", vr(vT5), sr(rWA, 4), 0, mods="offen lds")
        I("s_add_u32", sr(sT1), sr(sT1), 1024)
        I("s_mov_b32", sr(sT2), 16 * 2752)
        I("s_mov_b32", "m0", sr(sT1))
        I("buffer_load_dwordx4", vr(vT5), sr(rWA, 4), sr(sT2), mods="offen lds")
        I("v_lshlrev_b32", vr(vT6), 4, vr(vLane)); I("v_add_u32", vr(vT6), sr(sT0), vr(vT6))
        I("s_mul_i32", sr(sT1), sr(sW), 2 * WROW); I("s_add_u32", sr(sT1), sr(sT1), L_W2)
        I("s_mov_b32", "m0", sr(sT1))
        I("buffer_load_dwordx4", vr(vT6), sr(rWB, 4), 0, mods="offen nt lds")
        I("s_add_u32", sr(sT1), sr(sT1), WROW)
        I("s_movk_i32", sr(sT2), 1024)
        I("s_mov_b32", "m0", sr(sT1))
        I("buffer_load_dwordx4", vr(vT6), sr(rWB, 4), sr(sT2), mods="offen nt lds")
        self.a.label(skip)

    def check_all_counters(self):
        a, I = self.a, self.I
        lp, ok = self.L("CA"), self.L("CAOK")
        I("s_mov_b32", sr(sSpin), SPIN_MAX)
        I("v_and_b32", vr(vT5), 31, vr(vLane)); I("v_lshlrev_b32", vr(vT5), 2, vr(vT5))
        a.label(lp)
        I("buffer_load_dword", vr(vT6), vr(vT5), sr(rDBG, 4), 0, mods="offen sc1")
        I("s_waitcnt", "vmcnt(0)")
        I("v_cmp_gt_u32", "vcc", 8, vr(vT6))
        I("s_cbranch_vccz", ok)
        I("s_sub_u32", sr(sSpin), sr(sSpin), 1)
        I("s_cbranch_scc0", lp)
        a.label(ok)

    def tail(self, lab_exit_wait):
        a, I = self.a, self.I
        if self.late_wo == 99: self.wo_dma()
        self.ffn_dma()
        lab_ffn, lab_red = self.L("FFN"), self.L("RED")
        I("s_cmp_eq_u32", sr(sRole), 0)
        I("s_cbranch_scc1", "L_FIN")
        I("s_cmp_eq_u32", sr(sRole), 3)
        I("s_cbranch_scc1", lab_red)
        I("s_cmp_eq_u32", sr(sRole), 1)
        I("s_cbranch_scc0", lab_ffn)
        self.wo_stage()
        a.label(lab_ffn)
        self.ffn_stage()
        I("s_branch", "L_FIN")
        a.label(lab_red)
        I("s_cmp_eq_u32", sr(sW), 0)
        I("s_cbranch_scc0", "L_FIN")
        self.reducer()
        I("s_branch", "L_FIN")
        a.label(lab_exit_wait)
        if self.late_wo == 99: self.wo_dma()
        self.ffn_dma()
        I("s_cmp_eq_u32", sr(sRole), 0)
        I("s_cbranch_scc1", "L_FIN")
        I("s_cmp_eq_u32", sr(sRole), 3)
        I("s_cbranch_scc1", "L_FIN")
        I("s_waitcnt", "vmcnt(0)")
        I("s_barrier")
        I("s_branch", "L_FIN")

    def dry_top(self):
        top = self.L("TOP")
        self.I("s_mov_b32", sr(sDry), 1 if self.dry else 0)
        self.a.label(top)
        return top
    def skip_if_dry(self):
        lab = self.L("SK")
        self.I("s_cmp_eq_u32", sr(sDry), 1)
        self.I("s_cbranch_scc1", lab)
        return lab
    def dry_end(self, top):
        lab = self.L("REAL")
        self.I("s_cmp_eq_u32", sr(sDry), 0)
        self.I("s_cbranch_scc1", lab)
        self.I("s_mov_b32", sr(sDry), 0)
        self.I("s_branch", top)
        self.a.label(lab)

    def wo_stage(self):
        a, I = self.a, self.I
        vI4, vI2 = 8, 9
        BW = 64
        I("s_waitcnt", "vmcnt(0)" if self.late_wo == 99 else "vmcnt(1)")
        I("s_barrier")
        I("v_lshrrev_b32", vr(vI4), 2, vr(vC)); I("v_and_b32", vr(vI2), 3, vr(vC))
        I("v_lshl_add_u32", vr(vT5), vr(vG), 3, vr(vI4))
        I("s_movk_i32", sr(sT0), WROW)
        I("v_mul_lo_u32", vr(vT5), vr(vT5), sr(sT0))
        I("v_lshl_add_u32", vr(vT5), vr(vI2), 3, vr(vT5))
        I("s_lshl_b32", sr(sT0), sr(sW), 8)
        I("v_add_u32", vr(vT5), sr(sT0), vr(vT5))
        I("v_add_u32", vr(vT5), L_WB, vr(vT5))
        vBS, vMS = 10, 11
        vAml, vAown, vAo, vAy = 40, 41, 42, 43
        ML0, O0 = 12, 44
        I("v_bfe_u32", vr(vBS), vr(vC), 2, 1); I("v_and_b32", vr(vMS), 3, vr(vC))
        I("v_lshlrev_b32", vr(vAml), 10, vr(vBS))
        I("v_lshl_add_u32", vr(vAown), vr(vMS), 3, vr(vAml))
        I("s_lshl_b32", sr(sU0), sr(sHW), 5); I("s_add_u32", sr(sU0), sr(sU0), hex(ML))
        I("v_lshlrev_b32", vr(vAo), 16, vr(vBS))
        I("v_lshl_add_u32", vr(vAo), vr(vMS), 9, vr(vAo))
        I("v_lshl_add_u32", vr(vAo), vr(vG), 5, vr(vAo))
        I("s_lshl_b32", sr(sU1), sr(sHW), 11)
        I("s_lshl_b32", sr(sT1), sr(sB), 8)
        I("s_add_u32", sr(sU1), sr(sU1), sr(sT1)); I("s_add_u32", sr(sU1), sr(sU1), hex(OPART))
        def loads():
            for k in range(4):
                I("buffer_load_dwordx4", vr(O0 + 4 * k, 4), vr(vAo), sr(rWS, 4), sr(sU1), mods=f"offen offset:{(k >> 1) * 128 + (k & 1) * 16} sc1")
            I("buffer_load_dwordx4", vr(ML0, 4), vr(vAml), sr(rWS, 4), sr(sU0), mods="offen sc1")
            I("buffer_load_dwordx4", vr(ML0 + 4, 4), vr(vAml), sr(rWS, 4), sr(sU0), mods="offen offset:16 sc1")
            I("buffer_load_dwordx2", vr(ML0 + 8, 2), vr(vAown), sr(rWS, 4), sr(sU0), mods="offen sc1")
        loads()
        for ks in range(2):
            for tt in range(8):
                I("ds_read_b64_tr_b16", vr(BW + 32 * ks + 4 * tt, 2), vr(vT5), mods=f"offset:{32 * ks * WROW + 32 * tt}")
                I("ds_read_b64_tr_b16", vr(BW + 32 * ks + 4 * tt + 2, 2), vr(vT5), mods=f"offset:{(32 * ks + 4) * WROW + 32 * tt}")
        I("v_and_b32", vr(vAy), 1, vr(vG)); I("v_lshlrev_b32", vr(vAy), 17, vr(vAy))
        I("v_lshrrev_b32", vr(vT6), 1, vr(vG)); I("v_lshlrev_b32", vr(vT6), 12, vr(vT6))
        I("v_add_u32", vr(vAy), vr(vAy), vr(vT6))
        I("v_lshl_add_u32", vr(vAy), vr(vC), 2, vr(vAy))
        I("s_lshl_b32", sr(sU2), sr(sW), 15)
        I("s_lshl_b32", sr(sT1), sr(sF), 6); I("s_add_u32", sr(sU2), sr(sU2), sr(sT1)); I("s_add_u32", sr(sU2), sr(sU2), hex(YPART))
        I("s_mov_b32", sr(sMask), 0); I("s_mov_b32", sr(sMask + 1), -1)
        regs = list(range(ML0, ML0 + 10)) + list(range(O0, O0 + 16))
        lp, ok = self.L("POLL"), self.L("POK")
        I("s_mov_b32", sr(sSpin), SPIN_MAX)
        I("s_waitcnt", "vmcnt(0)")
        self.check_regs(regs, vT7)
        I("s_cbranch_vccz", ok)
        a.label(lp)
        loads()
        I("s_waitcnt", "vmcnt(0)")
        self.check_regs(regs, vT7)
        I("s_cbranch_vccz", ok)
        I("s_sub_u32", sr(sSpin), sr(sSpin), 1)
        I("s_cbranch_scc0", lp)
        a.label(ok)
        self.stamp(10)
        T = 22
        I("v_max3_f32", vr(T), vr(ML0), vr(ML0 + 2), vr(ML0 + 4)); I("v_max_f32", vr(T), vr(T), vr(ML0 + 6))
        for n in range(5): I("v_sub_f32", vr(T + 1 + n), vr(ML0 + 2 * n), vr(T))
        for n in range(5): I("v_mul_f32", vr(T + 1 + n), hex(LOG2E), vr(T + 1 + n))
        for n in range(5): I("v_exp_f32", vr(T + 1 + n), vr(T + 1 + n))
        I("v_mul_f32", vr(T), vr(T + 1), vr(ML0 + 1))
        I("v_fmac_f32", vr(T), vr(T + 2), vr(ML0 + 3)); I("v_fmac_f32", vr(T), vr(T + 3), vr(ML0 + 5)); I("v_fmac_f32", vr(T), vr(T + 4), vr(ML0 + 7))
        I("v_rcp_f32", vr(T), vr(T))
        I("v_mul_f32", vr(T), vr(T), vr(T + 5))
        for e in range(16): I("v_mul_f32", vr(O0 + e), vr(O0 + e), vr(T))
        for e in range(16): self.dpp("v_add_f32", O0 + e, O0 + e, O0 + e, "quad_perm:[1,0,3,2]")
        for e in range(16): self.dpp("v_add_f32", O0 + e, O0 + e, O0 + e, "quad_perm:[2,3,0,1]")
        AO = 28
        for k in range(8): I("v_cvt_pk_bf16_f32", vr(AO + k), vr(O0 + 2 * k), vr(O0 + 2 * k + 1))
        I("s_waitcnt", "lgkmcnt(0)")
        Dr = [44, 48, 52, 56, 12, 16, 20, 24]
        for tt in range(8):
            I("v_mfma_f32_16x16x32_bf16", vr(Dr[tt], 4), vr(AO, 4), vr(BW + 4 * tt, 4), 0)
        for tt in range(8):
            I("v_mfma_f32_16x16x32_bf16", vr(Dr[tt], 4), vr(AO + 4, 4), vr(BW + 32 + 4 * tt, 4), vr(Dr[tt], 4))
        for tt in range(0, 8, 2):
            I("v_cndmask_b32", vr(36 + tt // 2), vr(Dr[tt]), vr(Dr[tt + 1]), sr(sMask, 2))
        for tt in range(4): self.clamp(36 + tt)
        for tt in range(4):
            I("buffer_store_dword", vr(36 + tt), vr(vAy), sr(rWS, 4), sr(sU2), mods="offen sc1")
            if tt < 3: I("s_add_u32", sr(sU2), sr(sU2), 8192)
        self.stamp(11)
        I("s_branch", "L_FIN")

    def reduce16(self, r0, out):
        I = self.I
        I("v_permlane32_swap_b32", vr(r0), vr(r0 + 1)); I("v_permlane32_swap_b32", vr(r0 + 2), vr(r0 + 3))
        I("v_add_f32", vr(r0), vr(r0), vr(r0 + 1)); I("v_add_f32", vr(r0 + 2), vr(r0 + 2), vr(r0 + 3))
        self.swap_add(16, r0, r0 + 2, out)
        self.dpp("v_add_f32", out, out, out, "row_ror:8")
        self.dpp("v_add_f32", out, out, out, "row_ror:4")

    def reducer(self):
        a, I = self.a, self.I
        vCol, vX, vAo, vH, vA, vAh = 60, 61, 62, 63, 8, 9
        Y, S, U3 = 64, 96, 112
        self.perm_g(vT6, vT7)
        I("v_and_b32", vr(vCol), 3, vr(vLane))
        I("v_lshl_add_u32", vr(vCol), vr(vCol), 2, vr(vT6))
        I("v_lshlrev_b32", vr(vAo), 1, vr(vCol))
        I("s_lshl_b32", sr(sT0), sr(sBH), 5)
        I("buffer_load_ushort", vr(vX), vr(vAo), sr(rX, 4), sr(sT0), mods="offen")
        I("v_lshlrev_b32", vr(vA), 4, vr(vLane))
        I("v_lshlrev_b32", vr(vAh), 2, vr(vCol))
        I("s_lshl_b32", sr(sU0), sr(sBH), 12); I("s_add_u32", sr(sU0), sr(sU0), hex(YPART))
        I("s_lshl_b32", sr(sU2), sr(sBH), 6); I("s_add_u32", sr(sU2), sr(sU2), hex(HBUF))
        I("s_lshl_b32", sr(sU3), sr(sBH), 5)
        I("s_mul_i32", sr(sT0), sr(sBH), USTR); I("s_add_u32", sr(sT0), sr(sT0), hex(UPART))
        I("s_add_u32", sr(rWA), sr(pWS), sr(sT0)); I("s_addc_u32", sr(rWA + 1), sr(pWS + 1), 0)
        I("s_mov_b32", sr(rWA + 2), NF * 64); I("s_mov_b32", sr(rWA + 3), "0x20000")
        def loads():
            for k in range(4):
                I("buffer_load_dwordx4", vr(Y + 4 * k, 4), vr(vA), sr(rWS, 4), sr(sU0), mods=f"offen offset:{k * 1024} sc1")
        self.poll(loads, 4, range(Y, Y + 16))
        self.stamp(12)
        I("s_waitcnt", "vmcnt(0)")
        I("v_lshlrev_b32", vr(vX), 16, vr(vX))
        for e in range(4):
            I("v_add_f32", vr(S + e), vr(Y + e), vr(Y + 4 + e)); I("v_add_f32", vr(S + 4 + e), vr(Y + 8 + e), vr(Y + 12 + e))
        for e in range(4): I("v_add_f32", vr(S + e), vr(S + e), vr(S + 4 + e))
        self.reduce16(S, vH)
        I("v_cvt_pk_bf16_f32", vr(vH), vr(vH), vr(vH))
        I("v_lshlrev_b32", vr(vH), 16, vr(vH))
        I("v_add_f32", vr(vH), vr(vH), vr(vX))
        I("v_cvt_pk_bf16_f32", vr(vH), vr(vH), vr(vH))
        I("v_lshlrev_b32", vr(vH), 16, vr(vH))
        self.clamp(12, vH)
        self.execm("0x000f000f", "0x000f000f")
        I("buffer_store_dword", vr(12), vr(vAh), sr(rWS, 4), sr(sU2), mods="offen sc1")
        self.execall()
        self.stamp(13)
        I("s_mov_b32", sr(sMask), 0); I("s_mov_b32", sr(sMask + 1), "0xfffff000")
        def loads3():
            for k in range(3):
                I("buffer_load_dwordx4", vr(U3 + 4 * k, 4), vr(vA), sr(rWA, 4), 0, mods=f"offen offset:{k * 1024} sc1")
        if self.tags:
            lp, ok = self.L("POLL"), self.L("POK")
            I("s_mov_b32", sr(sSpin), SPIN_MAX)
            a.label(lp)
            loads3()
            I("s_waitcnt", "vmcnt(0)")
            for k in range(4):
                I("v_cndmask_b32", vr(U3 + 8 + k), vr(U3 + 8 + k), vr(vTag), sr(sMask, 2))
            self.check_regs(list(range(U3, U3 + 12)), vT7)
            I("s_cbranch_vccz", ok)
            I("s_sub_u32", sr(sSpin), sr(sSpin), 1)
            I("s_cbranch_scc0", lp)
            a.label(ok)
        else:
            self.poll(loads3, 3, range(U3, U3 + 12))
        self.stamp(14)
        for e in range(4):
            I("v_add_f32", vr(S + e), vr(U3 + e), vr(U3 + 4 + e))
        for e in range(4): I("v_add_f32", vr(S + e), vr(S + e), vr(U3 + 8 + e))
        self.reduce16(S, 12)
        I("v_cvt_pk_bf16_f32", vr(12), vr(12), vr(12))
        I("v_lshlrev_b32", vr(12), 16, vr(12))
        I("v_add_f32", vr(12), vr(12), vr(vH))
        I("v_cvt_pk_bf16_f32", vr(12), vr(12), vr(12))
        self.execm("0x000f000f", "0x000f000f")
        I("buffer_store_short", vr(12), vr(vAo), sr(rOUT, 4), sr(sU3), mods="offen")
        self.execall()
        if self.tags:
            lab_ne = self.L("NEP")
            I("s_cmp_eq_u32", sr(sBH), 0)
            I("s_cbranch_scc0", lab_ne)
            I("v_mov_b32", vr(13), sr(sEp)); I("v_mov_b32", vr(14), 0)
            I("s_mov_b32", sr(sT0), hex(EPOCH))
            I("s_mov_b64", "exec", 1)
            I("buffer_store_dword", vr(13), vr(14), sr(rWS, 4), sr(sT0), mods="offen sc1")
            self.execall()
            a.label(lab_ne)
        if self.dbgtime:
            I("s_memrealtime", "s[12:13]")
            I("s_waitcnt", "lgkmcnt(0)")
            I("s_sub_u32", sr(sT1), sr(sT1), "s38")
            I("v_mov_b32", vr(12), sr(sT1)); I("v_mov_b32", vr(vT6), 0)
            I("s_lshl_b32", sr(sT0), sr(sBH), 2)
            I("s_mov_b64", "exec", 1)
            I("buffer_store_dword", vr(12), vr(vT6), sr(rDBG, 4), sr(sT0), mods="offen")
            self.execall()
        self.stamp(15)

    def ffn_stage(self):
        a, I = self.a, self.I
        if self.stop in ("y", "h"):
            I("s_waitcnt", "vmcnt(0)"); I("s_barrier"); return
        vI4, vI2 = 8, 9
        B1, B2 = 64, 96
        I("s_waitcnt", "vmcnt(0)")
        I("s_barrier")
        I("v_lshrrev_b32", vr(vI4), 2, vr(vC)); I("v_and_b32", vr(vI2), 3, vr(vC))
        I("v_lshl_add_u32", vr(vT5), vr(vG), 3, vr(vI4)); I("v_lshlrev_b32", vr(vT5), 6, vr(vT5))
        I("v_lshl_add_u32", vr(vT5), vr(vI2), 3, vr(vT5))
        I("s_lshl_b32", sr(sT0), sr(sW), 13)
        I("v_add_u32", vr(vT5), sr(sT0), vr(vT5))
        for ks in range(4):
            for nt in range(2):
                o = L_WB + ks * 2048 + nt * 32
                I("ds_read_b64_tr_b16", vr(B1 + 8 * ks + 4 * nt, 2), vr(vT5), mods=f"offset:{o}")
                I("ds_read_b64_tr_b16", vr(B1 + 8 * ks + 4 * nt + 2, 2), vr(vT5), mods=f"offset:{o + 256}")
        I("v_lshl_add_u32", vr(vT6), vr(vG), 3, vr(vI4))
        I("s_movk_i32", sr(sT0), WROW)
        I("v_mul_lo_u32", vr(vT6), vr(vT6), sr(sT0))
        I("v_lshl_add_u32", vr(vT6), vr(vI2), 3, vr(vT6))
        I("s_lshl_b32", sr(sT0), sr(sW), 8)
        I("v_add_u32", vr(vT6), sr(sT0), vr(vT6))
        I("v_add_u32", vr(vT6), L_W2, vr(vT6))
        for tt in range(8):
            I("ds_read_b64_tr_b16", vr(B2 + 4 * tt, 2), vr(vT6), mods=f"offset:{32 * tt}")
            I("ds_read_b64_tr_b16", vr(B2 + 4 * tt + 2, 2), vr(vT6), mods=f"offset:{4 * WROW + 32 * tt}")
        vAh, vAhw, vAhr, vAuw, vAur, vAaw, vAar, vAo = 10, 11, 52, 53, 54, 55, 56, 57
        I("v_lshlrev_b32", vr(vAh), 5, vr(vLane))
        I("s_mov_b32", sr(sU0), hex(HBUF))
        I("v_lshlrev_b32", vr(vAhw), 4, vr(vLane)); I("s_lshl_b32", sr(sT0), sr(sW), 11); I("v_add_u32", vr(vAhw), sr(sT0), vr(vAhw))
        I("v_bfe_u32", vr(vT7), vr(vC), 2, 1)
        I("v_lshlrev_b32", vr(vAhr), 10, vr(vT7)); I("v_lshl_add_u32", vr(vAhr), vr(vG), 4, vr(vAhr))
        I("s_mul_i32", sr(sT0), sr(sW), 2048 + 256); I("v_add_u32", vr(vAhr), sr(sT0), vr(vAhr))
        I("v_and_b32", vr(vAuw), 1, vr(vG)); I("v_lshlrev_b32", vr(vAuw), 7, vr(vAuw))
        I("v_lshrrev_b32", vr(vT5), 1, vr(vG)); I("v_lshl_add_u32", vr(vAuw), vr(vT5), 6, vr(vAuw))
        I("v_lshl_add_u32", vr(vAuw), vr(vC), 2, vr(vAuw))
        I("s_lshl_b32", sr(sT0), sr(sW), 8); I("v_add_u32", vr(vAuw), sr(sT0), vr(vAuw))
        I("v_lshlrev_b32", vr(vAur), 2, vr(vLane))
        I("s_lshl_b32", sr(sT0), sr(sW), 7)
        I("v_lshlrev_b32", vr(vAaw), 1, vr(vLane)); I("v_add_u32", vr(vAaw), sr(sT0), vr(vAaw))
        I("v_lshlrev_b32", vr(vAar), 6, vr(vT7)); I("v_lshl_add_u32", vr(vAar), vr(vG), 4, vr(vAar)); I("v_add_u32", vr(vAar), sr(sT0), vr(vAar))
        I("v_and_b32", vr(vAo), 1, vr(vG)); I("s_mov_b32", sr(sT0), 32 * USTR); I("v_mul_lo_u32", vr(vAo), vr(vAo), sr(sT0))
        I("v_lshrrev_b32", vr(vT6), 1, vr(vG)); I("s_movk_i32", sr(sT0), USTR); I("v_mul_lo_u32", vr(vT6), vr(vT6), sr(sT0))
        I("v_add_u32", vr(vAo), vr(vAo), vr(vT6))
        I("v_lshl_add_u32", vr(vAo), vr(vC), 2, vr(vAo))
        I("s_mul_i32", sr(sU1), sr(sW), 8 * USTR)
        I("s_lshl_b32", sr(sT1), sr(sF), 6); I("s_add_u32", sr(sU1), sr(sU1), sr(sT1)); I("s_add_u32", sr(sU1), sr(sU1), hex(UPART))
        I("s_mov_b32", sr(sMask), 0); I("s_mov_b32", sr(sMask + 1), -1)
        I("s_waitcnt", "lgkmcnt(0)")
        H0, H1 = 12, 20
        top = self.dry_top()
        sk = self.skip_if_dry()
        def loads():
            I("buffer_load_dwordx4", vr(H0, 4), vr(vAh), sr(rWS, 4), sr(sU0), mods="offen sc1")
            I("buffer_load_dwordx4", vr(H0 + 4, 4), vr(vAh), sr(rWS, 4), sr(sU0), mods="offen offset:16 sc1")
            I("buffer_load_dwordx4", vr(H1, 4), vr(vAh), sr(rWS, 4), sr(sU0), mods="offen offset:2048 sc1")
            I("buffer_load_dwordx4", vr(H1 + 4, 4), vr(vAh), sr(rWS, 4), sr(sU0), mods="offen offset:2064 sc1")
        self.poll(loads, 4, range(12, 28))
        a.label(sk)
        self.stamp(9)
        A1, A2, B1s, B2s = 28, 29, 30, 31
        I("v_add_f32", vr(A1), vr(H0), vr(H0 + 1)); I("v_add_f32", vr(B1s), vr(H1), vr(H1 + 1))
        I("v_mul_f32", vr(A2), vr(H0), vr(H0)); I("v_mul_f32", vr(B2s), vr(H1), vr(H1))
        I("v_fmac_f32", vr(A2), vr(H0 + 1), vr(H0 + 1)); I("v_fmac_f32", vr(B2s), vr(H1 + 1), vr(H1 + 1))
        for e in range(2, 8):
            I("v_add_f32", vr(A1), vr(A1), vr(H0 + e)); I("v_add_f32", vr(B1s), vr(B1s), vr(H1 + e))
            I("v_fmac_f32", vr(A2), vr(H0 + e), vr(H0 + e)); I("v_fmac_f32", vr(B2s), vr(H1 + e), vr(H1 + e))
        self.wave_reduce63("v_add_f32", [A1, A2, B1s, B2s])
        for (r, s) in ((A1, sT0), (A2, sT1), (B1s, sT2), (B2s, sT3)):
            I("v_readlane_b32", sr(s), vr(r), 63)
        M0, M1, R0, R1, T0, T1 = 28, 29, 30, 31, 32, 33
        self.ln_scalars(sT0, sT1, sT2, sT3, M0, M1, R0, R1, T0, T1)
        I("v_mul_f32", vr(M0), vr(M0), vr(R0)); I("v_mul_f32", vr(M1), vr(M1), vr(R1))
        HN = 36
        for e in range(8):
            I("v_fma_f32", vr(HN + e), vr(H0 + e), vr(R0), f"-{vr(M0)}")
            I("v_fma_f32", vr(HN + 8 + e), vr(H1 + e), vr(R1), f"-{vr(M1)}")
        for k in range(8):
            I("v_cvt_pk_bf16_f32", vr(HN + k), vr(HN + 2 * k), vr(HN + 2 * k + 1))
        I("ds_write_b128", vr(vAhw), vr(HN, 4), mods=f"offset:{L_HN}")
        I("ds_write_b128", vr(vAhw), vr(HN + 4, 4), mods=f"offset:{L_HN + 1024}")
        I("s_waitcnt", "lgkmcnt(0)")
        for ks in range(4):
            I("ds_read_b128", vr(HN + 4 * ks, 4), vr(vAhr), mods=f"offset:{L_HN + ks * 64}")
        I("s_waitcnt", "lgkmcnt(0)")
        D0, D1 = 28, 32
        for ks in range(4):
            I("v_mfma_f32_16x16x32_bf16", vr(D0, 4), vr(HN + 4 * ks, 4), vr(B1 + 8 * ks, 4), (0 if ks == 0 else vr(D0, 4)))
            I("v_mfma_f32_16x16x32_bf16", vr(D1, 4), vr(HN + 4 * ks, 4), vr(B1 + 8 * ks + 4, 4), (0 if ks == 0 else vr(D1, 4)))
        I("v_cndmask_b32", vr(D0), vr(D0), vr(D1), sr(sMask, 2))
        I("ds_write_b32", vr(vAuw), vr(D0), mods=f"offset:{L_UP}")
        I("s_waitcnt", "lgkmcnt(0)")
        I("s_barrier")
        for w in range(4):
            I("ds_read_b32", vr(28 + w), vr(vAur), mods=f"offset:{L_UP + w * 256}")
        I("s_waitcnt", "lgkmcnt(0)")
        I("v_add_f32", vr(28), vr(28), vr(29)); I("v_add_f32", vr(30), vr(30), vr(31))
        I("v_add_f32", vr(28), vr(28), vr(30))
        I("v_cvt_pk_bf16_f32", vr(29), vr(28), vr(28))
        I("v_lshlrev_b32", vr(28), 16, vr(29))
        I("v_mul_f32", vr(29), "0xbfb8aa3b", vr(28))
        I("v_exp_f32", vr(29), vr(29))
        I("v_add_f32", vr(29), 1.0, vr(29))
        I("v_rcp_f32", vr(29), vr(29))
        I("v_mul_f32", vr(28), vr(28), vr(29))
        I("v_cvt_pk_bf16_f32", vr(28), vr(28), vr(28))
        I("ds_write_b16", vr(vAaw), vr(28), mods=f"offset:{L_ACT}")
        I("s_waitcnt", "lgkmcnt(0)")
        I("ds_read_b128", vr(28, 4), vr(vAar), mods=f"offset:{L_ACT}")
        I("s_waitcnt", "lgkmcnt(0)")
        self.stamp(10)
        DD = 32
        assert DD + 20 <= vAhr
        I("s_waitcnt", "vmcnt(0)")
        Dregs = [12, 16, 20, 24, 36, 40, 44, 48]
        for tt in range(8):
            I("v_mfma_f32_16x16x32_bf16", vr(Dregs[tt], 4), vr(28, 4), vr(B2 + 4 * tt, 4), 0)
        for tt in range(0, 8, 2):
            I("v_cndmask_b32", vr(32 + tt // 2), vr(Dregs[tt]), vr(Dregs[tt + 1]), sr(sMask, 2))
        for tt in range(4): self.clamp(32 + tt)
        lab_nb = self.L("NB")
        I("s_cmp_eq_u32", sr(sDry), 0)
        I("s_cbranch_scc1", lab_nb)
        I("s_barrier")
        a.label(lab_nb)
        self.dry_end(top)
        for tt in range(4):
            I("buffer_store_dword", vr(32 + tt), vr(vAo), sr(rWS, 4), sr(sU1), mods="offen sc1")
            if tt < 3: I("s_add_u32", sr(sU1), sr(sU1), 2 * USTR)
        self.stamp(11)

    def finish(self):
        a, I = self.a, self.I
        a.label("L_FIN")
        if self.stamps:
            self.stamp(20)
            self.execall()
            I("s_lshl_b32", sr(sT0), "s2", 4); I("s_add_u32", sr(sT0), sr(sT0), sr(sW)); I("s_lshl_b32", sr(sT0), sr(sT0), 8)
            I("s_add_u32", sr(sT0), sr(sT0), hex(STAMP))
            I("v_lshlrev_b32", vr(vT5), 2, vr(vLane))
            I("buffer_store_dword", "v0", vr(vT5), sr(rWS, 4), sr(sT0), mods="offen")
        a.label("L_END")
        return self.wrap()

    def wrap(self):
        body = self.a.text()
        hdr = open("sequential_preLN__mha_block_cached__dense_activation_silu__decode.s.ref").read().split("\n")
        top = [l for l in hdr if l.startswith(";") and "@launch" not in l and "Override" not in l and "grid=ceil" not in l][:12]
        out = "\n".join(top) + "\n"
        out += f"; @launch grid=(256,1,1) block=(1024,1,1) lds={LDS_SIZE}\n"
        out += f""".amdgcn_target "amdgcn-amd-amdhsa--gfx950"
.text
.globl {KN}
.p2align 8
.type {KN},@function
{KN}:
{body}  s_endpgm
.section .rodata,"a"
.p2align 6
.amdhsa_kernel {KN}
  .amdhsa_next_free_vgpr 128
  .amdhsa_next_free_sgpr 102
  .amdhsa_accum_offset 128
  .amdhsa_group_segment_fixed_size 0
  .amdhsa_kernarg_size 88
  .amdhsa_user_sgpr_count 2
  .amdhsa_user_sgpr_kernarg_segment_ptr 1
  .amdhsa_system_sgpr_workgroup_id_x 1
.end_amdhsa_kernel
"""
        return out

if __name__ == "__main__":
    kw = {}
    for x in sys.argv[2:]:
        k, v = x.split("=")
        kw[k] = int(v) if v.lstrip("-").isdigit() and k != "prios" else v
    g = Gen(**kw)
    open(sys.argv[1], "w").write(g.build())
    print("nops inserted:", g.a.nops, "lines", len(g.a.lines))
```

```python
import sys
from asmlib import Asm, vr, sr

KN = "sequential_preLN__mha_block_cached__dense_activation_silu__decode_kernel"

ML    = 0x040000
OPART = 0x050000
YPART = 0x080000
HBUF  = 0x100000
UPART = 0x110000
USTR  = 48 * 64
NF    = 43
EPOCH = 0x030000
TAGM = 0x3FF
STAMP = 0x200000
WSSZ  = 0x400000
L_QP = 0
L_OP = 0
L_QB = 8192
L_ML = 8192 + 256
L_CNT = 8192 + 256 + 128
L_QCNT = L_CNT + 4
L_FQ = L_CNT + 8
L_UP = 8192 + 512
L_ACT = 8192 + 512 + 1024
L_HN = 8192 + 2048 + 1024
L_WB = 20480
L_W2 = L_WB + 32768
L_XN = L_WB
WROW = 1056
LDS_SIZE = L_WB + 64 * WROW + 256

LOG2E = 0x3FB8AA3B
SCALE = 0x3DB504F3
SPIN_MAX = 400000
OOB = 0x40000000

sW, sE, sHalf, sBH, sB, sH, sM = 3, 4, 5, 6, 7, 8, 9
sDry = 10
sT0, sT1, sT2, sT3, sT4 = 11, 12, 13, 14, 15
pX, pK, pV, pWQ, pWO, pBX, pW1, pW2, pOUT, pDBG, pWS = 16, 18, 20, 22, 24, 26, 28, 30, 32, 34, 36
sRB = 26
sRole = 27
sHW = 101
rK, rV, rWS, rX, rWQ, rWA, rWB, rOUT, rDBG = 40, 44, 48, 52, 56, 60, 64, 68, 72
sOFF = 76
sN = 93
sSpin = 94
sF = 95
sMask = 96
sU0, sU1, sU2, sU3 = 98, 99, 100, 101
sStamp0 = 38
sEp = 10
sTagM = 76
rT1 = 16
vLane, vC, vG, vKV = 1, 2, 3, 4
vT5, vT6, vT7 = 5, 6, 7
vTag = 4
vCk0, vCk1 = 5, 6
vQ = 8
vD = 12
vS, vS2 = 16, 17
vACC = 20
DATA0 = 28
def kslot(i): return DATA0 + 4 * i
def vslot(i):
    if i < 8: return DATA0 + 4 * (17 + i)
    return DATA0 + 4 * (i - 8)

class Gen:
    def __init__(self, stamps=0, stop=None, skew=0, npre=2, dbgtime=0, nowq=0, prios="32111", nodma=0, noinv=0,
                 dry=0, pipe=0, wqflag="", late_wo=99, earlybar=1, npre2=15, hshift=8, map=0, pat=1, kfirst=1, t1test=0, touch=0, noq=0, bw=4, tags=1, wsplit=16):
        self.a = Asm()
        self.stamps, self.stop, self.skew, self.npre, self.dbgtime = stamps, stop, skew, npre, dbgtime
        self.nowq, self.nodma, self.noinv, self.dry, self.pipe = nowq, nodma, noinv, dry, pipe
        self.prios = [int(c) for c in str(prios).zfill(5)]
        self.wqflag = wqflag
        self.late_wo = late_wo
        self.earlybar = earlybar
        self.npre2 = npre2
        self.hshift = hshift
        self.map = map
        self.pat = pat
        self.kfirst = kfirst
        self.t1test = t1test
        self.touch = touch
        self.noq = noq
        self.bw = bw
        self.tags = tags
        self.wsplit = wsplit
        self.issued = []
        self.lab = 0
        self.wo_done = False

    def L(self, p="L"):
        self.lab += 1
        return f"{p}_{self.lab}"
    def I(self, *a, **k): self.a.I(*a, **k)

    def stamp(self, k):
        if not self.stamps: return
        if k == 0:
            self.I("s_memrealtime", sr(sStamp0, 2)); return
        if k == 1:
            self.I("s_waitcnt", "lgkmcnt(0)")
            self.I("v_mov_b32", "v0", 0)
            self.I("v_writelane_b32", "v0", sr(sStamp0), 0)
            self.I("v_writelane_b32", "v0", "s94", 19)
        self.I("s_memrealtime", sr(sStamp0, 2))
        self.I("s_waitcnt", "lgkmcnt(0)")
        self.I("v_writelane_b32", "v0", sr(sStamp0), k)

    def csel(self, dst, x, y):
        self.I("s_mov_b32", sr(dst), x)
        self.I("s_cselect_b32", sr(dst), sr(dst), y)
    def exec63(self):
        self.I("s_mov_b32", "exec_lo", 0); self.I("s_mov_b32", "exec_hi", "0x80000000")
    def execm(self, lo, hi):
        self.I("s_mov_b32", "exec_lo", lo); self.I("s_mov_b32", "exec_hi", hi)
    def execall(self): self.I("s_mov_b64", "exec", -1)

    def srd(self, r, plo, size, addoff=None):
        I = self.I
        if addoff is None:
            I("s_mov_b32", sr(r), sr(plo)); I("s_mov_b32", sr(r + 1), sr(plo + 1))
        else:
            I("s_add_u32", sr(r), sr(plo), addoff); I("s_addc_u32", sr(r + 1), sr(plo + 1), 0)
        I("s_mov_b32", sr(r + 2), size); I("s_mov_b32", sr(r + 3), "0x20000")

    def vm(self, tag, op, *ops, mods=""):
        self.I(op, *ops, mods=mods)
        self.issued.append(tag)
    def wait_vm(self, tag):
        idx = self.issued.index(tag)
        n = len(self.issued) - 1 - idx
        self.I("s_waitcnt", f"vmcnt({min(n, 63)})")

    def dpp(self, op, d, s0, s1, ctrl, rm="0xf"):
        self.I(op + "_dpp", vr(d), vr(s0), vr(s1), mods=f"{ctrl} row_mask:{rm} bank_mask:0xf")
    def row_reduce(self, op, regs):
        for sh in (8, 4, 2, 1):
            for r in regs: self.dpp(op, r, r, r, f"row_ror:{sh}")
    def wave_reduce63(self, op, regs):
        self.row_reduce(op, regs)
        for r in regs: self.dpp(op, r, r, r, "row_bcast:15", "0xa")
        for r in regs: self.dpp(op, r, r, r, "row_bcast:31", "0xc")
    def swap_add(self, which, a, b, d, op="v_add_f32"):
        self.I(f"v_permlane{which}_swap_b32", vr(a), vr(b))
        self.I(op, vr(d), vr(a), vr(b))
    def unpack(self, lo, hi, src):
        self.I("v_lshlrev_b32", vr(lo), 16, vr(src))
        self.I("v_and_b32", vr(hi), "0xffff0000", vr(src))
    def clamp(self, r, src=None):
        src = r if src is None else src
        if self.tags:
            self.I("v_and_or_b32", vr(r), vr(src), sr(sTagM), vr(vTag))
        else:
            self.I("v_min_u32", vr(r), -2, vr(src))
    def perm_g(self, d, t):
        I = self.I
        I("v_and_b32", vr(d), 1, vr(vG)); I("v_lshlrev_b32", vr(d), 1, vr(d))
        I("v_lshrrev_b32", vr(t), 1, vr(vG)); I("v_or_b32", vr(d), vr(d), vr(t))

    def check_regs(self, regs, t, t2=None):
        I = self.I
        rs = list(regs)
        if self.tags:
            for r in rs: I("v_xor_b32", vr(r), vr(vTag), vr(r))
            first = True
            while rs:
                if first:
                    if len(rs) >= 3:
                        I("v_or3_b32", vr(t), vr(rs[0]), vr(rs[1]), vr(rs[2])); rs = rs[3:]
                    elif len(rs) == 2:
                        I("v_or_b32", vr(t), vr(rs[0]), vr(rs[1])); rs = rs[2:]
                    else:
                        I("v_mov_b32", vr(t), vr(rs[0])); rs = rs[1:]
                    first = False
                elif len(rs) >= 2:
                    I("v_or3_b32", vr(t), vr(t), vr(rs[0]), vr(rs[1])); rs = rs[2:]
                else:
                    I("v_or_b32", vr(t), vr(t), vr(rs[0])); rs = rs[1:]
            I("v_and_b32", vr(t), hex(TAGM), vr(t))
            I("v_cmp_ne_u32", "vcc", 0, vr(t))
            return
        if len(rs) == 1:
            I("v_cmp_eq_u32", "vcc", -1, vr(rs[0])); return
        first = True
        while rs:
            if first:
                if len(rs) >= 3:
                    I("v_max3_u32", vr(t), vr(rs[0]), vr(rs[1]), vr(rs[2])); rs = rs[3:]
                else:
                    I("v_max_u32", vr(t), vr(rs[0]), vr(rs[1])); rs = rs[2:]
                first = False
            elif len(rs) >= 2:
                I("v_max3_u32", vr(t), vr(t), vr(rs[0]), vr(rs[1])); rs = rs[2:]
            else:
                I("v_max_u32", vr(t), vr(t), vr(rs[0])); rs = rs[1:]
        I("v_cmp_eq_u32", "vcc", -1, vr(t))

    def poll(self, loads, nloads, regs, t=vT7):
        I = self.I
        lp, ok = self.L("POLL"), self.L("POK")
        I("s_mov_b32", sr(sSpin), SPIN_MAX)
        if self.pipe: loads()
        self.a.label(lp)
        loads()
        I("s_waitcnt", f"vmcnt({nloads if self.pipe else 0})")
        self.check_regs(regs, t)
        I("s_cbranch_vccz", ok)
        I("s_sub_u32", sr(sSpin), sr(sSpin), 1)
        I("s_cbranch_scc0", lp)
        self.a.label(ok)

    def ln_scalars(self, s10, s20, s11, s21, vm0, vm1, vr0, vr1, t0, t1):
        I = self.I
        inv = "0x3b000000"
        I("v_mov_b32", vr(vm0), sr(s10)); I("v_mov_b32", vr(vm1), sr(s11))
        I("v_mov_b32", vr(vr0), sr(s20)); I("v_mov_b32", vr(vr1), sr(s21))
        for r in (vm0, vm1, vr0, vr1): I("v_mul_f32", vr(r), inv, vr(r))
        I("v_fma_f32", vr(vr0), f"-{vr(vm0)}", vr(vm0), vr(vr0))
        I("v_fma_f32", vr(vr1), f"-{vr(vm1)}", vr(vm1), vr(vr1))
        I("v_max_f32", vr(vr0), 0, vr(vr0)); I("v_max_f32", vr(vr1), 0, vr(vr1))
        I("v_cvt_pk_bf16_f32", vr(t0), vr(vm0), vr(vm1))
        I("v_cvt_pk_bf16_f32", vr(t1), vr(vr0), vr(vr1))
        self.unpack(vm0, vm1, t0)
        self.unpack(vr0, vr1, t1)
        I("v_add_f32", vr(vr0), "0x3727c5ac", vr(vr0)); I("v_add_f32", vr(vr1), "0x3727c5ac", vr(vr1))
        I("v_cvt_pk_bf16_f32", vr(t1), vr(vr0), vr(vr1))
        self.unpack(vr0, vr1, t1)
        I("v_sqrt_f32", vr(vr0), vr(vr0)); I("v_sqrt_f32", vr(vr1), vr(vr1))
        I("v_cvt_pk_bf16_f32", vr(t1), vr(vr0), vr(vr1))
        self.unpack(vr0, vr1, t1)
        I("v_rcp_f32", vr(vr0), vr(vr0)); I("v_rcp_f32", vr(vr1), vr(vr1))

    def ln_scalars1(self, s1, s2, vm0, vr0, t0):
        I = self.I
        inv = "0x3b000000"
        I("v_mov_b32", vr(vm0), sr(s1)); I("v_mov_b32", vr(vr0), sr(s2))
        I("v_mul_f32", vr(vm0), inv, vr(vm0)); I("v_mul_f32", vr(vr0), inv, vr(vr0))
        I("v_fma_f32", vr(vr0), f"-{vr(vm0)}", vr(vm0), vr(vr0))
        I("v_max_f32", vr(vr0), 0, vr(vr0))
        I("v_cvt_pk_bf16_f32", vr(t0), vr(vm0), vr(vr0))
        self.unpack(vm0, vr0, t0)
        I("v_add_f32", vr(vr0), "0x3727c5ac", vr(vr0))
        I("v_cvt_pk_bf16_f32", vr(t0), vr(vr0), vr(vr0))
        I("v_lshlrev_b32", vr(vr0), 16, vr(t0))
        I("v_sqrt_f32", vr(vr0), vr(vr0))
        I("v_cvt_pk_bf16_f32", vr(t0), vr(vr0), vr(vr0))
        I("v_lshlrev_b32", vr(vr0), 16, vr(t0))
        I("v_rcp_f32", vr(vr0), vr(vr0))

    def lds_set(self, off, val_sgpr_or_imm):
        I = self.I
        I("v_mov_b32", vr(vT6), off); I("v_mov_b32", vr(vT7), val_sgpr_or_imm)
        I("ds_write_b32", vr(vT6), vr(vT7))

    def lds_wait(self, off, val, sleep=1):
        I = self.I
        lp, ok = self.L("LW"), self.L("LWOK")
        I("v_mov_b32", vr(vT6), off)
        self.a.label(lp)
        I("ds_read_b32", vr(vT7), vr(vT6))
        I("s_waitcnt", "lgkmcnt(0)")
        I("v_readfirstlane_b32", sr(sT4), vr(vT7))
        I("s_cmp_ge_u32", sr(sT4), val)
        I("s_cbranch_scc1", ok)
        if sleep: I("s_sleep", sleep)
        I("s_branch", lp)
        self.a.label(ok)

    def invalidate(self):
        I = self.I
        for k in range(4): I("v_mov_b32", vr(20 + k), -1)
        I("v_lshlrev_b32", vr(vT5), 4, vr(vLane))
        I("s_lshl_b32", sr(sT0), sr(sBH), 2); I("s_add_u32", sr(sT0), sr(sT0), sr(sM))
        I("s_lshl_b32", sr(sT1), sr(sT0), 9); I("s_add_u32", sr(sT1), sr(sT1), hex(OPART))
        I("s_lshl_b32", sr(sT2), sr(sT0), 3); I("s_add_u32", sr(sT2), sr(sT2), hex(ML))
        self.execm(-1, 0)
        I("buffer_store_dwordx4", vr(20, 4), vr(vT5), sr(rWS, 4), sr(sT1), mods="offen sc1")
        I("s_mov_b64", "exec", 1)
        I("buffer_store_dwordx2", vr(20, 2), vr(vT5), sr(rWS, 4), sr(sT2), mods="offen sc1")
        I("s_lshl_b32", sr(sT1), sr(sBH), 6); I("s_add_u32", sr(sT1), sr(sT1), hex(HBUF))
        I("s_cmp_eq_u32", sr(sRole), 3)
        I("s_cselect_b32", sr(sT1), sr(sT1), hex(OOB))
        I("s_mov_b64", "exec", 15)
        I("buffer_store_dwordx4", vr(20, 4), vr(vT5), sr(rWS, 4), sr(sT1), mods="offen sc1")
        self.execall()
        I("s_cmp_eq_u32", sr(sRole), 1)
        self.csel(sT0, 4096, USTR)
        self.csel(sT1, hex(YPART), hex(UPART))
        I("s_lshl_b32", sr(sT2), sr(sF), 6); I("s_add_u32", sr(sT1), sr(sT1), sr(sT2))
        I("s_cmp_eq_u32", sr(sRole), 0); I("s_cselect_b32", sr(sT1), hex(OOB), sr(sT1))
        I("s_cmp_eq_u32", sr(sRole), 3); I("s_cselect_b32", sr(sT1), hex(OOB), sr(sT1))
        I("v_lshrrev_b32", vr(vT6), 2, vr(vLane))
        I("v_mul_lo_u32", vr(vT6), vr(vT6), sr(sT0))
        I("v_and_b32", vr(vT7), 3, vr(vLane)); I("v_lshlrev_b32", vr(vT7), 4, vr(vT7))
        I("v_add_u32", vr(vT6), vr(vT6), vr(vT7))
        I("s_lshl_b32", sr(sT0), sr(sT0), 4)
        for k in range(4):
            I("buffer_store_dwordx4", vr(20, 4), vr(vT6), sr(rWS, 4), sr(sT1), mods="offen sc1")
            if k < 3: I("s_add_u32", sr(sT1), sr(sT1), sr(sT0))

    def roles(self):
        a, I = self.a, self.I
        self.srd(rWS, pWS, hex(WSSZ))
        self.srd(rDBG, pDBG, 256)
        self.srd(rOUT, pOUT, 2048)
        I("s_mov_b32", sr(sRole), 0)
        I("s_add_u32", sr(sHW), sr(sH), self.hshift); I("s_and_b32", sr(sHW), sr(sHW), 31)
        I("s_lshl_b32", sr(sF), sr(sHW), 1); I("s_add_u32", sr(sF), sr(sF), sr(sB))
        I("s_cmp_eq_u32", sr(sM), 0); I("s_cselect_b32", sr(sRole), 1, sr(sRole))
        I("s_cmp_eq_u32", sr(sM), 1); I("s_cselect_b32", sr(sRole), 3, sr(sRole))
        I("s_and_b32", sr(sT1), "s2", 7); I("s_lshr_b32", sr(sT1), sr(sT1), 1); I("s_lshl_b32", sr(sT1), sr(sT1), 4)
        I("s_lshr_b32", sr(sT2), "s2", 4); I("s_add_u32", sr(sT1), sr(sT1), sr(sT2))
        I("s_cmp_lt_u32", sr(sT1), NF); I("s_cselect_b32", sr(sT2), 2, 0)
        I("s_cmp_eq_u32", sr(sM), 2); I("s_cselect_b32", sr(sT2), sr(sT2), 0)
        I("s_cmp_eq_u32", sr(sT2), 2); I("s_cselect_b32", sr(sRole), 2, sr(sRole)); I("s_cselect_b32", sr(sF), sr(sT1), sr(sF))
        lab_f, lab_done = self.L("RF"), self.L("RDONE")
        I("s_cmp_eq_u32", sr(sRole), 2)
        I("s_cbranch_scc1", lab_f)
        I("s_lshl_b32", sr(sT0), sr(sF), 16)
        self.srd(rWA, pWO, (65536 if not self.nodma else 0), sr(sT0))
        self.srd(rWB, pWO, 0, sr(sT0))
        I("s_branch", lab_done)
        a.label(lab_f)
        I("s_lshl_b32", sr(sT0), sr(sF), 6)
        I("s_sub_u32", sr(sT1), hex(512 * 2752), sr(sT0))
        self.srd(rWA, pW1, sr(sT1), sr(sT0))
        I("s_lshl_b32", sr(sT0), sr(sF), 15)
        self.srd(rWB, pW2, 32768, sr(sT0))
        a.label(lab_done)

    def build(self):
        a, I = self.a, self.I
        self.stamp(0)
        if self.dbgtime: I("s_memrealtime", "s[38:39]")
        I("s_load_dwordx16", sr(16, 16), "s[0:1]", 0)
        I("s_load_dwordx4", sr(32, 4), "s[0:1]", 64)
        I("s_load_dwordx2", sr(36, 2), "s[0:1]", 80)
        I("s_cmp_ge_u32", "s2", 256)
        I("s_cbranch_scc1", "L_END")
        I("v_and_b32", vr(vLane), 63, "v0")
        I("v_lshrrev_b32", vr(vT5), 6, "v0")
        I("v_and_b32", vr(vC), 15, "v0")
        I("v_readfirstlane_b32", sr(sW), vr(vT5))
        I("v_bfe_u32", vr(vG), "v0", 4, 2)
        I("s_and_b32", sr(sT0), "s2", 7)
        I("s_lshr_b32", sr(sT1), "s2", 3)
        if self.map == 0:
            I("s_and_b32", sr(sE), sr(sT0), 1)
            I("s_lshr_b32", sr(sT0), sr(sT0), 1)
            I("s_and_b32", sr(sHalf), sr(sT1), 1)
            I("s_lshr_b32", sr(sT2), sr(sT1), 1)
            I("s_lshr_b32", sr(sB), sr(sT2), 3)
            I("s_and_b32", sr(sT2), sr(sT2), 7)
            I("s_lshl_b32", sr(sH), sr(sT0), 3); I("s_add_u32", sr(sH), sr(sH), sr(sT2))
        else:
            I("s_and_b32", sr(sE), sr(sT1), 1)
            I("s_bfe_u32", sr(sHalf), sr(sT1), "0x10001")
            I("s_bfe_u32", sr(sB), sr(sT1), "0x10002")
            I("s_lshr_b32", sr(sT2), sr(sT1), 3)
            I("s_lshl_b32", sr(sH), sr(sT0), 2); I("s_add_u32", sr(sH), sr(sH), sr(sT2))
        I("s_lshl_b32", sr(sBH), sr(sB), 5); I("s_add_u32", sr(sBH), sr(sBH), sr(sH))
        I("s_lshl_b32", sr(sM), sr(sHalf), 1); I("s_add_u32", sr(sM), sr(sM), sr(sE))
        I("v_lshlrev_b32", vr(vKV), 4, vr(vLane))
        if self.pat == 1:
            I("s_lshl_b32", sr(sT0), sr(sW), 15)
            I("v_add_u32", vr(vKV), sr(sT0), vr(vKV))
            I("s_cmp_eq_u32", sr(sE), 0)
            self.csel(sT0, 1024, -1024)
            self.csel(sN, 16 + self.skew, 16 - self.skew)
            I("s_mul_i32", sr(sOFF), sr(sE), 31744)
        else:
            I("s_cmp_eq_u32", sr(sE), 0)
            self.csel(sN, 16 + self.skew, 16 - self.skew)
            I("s_mul_i32", sr(sT0), sr(sN), sr(sW)); I("s_lshl_b32", sr(sT0), sr(sT0), 10)
            I("v_add_u32", vr(vKV), sr(sT0), vr(vKV))
            I("s_movk_i32", sr(sT0), 1024)
            I("s_mul_i32", sr(sOFF), sr(sE), 16 * (16 + self.skew) * 1024)
        for i in range(1, 17):
            I("s_add_u32", sr(sOFF + i), sr(sOFF + i - 1), sr(sT0))
        for i in (15, 16):
            I("s_cmp_gt_u32", sr(sN), i)
            I("s_cselect_b32", sr(sOFF + i), sr(sOFF + i), hex(OOB))
        I("s_waitcnt", "lgkmcnt(0)")
        if self.tags: I("s_load_dword", sr(sEp), sr(pWS, 2), hex(EPOCH))
        I("s_setprio", self.prios[0])
        lab_r1 = self.L("RL1")
        I("s_cmp_eq_u32", sr(sW), 0 if not self.tags else 99)
        I("s_cbranch_scc0", lab_r1)
        self.roles()
        if self.touch:
            I("v_mov_b32", vr(vT5), 0)
            I("s_mov_b64", "exec", 1)
            I("buffer_load_dword", vr(24), vr(vT5), sr(rWA, 4), 0, mods="offen nt")
            I("buffer_load_dword", vr(25), vr(vT5), sr(rWB, 4), 0, mods="offen nt")
            I("buffer_load_dword", vr(26), vr(vT5), sr(rOUT, 4), 0, mods="offen nt")
            I("s_mov_b32", sr(sT0), 511 * 2752)
            I("buffer_load_dword", vr(27), vr(vT5), sr(rWA, 4), sr(sT0), mods="offen nt")
            self.execall()
        if not self.noinv: self.invalidate()
        a.label(lab_r1)
        I("s_lshl_b32", sr(sT0), sr(sBH), 20); I("s_lshl_b32", sr(sT1), sr(sHalf), 19); I("s_add_u32", sr(sT0), sr(sT0), sr(sT1))
        self.srd(rK, pK, "0x80000", sr(sT0))
        self.srd(rV, pV, "0x80000", sr(sT0))
        self.srd(rX, pX, 2048)
        I("s_lshl_b32", sr(sT0), sr(sH), 8)
        I("s_sub_u32", sr(sT1), hex(512 * 8192), sr(sT0))
        self.srd(rWQ, pWQ, sr(sT1), sr(sT0))
        if self.t1test:
            I("s_lshl_b32", sr(sT0), sr(sH), 17)
            self.srd(rT1, pWO, 131072, sr(sT0))
        NP = self.npre
        XF, WQ = 8, kslot(17)
        if self.map == 0:
            I("s_lshl_b32", sr(sT0), sr(sB), 1); I("s_add_u32", sr(sT0), sr(sT0), sr(sHalf)); I("s_lshl_b32", sr(sT0), sr(sT0), 2)
        else:
            I("s_lshr_b32", sr(sT0), "s2", 3); I("s_and_b32", sr(sT0), sr(sT0), 7); I("s_lshl_b32", sr(sT0), sr(sT0), 1)
        I("s_add_u32", sr(sT0), sr(sT0), sr(sW)); I("s_and_b32", sr(sRB), sr(sT0), 15)
        I("v_lshlrev_b32", vr(vT5), 4, vr(vLane))
        I("s_lshl_b32", sr(sT1), sr(sB), 10)
        self.vm("xf", "buffer_load_dwordx4", vr(XF, 4), vr(vT5), sr(rX, 4), sr(sT1), mods="offen")
        I("s_lshl_b32", sr(sT0), sr(sRB), 5)
        I("v_lshl_add_u32", vr(vT6), vr(vG), 1, sr(sT0))
        I("v_lshlrev_b32", vr(vT7), 13, vr(vT6))
        I("v_lshl_add_u32", vr(vT7), vr(vC), 4, vr(vT7))
        for kq in range(NP):
            self.vm(f"K{kq}", "buffer_load_dwordx4", vr(kslot(kq), 4), vr(vKV), sr(rK, 4), sr(sOFF + kq), mods="offen nt")
        if self.stamps:
            I("s_memrealtime", "s[94:95]")
        for i in range(8):
            off = (8 * (i >> 1) + (i & 1)) * 8192
            I("s_mov_b32", sr(sT2), off if not self.nowq else OOB)
            self.vm(f"wq{i}", "buffer_load_dwordx4", vr(WQ + 4 * i, 4), vr(vT7), sr(rWQ, 4), sr(sT2), mods=("offen " + self.wqflag).strip())
            if i == 1:
                I("v_lshlrev_b32", vr(vT5), 2, vr(vLane)); I("v_mov_b32", vr(vT6), 0)
                I("s_mov_b64", "exec", 15)
                I("ds_write_b32", vr(vT5), vr(vT6), mods=f"offset:{L_CNT}")
                self.execall()
                I("s_waitcnt", "lgkmcnt(0)")
                I("s_barrier")
        I("s_setprio", self.prios[1])
        nK2 = self.npre2 - NP
        if self.bw:
            lab_b = self.L("BW")
            I("s_cmp_ge_u32", sr(sW), self.bw)
            I("s_cbranch_scc1", lab_b)
        for kq in range(NP, self.npre2):
            self.vm(f"K{kq}", "buffer_load_dwordx4", vr(kslot(kq), 4), vr(vKV), sr(rK, 4), sr(sOFF + kq), mods="offen nt")
        if self.bw:
            a.label(lab_b)
        def wait_dual(tag):
            if not self.bw:
                self.wait_vm(tag); return
            idx = self.issued.index(tag)
            n = len(self.issued) - 1 - idx
            l0, l1 = self.L("WD"), self.L("WDJ")
            I("s_cmp_ge_u32", sr(sW), self.bw)
            I("s_cbranch_scc1", l0)
            I("s_waitcnt", f"vmcnt({n})")
            I("s_branch", l1)
            a.label(l0)
            I("s_waitcnt", f"vmcnt({n - nK2})")
            a.label(l1)
        self.stamp(1)
        self.roles()
        if self.noq:
            I("s_branch", "L_NOQ")
        I("s_mov_b32", sr(sT4), "0x3f803f80")
        wait_dual("xf")
        lab_noat = self.L("NOAT")
        I("s_cmp_eq_u32", sr(sW), 0 if not self.tags else 99)
        I("s_cbranch_scc0", lab_noat)
        self.stamp(17)
        I("v_mov_b32", vr(vT5), 0); I("v_mov_b32", vr(vT6), 1)
        I("s_lshl_b32", sr(sT0), sr(sH), 2)
        I("s_mov_b64", "exec", 1)
        I("buffer_atomic_add", vr(vT6), vr(vT5), sr(rDBG, 4), sr(sT0), mods="offen sc1")
        self.execall()
        a.label(lab_noat)
        I("s_mov_b32", sr(sT4), "0x3f803f80")
        A1, A2, T0 = 22, 23, 26
        for k in range(4):
            I("v_dot2_f32_bf16", vr(A1), vr(XF + k), sr(sT4), (0 if k == 0 else vr(A1)))
            I("v_dot2_f32_bf16", vr(A2), vr(XF + k), vr(XF + k), (0 if k == 0 else vr(A2)))
        self.wave_reduce63("v_add_f32", [A1, A2])
        I("v_readlane_b32", sr(sT0), vr(A1), 63); I("v_readlane_b32", sr(sT1), vr(A2), 63)
        M0, R0 = 22, 23
        self.ln_scalars1(sT0, sT1, M0, R0, T0)
        XU = 12
        for k in range(4): self.unpack(XU + 2 * k, XU + 2 * k + 1, XF + k)
        for e in range(8): I("v_sub_f32", vr(XU + e), vr(XU + e), vr(M0))
        for k in range(4): I("v_cvt_pk_bf16_f32", vr(XF + k), vr(XU + 2 * k), vr(XU + 2 * k + 1))
        for k in range(4): self.unpack(XU + 2 * k, XU + 2 * k + 1, XF + k)
        for e in range(8): I("v_mul_f32", vr(XU + e), vr(XU + e), vr(R0))
        for k in range(4): I("v_cvt_pk_bf16_f32", vr(XF + k), vr(XU + 2 * k), vr(XU + 2 * k + 1))
        I("v_lshlrev_b32", vr(vT5), 4, vr(vLane))
        I("s_lshl_b32", sr(sT0), sr(sW), 10)
        I("v_add_u32", vr(vT5), sr(sT0), vr(vT5))
        I("ds_write_b128", vr(vT5), vr(XF, 4), mods=f"offset:{L_XN}")
        I("s_lshl_b32", sr(sT1), sr(sRB), 6); I("s_add_u32", sr(sT0), sr(sT0), sr(sT1))
        I("v_lshlrev_b32", vr(vT5), 2, vr(vG))
        I("v_add_u32", vr(vT5), sr(sT0), vr(vT5))
        I("s_waitcnt", "lgkmcnt(0)")
        for ip in range(4):
            I("ds_read_b32", vr(12 + ip), vr(vT5), mods=f"offset:{L_XN + 16 * ip}")
        P = vACC
        PT = kslot(15)
        I("s_mov_b32", sr(sT2), "0x05040100"); I("s_mov_b32", sr(sT3), "0x07060302")
        I("s_waitcnt", "lgkmcnt(0)")
        for ip in range(4):
            wait_dual(f"wq{2 * ip + 1}")
            wa, wb = WQ + 8 * ip, WQ + 8 * ip + 4
            for k in range(4):
                I("v_perm_b32", vr(PT + 2 * k), vr(wb + k), vr(wa + k), sr(sT2))
                I("v_perm_b32", vr(PT + 2 * k + 1), vr(wb + k), vr(wa + k), sr(sT3))
            for e in range(8):
                I("v_dot2_f32_bf16", vr(P + e), vr(PT + e), vr(12 + ip), (0 if ip == 0 else vr(P + e)))
        for i in range(4): I("v_permlane32_swap_b32", vr(P + 2 * i), vr(P + 2 * i + 1))
        for i in range(4): I("v_add_f32", vr(P + 2 * i), vr(P + 2 * i), vr(P + 2 * i + 1))
        for i in range(2): I("v_permlane16_swap_b32", vr(P + 4 * i), vr(P + 4 * i + 2))
        for i in range(2): I("v_add_f32", vr(8 + i), vr(P + 4 * i), vr(P + 4 * i + 2))
        self.perm_g(vT6, vT7)
        I("v_lshl_add_u32", vr(vT5), vr(vC), 3, vr(vT6))
        I("v_lshlrev_b32", vr(vT5), 2, vr(vT5))
        I("s_lshl_b32", sr(sT0), sr(sW), 9)
        I("v_add_u32", vr(vT5), sr(sT0), vr(vT5))
        I("ds_write_b32", vr(vT5), vr(8), mods=f"offset:{L_QP}")
        I("ds_write_b32", vr(vT5), vr(9), mods=f"offset:{L_QP + 16}")
        I("s_waitcnt", "lgkmcnt(0)")
        I("v_mov_b32", vr(vT6), L_QCNT); I("v_mov_b32", vr(vT7), 1)
        I("s_mov_b64", "exec", 1)
        I("ds_add_rtn_u32", vr(vT5), vr(vT6), vr(vT7))
        self.execall()
        I("s_waitcnt", "lgkmcnt(0)")
        I("v_readfirstlane_b32", sr(sT0), vr(vT5))
        self.stamp(2)
        lab_notlast = self.L("NOTLAST")
        I("s_cmp_eq_u32", sr(sT0), 15)
        I("s_cbranch_scc0", lab_notlast)
        I("v_and_b32", vr(vT5), 31, vr(vLane)); I("v_lshlrev_b32", vr(vT5), 4, vr(vT5))
        I("v_lshrrev_b32", vr(vT6), 5, vr(vLane)); I("v_lshlrev_b32", vr(vT6), 12, vr(vT6))
        I("v_add_u32", vr(vT5), vr(vT5), vr(vT6))
        RB = WQ
        for k in range(8):
            I("ds_read_b128", vr(RB + 4 * k, 4), vr(vT5), mods=f"offset:{L_QP + 512 * k}")
        I("s_waitcnt", "lgkmcnt(0)")
        for e in range(4):
            for k in (0, 2, 4, 6): I("v_add_f32", vr(RB + 4 * k + e), vr(RB + 4 * k + e), vr(RB + 4 * k + 4 + e))
        for e in range(4):
            I("v_add_f32", vr(RB + e), vr(RB + e), vr(RB + 8 + e)); I("v_add_f32", vr(RB + 16 + e), vr(RB + 16 + e), vr(RB + 24 + e))
        for e in range(4): I("v_add_f32", vr(RB + e), vr(RB + e), vr(RB + 16 + e))
        for e in range(4): I("v_mov_b32", vr(RB + 4 + e), vr(RB + e))
        for e in range(4): I("v_permlane32_swap_b32", vr(RB + e), vr(RB + 4 + e))
        for e in range(4): I("v_add_f32", vr(RB + e), vr(RB + e), vr(RB + 4 + e))
        I("v_cvt_pk_bf16_f32", vr(RB + 8), vr(RB), vr(RB + 1)); I("v_cvt_pk_bf16_f32", vr(RB + 9), vr(RB + 2), vr(RB + 3))
        I("v_and_b32", vr(vT5), 31, vr(vLane)); I("v_lshlrev_b32", vr(vT5), 3, vr(vT5))
        I("ds_write_b64", vr(vT5), vr(RB + 8, 2), mods=f"offset:{L_QB}")
        I("s_waitcnt", "lgkmcnt(0)")
        self.lds_set(L_FQ, 1)
        a.label(lab_notlast)
        if self.noq:
            a.label("L_NOQ")
            self.lds_set(L_FQ, 1)
        if self.bw:
            lab_b2 = self.L("BW2")
            I("s_cmp_ge_u32", sr(sW), self.bw)
            I("s_cbranch_scc0", lab_b2)
            I("s_setprio", self.prios[1])
            for kq in range(NP, self.npre2):
                I("buffer_load_dwordx4", vr(kslot(kq), 4), vr(vKV), sr(rK, 4), sr(sOFF + kq), mods="offen nt")
            a.label(lab_b2)
        I("s_setprio", self.prios[2])
        for i in range(self.npre2, 17):
            self.vm(f"K{i}", "buffer_load_dwordx4", vr(kslot(i), 4), vr(vKV), sr(rK, 4), sr(sOFF + i), mods="offen nt")
        if self.t1test:
            I("s_lshl_b32", sr(sT0), sr(sH), 17)
            I("s_add_u32", "s84", sr(pWO), sr(sT0)) if False else None
            I("v_lshrrev_b32", vr(vT5), 2, vr(vLane)); I("v_lshlrev_b32", vr(vT5), 10, vr(vT5))
            I("v_and_b32", vr(vT6), 3, vr(vLane)); I("v_lshl_add_u32", vr(vT5), vr(vT6), 4, vr(vT5))
            I("s_lshl_b32", sr(sT1), sr(sW), 6); I("v_add_u32", vr(vT5), sr(sT1), vr(vT5))
            I("s_mov_b32", sr(sT2), 0)
            I("s_lshl_b32", sr(sT1), sr(sW), 12); I("s_add_u32", sr(sT1), sr(sT1), 20480)
            for k in range(8):
                I("s_mov_b32", "m0", sr(sT1))
                self.vm(f"T1_{k}", "buffer_load_dwordx4", vr(vT5), sr(rT1, 4), sr(sT2), mods=("offen lds" if self.t1test == 1 else "offen nt lds"))
                I("s_add_u32", sr(sT2), sr(sT2), 16 * 1024)
        if not self.kfirst:
            I("s_setprio", self.prios[3])
            for i in range(8):
                self.vm(f"V{i}", "buffer_load_dwordx4", vr(vslot(i), 4), vr(vKV), sr(rV, 4), sr(sOFF + i), mods="offen nt")
            self.stamp(16)
            self.lds_wait(L_FQ, 1)
            I("s_setprio", self.prios[4])
            self.stamp(4)
            I("v_lshlrev_b32", vr(vT5), 4, vr(vC))
            I("ds_read_b128", vr(vQ, 4), vr(vT5), mods=f"offset:{L_QB}")
            I("s_mov_b32", sr(sMask), "0x00010001"); I("s_mov_b32", sr(sMask + 1), "0x00010001")
            I("v_mov_b32", vr(vS), 0)
            I("s_waitcnt", "lgkmcnt(0)")
            groups = [[0, 1, 2, 3], [4, 5, 6, 7], [8, 9, 10, 11], [12, 13, 14], [15, 16]]
            nextv = 8
            for grp in groups:
                self.wait_vm(f"K{grp[-1]}")
                for n, i in enumerate(grp):
                    I("v_dot2_f32_bf16", vr(vD + n), vr(kslot(i)), vr(vQ), 0)
                for k in range(1, 4):
                    for n, i in enumerate(grp):
                        I("v_dot2_f32_bf16", vr(vD + n), vr(kslot(i) + k), vr(vQ + k), vr(vD + n))
                for i in grp:
                    if i <= 8 and nextv <= 16:
                        assert vslot(nextv) == kslot(i)
                        self.vm(f"V{nextv}", "buffer_load_dwordx4", vr(vslot(nextv), 4), vr(vKV), sr(rV, 4), sr(sOFF + nextv), mods="offen nt")
                        nextv += 1
                self.row_reduce("v_add_f32", [vD + n for n in range(len(grp))])
                for n, i in enumerate(grp):
                    if i < 16:
                        I("v_cndmask_b32", vr(vS), vr(vS), vr(vD + n), sr(sMask, 2))
                        if i < 15: I("s_lshl_b64", sr(sMask, 2), sr(sMask, 2), 1)
                    else:
                        I("v_mov_b32", vr(vS2), vr(vD + n))
                if nextv == 17 and not self.wo_done and not self.late_wo:
                    self.wo_dma()
        else:
            lab_qok, lab_kph, lab_vdone = self.L("QOK"), self.L("KPH"), self.L("VD")
            I("s_setprio", self.prios[3])
            I("v_mov_b32", vr(vT6), L_FQ)
            I("ds_read_b32", vr(vT7), vr(vT6))
            I("s_waitcnt", "lgkmcnt(0)")
            I("v_readfirstlane_b32", sr(sU3 - 1), vr(vT7))
            I("s_cmp_ge_u32", sr(sU3 - 1), 1)
            I("s_cbranch_scc1", lab_kph)
            for i in range(8):
                I("buffer_load_dwordx4", vr(vslot(i), 4), vr(vKV), sr(rV, 4), sr(sOFF + i), mods="offen nt")
            self.stamp(16)
            self.lds_wait(L_FQ, 1)
            a.label(lab_kph)
            I("s_setprio", self.prios[4])
            self.stamp(4)
            I("v_lshlrev_b32", vr(vT5), 4, vr(vC))
            I("ds_read_b128", vr(vQ, 4), vr(vT5), mods=f"offset:{L_QB}")
            I("s_mov_b32", sr(sMask), "0x00010001"); I("s_mov_b32", sr(sMask + 1), "0x00010001")
            I("v_mov_b32", vr(vS), 0)
            I("s_waitcnt", "lgkmcnt(0)")
            groups = [[0, 1, 2, 3], [4, 5, 6, 7], [8, 9, 10, 11], [12, 13, 14], [15, 16]]
            for grp in groups:
                self.wait_vm(f"K{grp[-1]}")
                for n, i in enumerate(grp):
                    I("v_dot2_f32_bf16", vr(vD + n), vr(kslot(i)), vr(vQ), 0)
                for k in range(1, 4):
                    for n, i in enumerate(grp):
                        I("v_dot2_f32_bf16", vr(vD + n), vr(kslot(i) + k), vr(vQ + k), vr(vD + n))
                if grp[-1] == 16:
                    I("s_cmp_ge_u32", sr(sU3 - 1), 1)
                    I("s_cbranch_scc0", lab_vdone)
                    for i in range(8):
                        I("buffer_load_dwordx4", vr(vslot(i), 4), vr(vKV), sr(rV, 4), sr(sOFF + i), mods="offen nt")
                    a.label(lab_vdone)
                    for i in range(8): self.issued.append(f"V{i}")
                    for i in range(8, 17):
                        self.vm(f"V{i}", "buffer_load_dwordx4", vr(vslot(i), 4), vr(vKV), sr(rV, 4), sr(sOFF + i), mods="offen nt")
                self.row_reduce("v_add_f32", [vD + n for n in range(len(grp))])
                for n, i in enumerate(grp):
                    if i < 16:
                        I("v_cndmask_b32", vr(vS), vr(vS), vr(vD + n), sr(sMask, 2))
                        if i < 15: I("s_lshl_b64", sr(sMask, 2), sr(sMask, 2), 1)
                    else:
                        I("v_mov_b32", vr(vS2), vr(vD + n))
            if not self.wo_done and not self.late_wo:
                self.wo_dma()
        T0, T1 = 18, 19
        I("v_cvt_pk_bf16_f32", vr(T0), vr(vS), vr(vS2))
        self.unpack(vS, vS2, T0)
        I("v_mul_f32", vr(vS), hex(SCALE), vr(vS)); I("v_mul_f32", vr(vS2), hex(SCALE), vr(vS2))
        I("v_cvt_pk_bf16_f32", vr(T0), vr(vS), vr(vS2))
        self.unpack(vS, vS2, T0)
        I("v_mov_b32", vr(T1), "0xff800000")
        I("v_cmp_gt_u32", "vcc", sr(sN), vr(vC))
        I("v_cndmask_b32", vr(vS), vr(T1), vr(vS), "vcc")
        I("s_cmp_gt_u32", sr(sN), 16)
        self.csel(sT0, "0x7f800000", "0xff800000")
        I("v_min_f32", vr(vS2), sr(sT0), vr(vS2))
        I("v_max_f32", vr(T0), vr(vS), vr(vS2))
        self.wave_reduce63("v_max_f32", [T0])
        I("v_readlane_b32", sr(sT0), vr(T0), 63)
        I("v_subrev_f32", vr(vS), sr(sT0), vr(vS)); I("v_subrev_f32", vr(vS2), sr(sT0), vr(vS2))
        I("v_mul_f32", vr(vS), hex(LOG2E), vr(vS)); I("v_mul_f32", vr(vS2), hex(LOG2E), vr(vS2))
        I("v_exp_f32", vr(vS), vr(vS)); I("v_exp_f32", vr(vS2), vr(vS2))
        I("v_mov_b32", vr(T0), vr(vS))
        I("v_fmac_f32", vr(T0), "0x3d800000", vr(vS2))
        self.wave_reduce63("v_add_f32", [T0])
        I("v_mov_b32", vr(T1), vr(T0))
        I("v_mov_b32", vr(T0), sr(sT0))
        I("s_lshl_b32", sr(sT1), sr(sW), 3)
        I("v_mov_b32", vr(vT5), sr(sT1))
        self.exec63()
        I("ds_write_b64", vr(vT5), vr(T0, 2), mods=f"offset:{L_ML}")
        I("s_waitcnt", "lgkmcnt(0)")
        I("v_mov_b32", vr(vT5), L_CNT); I("v_mov_b32", vr(vT6), 1)
        I("ds_add_u32", vr(vT5), vr(vT6))
        self.execall()
        self.stamp(5)
        for e in range(8): I("v_mov_b32", vr(vACC + e), 0)
        for i in range(17):
            self.wait_vm(f"V{i}")
            for k in range(4):
                self.unpack(8 + 2 * k, 9 + 2 * k, vslot(i) + k)
            for k in range(4):
                for hh in range(2):
                    if i < 16:
                        I("v_fmac_f32_dpp", vr(vACC + 2 * k + hh), vr(vS), vr(8 + 2 * k + hh), mods=f"row_newbcast:{i} row_mask:0xf bank_mask:0xf")
                    else:
                        I("v_fmac_f32", vr(vACC + 2 * k + hh), vr(vS2), vr(8 + 2 * k + hh))
            if self.late_wo and i == self.late_wo:
                self.wo_dma()
        self.stamp(6)
        if self.tags:
            I("s_add_u32", sr(sEp), sr(sEp), 1)
            I("s_and_b32", sr(sT0), sr(sEp), hex(TAGM))
            I("v_mov_b32", vr(vTag), sr(sT0))
            I("s_mov_b32", sr(sTagM), hex(0xFFFFFFFF ^ TAGM))
        for i in range(4): I("v_permlane32_swap_b32", vr(vACC + 2 * i), vr(vACC + 2 * i + 1))
        for i in range(4): I("v_add_f32", vr(vACC + 2 * i), vr(vACC + 2 * i), vr(vACC + 2 * i + 1))
        for i in range(2): I("v_permlane16_swap_b32", vr(vACC + 4 * i), vr(vACC + 4 * i + 2))
        for i in range(2): I("v_add_f32", vr(8 + i), vr(vACC + 4 * i), vr(vACC + 4 * i + 2))
        self.perm_g(vT6, vT7)
        I("v_lshl_add_u32", vr(vT5), vr(vC), 3, vr(vT6))
        I("v_lshlrev_b32", vr(vT5), 2, vr(vT5))
        I("s_lshl_b32", sr(sT0), sr(sW), 9)
        I("v_add_u32", vr(vT5), sr(sT0), vr(vT5))
        I("ds_write_b32", vr(vT5), vr(8), mods=f"offset:{L_OP}")
        I("ds_write_b32", vr(vT5), vr(9), mods=f"offset:{L_OP + 16}")
        if self.wsplit:
            lab_ws = self.L("WSP")
            I("s_cmp_lt_u32", sr(sW), self.wsplit)
            I("s_cbranch_scc0", lab_ws)
            self.wo_dma()
            a.label(lab_ws)
        lab_w4 = self.L("W4")
        I("s_cmp_lt_u32", sr(sW), 4)
        I("s_cbranch_scc0", lab_w4)
        self.lds_wait(L_CNT, 16, sleep=1)
        I("v_lshrrev_b32", vr(vT7), 3, vr(vLane))
        I("v_lshlrev_b32", vr(13), 4, vr(vT7))
        I("ds_read_b128", vr(12, 4), vr(13), mods=f"offset:{L_ML}")
        I("s_waitcnt", "lgkmcnt(0)")
        I("v_max_f32", vr(16), vr(12), vr(14))
        self.wave_reduce63("v_max_f32", [16])
        I("v_readlane_b32", sr(sT0), vr(16), 63)
        I("v_subrev_f32", vr(12), sr(sT0), vr(12)); I("v_subrev_f32", vr(14), sr(sT0), vr(14))
        I("v_mul_f32", vr(12), hex(LOG2E), vr(12)); I("v_mul_f32", vr(14), hex(LOG2E), vr(14))
        I("v_exp_f32", vr(12), vr(12)); I("v_exp_f32", vr(14), vr(14))
        I("v_mul_f32", vr(16), vr(12), vr(13)); I("v_fmac_f32", vr(16), vr(14), vr(15))
        I("v_mul_f32", vr(16), "0x3e000000", vr(16))
        self.wave_reduce63("v_add_f32", [16])
        lab_noml = self.L("NOML")
        I("s_cmp_eq_u32", sr(sW), 0)
        I("s_cbranch_scc0", lab_noml)
        I("v_mov_b32", vr(17), vr(16))
        I("v_mov_b32", vr(16), sr(sT0))
        self.clamp(16); self.clamp(17)
        I("s_lshl_b32", sr(sT1), sr(sBH), 2); I("s_add_u32", sr(sT1), sr(sT1), sr(sM)); I("s_lshl_b32", sr(sT1), sr(sT1), 3)
        I("s_add_u32", sr(sT1), sr(sT1), hex(ML))
        I("v_mov_b32", vr(vT5), 0)
        self.exec63()
        I("buffer_store_dwordx2", vr(16, 2), vr(vT5), sr(rWS, 4), sr(sT1), mods="offen sc1")
        self.execall()
        a.label(lab_noml)
        if not self.tags: self.check_all_counters()
        self.stamp(18)
        I("v_and_b32", vr(vT5), 7, vr(vLane)); I("v_lshlrev_b32", vr(16), 4, vr(vT5))
        I("v_lshrrev_b32", vr(vT7), 3, vr(vLane)); I("v_lshlrev_b32", vr(vT6), 10, vr(vT7))
        I("v_add_u32", vr(16), vr(16), vr(vT6))
        I("s_lshl_b32", sr(sT0), sr(sW), 7)
        I("v_add_u32", vr(16), sr(sT0), vr(16))
        self.perm_g(vT6, vT7)
        I("v_lshl_add_u32", vr(17), vr(vT5), 2, vr(vT6))
        I("v_lshlrev_b32", vr(17), 2, vr(17))
        I("s_lshl_b32", sr(sU0), sr(sBH), 2); I("s_add_u32", sr(sU0), sr(sU0), sr(sM)); I("s_lshl_b32", sr(sU0), sr(sU0), 9)
        I("s_add_u32", sr(sU0), sr(sU0), sr(sT0)); I("s_add_u32", sr(sU0), sr(sU0), hex(OPART))
        a.label(lab_w4)
        I("s_waitcnt", "lgkmcnt(0)")
        I("s_barrier")
        self.stamp(7)
        lab_exit_wait = self.L("XW")
        I("s_cmp_lt_u32", sr(sW), 4)
        I("s_cbranch_scc0", lab_exit_wait)
        I("ds_read_b128", vr(20, 4), vr(16), mods=f"offset:{L_OP}")
        I("ds_read_b128", vr(24, 4), vr(16), mods=f"offset:{L_OP + 512}")
        I("s_waitcnt", "lgkmcnt(0)")
        for e in range(4): I("v_mul_f32", vr(20 + e), vr(20 + e), vr(12))
        for e in range(4): I("v_fmac_f32", vr(20 + e), vr(24 + e), vr(14))
        I("v_permlane32_swap_b32", vr(20), vr(21)); I("v_permlane32_swap_b32", vr(22), vr(23))
        I("v_add_f32", vr(20), vr(20), vr(21)); I("v_add_f32", vr(22), vr(22), vr(23))
        self.swap_add(16, 20, 22, 20)
        self.dpp("v_add_f32", 20, 20, 20, "row_ror:8")
        self.clamp(20)
        self.execm("0x00ff00ff", "0x00ff00ff")
        I("buffer_store_dword", vr(20), vr(17), sr(rWS, 4), sr(sU0), mods="offen sc1")
        self.execall()
        self.stamp(8)
        if self.stop == "attn":
            a.label(lab_exit_wait)
            return self.finish()
        self.tail(lab_exit_wait)
        return self.finish()

    def wo_dma(self):
        I = self.I
        skip = self.L("NWD")
        self.wo_done = True
        I("s_cmp_eq_u32", sr(sRole), 1)
        I("s_cbranch_scc0", skip)
        I("s_lshl_b32", sr(sT2), sr(sW), 12)
        I("v_lshlrev_b32", vr(vT5), 4, vr(vLane))
        I("s_mul_i32", sr(sT1), sr(sW), 4 * WROW); I("s_add_u32", sr(sT1), sr(sT1), L_WB)
        for k in range(4):
            I("s_mov_b32", "m0", sr(sT1))
            I("buffer_load_dwordx4", vr(vT5), sr(rWA, 4), sr(sT2), mods="offen nt lds")
            if k < 3:
                I("s_add_u32", sr(sT1), sr(sT1), WROW); I("s_add_u32", sr(sT2), sr(sT2), 1024)
        self.a.label(skip)

    def ffn_dma(self):
        I = self.I
        skip = self.L("NFD")
        I("s_cmp_eq_u32", sr(sRole), 2)
        I("s_cbranch_scc0", skip)
        I("s_lshl_b32", sr(sT0), sr(sW), 5)
        I("v_lshrrev_b32", vr(vT5), 2, vr(vLane)); I("v_add_u32", vr(vT5), sr(sT0), vr(vT5))
        I("s_movk_i32", sr(sT1), 2752)
        I("v_mul_lo_u32", vr(vT5), vr(vT5), sr(sT1))
        I("v_and_b32", vr(vT6), 3, vr(vLane))
        I("v_lshl_add_u32", vr(vT5), vr(vT6), 4, vr(vT5))
        I("s_lshl_b32", sr(sT0), sr(sW), 11); I("s_add_u32", sr(sT1), sr(sT0), L_WB)
        I("s_mov_b32", "m0", sr(sT1))
        I("buffer_load_dwordx4", vr(vT5), sr(rWA, 4), 0, mods="offen lds")
        I("s_add_u32", sr(sT1), sr(sT1), 1024)
        I("s_mov_b32", sr(sT2), 16 * 2752)
        I("s_mov_b32", "m0", sr(sT1))
        I("buffer_load_dwordx4", vr(vT5), sr(rWA, 4), sr(sT2), mods="offen lds")
        I("v_lshlrev_b32", vr(vT6), 4, vr(vLane)); I("v_add_u32", vr(vT6), sr(sT0), vr(vT6))
        I("s_mul_i32", sr(sT1), sr(sW), 2 * WROW); I("s_add_u32", sr(sT1), sr(sT1), L_W2)
        I("s_mov_b32", "m0", sr(sT1))
        I("buffer_load_dwordx4", vr(vT6), sr(rWB, 4), 0, mods="offen nt lds")
        I("s_add_u32", sr(sT1), sr(sT1), WROW)
        I("s_movk_i32", sr(sT2), 1024)
        I("s_mov_b32", "m0", sr(sT1))
        I("buffer_load_dwordx4", vr(vT6), sr(rWB, 4), sr(sT2), mods="offen nt lds")
        self.a.label(skip)

    def check_all_counters(self):
        a, I = self.a, self.I
        lp, ok = self.L("CA"), self.L("CAOK")
        I("s_mov_b32", sr(sSpin), SPIN_MAX)
        I("v_and_b32", vr(vT5), 31, vr(vLane)); I("v_lshlrev_b32", vr(vT5), 2, vr(vT5))
        a.label(lp)
        I("buffer_load_dword", vr(vT6), vr(vT5), sr(rDBG, 4), 0, mods="offen sc1")
        I("s_waitcnt", "vmcnt(0)")
        I("v_cmp_gt_u32", "vcc", 8, vr(vT6))
        I("s_cbranch_vccz", ok)
        I("s_sub_u32", sr(sSpin), sr(sSpin), 1)
        I("s_cbranch_scc0", lp)
        a.label(ok)

    def tail(self, lab_exit_wait):
        a, I = self.a, self.I
        if self.late_wo == 99 and self.wsplit < 4: self.wo_dma()
        self.ffn_dma()
        lab_ffn, lab_red = self.L("FFN"), self.L("RED")
        I("s_cmp_eq_u32", sr(sRole), 0)
        I("s_cbranch_scc1", "L_FIN")
        I("s_cmp_eq_u32", sr(sRole), 3)
        I("s_cbranch_scc1", lab_red)
        I("s_cmp_eq_u32", sr(sRole), 1)
        I("s_cbranch_scc0", lab_ffn)
        self.wo_stage()
        a.label(lab_ffn)
        self.ffn_stage()
        I("s_branch", "L_FIN")
        a.label(lab_red)
        I("s_cmp_eq_u32", sr(sW), 0)
        I("s_cbranch_scc0", "L_FIN")
        self.reducer()
        I("s_branch", "L_FIN")
        a.label(lab_exit_wait)
        if self.late_wo == 99:
            lab_ws2 = self.L("WSP2")
            I("s_cmp_ge_u32", sr(sW), self.wsplit)
            I("s_cbranch_scc0", lab_ws2)
            self.wo_dma()
            a.label(lab_ws2)
        self.ffn_dma()
        I("s_cmp_eq_u32", sr(sRole), 0)
        I("s_cbranch_scc1", "L_FIN")
        I("s_cmp_eq_u32", sr(sRole), 3)
        I("s_cbranch_scc1", "L_FIN")
        I("s_waitcnt", "vmcnt(0)")
        I("s_barrier")
        I("s_branch", "L_FIN")

    def dry_top(self):
        top = self.L("TOP")
        self.I("s_mov_b32", sr(sDry), 1 if self.dry else 0)
        self.a.label(top)
        return top
    def skip_if_dry(self):
        lab = self.L("SK")
        self.I("s_cmp_eq_u32", sr(sDry), 1)
        self.I("s_cbranch_scc1", lab)
        return lab
    def dry_end(self, top):
        lab = self.L("REAL")
        self.I("s_cmp_eq_u32", sr(sDry), 0)
        self.I("s_cbranch_scc1", lab)
        self.I("s_mov_b32", sr(sDry), 0)
        self.I("s_branch", top)
        self.a.label(lab)

    def wo_stage(self):
        a, I = self.a, self.I
        vI4, vI2 = 8, 9
        BW = 64
        vBS, vMS = 10, 11
        vAml, vAown, vAo, vAy = 40, 41, 42, 43
        ML0, O0 = 12, 44
        I("v_bfe_u32", vr(vBS), vr(vC), 2, 1); I("v_and_b32", vr(vMS), 3, vr(vC))
        I("v_lshlrev_b32", vr(vAml), 10, vr(vBS))
        I("v_lshl_add_u32", vr(vAown), vr(vMS), 3, vr(vAml))
        I("s_lshl_b32", sr(sU0), sr(sHW), 5); I("s_add_u32", sr(sU0), sr(sU0), hex(ML))
        I("v_lshlrev_b32", vr(vAo), 16, vr(vBS))
        I("v_lshl_add_u32", vr(vAo), vr(vMS), 9, vr(vAo))
        I("v_lshl_add_u32", vr(vAo), vr(vG), 5, vr(vAo))
        I("s_lshl_b32", sr(sU1), sr(sHW), 11)
        I("s_lshl_b32", sr(sT1), sr(sB), 8)
        I("s_add_u32", sr(sU1), sr(sU1), sr(sT1)); I("s_add_u32", sr(sU1), sr(sU1), hex(OPART))
        def loads():
            for k in range(4):
                I("buffer_load_dwordx4", vr(O0 + 4 * k, 4), vr(vAo), sr(rWS, 4), sr(sU1), mods=f"offen offset:{(k >> 1) * 128 + (k & 1) * 16} sc1")
            I("buffer_load_dwordx4", vr(ML0, 4), vr(vAml), sr(rWS, 4), sr(sU0), mods="offen sc1")
            I("buffer_load_dwordx4", vr(ML0 + 4, 4), vr(vAml), sr(rWS, 4), sr(sU0), mods="offen offset:16 sc1")
            I("buffer_load_dwordx2", vr(ML0 + 8, 2), vr(vAown), sr(rWS, 4), sr(sU0), mods="offen sc1")
        loads()
        I("v_lshrrev_b32", vr(vI4), 2, vr(vC)); I("v_and_b32", vr(vI2), 3, vr(vC))
        I("v_lshl_add_u32", vr(vT5), vr(vG), 3, vr(vI4))
        I("s_movk_i32", sr(sT0), WROW)
        I("v_mul_lo_u32", vr(vT5), vr(vT5), sr(sT0))
        I("v_lshl_add_u32", vr(vT5), vr(vI2), 3, vr(vT5))
        I("s_lshl_b32", sr(sT0), sr(sW), 8)
        I("v_add_u32", vr(vT5), sr(sT0), vr(vT5))
        I("v_add_u32", vr(vT5), L_WB, vr(vT5))
        I("s_waitcnt", "vmcnt(7)")
        I("s_barrier")
        self.stamp(23)
        for ks in range(2):
            for tt in range(8):
                I("ds_read_b64_tr_b16", vr(BW + 32 * ks + 4 * tt, 2), vr(vT5), mods=f"offset:{32 * ks * WROW + 32 * tt}")
                I("ds_read_b64_tr_b16", vr(BW + 32 * ks + 4 * tt + 2, 2), vr(vT5), mods=f"offset:{(32 * ks + 4) * WROW + 32 * tt}")
        I("v_and_b32", vr(vAy), 1, vr(vG)); I("v_lshlrev_b32", vr(vAy), 17, vr(vAy))
        I("v_lshrrev_b32", vr(vT6), 1, vr(vG)); I("v_lshlrev_b32", vr(vT6), 12, vr(vT6))
        I("v_add_u32", vr(vAy), vr(vAy), vr(vT6))
        I("v_lshl_add_u32", vr(vAy), vr(vC), 2, vr(vAy))
        I("s_lshl_b32", sr(sU2), sr(sW), 15)
        I("s_lshl_b32", sr(sT1), sr(sF), 6); I("s_add_u32", sr(sU2), sr(sU2), sr(sT1)); I("s_add_u32", sr(sU2), sr(sU2), hex(YPART))
        I("s_mov_b32", sr(sMask), 0); I("s_mov_b32", sr(sMask + 1), -1)
        regs = list(range(ML0, ML0 + 10)) + list(range(O0, O0 + 16))
        lp, ok = self.L("POLL"), self.L("POK")
        I("s_mov_b32", sr(sSpin), SPIN_MAX)
        I("s_waitcnt", "vmcnt(0)")
        self.check_regs(regs, vT7)
        I("s_cbranch_vccz", ok)
        a.label(lp)
        loads()
        I("s_waitcnt", "vmcnt(0)")
        self.check_regs(regs, vT7)
        I("s_cbranch_vccz", ok)
        I("s_sub_u32", sr(sSpin), sr(sSpin), 1)
        I("s_cbranch_scc0", lp)
        a.label(ok)
        self.stamp(21)
        T = 22
        I("v_max3_f32", vr(T), vr(ML0), vr(ML0 + 2), vr(ML0 + 4)); I("v_max_f32", vr(T), vr(T), vr(ML0 + 6))
        for n in range(5): I("v_sub_f32", vr(T + 1 + n), vr(ML0 + 2 * n), vr(T))
        for n in range(5): I("v_mul_f32", vr(T + 1 + n), hex(LOG2E), vr(T + 1 + n))
        for n in range(5): I("v_exp_f32", vr(T + 1 + n), vr(T + 1 + n))
        I("v_mul_f32", vr(T), vr(T + 1), vr(ML0 + 1))
        I("v_fmac_f32", vr(T), vr(T + 2), vr(ML0 + 3)); I("v_fmac_f32", vr(T), vr(T + 3), vr(ML0 + 5)); I("v_fmac_f32", vr(T), vr(T + 4), vr(ML0 + 7))
        I("v_rcp_f32", vr(T), vr(T))
        I("v_mul_f32", vr(T), vr(T), vr(T + 5))
        for e in range(16): I("v_mul_f32", vr(O0 + e), vr(O0 + e), vr(T))
        for e in range(16): self.dpp("v_add_f32", O0 + e, O0 + e, O0 + e, "quad_perm:[1,0,3,2]")
        for e in range(16): self.dpp("v_add_f32", O0 + e, O0 + e, O0 + e, "quad_perm:[2,3,0,1]")
        AO = 28
        for k in range(8): I("v_cvt_pk_bf16_f32", vr(AO + k), vr(O0 + 2 * k), vr(O0 + 2 * k + 1))
        I("s_waitcnt", "lgkmcnt(0)")
        Dr = [44, 48, 52, 56, 12, 16, 20, 24]
        for tt in range(8):
            I("v_mfma_f32_16x16x32_bf16", vr(Dr[tt], 4), vr(AO, 4), vr(BW + 4 * tt, 4), 0)
        for tt in range(8):
            I("v_mfma_f32_16x16x32_bf16", vr(Dr[tt], 4), vr(AO + 4, 4), vr(BW + 32 + 4 * tt, 4), vr(Dr[tt], 4))
        for tt in range(0, 8, 2):
            I("v_cndmask_b32", vr(36 + tt // 2), vr(Dr[tt]), vr(Dr[tt + 1]), sr(sMask, 2))
        for tt in range(4): self.clamp(36 + tt)
        for tt in range(4):
            I("buffer_store_dword", vr(36 + tt), vr(vAy), sr(rWS, 4), sr(sU2), mods="offen sc1")
            if tt < 3: I("s_add_u32", sr(sU2), sr(sU2), 8192)
        self.stamp(22)
        I("s_branch", "L_FIN")

    def reduce16(self, r0, out):
        I = self.I
        I("v_permlane32_swap_b32", vr(r0), vr(r0 + 1)); I("v_permlane32_swap_b32", vr(r0 + 2), vr(r0 + 3))
        I("v_add_f32", vr(r0), vr(r0), vr(r0 + 1)); I("v_add_f32", vr(r0 + 2), vr(r0 + 2), vr(r0 + 3))
        self.swap_add(16, r0, r0 + 2, out)
        self.dpp("v_add_f32", out, out, out, "row_ror:8")
        self.dpp("v_add_f32", out, out, out, "row_ror:4")

    def reducer(self):
        a, I = self.a, self.I
        vCol, vX, vAo, vH, vA, vAh = 60, 61, 62, 63, 8, 9
        Y, S, U3 = 64, 96, 112
        self.perm_g(vT6, vT7)
        I("v_and_b32", vr(vCol), 3, vr(vLane))
        I("v_lshl_add_u32", vr(vCol), vr(vCol), 2, vr(vT6))
        I("v_lshlrev_b32", vr(vAo), 1, vr(vCol))
        I("s_lshl_b32", sr(sT0), sr(sBH), 5)
        I("buffer_load_ushort", vr(vX), vr(vAo), sr(rX, 4), sr(sT0), mods="offen")
        I("v_lshlrev_b32", vr(vA), 4, vr(vLane))
        I("v_lshlrev_b32", vr(vAh), 2, vr(vCol))
        I("s_lshl_b32", sr(sU0), sr(sBH), 12); I("s_add_u32", sr(sU0), sr(sU0), hex(YPART))
        I("s_lshl_b32", sr(sU2), sr(sBH), 6); I("s_add_u32", sr(sU2), sr(sU2), hex(HBUF))
        I("s_lshl_b32", sr(sU3), sr(sBH), 5)
        I("s_mul_i32", sr(sT0), sr(sBH), USTR); I("s_add_u32", sr(sT0), sr(sT0), hex(UPART))
        I("s_add_u32", sr(rWA), sr(pWS), sr(sT0)); I("s_addc_u32", sr(rWA + 1), sr(pWS + 1), 0)
        I("s_mov_b32", sr(rWA + 2), NF * 64); I("s_mov_b32", sr(rWA + 3), "0x20000")
        def loads():
            for k in range(4):
                I("buffer_load_dwordx4", vr(Y + 4 * k, 4), vr(vA), sr(rWS, 4), sr(sU0), mods=f"offen offset:{k * 1024} sc1")
        self.poll(loads, 4, range(Y, Y + 16))
        self.stamp(12)
        I("s_waitcnt", "vmcnt(0)")
        I("v_lshlrev_b32", vr(vX), 16, vr(vX))
        for e in range(4):
            I("v_add_f32", vr(S + e), vr(Y + e), vr(Y + 4 + e)); I("v_add_f32", vr(S + 4 + e), vr(Y + 8 + e), vr(Y + 12 + e))
        for e in range(4): I("v_add_f32", vr(S + e), vr(S + e), vr(S + 4 + e))
        self.reduce16(S, vH)
        I("v_cvt_pk_bf16_f32", vr(vH), vr(vH), vr(vH))
        I("v_lshlrev_b32", vr(vH), 16, vr(vH))
        I("v_add_f32", vr(vH), vr(vH), vr(vX))
        I("v_cvt_pk_bf16_f32", vr(vH), vr(vH), vr(vH))
        I("v_lshlrev_b32", vr(vH), 16, vr(vH))
        self.clamp(12, vH)
        self.execm("0x000f000f", "0x000f000f")
        I("buffer_store_dword", vr(12), vr(vAh), sr(rWS, 4), sr(sU2), mods="offen sc1")
        self.execall()
        self.stamp(13)
        I("s_mov_b32", sr(sMask), 0); I("s_mov_b32", sr(sMask + 1), "0xfffff000")
        def loads3():
            for k in range(3):
                I("buffer_load_dwordx4", vr(U3 + 4 * k, 4), vr(vA), sr(rWA, 4), 0, mods=f"offen offset:{k * 1024} sc1")
        if self.tags:
            lp, ok = self.L("POLL"), self.L("POK")
            I("s_mov_b32", sr(sSpin), SPIN_MAX)
            a.label(lp)
            loads3()
            I("s_waitcnt", "vmcnt(0)")
            for k in range(4):
                I("v_cndmask_b32", vr(U3 + 8 + k), vr(U3 + 8 + k), vr(vTag), sr(sMask, 2))
            self.check_regs(list(range(U3, U3 + 12)), vT7)
            I("s_cbranch_vccz", ok)
            I("s_sub_u32", sr(sSpin), sr(sSpin), 1)
            I("s_cbranch_scc0", lp)
            a.label(ok)
        else:
            self.poll(loads3, 3, range(U3, U3 + 12))
        self.stamp(14)
        for e in range(4):
            I("v_add_f32", vr(S + e), vr(U3 + e), vr(U3 + 4 + e))
        for e in range(4): I("v_add_f32", vr(S + e), vr(S + e), vr(U3 + 8 + e))
        self.reduce16(S, 12)
        I("v_cvt_pk_bf16_f32", vr(12), vr(12), vr(12))
        I("v_lshlrev_b32", vr(12), 16, vr(12))
        I("v_add_f32", vr(12), vr(12), vr(vH))
        I("v_cvt_pk_bf16_f32", vr(12), vr(12), vr(12))
        self.execm("0x000f000f", "0x000f000f")
        I("buffer_store_short", vr(12), vr(vAo), sr(rOUT, 4), sr(sU3), mods="offen")
        self.execall()
        if self.tags:
            lab_ne = self.L("NEP")
            I("s_cmp_eq_u32", sr(sBH), 0)
            I("s_cbranch_scc0", lab_ne)
            I("v_mov_b32", vr(13), sr(sEp)); I("v_mov_b32", vr(14), 0)
            I("s_mov_b32", sr(sT0), hex(EPOCH))
            I("s_mov_b64", "exec", 1)
            I("buffer_store_dword", vr(13), vr(14), sr(rWS, 4), sr(sT0), mods="offen sc1")
            self.execall()
            a.label(lab_ne)
        if self.dbgtime:
            I("s_memrealtime", "s[12:13]")
            I("s_waitcnt", "lgkmcnt(0)")
            I("s_sub_u32", sr(sT1), sr(sT1), "s38")
            I("v_mov_b32", vr(12), sr(sT1)); I("v_mov_b32", vr(vT6), 0)
            I("s_lshl_b32", sr(sT0), sr(sBH), 2)
            I("s_mov_b64", "exec", 1)
            I("buffer_store_dword", vr(12), vr(vT6), sr(rDBG, 4), sr(sT0), mods="offen")
            self.execall()
        self.stamp(15)

    def ffn_stage(self):
        a, I = self.a, self.I
        if self.stop in ("y", "h"):
            I("s_waitcnt", "vmcnt(0)"); I("s_barrier"); return
        vI4, vI2 = 8, 9
        B1, B2 = 64, 96
        I("s_waitcnt", "vmcnt(0)")
        I("s_barrier")
        I("v_lshrrev_b32", vr(vI4), 2, vr(vC)); I("v_and_b32", vr(vI2), 3, vr(vC))
        I("v_lshl_add_u32", vr(vT5), vr(vG), 3, vr(vI4)); I("v_lshlrev_b32", vr(vT5), 6, vr(vT5))
        I("v_lshl_add_u32", vr(vT5), vr(vI2), 3, vr(vT5))
        I("s_lshl_b32", sr(sT0), sr(sW), 13)
        I("v_add_u32", vr(vT5), sr(sT0), vr(vT5))
        for ks in range(4):
            for nt in range(2):
                o = L_WB + ks * 2048 + nt * 32
                I("ds_read_b64_tr_b16", vr(B1 + 8 * ks + 4 * nt, 2), vr(vT5), mods=f"offset:{o}")
                I("ds_read_b64_tr_b16", vr(B1 + 8 * ks + 4 * nt + 2, 2), vr(vT5), mods=f"offset:{o + 256}")
        I("v_lshl_add_u32", vr(vT6), vr(vG), 3, vr(vI4))
        I("s_movk_i32", sr(sT0), WROW)
        I("v_mul_lo_u32", vr(vT6), vr(vT6), sr(sT0))
        I("v_lshl_add_u32", vr(vT6), vr(vI2), 3, vr(vT6))
        I("s_lshl_b32", sr(sT0), sr(sW), 8)
        I("v_add_u32", vr(vT6), sr(sT0), vr(vT6))
        I("v_add_u32", vr(vT6), L_W2, vr(vT6))
        for tt in range(8):
            I("ds_read_b64_tr_b16", vr(B2 + 4 * tt, 2), vr(vT6), mods=f"offset:{32 * tt}")
            I("ds_read_b64_tr_b16", vr(B2 + 4 * tt + 2, 2), vr(vT6), mods=f"offset:{4 * WROW + 32 * tt}")
        vAh, vAhw, vAhr, vAuw, vAur, vAaw, vAar, vAo = 10, 11, 52, 53, 54, 55, 56, 57
        I("v_lshlrev_b32", vr(vAh), 5, vr(vLane))
        I("s_mov_b32", sr(sU0), hex(HBUF))
        I("v_lshlrev_b32", vr(vAhw), 4, vr(vLane)); I("s_lshl_b32", sr(sT0), sr(sW), 11); I("v_add_u32", vr(vAhw), sr(sT0), vr(vAhw))
        I("v_bfe_u32", vr(vT7), vr(vC), 2, 1)
        I("v_lshlrev_b32", vr(vAhr), 10, vr(vT7)); I("v_lshl_add_u32", vr(vAhr), vr(vG), 4, vr(vAhr))
        I("s_mul_i32", sr(sT0), sr(sW), 2048 + 256); I("v_add_u32", vr(vAhr), sr(sT0), vr(vAhr))
        I("v_and_b32", vr(vAuw), 1, vr(vG)); I("v_lshlrev_b32", vr(vAuw), 7, vr(vAuw))
        I("v_lshrrev_b32", vr(vT5), 1, vr(vG)); I("v_lshl_add_u32", vr(vAuw), vr(vT5), 6, vr(vAuw))
        I("v_lshl_add_u32", vr(vAuw), vr(vC), 2, vr(vAuw))
        I("s_lshl_b32", sr(sT0), sr(sW), 8); I("v_add_u32", vr(vAuw), sr(sT0), vr(vAuw))
        I("v_lshlrev_b32", vr(vAur), 2, vr(vLane))
        I("s_lshl_b32", sr(sT0), sr(sW), 7)
        I("v_lshlrev_b32", vr(vAaw), 1, vr(vLane)); I("v_add_u32", vr(vAaw), sr(sT0), vr(vAaw))
        I("v_lshlrev_b32", vr(vAar), 6, vr(vT7)); I("v_lshl_add_u32", vr(vAar), vr(vG), 4, vr(vAar)); I("v_add_u32", vr(vAar), sr(sT0), vr(vAar))
        I("v_and_b32", vr(vAo), 1, vr(vG)); I("s_mov_b32", sr(sT0), 32 * USTR); I("v_mul_lo_u32", vr(vAo), vr(vAo), sr(sT0))
        I("v_lshrrev_b32", vr(vT6), 1, vr(vG)); I("s_movk_i32", sr(sT0), USTR); I("v_mul_lo_u32", vr(vT6), vr(vT6), sr(sT0))
        I("v_add_u32", vr(vAo), vr(vAo), vr(vT6))
        I("v_lshl_add_u32", vr(vAo), vr(vC), 2, vr(vAo))
        I("s_mul_i32", sr(sU1), sr(sW), 8 * USTR)
        I("s_lshl_b32", sr(sT1), sr(sF), 6); I("s_add_u32", sr(sU1), sr(sU1), sr(sT1)); I("s_add_u32", sr(sU1), sr(sU1), hex(UPART))
        I("s_mov_b32", sr(sMask), 0); I("s_mov_b32", sr(sMask + 1), -1)
        I("s_waitcnt", "lgkmcnt(0)")
        H0, H1 = 12, 20
        top = self.dry_top()
        sk = self.skip_if_dry()
        def loads():
            I("buffer_load_dwordx4", vr(H0, 4), vr(vAh), sr(rWS, 4), sr(sU0), mods="offen sc1")
            I("buffer_load_dwordx4", vr(H0 + 4, 4), vr(vAh), sr(rWS, 4), sr(sU0), mods="offen offset:16 sc1")
            I("buffer_load_dwordx4", vr(H1, 4), vr(vAh), sr(rWS, 4), sr(sU0), mods="offen offset:2048 sc1")
            I("buffer_load_dwordx4", vr(H1 + 4, 4), vr(vAh), sr(rWS, 4), sr(sU0), mods="offen offset:2064 sc1")
        self.poll(loads, 4, range(12, 28))
        a.label(sk)
        self.stamp(9)
        A1, A2, B1s, B2s = 28, 29, 30, 31
        I("v_add_f32", vr(A1), vr(H0), vr(H0 + 1)); I("v_add_f32", vr(B1s), vr(H1), vr(H1 + 1))
        I("v_mul_f32", vr(A2), vr(H0), vr(H0)); I("v_mul_f32", vr(B2s), vr(H1), vr(H1))
        I("v_fmac_f32", vr(A2), vr(H0 + 1), vr(H0 + 1)); I("v_fmac_f32", vr(B2s), vr(H1 + 1), vr(H1 + 1))
        for e in range(2, 8):
            I("v_add_f32", vr(A1), vr(A1), vr(H0 + e)); I("v_add_f32", vr(B1s), vr(B1s), vr(H1 + e))
            I("v_fmac_f32", vr(A2), vr(H0 + e), vr(H0 + e)); I("v_fmac_f32", vr(B2s), vr(H1 + e), vr(H1 + e))
        self.wave_reduce63("v_add_f32", [A1, A2, B1s, B2s])
        for (r, s) in ((A1, sT0), (A2, sT1), (B1s, sT2), (B2s, sT3)):
            I("v_readlane_b32", sr(s), vr(r), 63)
        M0, M1, R0, R1, T0, T1 = 28, 29, 30, 31, 32, 33
        self.ln_scalars(sT0, sT1, sT2, sT3, M0, M1, R0, R1, T0, T1)
        I("v_mul_f32", vr(M0), vr(M0), vr(R0)); I("v_mul_f32", vr(M1), vr(M1), vr(R1))
        HN = 36
        for e in range(8):
            I("v_fma_f32", vr(HN + e), vr(H0 + e), vr(R0), f"-{vr(M0)}")
            I("v_fma_f32", vr(HN + 8 + e), vr(H1 + e), vr(R1), f"-{vr(M1)}")
        for k in range(8):
            I("v_cvt_pk_bf16_f32", vr(HN + k), vr(HN + 2 * k), vr(HN + 2 * k + 1))
        I("ds_write_b128", vr(vAhw), vr(HN, 4), mods=f"offset:{L_HN}")
        I("ds_write_b128", vr(vAhw), vr(HN + 4, 4), mods=f"offset:{L_HN + 1024}")
        I("s_waitcnt", "lgkmcnt(0)")
        for ks in range(4):
            I("ds_read_b128", vr(HN + 4 * ks, 4), vr(vAhr), mods=f"offset:{L_HN + ks * 64}")
        I("s_waitcnt", "lgkmcnt(0)")
        D0, D1 = 28, 32
        for ks in range(4):
            I("v_mfma_f32_16x16x32_bf16", vr(D0, 4), vr(HN + 4 * ks, 4), vr(B1 + 8 * ks, 4), (0 if ks == 0 else vr(D0, 4)))
            I("v_mfma_f32_16x16x32_bf16", vr(D1, 4), vr(HN + 4 * ks, 4), vr(B1 + 8 * ks + 4, 4), (0 if ks == 0 else vr(D1, 4)))
        I("v_cndmask_b32", vr(D0), vr(D0), vr(D1), sr(sMask, 2))
        I("ds_write_b32", vr(vAuw), vr(D0), mods=f"offset:{L_UP}")
        I("s_waitcnt", "lgkmcnt(0)")
        I("s_barrier")
        for w in range(4):
            I("ds_read_b32", vr(28 + w), vr(vAur), mods=f"offset:{L_UP + w * 256}")
        I("s_waitcnt", "lgkmcnt(0)")
        I("v_add_f32", vr(28), vr(28), vr(29)); I("v_add_f32", vr(30), vr(30), vr(31))
        I("v_add_f32", vr(28), vr(28), vr(30))
        I("v_cvt_pk_bf16_f32", vr(29), vr(28), vr(28))
        I("v_lshlrev_b32", vr(28), 16, vr(29))
        I("v_mul_f32", vr(29), "0xbfb8aa3b", vr(28))
        I("v_exp_f32", vr(29), vr(29))
        I("v_add_f32", vr(29), 1.0, vr(29))
        I("v_rcp_f32", vr(29), vr(29))
        I("v_mul_f32", vr(28), vr(28), vr(29))
        I("v_cvt_pk_bf16_f32", vr(28), vr(28), vr(28))
        I("ds_write_b16", vr(vAaw), vr(28), mods=f"offset:{L_ACT}")
        I("s_waitcnt", "lgkmcnt(0)")
        I("ds_read_b128", vr(28, 4), vr(vAar), mods=f"offset:{L_ACT}")
        I("s_waitcnt", "lgkmcnt(0)")
        self.stamp(10)
        DD = 32
        assert DD + 20 <= vAhr
        I("s_waitcnt", "vmcnt(0)")
        Dregs = [12, 16, 20, 24, 36, 40, 44, 48]
        for tt in range(8):
            I("v_mfma_f32_16x16x32_bf16", vr(Dregs[tt], 4), vr(28, 4), vr(B2 + 4 * tt, 4), 0)
        for tt in range(0, 8, 2):
            I("v_cndmask_b32", vr(32 + tt // 2), vr(Dregs[tt]), vr(Dregs[tt + 1]), sr(sMask, 2))
        for tt in range(4): self.clamp(32 + tt)
        lab_nb = self.L("NB")
        I("s_cmp_eq_u32", sr(sDry), 0)
        I("s_cbranch_scc1", lab_nb)
        I("s_barrier")
        a.label(lab_nb)
        self.dry_end(top)
        for tt in range(4):
            I("buffer_store_dword", vr(32 + tt), vr(vAo), sr(rWS, 4), sr(sU1), mods="offen sc1")
            if tt < 3: I("s_add_u32", sr(sU1), sr(sU1), 2 * USTR)
        self.stamp(11)

    def finish(self):
        a, I = self.a, self.I
        a.label("L_FIN")
        if self.stamps:
            self.stamp(20)
            self.execall()
            I("s_lshl_b32", sr(sT0), "s2", 4); I("s_add_u32", sr(sT0), sr(sT0), sr(sW)); I("s_lshl_b32", sr(sT0), sr(sT0), 8)
            I("s_add_u32", sr(sT0), sr(sT0), hex(STAMP))
            I("v_lshlrev_b32", vr(vT5), 2, vr(vLane))
            I("buffer_store_dword", "v0", vr(vT5), sr(rWS, 4), sr(sT0), mods="offen")
        a.label("L_END")
        return self.wrap()

    def wrap(self):
        body = self.a.text()
        hdr = open("sequential_preLN__mha_block_cached__dense_activation_silu__decode.s.ref").read().split("\n")
        top = [l for l in hdr if l.startswith(";") and "@launch" not in l and "Override" not in l and "grid=ceil" not in l][:12]
        out = "\n".join(top) + "\n"
        out += f"; @launch grid=(256,1,1) block=(1024,1,1) lds={LDS_SIZE}\n"
        out += f""".amdgcn_target "amdgcn-amd-amdhsa--gfx950"
.text
.globl {KN}
.p2align 8
.type {KN},@function
{KN}:
{body}  s_endpgm
.section .rodata,"a"
.p2align 6
.amdhsa_kernel {KN}
  .amdhsa_next_free_vgpr 128
  .amdhsa_next_free_sgpr 102
  .amdhsa_accum_offset 128
  .amdhsa_group_segment_fixed_size 0
  .amdhsa_kernarg_size 88
  .amdhsa_user_sgpr_count 2
  .amdhsa_user_sgpr_kernarg_segment_ptr 1
  .amdhsa_system_sgpr_workgroup_id_x 1
.end_amdhsa_kernel
"""
        return out

if __name__ == "__main__":
    kw = {}
    for x in sys.argv[2:]:
        k, v = x.split("=")
        kw[k] = int(v) if v.lstrip("-").isdigit() and k != "prios" else v
    g = Gen(**kw)
    open(sys.argv[1], "w").write(g.build())
    print("nops inserted:", g.a.nops, "lines", len(g.a.lines))
```

```python
import sys
from asmlib import Asm, vr, sr

KN = "sequential_preLN__mha_block_cached__dense_activation_silu__decode_kernel"

ML    = 0x040000
OPART = 0x050000
YPART = 0x080000
HBUF  = 0x100000
UPART = 0x110000
USTR  = 48 * 64
NF    = 43
EPOCH = 0x030000
TAGM = 0x3FF
STAMP = 0x200000
WSSZ  = 0x400000
L_QP = 0
L_OP = 0
L_QB = 8192
L_ML = 8192 + 256
L_CNT = 8192 + 256 + 128
L_QCNT = L_CNT + 4
L_FQ = L_CNT + 8
L_UP = 8192 + 512
L_ACT = 8192 + 512 + 1024
L_HN = 8192 + 2048 + 1024
L_WB = 20480
L_W2 = L_WB + 32768
L_XN = L_WB
WROW = 1056
LDS_SIZE = L_WB + 64 * WROW + 256

LOG2E = 0x3FB8AA3B
SCALE = 0x3DB504F3
SPIN_MAX = 400000
OOB = 0x40000000

sW, sE, sHalf, sBH, sB, sH, sM = 3, 4, 5, 6, 7, 8, 9
sDry = 10
sT0, sT1, sT2, sT3, sT4 = 11, 12, 13, 14, 15
pX, pK, pV, pWQ, pWO, pBX, pW1, pW2, pOUT, pDBG, pWS = 16, 18, 20, 22, 24, 26, 28, 30, 32, 34, 36
sRB = 26
sRole = 27
sHW = 101
rK, rV, rWS, rX, rWQ, rWA, rWB, rOUT, rDBG = 40, 44, 48, 52, 56, 60, 64, 68, 72
sOFF = 76
sN = 93
sSpin = 94
sF = 95
sMask = 96
sU0, sU1, sU2, sU3 = 98, 99, 100, 101
sStamp0 = 38
sEp = 10
sTagM = 76
rT1 = 16
vLane, vC, vG, vKV = 1, 2, 3, 4
vT5, vT6, vT7 = 5, 6, 7
vTag = 4
vCk0, vCk1 = 5, 6
vQ = 8
vD = 12
vS, vS2 = 16, 17
vACC = 20
DATA0 = 28
def kslot(i): return DATA0 + 4 * i
def vslot(i):
    if i < 8: return DATA0 + 4 * (17 + i)
    return DATA0 + 4 * (i - 8)

class Gen:
    def __init__(self, stamps=0, stop=None, skew=0, npre=2, dbgtime=0, nowq=0, prios="32111", nodma=0, noinv=0,
                 dry=0, pipe=0, wqflag="", late_wo=99, earlybar=1, npre2=15, hshift=8, map=0, pat=1, kfirst=1, t1test=0, touch=0, noq=0, bw=4, tags=1, wsplit=16, fearly=0, wo_at=0):
        self.a = Asm()
        self.stamps, self.stop, self.skew, self.npre, self.dbgtime = stamps, stop, skew, npre, dbgtime
        self.nowq, self.nodma, self.noinv, self.dry, self.pipe = nowq, nodma, noinv, dry, pipe
        self.prios = [int(c) for c in str(prios).zfill(5)]
        self.wqflag = wqflag
        self.late_wo = late_wo
        self.earlybar = earlybar
        self.npre2 = npre2
        self.hshift = hshift
        self.map = map
        self.pat = pat
        self.kfirst = kfirst
        self.t1test = t1test
        self.touch = touch
        self.noq = noq
        self.bw = bw
        self.tags = tags
        self.wsplit = wsplit
        self.fearly = fearly
        self.wo_at = wo_at
        self.nslot = 17 if skew else 16
        self.issued = []
        self.lab = 0
        self.wo_done = False

    def L(self, p="L"):
        self.lab += 1
        return f"{p}_{self.lab}"
    def I(self, *a, **k): self.a.I(*a, **k)

    def stamp(self, k):
        if not self.stamps: return
        if k == 0:
            self.I("s_memrealtime", sr(sStamp0, 2)); return
        if k == 1:
            self.I("s_waitcnt", "lgkmcnt(0)")
            self.I("v_mov_b32", "v0", 0)
            self.I("v_writelane_b32", "v0", sr(sStamp0), 0)
            self.I("v_writelane_b32", "v0", "s94", 19)
        self.I("s_memrealtime", sr(sStamp0, 2))
        self.I("s_waitcnt", "lgkmcnt(0)")
        self.I("v_writelane_b32", "v0", sr(sStamp0), k)

    def csel(self, dst, x, y):
        self.I("s_mov_b32", sr(dst), x)
        self.I("s_cselect_b32", sr(dst), sr(dst), y)
    def exec63(self):
        self.I("s_mov_b32", "exec_lo", 0); self.I("s_mov_b32", "exec_hi", "0x80000000")
    def execm(self, lo, hi):
        self.I("s_mov_b32", "exec_lo", lo); self.I("s_mov_b32", "exec_hi", hi)
    def execall(self): self.I("s_mov_b64", "exec", -1)

    def srd(self, r, plo, size, addoff=None):
        I = self.I
        if addoff is None:
            I("s_mov_b32", sr(r), sr(plo)); I("s_mov_b32", sr(r + 1), sr(plo + 1))
        else:
            I("s_add_u32", sr(r), sr(plo), addoff); I("s_addc_u32", sr(r + 1), sr(plo + 1), 0)
        I("s_mov_b32", sr(r + 2), size); I("s_mov_b32", sr(r + 3), "0x20000")

    def vm(self, tag, op, *ops, mods=""):
        self.I(op, *ops, mods=mods)
        self.issued.append(tag)
    def wait_vm(self, tag):
        idx = self.issued.index(tag)
        n = len(self.issued) - 1 - idx
        self.I("s_waitcnt", f"vmcnt({min(n, 63)})")

    def dpp(self, op, d, s0, s1, ctrl, rm="0xf"):
        self.I(op + "_dpp", vr(d), vr(s0), vr(s1), mods=f"{ctrl} row_mask:{rm} bank_mask:0xf")
    def row_reduce(self, op, regs):
        for sh in (8, 4, 2, 1):
            for r in regs: self.dpp(op, r, r, r, f"row_ror:{sh}")
    def wave_reduce63(self, op, regs):
        self.row_reduce(op, regs)
        for r in regs: self.dpp(op, r, r, r, "row_bcast:15", "0xa")
        for r in regs: self.dpp(op, r, r, r, "row_bcast:31", "0xc")
    def swap_add(self, which, a, b, d, op="v_add_f32"):
        self.I(f"v_permlane{which}_swap_b32", vr(a), vr(b))
        self.I(op, vr(d), vr(a), vr(b))
    def unpack(self, lo, hi, src):
        self.I("v_lshlrev_b32", vr(lo), 16, vr(src))
        self.I("v_and_b32", vr(hi), "0xffff0000", vr(src))
    def clamp(self, r, src=None):
        src = r if src is None else src
        if self.tags:
            self.I("v_and_or_b32", vr(r), vr(src), sr(sTagM), vr(vTag))
        else:
            self.I("v_min_u32", vr(r), -2, vr(src))
    def perm_g(self, d, t):
        I = self.I
        I("v_and_b32", vr(d), 1, vr(vG)); I("v_lshlrev_b32", vr(d), 1, vr(d))
        I("v_lshrrev_b32", vr(t), 1, vr(vG)); I("v_or_b32", vr(d), vr(d), vr(t))

    def check_regs(self, regs, t, t2=None):
        I = self.I
        rs = list(regs)
        if self.tags:
            for r in rs: I("v_xor_b32", vr(r), vr(vTag), vr(r))
            first = True
            while rs:
                if first:
                    if len(rs) >= 3:
                        I("v_or3_b32", vr(t), vr(rs[0]), vr(rs[1]), vr(rs[2])); rs = rs[3:]
                    elif len(rs) == 2:
                        I("v_or_b32", vr(t), vr(rs[0]), vr(rs[1])); rs = rs[2:]
                    else:
                        I("v_mov_b32", vr(t), vr(rs[0])); rs = rs[1:]
                    first = False
                elif len(rs) >= 2:
                    I("v_or3_b32", vr(t), vr(t), vr(rs[0]), vr(rs[1])); rs = rs[2:]
                else:
                    I("v_or_b32", vr(t), vr(t), vr(rs[0])); rs = rs[1:]
            I("v_and_b32", vr(t), hex(TAGM), vr(t))
            I("v_cmp_ne_u32", "vcc", 0, vr(t))
            return
        if len(rs) == 1:
            I("v_cmp_eq_u32", "vcc", -1, vr(rs[0])); return
        first = True
        while rs:
            if first:
                if len(rs) >= 3:
                    I("v_max3_u32", vr(t), vr(rs[0]), vr(rs[1]), vr(rs[2])); rs = rs[3:]
                else:
                    I("v_max_u32", vr(t), vr(rs[0]), vr(rs[1])); rs = rs[2:]
                first = False
            elif len(rs) >= 2:
                I("v_max3_u32", vr(t), vr(t), vr(rs[0]), vr(rs[1])); rs = rs[2:]
            else:
                I("v_max_u32", vr(t), vr(t), vr(rs[0])); rs = rs[1:]
        I("v_cmp_eq_u32", "vcc", -1, vr(t))

    def poll(self, loads, nloads, regs, t=vT7):
        I = self.I
        lp, ok = self.L("POLL"), self.L("POK")
        I("s_mov_b32", sr(sSpin), SPIN_MAX)
        if self.pipe: loads()
        self.a.label(lp)
        loads()
        I("s_waitcnt", f"vmcnt({nloads if self.pipe else 0})")
        self.check_regs(regs, t)
        I("s_cbranch_vccz", ok)
        I("s_sub_u32", sr(sSpin), sr(sSpin), 1)
        I("s_cbranch_scc0", lp)
        self.a.label(ok)

    def ln_scalars(self, s10, s20, s11, s21, vm0, vm1, vr0, vr1, t0, t1):
        I = self.I
        inv = "0x3b000000"
        I("v_mov_b32", vr(vm0), sr(s10)); I("v_mov_b32", vr(vm1), sr(s11))
        I("v_mov_b32", vr(vr0), sr(s20)); I("v_mov_b32", vr(vr1), sr(s21))
        for r in (vm0, vm1, vr0, vr1): I("v_mul_f32", vr(r), inv, vr(r))
        I("v_fma_f32", vr(vr0), f"-{vr(vm0)}", vr(vm0), vr(vr0))
        I("v_fma_f32", vr(vr1), f"-{vr(vm1)}", vr(vm1), vr(vr1))
        I("v_max_f32", vr(vr0), 0, vr(vr0)); I("v_max_f32", vr(vr1), 0, vr(vr1))
        I("v_cvt_pk_bf16_f32", vr(t0), vr(vm0), vr(vm1))
        I("v_cvt_pk_bf16_f32", vr(t1), vr(vr0), vr(vr1))
        self.unpack(vm0, vm1, t0)
        self.unpack(vr0, vr1, t1)
        I("v_add_f32", vr(vr0), "0x3727c5ac", vr(vr0)); I("v_add_f32", vr(vr1), "0x3727c5ac", vr(vr1))
        I("v_cvt_pk_bf16_f32", vr(t1), vr(vr0), vr(vr1))
        self.unpack(vr0, vr1, t1)
        I("v_sqrt_f32", vr(vr0), vr(vr0)); I("v_sqrt_f32", vr(vr1), vr(vr1))
        I("v_cvt_pk_bf16_f32", vr(t1), vr(vr0), vr(vr1))
        self.unpack(vr0, vr1, t1)
        I("v_rcp_f32", vr(vr0), vr(vr0)); I("v_rcp_f32", vr(vr1), vr(vr1))

    def ln_scalars1(self, s1, s2, vm0, vr0, t0):
        I = self.I
        inv = "0x3b000000"
        I("v_mov_b32", vr(vm0), sr(s1)); I("v_mov_b32", vr(vr0), sr(s2))
        I("v_mul_f32", vr(vm0), inv, vr(vm0)); I("v_mul_f32", vr(vr0), inv, vr(vr0))
        I("v_fma_f32", vr(vr0), f"-{vr(vm0)}", vr(vm0), vr(vr0))
        I("v_max_f32", vr(vr0), 0, vr(vr0))
        I("v_cvt_pk_bf16_f32", vr(t0), vr(vm0), vr(vr0))
        self.unpack(vm0, vr0, t0)
        I("v_add_f32", vr(vr0), "0x3727c5ac", vr(vr0))
        I("v_cvt_pk_bf16_f32", vr(t0), vr(vr0), vr(vr0))
        I("v_lshlrev_b32", vr(vr0), 16, vr(t0))
        I("v_sqrt_f32", vr(vr0), vr(vr0))
        I("v_cvt_pk_bf16_f32", vr(t0), vr(vr0), vr(vr0))
        I("v_lshlrev_b32", vr(vr0), 16, vr(t0))
        I("v_rcp_f32", vr(vr0), vr(vr0))

    def lds_set(self, off, val_sgpr_or_imm):
        I = self.I
        I("v_mov_b32", vr(vT6), off); I("v_mov_b32", vr(vT7), val_sgpr_or_imm)
        I("ds_write_b32", vr(vT6), vr(vT7))

    def lds_wait(self, off, val, sleep=1):
        I = self.I
        lp, ok = self.L("LW"), self.L("LWOK")
        I("v_mov_b32", vr(vT6), off)
        self.a.label(lp)
        I("ds_read_b32", vr(vT7), vr(vT6))
        I("s_waitcnt", "lgkmcnt(0)")
        I("v_readfirstlane_b32", sr(sT4), vr(vT7))
        I("s_cmp_ge_u32", sr(sT4), val)
        I("s_cbranch_scc1", ok)
        if sleep: I("s_sleep", sleep)
        I("s_branch", lp)
        self.a.label(ok)

    def invalidate(self):
        I = self.I
        for k in range(4): I("v_mov_b32", vr(20 + k), -1)
        I("v_lshlrev_b32", vr(vT5), 4, vr(vLane))
        I("s_lshl_b32", sr(sT0), sr(sBH), 2); I("s_add_u32", sr(sT0), sr(sT0), sr(sM))
        I("s_lshl_b32", sr(sT1), sr(sT0), 9); I("s_add_u32", sr(sT1), sr(sT1), hex(OPART))
        I("s_lshl_b32", sr(sT2), sr(sT0), 3); I("s_add_u32", sr(sT2), sr(sT2), hex(ML))
        self.execm(-1, 0)
        I("buffer_store_dwordx4", vr(20, 4), vr(vT5), sr(rWS, 4), sr(sT1), mods="offen sc1")
        I("s_mov_b64", "exec", 1)
        I("buffer_store_dwordx2", vr(20, 2), vr(vT5), sr(rWS, 4), sr(sT2), mods="offen sc1")
        I("s_lshl_b32", sr(sT1), sr(sBH), 6); I("s_add_u32", sr(sT1), sr(sT1), hex(HBUF))
        I("s_cmp_eq_u32", sr(sRole), 3)
        I("s_cselect_b32", sr(sT1), sr(sT1), hex(OOB))
        I("s_mov_b64", "exec", 15)
        I("buffer_store_dwordx4", vr(20, 4), vr(vT5), sr(rWS, 4), sr(sT1), mods="offen sc1")
        self.execall()
        I("s_cmp_eq_u32", sr(sRole), 1)
        self.csel(sT0, 4096, USTR)
        self.csel(sT1, hex(YPART), hex(UPART))
        I("s_lshl_b32", sr(sT2), sr(sF), 6); I("s_add_u32", sr(sT1), sr(sT1), sr(sT2))
        I("s_cmp_eq_u32", sr(sRole), 0); I("s_cselect_b32", sr(sT1), hex(OOB), sr(sT1))
        I("s_cmp_eq_u32", sr(sRole), 3); I("s_cselect_b32", sr(sT1), hex(OOB), sr(sT1))
        I("v_lshrrev_b32", vr(vT6), 2, vr(vLane))
        I("v_mul_lo_u32", vr(vT6), vr(vT6), sr(sT0))
        I("v_and_b32", vr(vT7), 3, vr(vLane)); I("v_lshlrev_b32", vr(vT7), 4, vr(vT7))
        I("v_add_u32", vr(vT6), vr(vT6), vr(vT7))
        I("s_lshl_b32", sr(sT0), sr(sT0), 4)
        for k in range(4):
            I("buffer_store_dwordx4", vr(20, 4), vr(vT6), sr(rWS, 4), sr(sT1), mods="offen sc1")
            if k < 3: I("s_add_u32", sr(sT1), sr(sT1), sr(sT0))

    def roles(self):
        a, I = self.a, self.I
        self.srd(rWS, pWS, hex(WSSZ))
        self.srd(rDBG, pDBG, 256)
        self.srd(rOUT, pOUT, 2048)
        I("s_mov_b32", sr(sRole), 0)
        I("s_add_u32", sr(sHW), sr(sH), self.hshift); I("s_and_b32", sr(sHW), sr(sHW), 31)
        I("s_lshl_b32", sr(sF), sr(sHW), 1); I("s_add_u32", sr(sF), sr(sF), sr(sB))
        I("s_cmp_eq_u32", sr(sM), 0); I("s_cselect_b32", sr(sRole), 1, sr(sRole))
        I("s_cmp_eq_u32", sr(sM), 1); I("s_cselect_b32", sr(sRole), 3, sr(sRole))
        I("s_and_b32", sr(sT1), "s2", 7); I("s_lshr_b32", sr(sT1), sr(sT1), 1); I("s_lshl_b32", sr(sT1), sr(sT1), 4)
        I("s_lshr_b32", sr(sT2), "s2", 4); I("s_add_u32", sr(sT1), sr(sT1), sr(sT2))
        I("s_cmp_lt_u32", sr(sT1), NF); I("s_cselect_b32", sr(sT2), 2, 0)
        I("s_cmp_eq_u32", sr(sM), 2); I("s_cselect_b32", sr(sT2), sr(sT2), 0)
        I("s_cmp_eq_u32", sr(sT2), 2); I("s_cselect_b32", sr(sRole), 2, sr(sRole)); I("s_cselect_b32", sr(sF), sr(sT1), sr(sF))
        lab_f, lab_done = self.L("RF"), self.L("RDONE")
        I("s_cmp_eq_u32", sr(sRole), 2)
        I("s_cbranch_scc1", lab_f)
        I("s_lshl_b32", sr(sT0), sr(sF), 16)
        self.srd(rWA, pWO, (65536 if not self.nodma else 0), sr(sT0))
        self.srd(rWB, pWO, 0, sr(sT0))
        I("s_branch", lab_done)
        a.label(lab_f)
        I("s_lshl_b32", sr(sT0), sr(sF), 6)
        I("s_sub_u32", sr(sT1), hex(512 * 2752), sr(sT0))
        self.srd(rWA, pW1, sr(sT1), sr(sT0))
        I("s_lshl_b32", sr(sT0), sr(sF), 15)
        self.srd(rWB, pW2, 32768, sr(sT0))
        a.label(lab_done)

    def build(self):
        a, I = self.a, self.I
        self.stamp(0)
        if self.dbgtime: I("s_memrealtime", "s[38:39]")
        I("s_load_dwordx16", sr(16, 16), "s[0:1]", 0)
        I("s_load_dwordx4", sr(32, 4), "s[0:1]", 64)
        I("s_load_dwordx2", sr(36, 2), "s[0:1]", 80)
        I("s_cmp_ge_u32", "s2", 256)
        I("s_cbranch_scc1", "L_END")
        I("v_and_b32", vr(vLane), 63, "v0")
        I("v_lshrrev_b32", vr(vT5), 6, "v0")
        I("v_and_b32", vr(vC), 15, "v0")
        I("v_readfirstlane_b32", sr(sW), vr(vT5))
        I("v_bfe_u32", vr(vG), "v0", 4, 2)
        I("s_and_b32", sr(sT0), "s2", 7)
        I("s_lshr_b32", sr(sT1), "s2", 3)
        if self.map == 0:
            I("s_and_b32", sr(sE), sr(sT0), 1)
            I("s_lshr_b32", sr(sT0), sr(sT0), 1)
            I("s_and_b32", sr(sHalf), sr(sT1), 1)
            I("s_lshr_b32", sr(sT2), sr(sT1), 1)
            I("s_lshr_b32", sr(sB), sr(sT2), 3)
            I("s_and_b32", sr(sT2), sr(sT2), 7)
            I("s_lshl_b32", sr(sH), sr(sT0), 3); I("s_add_u32", sr(sH), sr(sH), sr(sT2))
        else:
            I("s_and_b32", sr(sE), sr(sT1), 1)
            I("s_bfe_u32", sr(sHalf), sr(sT1), "0x10001")
            I("s_bfe_u32", sr(sB), sr(sT1), "0x10002")
            I("s_lshr_b32", sr(sT2), sr(sT1), 3)
            I("s_lshl_b32", sr(sH), sr(sT0), 2); I("s_add_u32", sr(sH), sr(sH), sr(sT2))
        I("s_lshl_b32", sr(sBH), sr(sB), 5); I("s_add_u32", sr(sBH), sr(sBH), sr(sH))
        I("s_lshl_b32", sr(sM), sr(sHalf), 1); I("s_add_u32", sr(sM), sr(sM), sr(sE))
        I("v_lshlrev_b32", vr(vKV), 4, vr(vLane))
        if self.pat == 1:
            I("s_lshl_b32", sr(sT0), sr(sW), 15)
            I("v_add_u32", vr(vKV), sr(sT0), vr(vKV))
            I("s_cmp_eq_u32", sr(sE), 0)
            self.csel(sT0, 1024, -1024)
            self.csel(sN, 16 + self.skew, 16 - self.skew)
            I("s_mul_i32", sr(sOFF), sr(sE), 31744)
        else:
            I("s_cmp_eq_u32", sr(sE), 0)
            self.csel(sN, 16 + self.skew, 16 - self.skew)
            I("s_mul_i32", sr(sT0), sr(sN), sr(sW)); I("s_lshl_b32", sr(sT0), sr(sT0), 10)
            I("v_add_u32", vr(vKV), sr(sT0), vr(vKV))
            I("s_movk_i32", sr(sT0), 1024)
            I("s_mul_i32", sr(sOFF), sr(sE), 16 * (16 + self.skew) * 1024)
        for i in range(1, self.nslot):
            I("s_add_u32", sr(sOFF + i), sr(sOFF + i - 1), sr(sT0))
        if self.skew:
            for i in (15, 16):
                I("s_cmp_gt_u32", sr(sN), i)
                I("s_cselect_b32", sr(sOFF + i), sr(sOFF + i), hex(OOB))
        I("s_waitcnt", "lgkmcnt(0)")
        if self.tags: I("s_load_dword", sr(sEp), sr(pWS, 2), hex(EPOCH))
        I("s_setprio", self.prios[0])
        if not self.tags:
            lab_r1 = self.L("RL1")
            I("s_cmp_eq_u32", sr(sW), 0)
            I("s_cbranch_scc0", lab_r1)
            self.roles()
            if not self.noinv: self.invalidate()
            a.label(lab_r1)
        NP = self.npre
        XF, WQ = 8, kslot(17)
        I("s_lshl_b32", sr(sT0), sr(sBH), 20); I("s_lshl_b32", sr(sT1), sr(sHalf), 19); I("s_add_u32", sr(sT0), sr(sT0), sr(sT1))
        self.srd(rK, pK, "0x80000", sr(sT0))
        for kq in range(NP):
            self.vm(f"K{kq}", "buffer_load_dwordx4", vr(kslot(kq), 4), vr(vKV), sr(rK, 4), sr(sOFF + kq), mods="offen nt")
        if self.stamps:
            I("s_memrealtime", "s[94:95]")
        self.srd(rV, pV, "0x80000", sr(sT0))
        self.srd(rX, pX, 2048)
        I("s_lshl_b32", sr(sT0), sr(sH), 8)
        I("s_sub_u32", sr(sT1), hex(512 * 8192), sr(sT0))
        self.srd(rWQ, pWQ, sr(sT1), sr(sT0))
        if not self.tags:
            raise SystemExit("tags=0 no longer supported with this ordering")
        if self.map == 0:
            I("s_lshl_b32", sr(sT0), sr(sB), 1); I("s_add_u32", sr(sT0), sr(sT0), sr(sHalf)); I("s_lshl_b32", sr(sT0), sr(sT0), 2)
        else:
            I("s_lshr_b32", sr(sT0), "s2", 3); I("s_and_b32", sr(sT0), sr(sT0), 7); I("s_lshl_b32", sr(sT0), sr(sT0), 1)
        I("s_add_u32", sr(sT0), sr(sT0), sr(sW)); I("s_and_b32", sr(sRB), sr(sT0), 15)
        I("v_lshlrev_b32", vr(vT5), 4, vr(vLane))
        I("s_lshl_b32", sr(sT1), sr(sB), 10)
        self.vm("xf", "buffer_load_dwordx4", vr(XF, 4), vr(vT5), sr(rX, 4), sr(sT1), mods="offen")
        I("s_lshl_b32", sr(sT0), sr(sRB), 5)
        I("v_lshl_add_u32", vr(vT6), vr(vG), 1, sr(sT0))
        I("v_lshlrev_b32", vr(vT7), 13, vr(vT6))
        I("v_lshl_add_u32", vr(vT7), vr(vC), 4, vr(vT7))
        for i in range(8):
            off = (8 * (i >> 1) + (i & 1)) * 8192
            I("s_mov_b32", sr(sT2), off if not self.nowq else OOB)
            self.vm(f"wq{i}", "buffer_load_dwordx4", vr(WQ + 4 * i, 4), vr(vT7), sr(rWQ, 4), sr(sT2), mods=("offen " + self.wqflag).strip())
            if i == 1:
                I("v_lshlrev_b32", vr(vT5), 2, vr(vLane)); I("v_mov_b32", vr(vT6), 0)
                I("s_mov_b64", "exec", 15)
                I("ds_write_b32", vr(vT5), vr(vT6), mods=f"offset:{L_CNT}")
                self.execall()
                I("s_waitcnt", "lgkmcnt(0)")
                I("s_barrier")
        I("s_setprio", self.prios[1])
        nK2 = self.npre2 - NP
        if self.bw:
            lab_b = self.L("BW")
            I("s_cmp_ge_u32", sr(sW), self.bw)
            I("s_cbranch_scc1", lab_b)
        for kq in range(NP, self.npre2):
            self.vm(f"K{kq}", "buffer_load_dwordx4", vr(kslot(kq), 4), vr(vKV), sr(rK, 4), sr(sOFF + kq), mods="offen nt")
        if self.bw:
            a.label(lab_b)
        def wait_dual(tag):
            if not self.bw:
                self.wait_vm(tag); return
            idx = self.issued.index(tag)
            n = len(self.issued) - 1 - idx
            l0, l1 = self.L("WD"), self.L("WDJ")
            I("s_cmp_ge_u32", sr(sW), self.bw)
            I("s_cbranch_scc1", l0)
            I("s_waitcnt", f"vmcnt({n})")
            I("s_branch", l1)
            a.label(l0)
            I("s_waitcnt", f"vmcnt({n - nK2})")
            a.label(l1)
        self.stamp(1)
        self.roles()
        if self.touch and not self.stamps:
            lab_nt = self.L("NT")
            I("s_cmp_eq_u32", sr(sW), 1)
            I("s_cbranch_scc0", lab_nt)
            I("v_mov_b32", vr(vT5), 0)
            I("s_mov_b64", "exec", 1)
            I("s_mov_b32", sr(sT0), hex(OPART))
            I("buffer_load_dword", "v0", vr(vT5), sr(rWS, 4), sr(sT0), mods="offen sc1")
            I("buffer_load_dword", "v0", vr(vT5), sr(rWA, 4), 0, mods="offen nt")
            I("buffer_load_dword", "v0", vr(vT5), sr(rWB, 4), 0, mods="offen nt")
            I("buffer_load_dword", "v0", vr(vT5), sr(rOUT, 4), 0, mods="offen nt")
            self.execall()
            I("s_waitcnt", "vmcnt(63)")
            a.label(lab_nt)
        if self.noq:
            I("s_branch", "L_NOQ")
        I("s_mov_b32", sr(sT4), "0x3f803f80")
        wait_dual("xf")
        if not self.tags:
            lab_noat = self.L("NOAT")
            I("s_cmp_eq_u32", sr(sW), 0)
            I("s_cbranch_scc0", lab_noat)
            self.stamp(17)
            I("v_mov_b32", vr(vT5), 0); I("v_mov_b32", vr(vT6), 1)
            I("s_lshl_b32", sr(sT0), sr(sH), 2)
            I("s_mov_b64", "exec", 1)
            I("buffer_atomic_add", vr(vT6), vr(vT5), sr(rDBG, 4), sr(sT0), mods="offen sc1")
            self.execall()
            a.label(lab_noat)
        I("s_mov_b32", sr(sT4), "0x3f803f80")
        A1, A2, T0 = 22, 23, 26
        for k in range(4):
            I("v_dot2_f32_bf16", vr(A1), vr(XF + k), sr(sT4), (0 if k == 0 else vr(A1)))
            I("v_dot2_f32_bf16", vr(A2), vr(XF + k), vr(XF + k), (0 if k == 0 else vr(A2)))
        self.wave_reduce63("v_add_f32", [A1, A2])
        I("v_readlane_b32", sr(sT0), vr(A1), 63); I("v_readlane_b32", sr(sT1), vr(A2), 63)
        M0, R0 = 22, 23
        self.ln_scalars1(sT0, sT1, M0, R0, T0)
        XU = 12
        for k in range(4): self.unpack(XU + 2 * k, XU + 2 * k + 1, XF + k)
        for e in range(8): I("v_sub_f32", vr(XU + e), vr(XU + e), vr(M0))
        for k in range(4): I("v_cvt_pk_bf16_f32", vr(XF + k), vr(XU + 2 * k), vr(XU + 2 * k + 1))
        for k in range(4): self.unpack(XU + 2 * k, XU + 2 * k + 1, XF + k)
        for e in range(8): I("v_mul_f32", vr(XU + e), vr(XU + e), vr(R0))
        for k in range(4): I("v_cvt_pk_bf16_f32", vr(XF + k), vr(XU + 2 * k), vr(XU + 2 * k + 1))
        I("v_lshlrev_b32", vr(vT5), 4, vr(vLane))
        I("s_lshl_b32", sr(sT0), sr(sW), 10)
        I("v_add_u32", vr(vT5), sr(sT0), vr(vT5))
        I("ds_write_b128", vr(vT5), vr(XF, 4), mods=f"offset:{L_XN}")
        I("s_lshl_b32", sr(sT1), sr(sRB), 6); I("s_add_u32", sr(sT0), sr(sT0), sr(sT1))
        I("v_lshlrev_b32", vr(vT5), 2, vr(vG))
        I("v_add_u32", vr(vT5), sr(sT0), vr(vT5))
        I("s_waitcnt", "lgkmcnt(0)")
        for ip in range(4):
            I("ds_read_b32", vr(12 + ip), vr(vT5), mods=f"offset:{L_XN + 16 * ip}")
        P = vACC
        PT = kslot(15)
        I("s_mov_b32", sr(sT2), "0x05040100"); I("s_mov_b32", sr(sT3), "0x07060302")
        I("s_waitcnt", "lgkmcnt(0)")
        for ip in range(4):
            wait_dual(f"wq{2 * ip + 1}")
            wa, wb = WQ + 8 * ip, WQ + 8 * ip + 4
            for k in range(4):
                I("v_perm_b32", vr(PT + 2 * k), vr(wb + k), vr(wa + k), sr(sT2))
                I("v_perm_b32", vr(PT + 2 * k + 1), vr(wb + k), vr(wa + k), sr(sT3))
            for e in range(8):
                I("v_dot2_f32_bf16", vr(P + e), vr(PT + e), vr(12 + ip), (0 if ip == 0 else vr(P + e)))
        for i in range(4): I("v_permlane32_swap_b32", vr(P + 2 * i), vr(P + 2 * i + 1))
        for i in range(4): I("v_add_f32", vr(P + 2 * i), vr(P + 2 * i), vr(P + 2 * i + 1))
        for i in range(2): I("v_permlane16_swap_b32", vr(P + 4 * i), vr(P + 4 * i + 2))
        for i in range(2): I("v_add_f32", vr(8 + i), vr(P + 4 * i), vr(P + 4 * i + 2))
        self.perm_g(vT6, vT7)
        I("v_lshl_add_u32", vr(vT5), vr(vC), 3, vr(vT6))
        I("v_lshlrev_b32", vr(vT5), 2, vr(vT5))
        I("s_lshl_b32", sr(sT0), sr(sW), 9)
        I("v_add_u32", vr(vT5), sr(sT0), vr(vT5))
        I("ds_write_b32", vr(vT5), vr(8), mods=f"offset:{L_QP}")
        I("ds_write_b32", vr(vT5), vr(9), mods=f"offset:{L_QP + 16}")
        I("s_waitcnt", "lgkmcnt(0)")
        I("v_mov_b32", vr(vT6), L_QCNT); I("v_mov_b32", vr(vT7), 1)
        I("s_mov_b64", "exec", 1)
        I("ds_add_rtn_u32", vr(vT5), vr(vT6), vr(vT7))
        self.execall()
        I("s_waitcnt", "lgkmcnt(0)")
        I("v_readfirstlane_b32", sr(sT0), vr(vT5))
        self.stamp(2)
        lab_notlast = self.L("NOTLAST")
        I("s_cmp_eq_u32", sr(sT0), 15)
        I("s_cbranch_scc0", lab_notlast)
        I("v_and_b32", vr(vT5), 31, vr(vLane)); I("v_lshlrev_b32", vr(vT5), 4, vr(vT5))
        I("v_lshrrev_b32", vr(vT6), 5, vr(vLane)); I("v_lshlrev_b32", vr(vT6), 12, vr(vT6))
        I("v_add_u32", vr(vT5), vr(vT5), vr(vT6))
        RB = WQ
        for k in range(8):
            I("ds_read_b128", vr(RB + 4 * k, 4), vr(vT5), mods=f"offset:{L_QP + 512 * k}")
        I("s_waitcnt", "lgkmcnt(0)")
        for e in range(4):
            for k in (0, 2, 4, 6): I("v_add_f32", vr(RB + 4 * k + e), vr(RB + 4 * k + e), vr(RB + 4 * k + 4 + e))
        for e in range(4):
            I("v_add_f32", vr(RB + e), vr(RB + e), vr(RB + 8 + e)); I("v_add_f32", vr(RB + 16 + e), vr(RB + 16 + e), vr(RB + 24 + e))
        for e in range(4): I("v_add_f32", vr(RB + e), vr(RB + e), vr(RB + 16 + e))
        for e in range(4): I("v_mov_b32", vr(RB + 4 + e), vr(RB + e))
        for e in range(4): I("v_permlane32_swap_b32", vr(RB + e), vr(RB + 4 + e))
        for e in range(4): I("v_add_f32", vr(RB + e), vr(RB + e), vr(RB + 4 + e))
        I("v_cvt_pk_bf16_f32", vr(RB + 8), vr(RB), vr(RB + 1)); I("v_cvt_pk_bf16_f32", vr(RB + 9), vr(RB + 2), vr(RB + 3))
        I("v_and_b32", vr(vT5), 31, vr(vLane)); I("v_lshlrev_b32", vr(vT5), 3, vr(vT5))
        I("ds_write_b64", vr(vT5), vr(RB + 8, 2), mods=f"offset:{L_QB}")
        I("s_waitcnt", "lgkmcnt(0)")
        self.lds_set(L_FQ, 1)
        a.label(lab_notlast)
        if self.noq:
            a.label("L_NOQ")
            self.lds_set(L_FQ, 1)
        if self.bw:
            lab_b2 = self.L("BW2")
            I("s_cmp_ge_u32", sr(sW), self.bw)
            I("s_cbranch_scc0", lab_b2)
            I("s_setprio", self.prios[1])
            for kq in range(NP, self.npre2):
                I("buffer_load_dwordx4", vr(kslot(kq), 4), vr(vKV), sr(rK, 4), sr(sOFF + kq), mods="offen nt")
            a.label(lab_b2)
        I("s_setprio", self.prios[2])
        for i in range(self.npre2, self.nslot):
            self.vm(f"K{i}", "buffer_load_dwordx4", vr(kslot(i), 4), vr(vKV), sr(rK, 4), sr(sOFF + i), mods="offen nt")
        if self.t1test:
            I("s_lshl_b32", sr(sT0), sr(sH), 17)
            I("s_add_u32", "s84", sr(pWO), sr(sT0)) if False else None
            I("v_lshrrev_b32", vr(vT5), 2, vr(vLane)); I("v_lshlrev_b32", vr(vT5), 10, vr(vT5))
            I("v_and_b32", vr(vT6), 3, vr(vLane)); I("v_lshl_add_u32", vr(vT5), vr(vT6), 4, vr(vT5))
            I("s_lshl_b32", sr(sT1), sr(sW), 6); I("v_add_u32", vr(vT5), sr(sT1), vr(vT5))
            I("s_mov_b32", sr(sT2), 0)
            I("s_lshl_b32", sr(sT1), sr(sW), 12); I("s_add_u32", sr(sT1), sr(sT1), 20480)
            for k in range(8):
                I("s_mov_b32", "m0", sr(sT1))
                self.vm(f"T1_{k}", "buffer_load_dwordx4", vr(vT5), sr(rT1, 4), sr(sT2), mods=("offen lds" if self.t1test == 1 else "offen nt lds"))
                I("s_add_u32", sr(sT2), sr(sT2), 16 * 1024)
        if not self.kfirst:
            I("s_setprio", self.prios[3])
            for i in range(8):
                self.vm(f"V{i}", "buffer_load_dwordx4", vr(vslot(i), 4), vr(vKV), sr(rV, 4), sr(sOFF + i), mods="offen nt")
            self.stamp(16)
            self.lds_wait(L_FQ, 1)
            I("s_setprio", self.prios[4])
            self.stamp(4)
            I("v_lshlrev_b32", vr(vT5), 4, vr(vC))
            I("ds_read_b128", vr(vQ, 4), vr(vT5), mods=f"offset:{L_QB}")
            I("s_mov_b32", sr(sMask), "0x00010001"); I("s_mov_b32", sr(sMask + 1), "0x00010001")
            I("v_mov_b32", vr(vS), 0)
            I("s_waitcnt", "lgkmcnt(0)")
            groups = [[0, 1, 2, 3], [4, 5, 6, 7], [8, 9, 10, 11], [12, 13, 14], [15, 16]]
            nextv = 8
            for grp in groups:
                self.wait_vm(f"K{grp[-1]}")
                for n, i in enumerate(grp):
                    I("v_dot2_f32_bf16", vr(vD + n), vr(kslot(i)), vr(vQ), 0)
                for k in range(1, 4):
                    for n, i in enumerate(grp):
                        I("v_dot2_f32_bf16", vr(vD + n), vr(kslot(i) + k), vr(vQ + k), vr(vD + n))
                for i in grp:
                    if i <= 8 and nextv <= 16:
                        assert vslot(nextv) == kslot(i)
                        self.vm(f"V{nextv}", "buffer_load_dwordx4", vr(vslot(nextv), 4), vr(vKV), sr(rV, 4), sr(sOFF + nextv), mods="offen nt")
                        nextv += 1
                self.row_reduce("v_add_f32", [vD + n for n in range(len(grp))])
                for n, i in enumerate(grp):
                    if i < 16:
                        I("v_cndmask_b32", vr(vS), vr(vS), vr(vD + n), sr(sMask, 2))
                        if i < 15: I("s_lshl_b64", sr(sMask, 2), sr(sMask, 2), 1)
                    else:
                        I("v_mov_b32", vr(vS2), vr(vD + n))
                if nextv == 17 and not self.wo_done and not self.late_wo:
                    self.wo_dma()
        else:
            lab_qok, lab_kph, lab_vdone = self.L("QOK"), self.L("KPH"), self.L("VD")
            I("s_setprio", self.prios[3])
            I("v_mov_b32", vr(vT6), L_FQ)
            I("ds_read_b32", vr(vT7), vr(vT6))
            I("s_waitcnt", "lgkmcnt(0)")
            I("v_readfirstlane_b32", sr(sU3 - 1), vr(vT7))
            I("s_cmp_ge_u32", sr(sU3 - 1), 1)
            I("s_cbranch_scc1", lab_kph)
            for i in range(8):
                I("buffer_load_dwordx4", vr(vslot(i), 4), vr(vKV), sr(rV, 4), sr(sOFF + i), mods="offen nt")
            self.stamp(16)
            self.lds_wait(L_FQ, 1)
            a.label(lab_kph)
            I("s_setprio", self.prios[4])
            self.stamp(4)
            I("v_lshlrev_b32", vr(vT5), 4, vr(vC))
            I("ds_read_b128", vr(vQ, 4), vr(vT5), mods=f"offset:{L_QB}")
            I("s_mov_b32", sr(sMask), "0x00010001"); I("s_mov_b32", sr(sMask + 1), "0x00010001")
            I("v_mov_b32", vr(vS), 0)
            I("s_waitcnt", "lgkmcnt(0)")
            groups = [[0, 1, 2, 3], [4, 5, 6, 7], [8, 9, 10, 11], [12, 13, 14], [15, 16]]
            if self.nslot == 16:
                groups = [[0, 1, 2, 3], [4, 5, 6, 7], [8, 9, 10, 11], [12, 13, 14, 15]]
                I("v_mov_b32", vr(vS2), 0)
            for grp in groups:
                self.wait_vm(f"K{grp[-1]}")
                for n, i in enumerate(grp):
                    I("v_dot2_f32_bf16", vr(vD + n), vr(kslot(i)), vr(vQ), 0)
                for k in range(1, 4):
                    for n, i in enumerate(grp):
                        I("v_dot2_f32_bf16", vr(vD + n), vr(kslot(i) + k), vr(vQ + k), vr(vD + n))
                if grp[-1] == self.nslot - 1:
                    I("s_cmp_ge_u32", sr(sU3 - 1), 1)
                    I("s_cbranch_scc0", lab_vdone)
                    for i in range(8):
                        I("buffer_load_dwordx4", vr(vslot(i), 4), vr(vKV), sr(rV, 4), sr(sOFF + i), mods="offen nt")
                    a.label(lab_vdone)
                    for i in range(8): self.issued.append(f"V{i}")
                    for i in range(8, self.nslot):
                        self.vm(f"V{i}", "buffer_load_dwordx4", vr(vslot(i), 4), vr(vKV), sr(rV, 4), sr(sOFF + i), mods="offen nt")
                self.row_reduce("v_add_f32", [vD + n for n in range(len(grp))])
                for n, i in enumerate(grp):
                    if i < 16:
                        I("v_cndmask_b32", vr(vS), vr(vS), vr(vD + n), sr(sMask, 2))
                        if i < 15: I("s_lshl_b64", sr(sMask, 2), sr(sMask, 2), 1)
                    else:
                        I("v_mov_b32", vr(vS2), vr(vD + n))
            if not self.wo_done and not self.late_wo:
                self.wo_dma()
        T0, T1 = 18, 19
        I("v_cvt_pk_bf16_f32", vr(T0), vr(vS), vr(vS2))
        self.unpack(vS, vS2, T0)
        I("v_mul_f32", vr(vS), hex(SCALE), vr(vS)); I("v_mul_f32", vr(vS2), hex(SCALE), vr(vS2))
        I("v_cvt_pk_bf16_f32", vr(T0), vr(vS), vr(vS2))
        self.unpack(vS, vS2, T0)
        I("v_mov_b32", vr(T1), "0xff800000")
        I("v_cmp_gt_u32", "vcc", sr(sN), vr(vC))
        I("v_cndmask_b32", vr(vS), vr(T1), vr(vS), "vcc")
        I("s_cmp_gt_u32", sr(sN), 16)
        self.csel(sT0, "0x7f800000", "0xff800000")
        I("v_min_f32", vr(vS2), sr(sT0), vr(vS2))
        I("v_max_f32", vr(T0), vr(vS), vr(vS2))
        self.wave_reduce63("v_max_f32", [T0])
        I("v_readlane_b32", sr(sT0), vr(T0), 63)
        I("v_subrev_f32", vr(vS), sr(sT0), vr(vS)); I("v_subrev_f32", vr(vS2), sr(sT0), vr(vS2))
        I("v_mul_f32", vr(vS), hex(LOG2E), vr(vS)); I("v_mul_f32", vr(vS2), hex(LOG2E), vr(vS2))
        I("v_exp_f32", vr(vS), vr(vS)); I("v_exp_f32", vr(vS2), vr(vS2))
        I("v_mov_b32", vr(T0), vr(vS))
        I("v_fmac_f32", vr(T0), "0x3d800000", vr(vS2))
        self.wave_reduce63("v_add_f32", [T0])
        I("v_mov_b32", vr(T1), vr(T0))
        I("v_mov_b32", vr(T0), sr(sT0))
        I("s_lshl_b32", sr(sT1), sr(sW), 3)
        I("v_mov_b32", vr(vT5), sr(sT1))
        self.exec63()
        I("ds_write_b64", vr(vT5), vr(T0, 2), mods=f"offset:{L_ML}")
        I("s_waitcnt", "lgkmcnt(0)")
        I("v_mov_b32", vr(vT5), L_CNT); I("v_mov_b32", vr(vT6), 1)
        I("ds_add_u32", vr(vT5), vr(vT6))
        self.execall()
        self.stamp(5)
        for e in range(8): I("v_mov_b32", vr(vACC + e), 0)
        for i in range(self.nslot):
            if self.wo_at and i > self.wo_at:
                idx = self.issued.index(f"V{i}")
                n = len(self.issued) - 1 - idx
                l0, l1 = self.L("WV"), self.L("WVJ")
                I("s_cmp_eq_u32", sr(sRole), 1)
                I("s_cbranch_scc1", l0)
                I("s_waitcnt", f"vmcnt({n})")
                I("s_branch", l1)
                a.label(l0)
                I("s_waitcnt", f"vmcnt({n + 4})")
                a.label(l1)
            else:
                self.wait_vm(f"V{i}")
            for k in range(4):
                self.unpack(8 + 2 * k, 9 + 2 * k, vslot(i) + k)
            for k in range(4):
                for hh in range(2):
                    if i < 16:
                        I("v_fmac_f32_dpp", vr(vACC + 2 * k + hh), vr(vS), vr(8 + 2 * k + hh), mods=f"row_newbcast:{i} row_mask:0xf bank_mask:0xf")
                    else:
                        I("v_fmac_f32", vr(vACC + 2 * k + hh), vr(vS2), vr(8 + 2 * k + hh))
            if self.wo_at and i == self.wo_at:
                self.wo_dma()
        self.stamp(6)
        if self.tags:
            I("s_add_u32", sr(sEp), sr(sEp), 1)
            I("s_and_b32", sr(sT0), sr(sEp), hex(TAGM))
            I("v_mov_b32", vr(vTag), sr(sT0))
            I("s_mov_b32", sr(sTagM), hex(0xFFFFFFFF ^ TAGM))
        for i in range(4): I("v_permlane32_swap_b32", vr(vACC + 2 * i), vr(vACC + 2 * i + 1))
        for i in range(4): I("v_add_f32", vr(vACC + 2 * i), vr(vACC + 2 * i), vr(vACC + 2 * i + 1))
        for i in range(2): I("v_permlane16_swap_b32", vr(vACC + 4 * i), vr(vACC + 4 * i + 2))
        for i in range(2): I("v_add_f32", vr(8 + i), vr(vACC + 4 * i), vr(vACC + 4 * i + 2))
        self.perm_g(vT6, vT7)
        I("v_lshl_add_u32", vr(vT5), vr(vC), 3, vr(vT6))
        I("v_lshlrev_b32", vr(vT5), 2, vr(vT5))
        I("s_lshl_b32", sr(sT0), sr(sW), 9)
        I("v_add_u32", vr(vT5), sr(sT0), vr(vT5))
        I("ds_write_b32", vr(vT5), vr(8), mods=f"offset:{L_OP}")
        I("ds_write_b32", vr(vT5), vr(9), mods=f"offset:{L_OP + 16}")
        if self.wsplit and not self.wo_at:
            lab_ws = self.L("WSP")
            I("s_cmp_lt_u32", sr(sW), self.wsplit)
            I("s_cbranch_scc0", lab_ws)
            self.wo_dma()
            a.label(lab_ws)
        if self.fearly: self.ffn_dma()
        lab_w4 = self.L("W4")
        I("s_cmp_lt_u32", sr(sW), 4)
        I("s_cbranch_scc0", lab_w4)
        self.lds_wait(L_CNT, 16, sleep=1)
        I("v_lshrrev_b32", vr(vT7), 3, vr(vLane))
        I("v_lshlrev_b32", vr(13), 4, vr(vT7))
        I("ds_read_b128", vr(12, 4), vr(13), mods=f"offset:{L_ML}")
        I("s_waitcnt", "lgkmcnt(0)")
        I("v_max_f32", vr(16), vr(12), vr(14))
        self.wave_reduce63("v_max_f32", [16])
        I("v_readlane_b32", sr(sT0), vr(16), 63)
        I("v_subrev_f32", vr(12), sr(sT0), vr(12)); I("v_subrev_f32", vr(14), sr(sT0), vr(14))
        I("v_mul_f32", vr(12), hex(LOG2E), vr(12)); I("v_mul_f32", vr(14), hex(LOG2E), vr(14))
        I("v_exp_f32", vr(12), vr(12)); I("v_exp_f32", vr(14), vr(14))
        I("v_mul_f32", vr(16), vr(12), vr(13)); I("v_fmac_f32", vr(16), vr(14), vr(15))
        I("v_mul_f32", vr(16), "0x3e000000", vr(16))
        self.wave_reduce63("v_add_f32", [16])
        lab_noml = self.L("NOML")
        I("s_cmp_eq_u32", sr(sW), 0)
        I("s_cbranch_scc0", lab_noml)
        I("v_mov_b32", vr(17), vr(16))
        I("v_mov_b32", vr(16), sr(sT0))
        self.clamp(16); self.clamp(17)
        I("s_lshl_b32", sr(sT1), sr(sBH), 2); I("s_add_u32", sr(sT1), sr(sT1), sr(sM)); I("s_lshl_b32", sr(sT1), sr(sT1), 3)
        I("s_add_u32", sr(sT1), sr(sT1), hex(ML))
        I("v_mov_b32", vr(vT5), 0)
        self.exec63()
        I("buffer_store_dwordx2", vr(16, 2), vr(vT5), sr(rWS, 4), sr(sT1), mods="offen sc1")
        self.execall()
        a.label(lab_noml)
        if not self.tags: self.check_all_counters()
        self.stamp(18)
        I("v_and_b32", vr(vT5), 7, vr(vLane)); I("v_lshlrev_b32", vr(16), 4, vr(vT5))
        I("v_lshrrev_b32", vr(vT7), 3, vr(vLane)); I("v_lshlrev_b32", vr(vT6), 10, vr(vT7))
        I("v_add_u32", vr(16), vr(16), vr(vT6))
        I("s_lshl_b32", sr(sT0), sr(sW), 7)
        I("v_add_u32", vr(16), sr(sT0), vr(16))
        self.perm_g(vT6, vT7)
        I("v_lshl_add_u32", vr(17), vr(vT5), 2, vr(vT6))
        I("v_lshlrev_b32", vr(17), 2, vr(17))
        I("s_lshl_b32", sr(sU0), sr(sBH), 2); I("s_add_u32", sr(sU0), sr(sU0), sr(sM)); I("s_lshl_b32", sr(sU0), sr(sU0), 9)
        I("s_add_u32", sr(sU0), sr(sU0), sr(sT0)); I("s_add_u32", sr(sU0), sr(sU0), hex(OPART))
        a.label(lab_w4)
        I("s_waitcnt", "lgkmcnt(0)")
        I("s_barrier")
        self.stamp(7)
        lab_exit_wait = self.L("XW")
        I("s_cmp_lt_u32", sr(sW), 4)
        I("s_cbranch_scc0", lab_exit_wait)
        I("ds_read_b128", vr(20, 4), vr(16), mods=f"offset:{L_OP}")
        I("ds_read_b128", vr(24, 4), vr(16), mods=f"offset:{L_OP + 512}")
        I("s_waitcnt", "lgkmcnt(0)")
        for e in range(4): I("v_mul_f32", vr(20 + e), vr(20 + e), vr(12))
        for e in range(4): I("v_fmac_f32", vr(20 + e), vr(24 + e), vr(14))
        I("v_permlane32_swap_b32", vr(20), vr(21)); I("v_permlane32_swap_b32", vr(22), vr(23))
        I("v_add_f32", vr(20), vr(20), vr(21)); I("v_add_f32", vr(22), vr(22), vr(23))
        self.swap_add(16, 20, 22, 20)
        self.dpp("v_add_f32", 20, 20, 20, "row_ror:8")
        self.clamp(20)
        self.execm("0x00ff00ff", "0x00ff00ff")
        I("buffer_store_dword", vr(20), vr(17), sr(rWS, 4), sr(sU0), mods="offen sc1")
        self.execall()
        self.stamp(8)
        if self.stop == "attn":
            a.label(lab_exit_wait)
            return self.finish()
        self.tail(lab_exit_wait)
        return self.finish()

    def wo_dma(self):
        I = self.I
        skip = self.L("NWD")
        self.wo_done = True
        I("s_cmp_eq_u32", sr(sRole), 1)
        I("s_cbranch_scc0", skip)
        I("s_lshl_b32", sr(sT2), sr(sW), 12)
        I("v_lshlrev_b32", vr(vT5), 4, vr(vLane))
        I("s_mul_i32", sr(sT1), sr(sW), 4 * WROW); I("s_add_u32", sr(sT1), sr(sT1), L_WB)
        for k in range(4):
            I("s_mov_b32", "m0", sr(sT1))
            I("buffer_load_dwordx4", vr(vT5), sr(rWA, 4), sr(sT2), mods="offen nt lds")
            if k < 3:
                I("s_add_u32", sr(sT1), sr(sT1), WROW); I("s_add_u32", sr(sT2), sr(sT2), 1024)
        self.a.label(skip)

    def ffn_dma(self):
        I = self.I
        skip = self.L("NFD")
        I("s_cmp_eq_u32", sr(sRole), 2)
        I("s_cbranch_scc0", skip)
        I("s_lshl_b32", sr(sT0), sr(sW), 5)
        I("v_lshrrev_b32", vr(vT5), 2, vr(vLane)); I("v_add_u32", vr(vT5), sr(sT0), vr(vT5))
        I("s_movk_i32", sr(sT1), 2752)
        I("v_mul_lo_u32", vr(vT5), vr(vT5), sr(sT1))
        I("v_and_b32", vr(vT6), 3, vr(vLane))
        I("v_lshl_add_u32", vr(vT5), vr(vT6), 4, vr(vT5))
        I("s_lshl_b32", sr(sT0), sr(sW), 11); I("s_add_u32", sr(sT1), sr(sT0), L_WB)
        I("s_mov_b32", "m0", sr(sT1))
        I("buffer_load_dwordx4", vr(vT5), sr(rWA, 4), 0, mods="offen lds")
        I("s_add_u32", sr(sT1), sr(sT1), 1024)
        I("s_mov_b32", sr(sT2), 16 * 2752)
        I("s_mov_b32", "m0", sr(sT1))
        I("buffer_load_dwordx4", vr(vT5), sr(rWA, 4), sr(sT2), mods="offen lds")
        I("v_lshlrev_b32", vr(vT6), 4, vr(vLane)); I("v_add_u32", vr(vT6), sr(sT0), vr(vT6))
        I("s_mul_i32", sr(sT1), sr(sW), 2 * WROW); I("s_add_u32", sr(sT1), sr(sT1), L_W2)
        I("s_mov_b32", "m0", sr(sT1))
        I("buffer_load_dwordx4", vr(vT6), sr(rWB, 4), 0, mods="offen nt lds")
        I("s_add_u32", sr(sT1), sr(sT1), WROW)
        I("s_movk_i32", sr(sT2), 1024)
        I("s_mov_b32", "m0", sr(sT1))
        I("buffer_load_dwordx4", vr(vT6), sr(rWB, 4), sr(sT2), mods="offen nt lds")
        self.a.label(skip)

    def check_all_counters(self):
        a, I = self.a, self.I
        lp, ok = self.L("CA"), self.L("CAOK")
        I("s_mov_b32", sr(sSpin), SPIN_MAX)
        I("v_and_b32", vr(vT5), 31, vr(vLane)); I("v_lshlrev_b32", vr(vT5), 2, vr(vT5))
        a.label(lp)
        I("buffer_load_dword", vr(vT6), vr(vT5), sr(rDBG, 4), 0, mods="offen sc1")
        I("s_waitcnt", "vmcnt(0)")
        I("v_cmp_gt_u32", "vcc", 8, vr(vT6))
        I("s_cbranch_vccz", ok)
        I("s_sub_u32", sr(sSpin), sr(sSpin), 1)
        I("s_cbranch_scc0", lp)
        a.label(ok)

    def tail(self, lab_exit_wait):
        a, I = self.a, self.I
        if self.late_wo == 99 and self.wsplit < 4: self.wo_dma()
        if not self.fearly: self.ffn_dma()
        lab_ffn, lab_red = self.L("FFN"), self.L("RED")
        I("s_cmp_eq_u32", sr(sRole), 0)
        I("s_cbranch_scc1", "L_FIN")
        I("s_cmp_eq_u32", sr(sRole), 3)
        I("s_cbranch_scc1", lab_red)
        I("s_cmp_eq_u32", sr(sRole), 1)
        I("s_cbranch_scc0", lab_ffn)
        self.wo_stage()
        a.label(lab_ffn)
        self.ffn_stage()
        I("s_branch", "L_FIN")
        a.label(lab_red)
        I("s_cmp_eq_u32", sr(sW), 0)
        I("s_cbranch_scc0", "L_FIN")
        self.reducer()
        I("s_branch", "L_FIN")
        a.label(lab_exit_wait)
        if self.late_wo == 99:
            lab_ws2 = self.L("WSP2")
            I("s_cmp_ge_u32", sr(sW), self.wsplit)
            I("s_cbranch_scc0", lab_ws2)
            self.wo_dma()
            a.label(lab_ws2)
        if not self.fearly: self.ffn_dma()
        I("s_cmp_eq_u32", sr(sRole), 0)
        I("s_cbranch_scc1", "L_FIN")
        I("s_cmp_eq_u32", sr(sRole), 3)
        I("s_cbranch_scc1", "L_FIN")
        I("s_waitcnt", "vmcnt(0)")
        I("s_barrier")
        I("s_branch", "L_FIN")

    def dry_top(self):
        top = self.L("TOP")
        self.I("s_mov_b32", sr(sDry), 1 if self.dry else 0)
        self.a.label(top)
        return top
    def skip_if_dry(self):
        lab = self.L("SK")
        self.I("s_cmp_eq_u32", sr(sDry), 1)
        self.I("s_cbranch_scc1", lab)
        return lab
    def dry_end(self, top):
        lab = self.L("REAL")
        self.I("s_cmp_eq_u32", sr(sDry), 0)
        self.I("s_cbranch_scc1", lab)
        self.I("s_mov_b32", sr(sDry), 0)
        self.I("s_branch", top)
        self.a.label(lab)

    def wo_stage(self):
        a, I = self.a, self.I
        vI4, vI2 = 8, 9
        BW = 64
        vBS, vMS = 10, 11
        vAml, vAown, vAo, vAy = 40, 41, 42, 43
        ML0, O0 = 12, 44
        I("v_bfe_u32", vr(vBS), vr(vC), 2, 1); I("v_and_b32", vr(vMS), 3, vr(vC))
        I("v_lshlrev_b32", vr(vAml), 10, vr(vBS))
        I("v_lshl_add_u32", vr(vAown), vr(vMS), 3, vr(vAml))
        I("s_lshl_b32", sr(sU0), sr(sHW), 5); I("s_add_u32", sr(sU0), sr(sU0), hex(ML))
        I("v_lshlrev_b32", vr(vAo), 16, vr(vBS))
        I("v_lshl_add_u32", vr(vAo), vr(vMS), 9, vr(vAo))
        I("v_lshl_add_u32", vr(vAo), vr(vG), 5, vr(vAo))
        I("s_lshl_b32", sr(sU1), sr(sHW), 11)
        I("s_lshl_b32", sr(sT1), sr(sB), 8)
        I("s_add_u32", sr(sU1), sr(sU1), sr(sT1)); I("s_add_u32", sr(sU1), sr(sU1), hex(OPART))
        def loads():
            for k in range(4):
                I("buffer_load_dwordx4", vr(O0 + 4 * k, 4), vr(vAo), sr(rWS, 4), sr(sU1), mods=f"offen offset:{(k >> 1) * 128 + (k & 1) * 16} sc1")
            I("buffer_load_dwordx4", vr(ML0, 4), vr(vAml), sr(rWS, 4), sr(sU0), mods="offen sc1")
            I("buffer_load_dwordx4", vr(ML0 + 4, 4), vr(vAml), sr(rWS, 4), sr(sU0), mods="offen offset:16 sc1")
            I("buffer_load_dwordx2", vr(ML0 + 8, 2), vr(vAown), sr(rWS, 4), sr(sU0), mods="offen sc1")
        loads()
        I("v_lshrrev_b32", vr(vI4), 2, vr(vC)); I("v_and_b32", vr(vI2), 3, vr(vC))
        I("v_lshl_add_u32", vr(vT5), vr(vG), 3, vr(vI4))
        I("s_movk_i32", sr(sT0), WROW)
        I("v_mul_lo_u32", vr(vT5), vr(vT5), sr(sT0))
        I("v_lshl_add_u32", vr(vT5), vr(vI2), 3, vr(vT5))
        I("s_lshl_b32", sr(sT0), sr(sW), 8)
        I("v_add_u32", vr(vT5), sr(sT0), vr(vT5))
        I("v_add_u32", vr(vT5), L_WB, vr(vT5))
        I("s_waitcnt", "vmcnt(7)")
        I("s_barrier")
        self.stamp(23)
        for ks in range(2):
            for tt in range(8):
                I("ds_read_b64_tr_b16", vr(BW + 32 * ks + 4 * tt, 2), vr(vT5), mods=f"offset:{32 * ks * WROW + 32 * tt}")
                I("ds_read_b64_tr_b16", vr(BW + 32 * ks + 4 * tt + 2, 2), vr(vT5), mods=f"offset:{(32 * ks + 4) * WROW + 32 * tt}")
        I("v_and_b32", vr(vAy), 1, vr(vG)); I("v_lshlrev_b32", vr(vAy), 17, vr(vAy))
        I("v_lshrrev_b32", vr(vT6), 1, vr(vG)); I("v_lshlrev_b32", vr(vT6), 12, vr(vT6))
        I("v_add_u32", vr(vAy), vr(vAy), vr(vT6))
        I("v_lshl_add_u32", vr(vAy), vr(vC), 2, vr(vAy))
        I("s_lshl_b32", sr(sU2), sr(sW), 15)
        I("s_lshl_b32", sr(sT1), sr(sF), 6); I("s_add_u32", sr(sU2), sr(sU2), sr(sT1)); I("s_add_u32", sr(sU2), sr(sU2), hex(YPART))
        I("s_mov_b32", sr(sMask), 0); I("s_mov_b32", sr(sMask + 1), -1)
        regs = list(range(ML0, ML0 + 10)) + list(range(O0, O0 + 16))
        lp, ok = self.L("POLL"), self.L("POK")
        I("s_mov_b32", sr(sSpin), SPIN_MAX)
        I("s_waitcnt", "vmcnt(0)")
        self.check_regs(regs, vT7)
        I("s_cbranch_vccz", ok)
        a.label(lp)
        loads()
        I("s_waitcnt", "vmcnt(0)")
        self.check_regs(regs, vT7)
        I("s_cbranch_vccz", ok)
        I("s_sub_u32", sr(sSpin), sr(sSpin), 1)
        I("s_cbranch_scc0", lp)
        a.label(ok)
        self.stamp(21)
        T = 22
        I("v_max3_f32", vr(T), vr(ML0), vr(ML0 + 2), vr(ML0 + 4)); I("v_max_f32", vr(T), vr(T), vr(ML0 + 6))
        for n in range(5): I("v_sub_f32", vr(T + 1 + n), vr(ML0 + 2 * n), vr(T))
        for n in range(5): I("v_mul_f32", vr(T + 1 + n), hex(LOG2E), vr(T + 1 + n))
        for n in range(5): I("v_exp_f32", vr(T + 1 + n), vr(T + 1 + n))
        I("v_mul_f32", vr(T), vr(T + 1), vr(ML0 + 1))
        I("v_fmac_f32", vr(T), vr(T + 2), vr(ML0 + 3)); I("v_fmac_f32", vr(T), vr(T + 3), vr(ML0 + 5)); I("v_fmac_f32", vr(T), vr(T + 4), vr(ML0 + 7))
        I("v_rcp_f32", vr(T), vr(T))
        I("v_mul_f32", vr(T), vr(T), vr(T + 5))
        for e in range(16): I("v_mul_f32", vr(O0 + e), vr(O0 + e), vr(T))
        for e in range(16): self.dpp("v_add_f32", O0 + e, O0 + e, O0 + e, "quad_perm:[1,0,3,2]")
        for e in range(16): self.dpp("v_add_f32", O0 + e, O0 + e, O0 + e, "quad_perm:[2,3,0,1]")
        AO = 28
        for k in range(8): I("v_cvt_pk_bf16_f32", vr(AO + k), vr(O0 + 2 * k), vr(O0 + 2 * k + 1))
        I("s_waitcnt", "lgkmcnt(0)")
        Dr = [44, 48, 52, 56, 12, 16, 20, 24]
        for tt in range(8):
            I("v_mfma_f32_16x16x32_bf16", vr(Dr[tt], 4), vr(AO, 4), vr(BW + 4 * tt, 4), 0)
        for tt in range(8):
            I("v_mfma_f32_16x16x32_bf16", vr(Dr[tt], 4), vr(AO + 4, 4), vr(BW + 32 + 4 * tt, 4), vr(Dr[tt], 4))
        for tt in range(0, 8, 2):
            I("v_cndmask_b32", vr(36 + tt // 2), vr(Dr[tt]), vr(Dr[tt + 1]), sr(sMask, 2))
        for tt in range(4): self.clamp(36 + tt)
        for tt in range(4):
            I("buffer_store_dword", vr(36 + tt), vr(vAy), sr(rWS, 4), sr(sU2), mods="offen sc1")
            if tt < 3: I("s_add_u32", sr(sU2), sr(sU2), 8192)
        self.stamp(22)
        I("s_branch", "L_FIN")

    def reduce16(self, r0, out):
        I = self.I
        I("v_permlane32_swap_b32", vr(r0), vr(r0 + 1)); I("v_permlane32_swap_b32", vr(r0 + 2), vr(r0 + 3))
        I("v_add_f32", vr(r0), vr(r0), vr(r0 + 1)); I("v_add_f32", vr(r0 + 2), vr(r0 + 2), vr(r0 + 3))
        self.swap_add(16, r0, r0 + 2, out)
        self.dpp("v_add_f32", out, out, out, "row_ror:8")
        self.dpp("v_add_f32", out, out, out, "row_ror:4")

    def reducer(self):
        a, I = self.a, self.I
        vCol, vX, vAo, vH, vA, vAh = 60, 61, 62, 63, 8, 9
        Y, S, U3 = 64, 96, 112
        self.perm_g(vT6, vT7)
        I("v_and_b32", vr(vCol), 3, vr(vLane))
        I("v_lshl_add_u32", vr(vCol), vr(vCol), 2, vr(vT6))
        I("v_lshlrev_b32", vr(vAo), 1, vr(vCol))
        I("s_lshl_b32", sr(sT0), sr(sBH), 5)
        I("buffer_load_ushort", vr(vX), vr(vAo), sr(rX, 4), sr(sT0), mods="offen")
        I("v_lshlrev_b32", vr(vA), 4, vr(vLane))
        I("v_lshlrev_b32", vr(vAh), 2, vr(vCol))
        I("s_lshl_b32", sr(sU0), sr(sBH), 12); I("s_add_u32", sr(sU0), sr(sU0), hex(YPART))
        I("s_lshl_b32", sr(sU2), sr(sBH), 6); I("s_add_u32", sr(sU2), sr(sU2), hex(HBUF))
        I("s_lshl_b32", sr(sU3), sr(sBH), 5)
        I("s_mul_i32", sr(sT0), sr(sBH), USTR); I("s_add_u32", sr(sT0), sr(sT0), hex(UPART))
        I("s_add_u32", sr(rWA), sr(pWS), sr(sT0)); I("s_addc_u32", sr(rWA + 1), sr(pWS + 1), 0)
        I("s_mov_b32", sr(rWA + 2), NF * 64); I("s_mov_b32", sr(rWA + 3), "0x20000")
        def loads():
            for k in range(4):
                I("buffer_load_dwordx4", vr(Y + 4 * k, 4), vr(vA), sr(rWS, 4), sr(sU0), mods=f"offen offset:{k * 1024} sc1")
        self.poll(loads, 4, range(Y, Y + 16))
        self.stamp(12)
        I("s_waitcnt", "vmcnt(0)")
        I("v_lshlrev_b32", vr(vX), 16, vr(vX))
        for e in range(4):
            I("v_add_f32", vr(S + e), vr(Y + e), vr(Y + 4 + e)); I("v_add_f32", vr(S + 4 + e), vr(Y + 8 + e), vr(Y + 12 + e))
        for e in range(4): I("v_add_f32", vr(S + e), vr(S + e), vr(S + 4 + e))
        self.reduce16(S, vH)
        I("v_cvt_pk_bf16_f32", vr(vH), vr(vH), vr(vH))
        I("v_lshlrev_b32", vr(vH), 16, vr(vH))
        I("v_add_f32", vr(vH), vr(vH), vr(vX))
        I("v_cvt_pk_bf16_f32", vr(vH), vr(vH), vr(vH))
        I("v_lshlrev_b32", vr(vH), 16, vr(vH))
        self.clamp(12, vH)
        self.execm("0x000f000f", "0x000f000f")
        I("buffer_store_dword", vr(12), vr(vAh), sr(rWS, 4), sr(sU2), mods="offen sc1")
        self.execall()
        self.stamp(13)
        I("s_mov_b32", sr(sMask), 0); I("s_mov_b32", sr(sMask + 1), "0xfffff000")
        def loads3():
            for k in range(3):
                I("buffer_load_dwordx4", vr(U3 + 4 * k, 4), vr(vA), sr(rWA, 4), 0, mods=f"offen offset:{k * 1024} sc1")
        if self.tags:
            lp, ok = self.L("POLL"), self.L("POK")
            I("s_mov_b32", sr(sSpin), SPIN_MAX)
            a.label(lp)
            loads3()
            I("s_waitcnt", "vmcnt(0)")
            for k in range(4):
                I("v_cndmask_b32", vr(U3 + 8 + k), vr(U3 + 8 + k), vr(vTag), sr(sMask, 2))
            self.check_regs(list(range(U3, U3 + 12)), vT7)
            I("s_cbranch_vccz", ok)
            I("s_sub_u32", sr(sSpin), sr(sSpin), 1)
            I("s_cbranch_scc0", lp)
            a.label(ok)
        else:
            self.poll(loads3, 3, range(U3, U3 + 12))
        self.stamp(14)
        for e in range(4):
            I("v_add_f32", vr(S + e), vr(U3 + e), vr(U3 + 4 + e))
        for e in range(4): I("v_add_f32", vr(S + e), vr(S + e), vr(U3 + 8 + e))
        self.reduce16(S, 12)
        I("v_cvt_pk_bf16_f32", vr(12), vr(12), vr(12))
        I("v_lshlrev_b32", vr(12), 16, vr(12))
        I("v_add_f32", vr(12), vr(12), vr(vH))
        I("v_cvt_pk_bf16_f32", vr(12), vr(12), vr(12))
        self.execm("0x000f000f", "0x000f000f")
        I("buffer_store_short", vr(12), vr(vAo), sr(rOUT, 4), sr(sU3), mods="offen")
        self.execall()
        if self.tags:
            lab_ne = self.L("NEP")
            I("s_cmp_eq_u32", sr(sBH), 0)
            I("s_cbranch_scc0", lab_ne)
            I("v_mov_b32", vr(13), sr(sEp)); I("v_mov_b32", vr(14), 0)
            I("s_mov_b32", sr(sT0), hex(EPOCH))
            I("s_mov_b64", "exec", 1)
            I("buffer_store_dword", vr(13), vr(14), sr(rWS, 4), sr(sT0), mods="offen sc1")
            self.execall()
            a.label(lab_ne)
        if self.dbgtime:
            I("s_memrealtime", "s[12:13]")
            I("s_waitcnt", "lgkmcnt(0)")
            I("s_sub_u32", sr(sT1), sr(sT1), "s38")
            I("v_mov_b32", vr(12), sr(sT1)); I("v_mov_b32", vr(vT6), 0)
            I("s_lshl_b32", sr(sT0), sr(sBH), 2)
            I("s_mov_b64", "exec", 1)
            I("buffer_store_dword", vr(12), vr(vT6), sr(rDBG, 4), sr(sT0), mods="offen")
            self.execall()
        self.stamp(15)

    def ffn_stage(self):
        a, I = self.a, self.I
        if self.stop in ("y", "h"):
            I("s_waitcnt", "vmcnt(0)"); I("s_barrier"); return
        vI4, vI2 = 8, 9
        B1, B2 = 64, 96
        I("s_waitcnt", "vmcnt(0)")
        I("s_barrier")
        I("v_lshrrev_b32", vr(vI4), 2, vr(vC)); I("v_and_b32", vr(vI2), 3, vr(vC))
        I("v_lshl_add_u32", vr(vT5), vr(vG), 3, vr(vI4)); I("v_lshlrev_b32", vr(vT5), 6, vr(vT5))
        I("v_lshl_add_u32", vr(vT5), vr(vI2), 3, vr(vT5))
        I("s_lshl_b32", sr(sT0), sr(sW), 13)
        I("v_add_u32", vr(vT5), sr(sT0), vr(vT5))
        for ks in range(4):
            for nt in range(2):
                o = L_WB + ks * 2048 + nt * 32
                I("ds_read_b64_tr_b16", vr(B1 + 8 * ks + 4 * nt, 2), vr(vT5), mods=f"offset:{o}")
                I("ds_read_b64_tr_b16", vr(B1 + 8 * ks + 4 * nt + 2, 2), vr(vT5), mods=f"offset:{o + 256}")
        I("v_lshl_add_u32", vr(vT6), vr(vG), 3, vr(vI4))
        I("s_movk_i32", sr(sT0), WROW)
        I("v_mul_lo_u32", vr(vT6), vr(vT6), sr(sT0))
        I("v_lshl_add_u32", vr(vT6), vr(vI2), 3, vr(vT6))
        I("s_lshl_b32", sr(sT0), sr(sW), 8)
        I("v_add_u32", vr(vT6), sr(sT0), vr(vT6))
        I("v_add_u32", vr(vT6), L_W2, vr(vT6))
        for tt in range(8):
            I("ds_read_b64_tr_b16", vr(B2 + 4 * tt, 2), vr(vT6), mods=f"offset:{32 * tt}")
            I("ds_read_b64_tr_b16", vr(B2 + 4 * tt + 2, 2), vr(vT6), mods=f"offset:{4 * WROW + 32 * tt}")
        vAh, vAhw, vAhr, vAuw, vAur, vAaw, vAar, vAo = 10, 11, 52, 53, 54, 55, 56, 57
        I("v_lshlrev_b32", vr(vAh), 5, vr(vLane))
        I("s_mov_b32", sr(sU0), hex(HBUF))
        I("v_lshlrev_b32", vr(vAhw), 4, vr(vLane)); I("s_lshl_b32", sr(sT0), sr(sW), 11); I("v_add_u32", vr(vAhw), sr(sT0), vr(vAhw))
        I("v_bfe_u32", vr(vT7), vr(vC), 2, 1)
        I("v_lshlrev_b32", vr(vAhr), 10, vr(vT7)); I("v_lshl_add_u32", vr(vAhr), vr(vG), 4, vr(vAhr))
        I("s_mul_i32", sr(sT0), sr(sW), 2048 + 256); I("v_add_u32", vr(vAhr), sr(sT0), vr(vAhr))
        I("v_and_b32", vr(vAuw), 1, vr(vG)); I("v_lshlrev_b32", vr(vAuw), 7, vr(vAuw))
        I("v_lshrrev_b32", vr(vT5), 1, vr(vG)); I("v_lshl_add_u32", vr(vAuw), vr(vT5), 6, vr(vAuw))
        I("v_lshl_add_u32", vr(vAuw), vr(vC), 2, vr(vAuw))
        I("s_lshl_b32", sr(sT0), sr(sW), 8); I("v_add_u32", vr(vAuw), sr(sT0), vr(vAuw))
        I("v_lshlrev_b32", vr(vAur), 2, vr(vLane))
        I("s_lshl_b32", sr(sT0), sr(sW), 7)
        I("v_lshlrev_b32", vr(vAaw), 1, vr(vLane)); I("v_add_u32", vr(vAaw), sr(sT0), vr(vAaw))
        I("v_lshlrev_b32", vr(vAar), 6, vr(vT7)); I("v_lshl_add_u32", vr(vAar), vr(vG), 4, vr(vAar)); I("v_add_u32", vr(vAar), sr(sT0), vr(vAar))
        I("v_and_b32", vr(vAo), 1, vr(vG)); I("s_mov_b32", sr(sT0), 32 * USTR); I("v_mul_lo_u32", vr(vAo), vr(vAo), sr(sT0))
        I("v_lshrrev_b32", vr(vT6), 1, vr(vG)); I("s_movk_i32", sr(sT0), USTR); I("v_mul_lo_u32", vr(vT6), vr(vT6), sr(sT0))
        I("v_add_u32", vr(vAo), vr(vAo), vr(vT6))
        I("v_lshl_add_u32", vr(vAo), vr(vC), 2, vr(vAo))
        I("s_mul_i32", sr(sU1), sr(sW), 8 * USTR)
        I("s_lshl_b32", sr(sT1), sr(sF), 6); I("s_add_u32", sr(sU1), sr(sU1), sr(sT1)); I("s_add_u32", sr(sU1), sr(sU1), hex(UPART))
        I("s_mov_b32", sr(sMask), 0); I("s_mov_b32", sr(sMask + 1), -1)
        I("s_waitcnt", "lgkmcnt(0)")
        H0, H1 = 12, 20
        top = self.dry_top()
        sk = self.skip_if_dry()
        def loads():
            I("buffer_load_dwordx4", vr(H0, 4), vr(vAh), sr(rWS, 4), sr(sU0), mods="offen sc1")
            I("buffer_load_dwordx4", vr(H0 + 4, 4), vr(vAh), sr(rWS, 4), sr(sU0), mods="offen offset:16 sc1")
            I("buffer_load_dwordx4", vr(H1, 4), vr(vAh), sr(rWS, 4), sr(sU0), mods="offen offset:2048 sc1")
            I("buffer_load_dwordx4", vr(H1 + 4, 4), vr(vAh), sr(rWS, 4), sr(sU0), mods="offen offset:2064 sc1")
        self.poll(loads, 4, range(12, 28))
        a.label(sk)
        self.stamp(9)
        A1, A2, B1s, B2s = 28, 29, 30, 31
        I("v_add_f32", vr(A1), vr(H0), vr(H0 + 1)); I("v_add_f32", vr(B1s), vr(H1), vr(H1 + 1))
        I("v_mul_f32", vr(A2), vr(H0), vr(H0)); I("v_mul_f32", vr(B2s), vr(H1), vr(H1))
        I("v_fmac_f32", vr(A2), vr(H0 + 1), vr(H0 + 1)); I("v_fmac_f32", vr(B2s), vr(H1 + 1), vr(H1 + 1))
        for e in range(2, 8):
            I("v_add_f32", vr(A1), vr(A1), vr(H0 + e)); I("v_add_f32", vr(B1s), vr(B1s), vr(H1 + e))
            I("v_fmac_f32", vr(A2), vr(H0 + e), vr(H0 + e)); I("v_fmac_f32", vr(B2s), vr(H1 + e), vr(H1 + e))
        self.wave_reduce63("v_add_f32", [A1, A2, B1s, B2s])
        for (r, s) in ((A1, sT0), (A2, sT1), (B1s, sT2), (B2s, sT3)):
            I("v_readlane_b32", sr(s), vr(r), 63)
        M0, M1, R0, R1, T0, T1 = 28, 29, 30, 31, 32, 33
        self.ln_scalars(sT0, sT1, sT2, sT3, M0, M1, R0, R1, T0, T1)
        I("v_mul_f32", vr(M0), vr(M0), vr(R0)); I("v_mul_f32", vr(M1), vr(M1), vr(R1))
        HN = 36
        for e in range(8):
            I("v_fma_f32", vr(HN + e), vr(H0 + e), vr(R0), f"-{vr(M0)}")
            I("v_fma_f32", vr(HN + 8 + e), vr(H1 + e), vr(R1), f"-{vr(M1)}")
        for k in range(8):
            I("v_cvt_pk_bf16_f32", vr(HN + k), vr(HN + 2 * k), vr(HN + 2 * k + 1))
        I("ds_write_b128", vr(vAhw), vr(HN, 4), mods=f"offset:{L_HN}")
        I("ds_write_b128", vr(vAhw), vr(HN + 4, 4), mods=f"offset:{L_HN + 1024}")
        I("s_waitcnt", "lgkmcnt(0)")
        for ks in range(4):
            I("ds_read_b128", vr(HN + 4 * ks, 4), vr(vAhr), mods=f"offset:{L_HN + ks * 64}")
        I("s_waitcnt", "lgkmcnt(0)")
        D0, D1 = 28, 32
        for ks in range(4):
            I("v_mfma_f32_16x16x32_bf16", vr(D0, 4), vr(HN + 4 * ks, 4), vr(B1 + 8 * ks, 4), (0 if ks == 0 else vr(D0, 4)))
            I("v_mfma_f32_16x16x32_bf16", vr(D1, 4), vr(HN + 4 * ks, 4), vr(B1 + 8 * ks + 4, 4), (0 if ks == 0 else vr(D1, 4)))
        I("v_cndmask_b32", vr(D0), vr(D0), vr(D1), sr(sMask, 2))
        I("ds_write_b32", vr(vAuw), vr(D0), mods=f"offset:{L_UP}")
        I("s_waitcnt", "lgkmcnt(0)")
        I("s_barrier")
        for w in range(4):
            I("ds_read_b32", vr(28 + w), vr(vAur), mods=f"offset:{L_UP + w * 256}")
        I("s_waitcnt", "lgkmcnt(0)")
        I("v_add_f32", vr(28), vr(28), vr(29)); I("v_add_f32", vr(30), vr(30), vr(31))
        I("v_add_f32", vr(28), vr(28), vr(30))
        I("v_cvt_pk_bf16_f32", vr(29), vr(28), vr(28))
        I("v_lshlrev_b32", vr(28), 16, vr(29))
        I("v_mul_f32", vr(29), "0xbfb8aa3b", vr(28))
        I("v_exp_f32", vr(29), vr(29))
        I("v_add_f32", vr(29), 1.0, vr(29))
        I("v_rcp_f32", vr(29), vr(29))
        I("v_mul_f32", vr(28), vr(28), vr(29))
        I("v_cvt_pk_bf16_f32", vr(28), vr(28), vr(28))
        I("ds_write_b16", vr(vAaw), vr(28), mods=f"offset:{L_ACT}")
        I("s_waitcnt", "lgkmcnt(0)")
        I("ds_read_b128", vr(28, 4), vr(vAar), mods=f"offset:{L_ACT}")
        I("s_waitcnt", "lgkmcnt(0)")
        self.stamp(10)
        DD = 32
        assert DD + 20 <= vAhr
        I("s_waitcnt", "vmcnt(0)")
        Dregs = [12, 16, 20, 24, 36, 40, 44, 48]
        for tt in range(8):
            I("v_mfma_f32_16x16x32_bf16", vr(Dregs[tt], 4), vr(28, 4), vr(B2 + 4 * tt, 4), 0)
        for tt in range(0, 8, 2):
            I("v_cndmask_b32", vr(32 + tt // 2), vr(Dregs[tt]), vr(Dregs[tt + 1]), sr(sMask, 2))
        for tt in range(4): self.clamp(32 + tt)
        lab_nb = self.L("NB")
        I("s_cmp_eq_u32", sr(sDry), 0)
        I("s_cbranch_scc1", lab_nb)
        I("s_barrier")
        a.label(lab_nb)
        self.dry_end(top)
        for tt in range(4):
            I("buffer_store_dword", vr(32 + tt), vr(vAo), sr(rWS, 4), sr(sU1), mods="offen sc1")
            if tt < 3: I("s_add_u32", sr(sU1), sr(sU1), 2 * USTR)
        self.stamp(11)

    def finish(self):
        a, I = self.a, self.I
        a.label("L_FIN")
        if self.stamps:
            self.stamp(20)
            self.execall()
            I("s_lshl_b32", sr(sT0), "s2", 4); I("s_add_u32", sr(sT0), sr(sT0), sr(sW)); I("s_lshl_b32", sr(sT0), sr(sT0), 8)
            I("s_add_u32", sr(sT0), sr(sT0), hex(STAMP))
            I("v_lshlrev_b32", vr(vT5), 2, vr(vLane))
            I("buffer_store_dword", "v0", vr(vT5), sr(rWS, 4), sr(sT0), mods="offen")
        a.label("L_END")
        return self.wrap()

    def wrap(self):
        body = self.a.text()
        hdr = open("sequential_preLN__mha_block_cached__dense_activation_silu__decode.s.ref").read().split("\n")
        top = [l for l in hdr if l.startswith(";") and "@launch" not in l and "Override" not in l and "grid=ceil" not in l][:12]
        out = "\n".join(top) + "\n"
        out += f"; @launch grid=(256,1,1) block=(1024,1,1) lds={LDS_SIZE}\n"
        out += f""".amdgcn_target "amdgcn-amd-amdhsa--gfx950"
.text
.globl {KN}
.p2align 8
.type {KN},@function
{KN}:
{body}  s_endpgm
.section .rodata,"a"
.p2align 6
.amdhsa_kernel {KN}
  .amdhsa_next_free_vgpr 128
  .amdhsa_next_free_sgpr 102
  .amdhsa_accum_offset 128
  .amdhsa_group_segment_fixed_size 0
  .amdhsa_kernarg_size 88
  .amdhsa_user_sgpr_count 2
  .amdhsa_user_sgpr_kernarg_segment_ptr 1
  .amdhsa_system_sgpr_workgroup_id_x 1
.end_amdhsa_kernel
"""
        return out

if __name__ == "__main__":
    kw = {}
    for x in sys.argv[2:]:
        k, v = x.split("=")
        kw[k] = int(v) if v.lstrip("-").isdigit() and k != "prios" else v
    g = Gen(**kw)
    open(sys.argv[1], "w").write(g.build())
    print("nops inserted:", g.a.nops, "lines", len(g.a.lines))
```

```python
import sys
from asmlib import Asm, vr, sr

KN = "sequential_preLN__mha_block_cached__dense_activation_silu__decode_kernel"

ML    = 0x040000
OPART = 0x050000
YPART = 0x080000
HBUF  = 0x100000
UPART = 0x110000
USTR  = 48 * 64
NF    = 43
EPOCH = 0x030000
TAGM = 0x3FF
STAMP = 0x200000
WSSZ  = 0x400000
L_QP = 0
L_OP = 0
L_QB = 8192
L_ML = 8192 + 256
L_CNT = 8192 + 256 + 128
L_QCNT = L_CNT + 4
L_FQ = L_CNT + 8
L_UP = 8192 + 512
L_ACT = 8192 + 512 + 1024
L_HN = 8192 + 2048 + 1024
L_WB = 20480
L_W2 = L_WB + 32768
L_XN = L_WB
WROW = 1056
LDS_SIZE = L_WB + 64 * WROW + 256

LOG2E = 0x3FB8AA3B
SCALE = 0x3DB504F3
SPIN_MAX = 400000
OOB = 0x40000000

sW, sE, sHalf, sBH, sB, sH, sM = 3, 4, 5, 6, 7, 8, 9
sDry = 10
sT0, sT1, sT2, sT3, sT4 = 11, 12, 13, 14, 15
pX, pK, pV, pWQ, pWO, pBX, pW1, pW2, pOUT, pDBG, pWS = 16, 18, 20, 22, 24, 26, 28, 30, 32, 34, 36
sRB = 26
sRole = 27
sHW = 101
rK, rV, rWS, rX, rWQ, rWA, rWB, rOUT, rDBG = 40, 44, 48, 52, 56, 60, 64, 68, 72
sOFF = 76
sN = 93
sSpin = 94
sF = 95
sMask = 96
sU0, sU1, sU2, sU3 = 98, 99, 100, 101
sStamp0 = 38
sEp = 10
sTagM = 76
rT1 = 16
vLane, vC, vG, vKV = 1, 2, 3, 4
vT5, vT6, vT7 = 5, 6, 7
vTag = 4
vCk0, vCk1 = 5, 6
vQ = 8
vD = 12
vS, vS2 = 16, 17
vACC = 20
DATA0 = 28
def kslot(i): return DATA0 + 4 * i
def vslot(i):
    if i < 8: return DATA0 + 4 * (17 + i)
    return DATA0 + 4 * (i - 8)

class Gen:
    def __init__(self, stamps=0, stop=None, skew=0, npre=4, dbgtime=0, nowq=0, prios="32111", nodma=0, noinv=0,
                 dry=0, pipe=0, wqflag="", late_wo=99, earlybar=1, npre2=15, hshift=8, map=1, pat=1, kfirst=1, t1test=0, touch=0, noq=0, bw=4, tags=1, wsplit=16, fearly=0, wo_at=0, rot=2):
        self.a = Asm()
        self.stamps, self.stop, self.skew, self.npre, self.dbgtime = stamps, stop, skew, npre, dbgtime
        self.nowq, self.nodma, self.noinv, self.dry, self.pipe = nowq, nodma, noinv, dry, pipe
        self.prios = [int(c) for c in str(prios).zfill(5)]
        self.wqflag = wqflag
        self.late_wo = late_wo
        self.earlybar = earlybar
        self.npre2 = npre2
        self.hshift = hshift
        self.map = map
        self.pat = pat
        self.kfirst = kfirst
        self.t1test = t1test
        self.touch = touch
        self.noq = noq
        self.bw = bw
        self.tags = tags
        self.wsplit = wsplit
        self.fearly = fearly
        self.wo_at = wo_at
        self.rot = rot
        self.nslot = 17 if skew else 16
        self.issued = []
        self.lab = 0
        self.wo_done = False

    def L(self, p="L"):
        self.lab += 1
        return f"{p}_{self.lab}"
    def I(self, *a, **k): self.a.I(*a, **k)

    def stamp(self, k):
        if not self.stamps: return
        if k == 0:
            self.I("s_memrealtime", sr(sStamp0, 2)); return
        if k == 1:
            self.I("s_waitcnt", "lgkmcnt(0)")
            self.I("v_mov_b32", "v0", 0)
            self.I("v_writelane_b32", "v0", sr(sStamp0), 0)
            self.I("v_writelane_b32", "v0", "s94", 19)
        self.I("s_memrealtime", sr(sStamp0, 2))
        self.I("s_waitcnt", "lgkmcnt(0)")
        self.I("v_writelane_b32", "v0", sr(sStamp0), k)

    def csel(self, dst, x, y):
        self.I("s_mov_b32", sr(dst), x)
        self.I("s_cselect_b32", sr(dst), sr(dst), y)
    def exec63(self):
        self.I("s_mov_b32", "exec_lo", 0); self.I("s_mov_b32", "exec_hi", "0x80000000")
    def execm(self, lo, hi):
        self.I("s_mov_b32", "exec_lo", lo); self.I("s_mov_b32", "exec_hi", hi)
    def execall(self): self.I("s_mov_b64", "exec", -1)

    def srd(self, r, plo, size, addoff=None):
        I = self.I
        if addoff is None:
            I("s_mov_b32", sr(r), sr(plo)); I("s_mov_b32", sr(r + 1), sr(plo + 1))
        else:
            I("s_add_u32", sr(r), sr(plo), addoff); I("s_addc_u32", sr(r + 1), sr(plo + 1), 0)
        I("s_mov_b32", sr(r + 2), size); I("s_mov_b32", sr(r + 3), "0x20000")

    def vm(self, tag, op, *ops, mods=""):
        self.I(op, *ops, mods=mods)
        self.issued.append(tag)
    def wait_vm(self, tag):
        idx = self.issued.index(tag)
        n = len(self.issued) - 1 - idx
        self.I("s_waitcnt", f"vmcnt({min(n, 63)})")

    def dpp(self, op, d, s0, s1, ctrl, rm="0xf"):
        self.I(op + "_dpp", vr(d), vr(s0), vr(s1), mods=f"{ctrl} row_mask:{rm} bank_mask:0xf")
    def row_reduce(self, op, regs):
        for sh in (8, 4, 2, 1):
            for r in regs: self.dpp(op, r, r, r, f"row_ror:{sh}")
    def wave_reduce63(self, op, regs):
        self.row_reduce(op, regs)
        for r in regs: self.dpp(op, r, r, r, "row_bcast:15", "0xa")
        for r in regs: self.dpp(op, r, r, r, "row_bcast:31", "0xc")
    def swap_add(self, which, a, b, d, op="v_add_f32"):
        self.I(f"v_permlane{which}_swap_b32", vr(a), vr(b))
        self.I(op, vr(d), vr(a), vr(b))
    def unpack(self, lo, hi, src):
        self.I("v_lshlrev_b32", vr(lo), 16, vr(src))
        self.I("v_and_b32", vr(hi), "0xffff0000", vr(src))
    def clamp(self, r, src=None):
        src = r if src is None else src
        if self.tags:
            self.I("v_and_or_b32", vr(r), vr(src), sr(sTagM), vr(vTag))
        else:
            self.I("v_min_u32", vr(r), -2, vr(src))
    def perm_g(self, d, t):
        I = self.I
        I("v_and_b32", vr(d), 1, vr(vG)); I("v_lshlrev_b32", vr(d), 1, vr(d))
        I("v_lshrrev_b32", vr(t), 1, vr(vG)); I("v_or_b32", vr(d), vr(d), vr(t))

    def check_regs(self, regs, t, t2=None):
        I = self.I
        rs = list(regs)
        if self.tags:
            for r in rs: I("v_xor_b32", vr(r), vr(vTag), vr(r))
            first = True
            while rs:
                if first:
                    if len(rs) >= 3:
                        I("v_or3_b32", vr(t), vr(rs[0]), vr(rs[1]), vr(rs[2])); rs = rs[3:]
                    elif len(rs) == 2:
                        I("v_or_b32", vr(t), vr(rs[0]), vr(rs[1])); rs = rs[2:]
                    else:
                        I("v_mov_b32", vr(t), vr(rs[0])); rs = rs[1:]
                    first = False
                elif len(rs) >= 2:
                    I("v_or3_b32", vr(t), vr(t), vr(rs[0]), vr(rs[1])); rs = rs[2:]
                else:
                    I("v_or_b32", vr(t), vr(t), vr(rs[0])); rs = rs[1:]
            I("v_and_b32", vr(t), hex(TAGM), vr(t))
            I("v_cmp_ne_u32", "vcc", 0, vr(t))
            return
        if len(rs) == 1:
            I("v_cmp_eq_u32", "vcc", -1, vr(rs[0])); return
        first = True
        while rs:
            if first:
                if len(rs) >= 3:
                    I("v_max3_u32", vr(t), vr(rs[0]), vr(rs[1]), vr(rs[2])); rs = rs[3:]
                else:
                    I("v_max_u32", vr(t), vr(rs[0]), vr(rs[1])); rs = rs[2:]
                first = False
            elif len(rs) >= 2:
                I("v_max3_u32", vr(t), vr(t), vr(rs[0]), vr(rs[1])); rs = rs[2:]
            else:
                I("v_max_u32", vr(t), vr(t), vr(rs[0])); rs = rs[1:]
        I("v_cmp_eq_u32", "vcc", -1, vr(t))

    def poll(self, loads, nloads, regs, t=vT7):
        I = self.I
        lp, ok = self.L("POLL"), self.L("POK")
        I("s_mov_b32", sr(sSpin), SPIN_MAX)
        if self.pipe: loads()
        self.a.label(lp)
        loads()
        I("s_waitcnt", f"vmcnt({nloads if self.pipe else 0})")
        self.check_regs(regs, t)
        I("s_cbranch_vccz", ok)
        I("s_sub_u32", sr(sSpin), sr(sSpin), 1)
        I("s_cbranch_scc0", lp)
        self.a.label(ok)

    def ln_scalars(self, s10, s20, s11, s21, vm0, vm1, vr0, vr1, t0, t1):
        I = self.I
        inv = "0x3b000000"
        I("v_mov_b32", vr(vm0), sr(s10)); I("v_mov_b32", vr(vm1), sr(s11))
        I("v_mov_b32", vr(vr0), sr(s20)); I("v_mov_b32", vr(vr1), sr(s21))
        for r in (vm0, vm1, vr0, vr1): I("v_mul_f32", vr(r), inv, vr(r))
        I("v_fma_f32", vr(vr0), f"-{vr(vm0)}", vr(vm0), vr(vr0))
        I("v_fma_f32", vr(vr1), f"-{vr(vm1)}", vr(vm1), vr(vr1))
        I("v_max_f32", vr(vr0), 0, vr(vr0)); I("v_max_f32", vr(vr1), 0, vr(vr1))
        I("v_cvt_pk_bf16_f32", vr(t0), vr(vm0), vr(vm1))
        I("v_cvt_pk_bf16_f32", vr(t1), vr(vr0), vr(vr1))
        self.unpack(vm0, vm1, t0)
        self.unpack(vr0, vr1, t1)
        I("v_add_f32", vr(vr0), "0x3727c5ac", vr(vr0)); I("v_add_f32", vr(vr1), "0x3727c5ac", vr(vr1))
        I("v_cvt_pk_bf16_f32", vr(t1), vr(vr0), vr(vr1))
        self.unpack(vr0, vr1, t1)
        I("v_sqrt_f32", vr(vr0), vr(vr0)); I("v_sqrt_f32", vr(vr1), vr(vr1))
        I("v_cvt_pk_bf16_f32", vr(t1), vr(vr0), vr(vr1))
        self.unpack(vr0, vr1, t1)
        I("v_rcp_f32", vr(vr0), vr(vr0)); I("v_rcp_f32", vr(vr1), vr(vr1))

    def ln_scalars1(self, s1, s2, vm0, vr0, t0):
        I = self.I
        inv = "0x3b000000"
        I("v_mov_b32", vr(vm0), sr(s1)); I("v_mov_b32", vr(vr0), sr(s2))
        I("v_mul_f32", vr(vm0), inv, vr(vm0)); I("v_mul_f32", vr(vr0), inv, vr(vr0))
        I("v_fma_f32", vr(vr0), f"-{vr(vm0)}", vr(vm0), vr(vr0))
        I("v_max_f32", vr(vr0), 0, vr(vr0))
        I("v_cvt_pk_bf16_f32", vr(t0), vr(vm0), vr(vr0))
        self.unpack(vm0, vr0, t0)
        I("v_add_f32", vr(vr0), "0x3727c5ac", vr(vr0))
        I("v_cvt_pk_bf16_f32", vr(t0), vr(vr0), vr(vr0))
        I("v_lshlrev_b32", vr(vr0), 16, vr(t0))
        I("v_sqrt_f32", vr(vr0), vr(vr0))
        I("v_cvt_pk_bf16_f32", vr(t0), vr(vr0), vr(vr0))
        I("v_lshlrev_b32", vr(vr0), 16, vr(t0))
        I("v_rcp_f32", vr(vr0), vr(vr0))

    def lds_set(self, off, val_sgpr_or_imm):
        I = self.I
        I("v_mov_b32", vr(vT6), off); I("v_mov_b32", vr(vT7), val_sgpr_or_imm)
        I("ds_write_b32", vr(vT6), vr(vT7))

    def lds_wait(self, off, val, sleep=1):
        I = self.I
        lp, ok = self.L("LW"), self.L("LWOK")
        I("v_mov_b32", vr(vT6), off)
        self.a.label(lp)
        I("ds_read_b32", vr(vT7), vr(vT6))
        I("s_waitcnt", "lgkmcnt(0)")
        I("v_readfirstlane_b32", sr(sT4), vr(vT7))
        I("s_cmp_ge_u32", sr(sT4), val)
        I("s_cbranch_scc1", ok)
        if sleep: I("s_sleep", sleep)
        I("s_branch", lp)
        self.a.label(ok)

    def invalidate(self):
        I = self.I
        for k in range(4): I("v_mov_b32", vr(20 + k), -1)
        I("v_lshlrev_b32", vr(vT5), 4, vr(vLane))
        I("s_lshl_b32", sr(sT0), sr(sBH), 2); I("s_add_u32", sr(sT0), sr(sT0), sr(sM))
        I("s_lshl_b32", sr(sT1), sr(sT0), 9); I("s_add_u32", sr(sT1), sr(sT1), hex(OPART))
        I("s_lshl_b32", sr(sT2), sr(sT0), 3); I("s_add_u32", sr(sT2), sr(sT2), hex(ML))
        self.execm(-1, 0)
        I("buffer_store_dwordx4", vr(20, 4), vr(vT5), sr(rWS, 4), sr(sT1), mods="offen sc1")
        I("s_mov_b64", "exec", 1)
        I("buffer_store_dwordx2", vr(20, 2), vr(vT5), sr(rWS, 4), sr(sT2), mods="offen sc1")
        I("s_lshl_b32", sr(sT1), sr(sBH), 6); I("s_add_u32", sr(sT1), sr(sT1), hex(HBUF))
        I("s_cmp_eq_u32", sr(sRole), 3)
        I("s_cselect_b32", sr(sT1), sr(sT1), hex(OOB))
        I("s_mov_b64", "exec", 15)
        I("buffer_store_dwordx4", vr(20, 4), vr(vT5), sr(rWS, 4), sr(sT1), mods="offen sc1")
        self.execall()
        I("s_cmp_eq_u32", sr(sRole), 1)
        self.csel(sT0, 4096, USTR)
        self.csel(sT1, hex(YPART), hex(UPART))
        I("s_lshl_b32", sr(sT2), sr(sF), 6); I("s_add_u32", sr(sT1), sr(sT1), sr(sT2))
        I("s_cmp_eq_u32", sr(sRole), 0); I("s_cselect_b32", sr(sT1), hex(OOB), sr(sT1))
        I("s_cmp_eq_u32", sr(sRole), 3); I("s_cselect_b32", sr(sT1), hex(OOB), sr(sT1))
        I("v_lshrrev_b32", vr(vT6), 2, vr(vLane))
        I("v_mul_lo_u32", vr(vT6), vr(vT6), sr(sT0))
        I("v_and_b32", vr(vT7), 3, vr(vLane)); I("v_lshlrev_b32", vr(vT7), 4, vr(vT7))
        I("v_add_u32", vr(vT6), vr(vT6), vr(vT7))
        I("s_lshl_b32", sr(sT0), sr(sT0), 4)
        for k in range(4):
            I("buffer_store_dwordx4", vr(20, 4), vr(vT6), sr(rWS, 4), sr(sT1), mods="offen sc1")
            if k < 3: I("s_add_u32", sr(sT1), sr(sT1), sr(sT0))

    def roles(self):
        a, I = self.a, self.I
        self.srd(rWS, pWS, hex(WSSZ))
        self.srd(rDBG, pDBG, 256)
        self.srd(rOUT, pOUT, 2048)
        I("s_and_b32", sr(sT0), "s2", 7); I("s_lshr_b32", sr(sT1), sr(sT0), 1); I("s_lshl_b32", sr(sT1), sr(sT1), 4)
        I("s_lshr_b32", sr(sT2), "s2", 4); I("s_add_u32", sr(sT1), sr(sT1), sr(sT2))
        I("s_and_b32", sr(sT0), sr(sT0), 1)
        I("s_bfe_u32", sr(sT2), "s2", "0x10003")
        I("s_lshl_b32", sr(sT2), sr(sT2), 1); I("s_add_u32", sr(sT0), sr(sT0), sr(sT2))
        I("s_mov_b32", sr(sRole), 0)
        I("s_mov_b32", sr(sF), sr(sT1))
        I("s_cmp_eq_u32", sr(sT0), 1); I("s_cselect_b32", sr(sRole), 3, sr(sRole))
        I("s_cmp_lt_u32", sr(sT1), NF); I("s_cselect_b32", sr(sT2), 2, 0)
        I("s_cmp_eq_u32", sr(sT0), 2); I("s_cselect_b32", sr(sRole), sr(sT2), sr(sRole))
        I("s_add_u32", sr(sT2), sr(sT1), 2 * self.hshift); I("s_and_b32", sr(sT2), sr(sT2), 63)
        I("s_cmp_eq_u32", sr(sT0), 0); I("s_cselect_b32", sr(sRole), 1, sr(sRole)); I("s_cselect_b32", sr(sF), sr(sT2), sr(sF))
        I("s_lshr_b32", sr(sHW), sr(sF), 1)
        lab_f, lab_done = self.L("RF"), self.L("RDONE")
        I("s_cmp_eq_u32", sr(sRole), 2)
        I("s_cbranch_scc1", lab_f)
        I("s_lshl_b32", sr(sT0), sr(sF), 16)
        self.srd(rWA, pWO, (65536 if not self.nodma else 0), sr(sT0))
        self.srd(rWB, pWO, 0, sr(sT0))
        I("s_branch", lab_done)
        a.label(lab_f)
        I("s_lshl_b32", sr(sT0), sr(sF), 6)
        I("s_sub_u32", sr(sT1), hex(512 * 2752), sr(sT0))
        self.srd(rWA, pW1, sr(sT1), sr(sT0))
        I("s_lshl_b32", sr(sT0), sr(sF), 15)
        self.srd(rWB, pW2, 32768, sr(sT0))
        a.label(lab_done)

    def build(self):
        a, I = self.a, self.I
        self.stamp(0)
        if self.dbgtime: I("s_memrealtime", "s[38:39]")
        I("s_load_dwordx16", sr(16, 16), "s[0:1]", 0)
        I("s_load_dwordx4", sr(32, 4), "s[0:1]", 64)
        I("s_load_dwordx2", sr(36, 2), "s[0:1]", 80)
        I("s_cmp_ge_u32", "s2", 256)
        I("s_cbranch_scc1", "L_END")
        I("v_and_b32", vr(vLane), 63, "v0")
        I("v_lshrrev_b32", vr(vT5), 6, "v0")
        I("v_and_b32", vr(vC), 15, "v0")
        I("v_readfirstlane_b32", sr(sW), vr(vT5))
        I("v_bfe_u32", vr(vG), "v0", 4, 2)
        I("s_and_b32", sr(sT0), "s2", 7)
        I("s_lshr_b32", sr(sT1), "s2", 3)
        if self.map == 0:
            I("s_and_b32", sr(sE), sr(sT0), 1)
            I("s_lshr_b32", sr(sT0), sr(sT0), 1)
            I("s_and_b32", sr(sHalf), sr(sT1), 1)
            I("s_lshr_b32", sr(sT2), sr(sT1), 1)
            I("s_lshr_b32", sr(sB), sr(sT2), 3)
            I("s_and_b32", sr(sT2), sr(sT2), 7)
            I("s_lshl_b32", sr(sH), sr(sT0), 3); I("s_add_u32", sr(sH), sr(sH), sr(sT2))
        else:
            I("s_and_b32", sr(sE), sr(sT1), 1)
            I("s_bfe_u32", sr(sHalf), sr(sT1), "0x10001")
            I("s_bfe_u32", sr(sB), sr(sT1), "0x10002")
            I("s_lshr_b32", sr(sT2), sr(sT1), 3)
            I("s_lshl_b32", sr(sH), sr(sT0), 2); I("s_add_u32", sr(sH), sr(sH), sr(sT2))
        I("s_lshl_b32", sr(sBH), sr(sB), 5); I("s_add_u32", sr(sBH), sr(sBH), sr(sH))
        I("s_lshl_b32", sr(sM), sr(sHalf), 1); I("s_add_u32", sr(sM), sr(sM), sr(sE))
        I("v_lshlrev_b32", vr(vKV), 4, vr(vLane))
        if self.pat == 1:
            I("s_lshl_b32", sr(sT0), sr(sW), 15)
            I("v_add_u32", vr(vKV), sr(sT0), vr(vKV))
            I("s_cmp_eq_u32", sr(sE), 0)
            self.csel(sT0, 1024, -1024)
            self.csel(sN, 16 + self.skew, 16 - self.skew)
            I("s_mul_i32", sr(sOFF), sr(sE), 31744)
        else:
            I("s_cmp_eq_u32", sr(sE), 0)
            self.csel(sN, 16 + self.skew, 16 - self.skew)
            I("s_mul_i32", sr(sT0), sr(sN), sr(sW)); I("s_lshl_b32", sr(sT0), sr(sT0), 10)
            I("v_add_u32", vr(vKV), sr(sT0), vr(vKV))
            I("s_movk_i32", sr(sT0), 1024)
            I("s_mul_i32", sr(sOFF), sr(sE), 16 * (16 + self.skew) * 1024)
        for i in range(1, self.nslot):
            I("s_add_u32", sr(sOFF + i), sr(sOFF + i - 1), sr(sT0))
        if self.skew:
            for i in (15, 16):
                I("s_cmp_gt_u32", sr(sN), i)
                I("s_cselect_b32", sr(sOFF + i), sr(sOFF + i), hex(OOB))
        I("s_waitcnt", "lgkmcnt(0)")
        if self.tags: I("s_load_dword", sr(sEp), sr(pWS, 2), hex(EPOCH))
        I("s_setprio", self.prios[0])
        if not self.tags:
            lab_r1 = self.L("RL1")
            I("s_cmp_eq_u32", sr(sW), 0)
            I("s_cbranch_scc0", lab_r1)
            self.roles()
            if not self.noinv: self.invalidate()
            a.label(lab_r1)
        NP = self.npre
        XF, WQ = 8, kslot(17)
        I("s_lshl_b32", sr(sT0), sr(sBH), 20); I("s_lshl_b32", sr(sT1), sr(sHalf), 19); I("s_add_u32", sr(sT0), sr(sT0), sr(sT1))
        self.srd(rK, pK, "0x80000", sr(sT0))
        for kq in range(NP):
            self.vm(f"K{kq}", "buffer_load_dwordx4", vr(kslot(kq), 4), vr(vKV), sr(rK, 4), sr(sOFF + kq), mods="offen nt")
        if self.stamps:
            I("s_memrealtime", "s[94:95]")
        self.srd(rV, pV, "0x80000", sr(sT0))
        self.srd(rX, pX, 2048)
        I("s_lshl_b32", sr(sT0), sr(sH), 8)
        I("s_sub_u32", sr(sT1), hex(512 * 8192), sr(sT0))
        self.srd(rWQ, pWQ, sr(sT1), sr(sT0))
        if not self.tags:
            raise SystemExit("tags=0 no longer supported with this ordering")
        if self.map == 0:
            I("s_lshl_b32", sr(sT0), sr(sB), 1); I("s_add_u32", sr(sT0), sr(sT0), sr(sHalf)); I("s_lshl_b32", sr(sT0), sr(sT0), 2)
        else:
            I("s_lshr_b32", sr(sT0), "s2", 3); I("s_and_b32", sr(sT0), sr(sT0), 7); I("s_mul_i32", sr(sT0), sr(sT0), self.rot)
        I("s_add_u32", sr(sT0), sr(sT0), sr(sW)); I("s_and_b32", sr(sRB), sr(sT0), 15)
        I("v_lshlrev_b32", vr(vT5), 4, vr(vLane))
        I("s_lshl_b32", sr(sT1), sr(sB), 10)
        self.vm("xf", "buffer_load_dwordx4", vr(XF, 4), vr(vT5), sr(rX, 4), sr(sT1), mods="offen")
        I("s_lshl_b32", sr(sT0), sr(sRB), 5)
        I("v_lshl_add_u32", vr(vT6), vr(vG), 1, sr(sT0))
        I("v_lshlrev_b32", vr(vT7), 13, vr(vT6))
        I("v_lshl_add_u32", vr(vT7), vr(vC), 4, vr(vT7))
        for i in range(8):
            off = (8 * (i >> 1) + (i & 1)) * 8192
            I("s_mov_b32", sr(sT2), off if not self.nowq else OOB)
            self.vm(f"wq{i}", "buffer_load_dwordx4", vr(WQ + 4 * i, 4), vr(vT7), sr(rWQ, 4), sr(sT2), mods=("offen " + self.wqflag).strip())
            if i == 1:
                I("v_lshlrev_b32", vr(vT5), 2, vr(vLane)); I("v_mov_b32", vr(vT6), 0)
                I("s_mov_b64", "exec", 15)
                I("ds_write_b32", vr(vT5), vr(vT6), mods=f"offset:{L_CNT}")
                self.execall()
                I("s_waitcnt", "lgkmcnt(0)")
                I("s_barrier")
        I("s_setprio", self.prios[1])
        nK2 = self.npre2 - NP
        if self.bw:
            lab_b = self.L("BW")
            I("s_cmp_ge_u32", sr(sW), self.bw)
            I("s_cbranch_scc1", lab_b)
        for kq in range(NP, self.npre2):
            self.vm(f"K{kq}", "buffer_load_dwordx4", vr(kslot(kq), 4), vr(vKV), sr(rK, 4), sr(sOFF + kq), mods="offen nt")
        if self.bw:
            a.label(lab_b)
        def wait_dual(tag):
            if not self.bw:
                self.wait_vm(tag); return
            idx = self.issued.index(tag)
            n = len(self.issued) - 1 - idx
            l0, l1 = self.L("WD"), self.L("WDJ")
            I("s_cmp_ge_u32", sr(sW), self.bw)
            I("s_cbranch_scc1", l0)
            I("s_waitcnt", f"vmcnt({n})")
            I("s_branch", l1)
            a.label(l0)
            I("s_waitcnt", f"vmcnt({n - nK2})")
            a.label(l1)
        self.stamp(1)
        self.roles()
        if self.touch and not self.stamps:
            lab_nt = self.L("NT")
            I("s_cmp_eq_u32", sr(sW), 1)
            I("s_cbranch_scc0", lab_nt)
            I("v_mov_b32", vr(vT5), 0)
            I("s_mov_b64", "exec", 1)
            I("s_mov_b32", sr(sT0), hex(OPART))
            I("buffer_load_dword", "v0", vr(vT5), sr(rWS, 4), sr(sT0), mods="offen sc1")
            I("buffer_load_dword", "v0", vr(vT5), sr(rWA, 4), 0, mods="offen nt")
            I("buffer_load_dword", "v0", vr(vT5), sr(rWB, 4), 0, mods="offen nt")
            I("buffer_load_dword", "v0", vr(vT5), sr(rOUT, 4), 0, mods="offen nt")
            self.execall()
            I("s_waitcnt", "vmcnt(63)")
            a.label(lab_nt)
        if self.noq:
            I("s_branch", "L_NOQ")
        I("s_mov_b32", sr(sT4), "0x3f803f80")
        wait_dual("xf")
        if not self.tags:
            lab_noat = self.L("NOAT")
            I("s_cmp_eq_u32", sr(sW), 0)
            I("s_cbranch_scc0", lab_noat)
            self.stamp(17)
            I("v_mov_b32", vr(vT5), 0); I("v_mov_b32", vr(vT6), 1)
            I("s_lshl_b32", sr(sT0), sr(sH), 2)
            I("s_mov_b64", "exec", 1)
            I("buffer_atomic_add", vr(vT6), vr(vT5), sr(rDBG, 4), sr(sT0), mods="offen sc1")
            self.execall()
            a.label(lab_noat)
        I("s_mov_b32", sr(sT4), "0x3f803f80")
        A1, A2, T0 = 22, 23, 26
        for k in range(4):
            I("v_dot2_f32_bf16", vr(A1), vr(XF + k), sr(sT4), (0 if k == 0 else vr(A1)))
            I("v_dot2_f32_bf16", vr(A2), vr(XF + k), vr(XF + k), (0 if k == 0 else vr(A2)))
        self.wave_reduce63("v_add_f32", [A1, A2])
        I("v_readlane_b32", sr(sT0), vr(A1), 63); I("v_readlane_b32", sr(sT1), vr(A2), 63)
        M0, R0 = 22, 23
        self.ln_scalars1(sT0, sT1, M0, R0, T0)
        XU = 12
        for k in range(4): self.unpack(XU + 2 * k, XU + 2 * k + 1, XF + k)
        for e in range(8): I("v_sub_f32", vr(XU + e), vr(XU + e), vr(M0))
        for k in range(4): I("v_cvt_pk_bf16_f32", vr(XF + k), vr(XU + 2 * k), vr(XU + 2 * k + 1))
        for k in range(4): self.unpack(XU + 2 * k, XU + 2 * k + 1, XF + k)
        for e in range(8): I("v_mul_f32", vr(XU + e), vr(XU + e), vr(R0))
        for k in range(4): I("v_cvt_pk_bf16_f32", vr(XF + k), vr(XU + 2 * k), vr(XU + 2 * k + 1))
        I("v_lshlrev_b32", vr(vT5), 4, vr(vLane))
        I("s_lshl_b32", sr(sT0), sr(sW), 10)
        I("v_add_u32", vr(vT5), sr(sT0), vr(vT5))
        I("ds_write_b128", vr(vT5), vr(XF, 4), mods=f"offset:{L_XN}")
        I("s_lshl_b32", sr(sT1), sr(sRB), 6); I("s_add_u32", sr(sT0), sr(sT0), sr(sT1))
        I("v_lshlrev_b32", vr(vT5), 2, vr(vG))
        I("v_add_u32", vr(vT5), sr(sT0), vr(vT5))
        I("s_waitcnt", "lgkmcnt(0)")
        for ip in range(4):
            I("ds_read_b32", vr(12 + ip), vr(vT5), mods=f"offset:{L_XN + 16 * ip}")
        P = vACC
        PT = kslot(15)
        I("s_mov_b32", sr(sT2), "0x05040100"); I("s_mov_b32", sr(sT3), "0x07060302")
        I("s_waitcnt", "lgkmcnt(0)")
        for ip in range(4):
            wait_dual(f"wq{2 * ip + 1}")
            wa, wb = WQ + 8 * ip, WQ + 8 * ip + 4
            for k in range(4):
                I("v_perm_b32", vr(PT + 2 * k), vr(wb + k), vr(wa + k), sr(sT2))
                I("v_perm_b32", vr(PT + 2 * k + 1), vr(wb + k), vr(wa + k), sr(sT3))
            for e in range(8):
                I("v_dot2_f32_bf16", vr(P + e), vr(PT + e), vr(12 + ip), (0 if ip == 0 else vr(P + e)))
        for i in range(4): I("v_permlane32_swap_b32", vr(P + 2 * i), vr(P + 2 * i + 1))
        for i in range(4): I("v_add_f32", vr(P + 2 * i), vr(P + 2 * i), vr(P + 2 * i + 1))
        for i in range(2): I("v_permlane16_swap_b32", vr(P + 4 * i), vr(P + 4 * i + 2))
        for i in range(2): I("v_add_f32", vr(8 + i), vr(P + 4 * i), vr(P + 4 * i + 2))
        self.perm_g(vT6, vT7)
        I("v_lshl_add_u32", vr(vT5), vr(vC), 3, vr(vT6))
        I("v_lshlrev_b32", vr(vT5), 2, vr(vT5))
        I("s_lshl_b32", sr(sT0), sr(sW), 9)
        I("v_add_u32", vr(vT5), sr(sT0), vr(vT5))
        I("ds_write_b32", vr(vT5), vr(8), mods=f"offset:{L_QP}")
        I("ds_write_b32", vr(vT5), vr(9), mods=f"offset:{L_QP + 16}")
        I("s_waitcnt", "lgkmcnt(0)")
        I("v_mov_b32", vr(vT6), L_QCNT); I("v_mov_b32", vr(vT7), 1)
        I("s_mov_b64", "exec", 1)
        I("ds_add_rtn_u32", vr(vT5), vr(vT6), vr(vT7))
        self.execall()
        I("s_waitcnt", "lgkmcnt(0)")
        I("v_readfirstlane_b32", sr(sT0), vr(vT5))
        self.stamp(2)
        lab_notlast = self.L("NOTLAST")
        I("s_cmp_eq_u32", sr(sT0), 15)
        I("s_cbranch_scc0", lab_notlast)
        I("v_and_b32", vr(vT5), 31, vr(vLane)); I("v_lshlrev_b32", vr(vT5), 4, vr(vT5))
        I("v_lshrrev_b32", vr(vT6), 5, vr(vLane)); I("v_lshlrev_b32", vr(vT6), 12, vr(vT6))
        I("v_add_u32", vr(vT5), vr(vT5), vr(vT6))
        RB = WQ
        for k in range(8):
            I("ds_read_b128", vr(RB + 4 * k, 4), vr(vT5), mods=f"offset:{L_QP + 512 * k}")
        I("s_waitcnt", "lgkmcnt(0)")
        for e in range(4):
            for k in (0, 2, 4, 6): I("v_add_f32", vr(RB + 4 * k + e), vr(RB + 4 * k + e), vr(RB + 4 * k + 4 + e))
        for e in range(4):
            I("v_add_f32", vr(RB + e), vr(RB + e), vr(RB + 8 + e)); I("v_add_f32", vr(RB + 16 + e), vr(RB + 16 + e), vr(RB + 24 + e))
        for e in range(4): I("v_add_f32", vr(RB + e), vr(RB + e), vr(RB + 16 + e))
        for e in range(4): I("v_mov_b32", vr(RB + 4 + e), vr(RB + e))
        for e in range(4): I("v_permlane32_swap_b32", vr(RB + e), vr(RB + 4 + e))
        for e in range(4): I("v_add_f32", vr(RB + e), vr(RB + e), vr(RB + 4 + e))
        I("v_cvt_pk_bf16_f32", vr(RB + 8), vr(RB), vr(RB + 1)); I("v_cvt_pk_bf16_f32", vr(RB + 9), vr(RB + 2), vr(RB + 3))
        I("v_and_b32", vr(vT5), 31, vr(vLane)); I("v_lshlrev_b32", vr(vT5), 3, vr(vT5))
        I("ds_write_b64", vr(vT5), vr(RB + 8, 2), mods=f"offset:{L_QB}")
        I("s_waitcnt", "lgkmcnt(0)")
        self.lds_set(L_FQ, 1)
        a.label(lab_notlast)
        if self.noq:
            a.label("L_NOQ")
            self.lds_set(L_FQ, 1)
        if self.bw:
            lab_b2 = self.L("BW2")
            I("s_cmp_ge_u32", sr(sW), self.bw)
            I("s_cbranch_scc0", lab_b2)
            I("s_setprio", self.prios[1])
            for kq in range(NP, self.npre2):
                I("buffer_load_dwordx4", vr(kslot(kq), 4), vr(vKV), sr(rK, 4), sr(sOFF + kq), mods="offen nt")
            a.label(lab_b2)
        I("s_setprio", self.prios[2])
        for i in range(self.npre2, self.nslot):
            self.vm(f"K{i}", "buffer_load_dwordx4", vr(kslot(i), 4), vr(vKV), sr(rK, 4), sr(sOFF + i), mods="offen nt")
        if self.t1test:
            I("s_lshl_b32", sr(sT0), sr(sH), 17)
            I("s_add_u32", "s84", sr(pWO), sr(sT0)) if False else None
            I("v_lshrrev_b32", vr(vT5), 2, vr(vLane)); I("v_lshlrev_b32", vr(vT5), 10, vr(vT5))
            I("v_and_b32", vr(vT6), 3, vr(vLane)); I("v_lshl_add_u32", vr(vT5), vr(vT6), 4, vr(vT5))
            I("s_lshl_b32", sr(sT1), sr(sW), 6); I("v_add_u32", vr(vT5), sr(sT1), vr(vT5))
            I("s_mov_b32", sr(sT2), 0)
            I("s_lshl_b32", sr(sT1), sr(sW), 12); I("s_add_u32", sr(sT1), sr(sT1), 20480)
            for k in range(8):
                I("s_mov_b32", "m0", sr(sT1))
                self.vm(f"T1_{k}", "buffer_load_dwordx4", vr(vT5), sr(rT1, 4), sr(sT2), mods=("offen lds" if self.t1test == 1 else "offen nt lds"))
                I("s_add_u32", sr(sT2), sr(sT2), 16 * 1024)
        if not self.kfirst:
            I("s_setprio", self.prios[3])
            for i in range(8):
                self.vm(f"V{i}", "buffer_load_dwordx4", vr(vslot(i), 4), vr(vKV), sr(rV, 4), sr(sOFF + i), mods="offen nt")
            self.stamp(16)
            self.lds_wait(L_FQ, 1)
            I("s_setprio", self.prios[4])
            self.stamp(4)
            I("v_lshlrev_b32", vr(vT5), 4, vr(vC))
            I("ds_read_b128", vr(vQ, 4), vr(vT5), mods=f"offset:{L_QB}")
            I("s_mov_b32", sr(sMask), "0x00010001"); I("s_mov_b32", sr(sMask + 1), "0x00010001")
            I("v_mov_b32", vr(vS), 0)
            I("s_waitcnt", "lgkmcnt(0)")
            groups = [[0, 1, 2, 3], [4, 5, 6, 7], [8, 9, 10, 11], [12, 13, 14], [15, 16]]
            nextv = 8
            for grp in groups:
                self.wait_vm(f"K{grp[-1]}")
                for n, i in enumerate(grp):
                    I("v_dot2_f32_bf16", vr(vD + n), vr(kslot(i)), vr(vQ), 0)
                for k in range(1, 4):
                    for n, i in enumerate(grp):
                        I("v_dot2_f32_bf16", vr(vD + n), vr(kslot(i) + k), vr(vQ + k), vr(vD + n))
                for i in grp:
                    if i <= 8 and nextv <= 16:
                        assert vslot(nextv) == kslot(i)
                        self.vm(f"V{nextv}", "buffer_load_dwordx4", vr(vslot(nextv), 4), vr(vKV), sr(rV, 4), sr(sOFF + nextv), mods="offen nt")
                        nextv += 1
                self.row_reduce("v_add_f32", [vD + n for n in range(len(grp))])
                for n, i in enumerate(grp):
                    if i < 16:
                        I("v_cndmask_b32", vr(vS), vr(vS), vr(vD + n), sr(sMask, 2))
                        if i < 15: I("s_lshl_b64", sr(sMask, 2), sr(sMask, 2), 1)
                    else:
                        I("v_mov_b32", vr(vS2), vr(vD + n))
                if nextv == 17 and not self.wo_done and not self.late_wo:
                    self.wo_dma()
        else:
            lab_qok, lab_kph, lab_vdone = self.L("QOK"), self.L("KPH"), self.L("VD")
            I("s_setprio", self.prios[3])
            I("v_mov_b32", vr(vT6), L_FQ)
            I("ds_read_b32", vr(vT7), vr(vT6))
            I("s_waitcnt", "lgkmcnt(0)")
            I("v_readfirstlane_b32", sr(sU3 - 1), vr(vT7))
            I("s_cmp_ge_u32", sr(sU3 - 1), 1)
            I("s_cbranch_scc1", lab_kph)
            for i in range(8):
                I("buffer_load_dwordx4", vr(vslot(i), 4), vr(vKV), sr(rV, 4), sr(sOFF + i), mods="offen nt")
            self.stamp(16)
            self.lds_wait(L_FQ, 1)
            a.label(lab_kph)
            I("s_setprio", self.prios[4])
            self.stamp(4)
            I("v_lshlrev_b32", vr(vT5), 4, vr(vC))
            I("ds_read_b128", vr(vQ, 4), vr(vT5), mods=f"offset:{L_QB}")
            I("s_mov_b32", sr(sMask), "0x00010001"); I("s_mov_b32", sr(sMask + 1), "0x00010001")
            I("v_mov_b32", vr(vS), 0)
            I("s_waitcnt", "lgkmcnt(0)")
            groups = [[0, 1, 2, 3], [4, 5, 6, 7], [8, 9, 10, 11], [12, 13, 14], [15, 16]]
            if self.nslot == 16:
                groups = [[0, 1, 2, 3], [4, 5, 6, 7], [8, 9, 10, 11], [12, 13, 14, 15]]
                I("v_mov_b32", vr(vS2), 0)
            for grp in groups:
                self.wait_vm(f"K{grp[-1]}")
                for n, i in enumerate(grp):
                    I("v_dot2_f32_bf16", vr(vD + n), vr(kslot(i)), vr(vQ), 0)
                for k in range(1, 4):
                    for n, i in enumerate(grp):
                        I("v_dot2_f32_bf16", vr(vD + n), vr(kslot(i) + k), vr(vQ + k), vr(vD + n))
                if grp[-1] == self.nslot - 1:
                    I("s_cmp_ge_u32", sr(sU3 - 1), 1)
                    I("s_cbranch_scc0", lab_vdone)
                    for i in range(8):
                        I("buffer_load_dwordx4", vr(vslot(i), 4), vr(vKV), sr(rV, 4), sr(sOFF + i), mods="offen nt")
                    a.label(lab_vdone)
                    for i in range(8): self.issued.append(f"V{i}")
                    for i in range(8, self.nslot):
                        self.vm(f"V{i}", "buffer_load_dwordx4", vr(vslot(i), 4), vr(vKV), sr(rV, 4), sr(sOFF + i), mods="offen nt")
                self.row_reduce("v_add_f32", [vD + n for n in range(len(grp))])
                for n, i in enumerate(grp):
                    if i < 16:
                        I("v_cndmask_b32", vr(vS), vr(vS), vr(vD + n), sr(sMask, 2))
                        if i < 15: I("s_lshl_b64", sr(sMask, 2), sr(sMask, 2), 1)
                    else:
                        I("v_mov_b32", vr(vS2), vr(vD + n))
            if not self.wo_done and not self.late_wo:
                self.wo_dma()
        T0, T1 = 18, 19
        I("v_cvt_pk_bf16_f32", vr(T0), vr(vS), vr(vS2))
        self.unpack(vS, vS2, T0)
        I("v_mul_f32", vr(vS), hex(SCALE), vr(vS)); I("v_mul_f32", vr(vS2), hex(SCALE), vr(vS2))
        I("v_cvt_pk_bf16_f32", vr(T0), vr(vS), vr(vS2))
        self.unpack(vS, vS2, T0)
        I("v_mov_b32", vr(T1), "0xff800000")
        I("v_cmp_gt_u32", "vcc", sr(sN), vr(vC))
        I("v_cndmask_b32", vr(vS), vr(T1), vr(vS), "vcc")
        I("s_cmp_gt_u32", sr(sN), 16)
        self.csel(sT0, "0x7f800000", "0xff800000")
        I("v_min_f32", vr(vS2), sr(sT0), vr(vS2))
        I("v_max_f32", vr(T0), vr(vS), vr(vS2))
        self.wave_reduce63("v_max_f32", [T0])
        I("v_readlane_b32", sr(sT0), vr(T0), 63)
        I("v_subrev_f32", vr(vS), sr(sT0), vr(vS)); I("v_subrev_f32", vr(vS2), sr(sT0), vr(vS2))
        I("v_mul_f32", vr(vS), hex(LOG2E), vr(vS)); I("v_mul_f32", vr(vS2), hex(LOG2E), vr(vS2))
        I("v_exp_f32", vr(vS), vr(vS)); I("v_exp_f32", vr(vS2), vr(vS2))
        I("v_mov_b32", vr(T0), vr(vS))
        I("v_fmac_f32", vr(T0), "0x3d800000", vr(vS2))
        self.wave_reduce63("v_add_f32", [T0])
        I("v_mov_b32", vr(T1), vr(T0))
        I("v_mov_b32", vr(T0), sr(sT0))
        I("s_lshl_b32", sr(sT1), sr(sW), 3)
        I("v_mov_b32", vr(vT5), sr(sT1))
        self.exec63()
        I("ds_write_b64", vr(vT5), vr(T0, 2), mods=f"offset:{L_ML}")
        I("s_waitcnt", "lgkmcnt(0)")
        I("v_mov_b32", vr(vT5), L_CNT); I("v_mov_b32", vr(vT6), 1)
        I("ds_add_u32", vr(vT5), vr(vT6))
        self.execall()
        self.stamp(5)
        for e in range(8): I("v_mov_b32", vr(vACC + e), 0)
        for i in range(self.nslot):
            if self.wo_at and i > self.wo_at:
                idx = self.issued.index(f"V{i}")
                n = len(self.issued) - 1 - idx
                l0, l1 = self.L("WV"), self.L("WVJ")
                I("s_cmp_eq_u32", sr(sRole), 1)
                I("s_cbranch_scc1", l0)
                I("s_waitcnt", f"vmcnt({n})")
                I("s_branch", l1)
                a.label(l0)
                I("s_waitcnt", f"vmcnt({n + 4})")
                a.label(l1)
            else:
                self.wait_vm(f"V{i}")
            for k in range(4):
                self.unpack(8 + 2 * k, 9 + 2 * k, vslot(i) + k)
            for k in range(4):
                for hh in range(2):
                    if i < 16:
                        I("v_fmac_f32_dpp", vr(vACC + 2 * k + hh), vr(vS), vr(8 + 2 * k + hh), mods=f"row_newbcast:{i} row_mask:0xf bank_mask:0xf")
                    else:
                        I("v_fmac_f32", vr(vACC + 2 * k + hh), vr(vS2), vr(8 + 2 * k + hh))
            if self.wo_at and i == self.wo_at:
                self.wo_dma()
        self.stamp(6)
        if self.tags:
            I("s_add_u32", sr(sEp), sr(sEp), 1)
            I("s_and_b32", sr(sT0), sr(sEp), hex(TAGM))
            I("v_mov_b32", vr(vTag), sr(sT0))
            I("s_mov_b32", sr(sTagM), hex(0xFFFFFFFF ^ TAGM))
        for i in range(4): I("v_permlane32_swap_b32", vr(vACC + 2 * i), vr(vACC + 2 * i + 1))
        for i in range(4): I("v_add_f32", vr(vACC + 2 * i), vr(vACC + 2 * i), vr(vACC + 2 * i + 1))
        for i in range(2): I("v_permlane16_swap_b32", vr(vACC + 4 * i), vr(vACC + 4 * i + 2))
        for i in range(2): I("v_add_f32", vr(8 + i), vr(vACC + 4 * i), vr(vACC + 4 * i + 2))
        self.perm_g(vT6, vT7)
        I("v_lshl_add_u32", vr(vT5), vr(vC), 3, vr(vT6))
        I("v_lshlrev_b32", vr(vT5), 2, vr(vT5))
        I("s_lshl_b32", sr(sT0), sr(sW), 9)
        I("v_add_u32", vr(vT5), sr(sT0), vr(vT5))
        I("ds_write_b32", vr(vT5), vr(8), mods=f"offset:{L_OP}")
        I("ds_write_b32", vr(vT5), vr(9), mods=f"offset:{L_OP + 16}")
        if self.wsplit and not self.wo_at:
            lab_ws = self.L("WSP")
            I("s_cmp_lt_u32", sr(sW), self.wsplit)
            I("s_cbranch_scc0", lab_ws)
            self.wo_dma()
            a.label(lab_ws)
        if self.fearly: self.ffn_dma()
        lab_w4 = self.L("W4")
        I("s_cmp_lt_u32", sr(sW), 4)
        I("s_cbranch_scc0", lab_w4)
        self.lds_wait(L_CNT, 16, sleep=1)
        I("v_lshrrev_b32", vr(vT7), 3, vr(vLane))
        I("v_lshlrev_b32", vr(13), 4, vr(vT7))
        I("ds_read_b128", vr(12, 4), vr(13), mods=f"offset:{L_ML}")
        I("s_waitcnt", "lgkmcnt(0)")
        I("v_max_f32", vr(16), vr(12), vr(14))
        self.wave_reduce63("v_max_f32", [16])
        I("v_readlane_b32", sr(sT0), vr(16), 63)
        I("v_subrev_f32", vr(12), sr(sT0), vr(12)); I("v_subrev_f32", vr(14), sr(sT0), vr(14))
        I("v_mul_f32", vr(12), hex(LOG2E), vr(12)); I("v_mul_f32", vr(14), hex(LOG2E), vr(14))
        I("v_exp_f32", vr(12), vr(12)); I("v_exp_f32", vr(14), vr(14))
        I("v_mul_f32", vr(16), vr(12), vr(13)); I("v_fmac_f32", vr(16), vr(14), vr(15))
        I("v_mul_f32", vr(16), "0x3e000000", vr(16))
        self.wave_reduce63("v_add_f32", [16])
        lab_noml = self.L("NOML")
        I("s_cmp_eq_u32", sr(sW), 0)
        I("s_cbranch_scc0", lab_noml)
        I("v_mov_b32", vr(17), vr(16))
        I("v_mov_b32", vr(16), sr(sT0))
        self.clamp(16); self.clamp(17)
        I("s_lshl_b32", sr(sT1), sr(sBH), 2); I("s_add_u32", sr(sT1), sr(sT1), sr(sM)); I("s_lshl_b32", sr(sT1), sr(sT1), 3)
        I("s_add_u32", sr(sT1), sr(sT1), hex(ML))
        I("v_mov_b32", vr(vT5), 0)
        self.exec63()
        I("buffer_store_dwordx2", vr(16, 2), vr(vT5), sr(rWS, 4), sr(sT1), mods="offen sc1")
        self.execall()
        a.label(lab_noml)
        if not self.tags: self.check_all_counters()
        self.stamp(18)
        I("v_and_b32", vr(vT5), 7, vr(vLane)); I("v_lshlrev_b32", vr(16), 4, vr(vT5))
        I("v_lshrrev_b32", vr(vT7), 3, vr(vLane)); I("v_lshlrev_b32", vr(vT6), 10, vr(vT7))
        I("v_add_u32", vr(16), vr(16), vr(vT6))
        I("s_lshl_b32", sr(sT0), sr(sW), 7)
        I("v_add_u32", vr(16), sr(sT0), vr(16))
        self.perm_g(vT6, vT7)
        I("v_lshl_add_u32", vr(17), vr(vT5), 2, vr(vT6))
        I("v_lshlrev_b32", vr(17), 2, vr(17))
        I("s_lshl_b32", sr(sU0), sr(sBH), 2); I("s_add_u32", sr(sU0), sr(sU0), sr(sM)); I("s_lshl_b32", sr(sU0), sr(sU0), 9)
        I("s_add_u32", sr(sU0), sr(sU0), sr(sT0)); I("s_add_u32", sr(sU0), sr(sU0), hex(OPART))
        a.label(lab_w4)
        I("s_waitcnt", "lgkmcnt(0)")
        I("s_barrier")
        self.stamp(7)
        lab_exit_wait = self.L("XW")
        I("s_cmp_lt_u32", sr(sW), 4)
        I("s_cbranch_scc0", lab_exit_wait)
        I("ds_read_b128", vr(20, 4), vr(16), mods=f"offset:{L_OP}")
        I("ds_read_b128", vr(24, 4), vr(16), mods=f"offset:{L_OP + 512}")
        I("s_waitcnt", "lgkmcnt(0)")
        for e in range(4): I("v_mul_f32", vr(20 + e), vr(20 + e), vr(12))
        for e in range(4): I("v_fmac_f32", vr(20 + e), vr(24 + e), vr(14))
        I("v_permlane32_swap_b32", vr(20), vr(21)); I("v_permlane32_swap_b32", vr(22), vr(23))
        I("v_add_f32", vr(20), vr(20), vr(21)); I("v_add_f32", vr(22), vr(22), vr(23))
        self.swap_add(16, 20, 22, 20)
        self.dpp("v_add_f32", 20, 20, 20, "row_ror:8")
        self.clamp(20)
        self.execm("0x00ff00ff", "0x00ff00ff")
        I("buffer_store_dword", vr(20), vr(17), sr(rWS, 4), sr(sU0), mods="offen sc1")
        self.execall()
        self.stamp(8)
        if self.stop == "attn":
            a.label(lab_exit_wait)
            return self.finish()
        self.tail(lab_exit_wait)
        return self.finish()

    def wo_dma(self):
        I = self.I
        skip = self.L("NWD")
        self.wo_done = True
        I("s_cmp_eq_u32", sr(sRole), 1)
        I("s_cbranch_scc0", skip)
        I("s_lshl_b32", sr(sT2), sr(sW), 12)
        I("v_lshlrev_b32", vr(vT5), 4, vr(vLane))
        I("s_mul_i32", sr(sT1), sr(sW), 4 * WROW); I("s_add_u32", sr(sT1), sr(sT1), L_WB)
        for k in range(4):
            I("s_mov_b32", "m0", sr(sT1))
            I("buffer_load_dwordx4", vr(vT5), sr(rWA, 4), sr(sT2), mods="offen nt lds")
            if k < 3:
                I("s_add_u32", sr(sT1), sr(sT1), WROW); I("s_add_u32", sr(sT2), sr(sT2), 1024)
        self.a.label(skip)

    def ffn_dma(self):
        I = self.I
        skip = self.L("NFD")
        I("s_cmp_eq_u32", sr(sRole), 2)
        I("s_cbranch_scc0", skip)
        I("s_lshl_b32", sr(sT0), sr(sW), 5)
        I("v_lshrrev_b32", vr(vT5), 2, vr(vLane)); I("v_add_u32", vr(vT5), sr(sT0), vr(vT5))
        I("s_movk_i32", sr(sT1), 2752)
        I("v_mul_lo_u32", vr(vT5), vr(vT5), sr(sT1))
        I("v_and_b32", vr(vT6), 3, vr(vLane))
        I("v_lshl_add_u32", vr(vT5), vr(vT6), 4, vr(vT5))
        I("s_lshl_b32", sr(sT0), sr(sW), 11); I("s_add_u32", sr(sT1), sr(sT0), L_WB)
        I("s_mov_b32", "m0", sr(sT1))
        I("buffer_load_dwordx4", vr(vT5), sr(rWA, 4), 0, mods="offen lds")
        I("s_add_u32", sr(sT1), sr(sT1), 1024)
        I("s_mov_b32", sr(sT2), 16 * 2752)
        I("s_mov_b32", "m0", sr(sT1))
        I("buffer_load_dwordx4", vr(vT5), sr(rWA, 4), sr(sT2), mods="offen lds")
        I("v_lshlrev_b32", vr(vT6), 4, vr(vLane)); I("v_add_u32", vr(vT6), sr(sT0), vr(vT6))
        I("s_mul_i32", sr(sT1), sr(sW), 2 * WROW); I("s_add_u32", sr(sT1), sr(sT1), L_W2)
        I("s_mov_b32", "m0", sr(sT1))
        I("buffer_load_dwordx4", vr(vT6), sr(rWB, 4), 0, mods="offen nt lds")
        I("s_add_u32", sr(sT1), sr(sT1), WROW)
        I("s_movk_i32", sr(sT2), 1024)
        I("s_mov_b32", "m0", sr(sT1))
        I("buffer_load_dwordx4", vr(vT6), sr(rWB, 4), sr(sT2), mods="offen nt lds")
        self.a.label(skip)

    def check_all_counters(self):
        a, I = self.a, self.I
        lp, ok = self.L("CA"), self.L("CAOK")
        I("s_mov_b32", sr(sSpin), SPIN_MAX)
        I("v_and_b32", vr(vT5), 31, vr(vLane)); I("v_lshlrev_b32", vr(vT5), 2, vr(vT5))
        a.label(lp)
        I("buffer_load_dword", vr(vT6), vr(vT5), sr(rDBG, 4), 0, mods="offen sc1")
        I("s_waitcnt", "vmcnt(0)")
        I("v_cmp_gt_u32", "vcc", 8, vr(vT6))
        I("s_cbranch_vccz", ok)
        I("s_sub_u32", sr(sSpin), sr(sSpin), 1)
        I("s_cbranch_scc0", lp)
        a.label(ok)

    def tail(self, lab_exit_wait):
        a, I = self.a, self.I
        if self.late_wo == 99 and self.wsplit < 4: self.wo_dma()
        if not self.fearly: self.ffn_dma()
        lab_ffn, lab_red = self.L("FFN"), self.L("RED")
        I("s_cmp_eq_u32", sr(sRole), 0)
        I("s_cbranch_scc1", "L_FIN")
        I("s_cmp_eq_u32", sr(sRole), 3)
        I("s_cbranch_scc1", lab_red)
        I("s_cmp_eq_u32", sr(sRole), 1)
        I("s_cbranch_scc0", lab_ffn)
        self.wo_stage()
        a.label(lab_ffn)
        self.ffn_stage()
        I("s_branch", "L_FIN")
        a.label(lab_red)
        I("s_cmp_eq_u32", sr(sW), 0)
        I("s_cbranch_scc0", "L_FIN")
        self.reducer()
        I("s_branch", "L_FIN")
        a.label(lab_exit_wait)
        if self.late_wo == 99:
            lab_ws2 = self.L("WSP2")
            I("s_cmp_ge_u32", sr(sW), self.wsplit)
            I("s_cbranch_scc0", lab_ws2)
            self.wo_dma()
            a.label(lab_ws2)
        if not self.fearly: self.ffn_dma()
        I("s_cmp_eq_u32", sr(sRole), 0)
        I("s_cbranch_scc1", "L_FIN")
        I("s_cmp_eq_u32", sr(sRole), 3)
        I("s_cbranch_scc1", "L_FIN")
        I("s_waitcnt", "vmcnt(0)")
        I("s_barrier")
        I("s_branch", "L_FIN")

    def dry_top(self):
        top = self.L("TOP")
        self.I("s_mov_b32", sr(sDry), 1 if self.dry else 0)
        self.a.label(top)
        return top
    def skip_if_dry(self):
        lab = self.L("SK")
        self.I("s_cmp_eq_u32", sr(sDry), 1)
        self.I("s_cbranch_scc1", lab)
        return lab
    def dry_end(self, top):
        lab = self.L("REAL")
        self.I("s_cmp_eq_u32", sr(sDry), 0)
        self.I("s_cbranch_scc1", lab)
        self.I("s_mov_b32", sr(sDry), 0)
        self.I("s_branch", top)
        self.a.label(lab)

    def wo_stage(self):
        a, I = self.a, self.I
        vI4, vI2 = 8, 9
        BW = 64
        vBS, vMS = 10, 11
        vAml, vAown, vAo, vAy = 40, 41, 42, 43
        ML0, O0 = 12, 44
        I("v_bfe_u32", vr(vBS), vr(vC), 2, 1); I("v_and_b32", vr(vMS), 3, vr(vC))
        I("v_lshlrev_b32", vr(vAml), 10, vr(vBS))
        I("v_lshl_add_u32", vr(vAown), vr(vMS), 3, vr(vAml))
        I("s_lshl_b32", sr(sU0), sr(sHW), 5); I("s_add_u32", sr(sU0), sr(sU0), hex(ML))
        I("v_lshlrev_b32", vr(vAo), 16, vr(vBS))
        I("v_lshl_add_u32", vr(vAo), vr(vMS), 9, vr(vAo))
        I("v_lshl_add_u32", vr(vAo), vr(vG), 5, vr(vAo))
        I("s_lshl_b32", sr(sU1), sr(sHW), 11)
        I("s_and_b32", sr(sT1), sr(sF), 1); I("s_lshl_b32", sr(sT1), sr(sT1), 8)
        I("s_add_u32", sr(sU1), sr(sU1), sr(sT1)); I("s_add_u32", sr(sU1), sr(sU1), hex(OPART))
        def loads():
            for k in range(4):
                I("buffer_load_dwordx4", vr(O0 + 4 * k, 4), vr(vAo), sr(rWS, 4), sr(sU1), mods=f"offen offset:{(k >> 1) * 128 + (k & 1) * 16} sc1")
            I("buffer_load_dwordx4", vr(ML0, 4), vr(vAml), sr(rWS, 4), sr(sU0), mods="offen sc1")
            I("buffer_load_dwordx4", vr(ML0 + 4, 4), vr(vAml), sr(rWS, 4), sr(sU0), mods="offen offset:16 sc1")
            I("buffer_load_dwordx2", vr(ML0 + 8, 2), vr(vAown), sr(rWS, 4), sr(sU0), mods="offen sc1")
        loads()
        I("v_lshrrev_b32", vr(vI4), 2, vr(vC)); I("v_and_b32", vr(vI2), 3, vr(vC))
        I("v_lshl_add_u32", vr(vT5), vr(vG), 3, vr(vI4))
        I("s_movk_i32", sr(sT0), WROW)
        I("v_mul_lo_u32", vr(vT5), vr(vT5), sr(sT0))
        I("v_lshl_add_u32", vr(vT5), vr(vI2), 3, vr(vT5))
        I("s_lshl_b32", sr(sT0), sr(sW), 8)
        I("v_add_u32", vr(vT5), sr(sT0), vr(vT5))
        I("v_add_u32", vr(vT5), L_WB, vr(vT5))
        I("s_waitcnt", "vmcnt(7)")
        I("s_barrier")
        self.stamp(23)
        for ks in range(2):
            for tt in range(8):
                I("ds_read_b64_tr_b16", vr(BW + 32 * ks + 4 * tt, 2), vr(vT5), mods=f"offset:{32 * ks * WROW + 32 * tt}")
                I("ds_read_b64_tr_b16", vr(BW + 32 * ks + 4 * tt + 2, 2), vr(vT5), mods=f"offset:{(32 * ks + 4) * WROW + 32 * tt}")
        I("v_and_b32", vr(vAy), 1, vr(vG)); I("v_lshlrev_b32", vr(vAy), 17, vr(vAy))
        I("v_lshrrev_b32", vr(vT6), 1, vr(vG)); I("v_lshlrev_b32", vr(vT6), 12, vr(vT6))
        I("v_add_u32", vr(vAy), vr(vAy), vr(vT6))
        I("v_lshl_add_u32", vr(vAy), vr(vC), 2, vr(vAy))
        I("s_lshl_b32", sr(sU2), sr(sW), 15)
        I("s_lshl_b32", sr(sT1), sr(sF), 6); I("s_add_u32", sr(sU2), sr(sU2), sr(sT1)); I("s_add_u32", sr(sU2), sr(sU2), hex(YPART))
        I("s_mov_b32", sr(sMask), 0); I("s_mov_b32", sr(sMask + 1), -1)
        regs = list(range(ML0, ML0 + 10)) + list(range(O0, O0 + 16))
        lp, ok = self.L("POLL"), self.L("POK")
        I("s_mov_b32", sr(sSpin), SPIN_MAX)
        I("s_waitcnt", "vmcnt(0)")
        self.check_regs(regs, vT7)
        I("s_cbranch_vccz", ok)
        a.label(lp)
        loads()
        I("s_waitcnt", "vmcnt(0)")
        self.check_regs(regs, vT7)
        I("s_cbranch_vccz", ok)
        I("s_sub_u32", sr(sSpin), sr(sSpin), 1)
        I("s_cbranch_scc0", lp)
        a.label(ok)
        self.stamp(21)
        T = 22
        I("v_max3_f32", vr(T), vr(ML0), vr(ML0 + 2), vr(ML0 + 4)); I("v_max_f32", vr(T), vr(T), vr(ML0 + 6))
        for n in range(5): I("v_sub_f32", vr(T + 1 + n), vr(ML0 + 2 * n), vr(T))
        for n in range(5): I("v_mul_f32", vr(T + 1 + n), hex(LOG2E), vr(T + 1 + n))
        for n in range(5): I("v_exp_f32", vr(T + 1 + n), vr(T + 1 + n))
        I("v_mul_f32", vr(T), vr(T + 1), vr(ML0 + 1))
        I("v_fmac_f32", vr(T), vr(T + 2), vr(ML0 + 3)); I("v_fmac_f32", vr(T), vr(T + 3), vr(ML0 + 5)); I("v_fmac_f32", vr(T), vr(T + 4), vr(ML0 + 7))
        I("v_rcp_f32", vr(T), vr(T))
        I("v_mul_f32", vr(T), vr(T), vr(T + 5))
        for e in range(16): I("v_mul_f32", vr(O0 + e), vr(O0 + e), vr(T))
        for e in range(16): self.dpp("v_add_f32", O0 + e, O0 + e, O0 + e, "quad_perm:[1,0,3,2]")
        for e in range(16): self.dpp("v_add_f32", O0 + e, O0 + e, O0 + e, "quad_perm:[2,3,0,1]")
        AO = 28
        for k in range(8): I("v_cvt_pk_bf16_f32", vr(AO + k), vr(O0 + 2 * k), vr(O0 + 2 * k + 1))
        I("s_waitcnt", "lgkmcnt(0)")
        Dr = [44, 48, 52, 56, 12, 16, 20, 24]
        for tt in range(8):
            I("v_mfma_f32_16x16x32_bf16", vr(Dr[tt], 4), vr(AO, 4), vr(BW + 4 * tt, 4), 0)
        for tt in range(8):
            I("v_mfma_f32_16x16x32_bf16", vr(Dr[tt], 4), vr(AO + 4, 4), vr(BW + 32 + 4 * tt, 4), vr(Dr[tt], 4))
        for tt in range(0, 8, 2):
            I("v_cndmask_b32", vr(36 + tt // 2), vr(Dr[tt]), vr(Dr[tt + 1]), sr(sMask, 2))
        for tt in range(4): self.clamp(36 + tt)
        for tt in range(4):
            I("buffer_store_dword", vr(36 + tt), vr(vAy), sr(rWS, 4), sr(sU2), mods="offen sc1")
            if tt < 3: I("s_add_u32", sr(sU2), sr(sU2), 8192)
        self.stamp(22)
        I("s_branch", "L_FIN")

    def reduce16(self, r0, out):
        I = self.I
        I("v_permlane32_swap_b32", vr(r0), vr(r0 + 1)); I("v_permlane32_swap_b32", vr(r0 + 2), vr(r0 + 3))
        I("v_add_f32", vr(r0), vr(r0), vr(r0 + 1)); I("v_add_f32", vr(r0 + 2), vr(r0 + 2), vr(r0 + 3))
        self.swap_add(16, r0, r0 + 2, out)
        self.dpp("v_add_f32", out, out, out, "row_ror:8")
        self.dpp("v_add_f32", out, out, out, "row_ror:4")

    def reducer(self):
        a, I = self.a, self.I
        vCol, vX, vAo, vH, vA, vAh = 60, 61, 62, 63, 8, 9
        Y, S, U3 = 64, 96, 112
        self.perm_g(vT6, vT7)
        I("v_and_b32", vr(vCol), 3, vr(vLane))
        I("v_lshl_add_u32", vr(vCol), vr(vCol), 2, vr(vT6))
        I("v_lshlrev_b32", vr(vAo), 1, vr(vCol))
        I("s_lshl_b32", sr(sT0), sr(sF), 5)
        I("buffer_load_ushort", vr(vX), vr(vAo), sr(rX, 4), sr(sT0), mods="offen")
        I("v_lshlrev_b32", vr(vA), 4, vr(vLane))
        I("v_lshlrev_b32", vr(vAh), 2, vr(vCol))
        I("s_lshl_b32", sr(sU0), sr(sF), 12); I("s_add_u32", sr(sU0), sr(sU0), hex(YPART))
        I("s_lshl_b32", sr(sU2), sr(sF), 6); I("s_add_u32", sr(sU2), sr(sU2), hex(HBUF))
        I("s_lshl_b32", sr(sU3), sr(sF), 5)
        I("s_mul_i32", sr(sT0), sr(sF), USTR); I("s_add_u32", sr(sT0), sr(sT0), hex(UPART))
        I("s_add_u32", sr(rWA), sr(pWS), sr(sT0)); I("s_addc_u32", sr(rWA + 1), sr(pWS + 1), 0)
        I("s_mov_b32", sr(rWA + 2), NF * 64); I("s_mov_b32", sr(rWA + 3), "0x20000")
        def loads():
            for k in range(4):
                I("buffer_load_dwordx4", vr(Y + 4 * k, 4), vr(vA), sr(rWS, 4), sr(sU0), mods=f"offen offset:{k * 1024} sc1")
        self.poll(loads, 4, range(Y, Y + 16))
        self.stamp(12)
        I("s_waitcnt", "vmcnt(0)")
        I("v_lshlrev_b32", vr(vX), 16, vr(vX))
        for e in range(4):
            I("v_add_f32", vr(S + e), vr(Y + e), vr(Y + 4 + e)); I("v_add_f32", vr(S + 4 + e), vr(Y + 8 + e), vr(Y + 12 + e))
        for e in range(4): I("v_add_f32", vr(S + e), vr(S + e), vr(S + 4 + e))
        self.reduce16(S, vH)
        I("v_cvt_pk_bf16_f32", vr(vH), vr(vH), vr(vH))
        I("v_lshlrev_b32", vr(vH), 16, vr(vH))
        I("v_add_f32", vr(vH), vr(vH), vr(vX))
        I("v_cvt_pk_bf16_f32", vr(vH), vr(vH), vr(vH))
        I("v_lshlrev_b32", vr(vH), 16, vr(vH))
        self.clamp(12, vH)
        self.execm("0x000f000f", "0x000f000f")
        I("buffer_store_dword", vr(12), vr(vAh), sr(rWS, 4), sr(sU2), mods="offen sc1")
        self.execall()
        self.stamp(13)
        I("s_mov_b32", sr(sMask), 0); I("s_mov_b32", sr(sMask + 1), "0xfffff000")
        def loads3():
            for k in range(3):
                I("buffer_load_dwordx4", vr(U3 + 4 * k, 4), vr(vA), sr(rWA, 4), 0, mods=f"offen offset:{k * 1024} sc1")
        if self.tags:
            lp, ok = self.L("POLL"), self.L("POK")
            I("s_mov_b32", sr(sSpin), SPIN_MAX)
            a.label(lp)
            loads3()
            I("s_waitcnt", "vmcnt(0)")
            for k in range(4):
                I("v_cndmask_b32", vr(U3 + 8 + k), vr(U3 + 8 + k), vr(vTag), sr(sMask, 2))
            self.check_regs(list(range(U3, U3 + 12)), vT7)
            I("s_cbranch_vccz", ok)
            I("s_sub_u32", sr(sSpin), sr(sSpin), 1)
            I("s_cbranch_scc0", lp)
            a.label(ok)
        else:
            self.poll(loads3, 3, range(U3, U3 + 12))
        self.stamp(14)
        for e in range(4):
            I("v_add_f32", vr(S + e), vr(U3 + e), vr(U3 + 4 + e))
        for e in range(4): I("v_add_f32", vr(S + e), vr(S + e), vr(U3 + 8 + e))
        self.reduce16(S, 12)
        I("v_cvt_pk_bf16_f32", vr(12), vr(12), vr(12))
        I("v_lshlrev_b32", vr(12), 16, vr(12))
        I("v_add_f32", vr(12), vr(12), vr(vH))
        I("v_cvt_pk_bf16_f32", vr(12), vr(12), vr(12))
        self.execm("0x000f000f", "0x000f000f")
        I("buffer_store_short", vr(12), vr(vAo), sr(rOUT, 4), sr(sU3), mods="offen")
        self.execall()
        if self.tags:
            lab_ne = self.L("NEP")
            I("s_cmp_eq_u32", sr(sF), 0)
            I("s_cbranch_scc0", lab_ne)
            I("v_mov_b32", vr(13), sr(sEp)); I("v_mov_b32", vr(14), 0)
            I("s_mov_b32", sr(sT0), hex(EPOCH))
            I("s_mov_b64", "exec", 1)
            I("buffer_store_dword", vr(13), vr(14), sr(rWS, 4), sr(sT0), mods="offen sc1")
            self.execall()
            a.label(lab_ne)
        if self.dbgtime:
            I("s_memrealtime", "s[12:13]")
            I("s_waitcnt", "lgkmcnt(0)")
            I("s_sub_u32", sr(sT1), sr(sT1), "s38")
            I("v_mov_b32", vr(12), sr(sT1)); I("v_mov_b32", vr(vT6), 0)
            I("s_lshl_b32", sr(sT0), sr(sF), 2)
            I("s_mov_b64", "exec", 1)
            I("buffer_store_dword", vr(12), vr(vT6), sr(rDBG, 4), sr(sT0), mods="offen")
            self.execall()
        self.stamp(15)

    def ffn_stage(self):
        a, I = self.a, self.I
        if self.stop in ("y", "h"):
            I("s_waitcnt", "vmcnt(0)"); I("s_barrier"); return
        vI4, vI2 = 8, 9
        B1, B2 = 64, 96
        I("s_waitcnt", "vmcnt(0)")
        I("s_barrier")
        I("v_lshrrev_b32", vr(vI4), 2, vr(vC)); I("v_and_b32", vr(vI2), 3, vr(vC))
        I("v_lshl_add_u32", vr(vT5), vr(vG), 3, vr(vI4)); I("v_lshlrev_b32", vr(vT5), 6, vr(vT5))
        I("v_lshl_add_u32", vr(vT5), vr(vI2), 3, vr(vT5))
        I("s_lshl_b32", sr(sT0), sr(sW), 13)
        I("v_add_u32", vr(vT5), sr(sT0), vr(vT5))
        for ks in range(4):
            for nt in range(2):
                o = L_WB + ks * 2048 + nt * 32
                I("ds_read_b64_tr_b16", vr(B1 + 8 * ks + 4 * nt, 2), vr(vT5), mods=f"offset:{o}")
                I("ds_read_b64_tr_b16", vr(B1 + 8 * ks + 4 * nt + 2, 2), vr(vT5), mods=f"offset:{o + 256}")
        I("v_lshl_add_u32", vr(vT6), vr(vG), 3, vr(vI4))
        I("s_movk_i32", sr(sT0), WROW)
        I("v_mul_lo_u32", vr(vT6), vr(vT6), sr(sT0))
        I("v_lshl_add_u32", vr(vT6), vr(vI2), 3, vr(vT6))
        I("s_lshl_b32", sr(sT0), sr(sW), 8)
        I("v_add_u32", vr(vT6), sr(sT0), vr(vT6))
        I("v_add_u32", vr(vT6), L_W2, vr(vT6))
        for tt in range(8):
            I("ds_read_b64_tr_b16", vr(B2 + 4 * tt, 2), vr(vT6), mods=f"offset:{32 * tt}")
            I("ds_read_b64_tr_b16", vr(B2 + 4 * tt + 2, 2), vr(vT6), mods=f"offset:{4 * WROW + 32 * tt}")
        vAh, vAhw, vAhr, vAuw, vAur, vAaw, vAar, vAo = 10, 11, 52, 53, 54, 55, 56, 57
        I("v_lshlrev_b32", vr(vAh), 5, vr(vLane))
        I("s_mov_b32", sr(sU0), hex(HBUF))
        I("v_lshlrev_b32", vr(vAhw), 4, vr(vLane)); I("s_lshl_b32", sr(sT0), sr(sW), 11); I("v_add_u32", vr(vAhw), sr(sT0), vr(vAhw))
        I("v_bfe_u32", vr(vT7), vr(vC), 2, 1)
        I("v_lshlrev_b32", vr(vAhr), 10, vr(vT7)); I("v_lshl_add_u32", vr(vAhr), vr(vG), 4, vr(vAhr))
        I("s_mul_i32", sr(sT0), sr(sW), 2048 + 256); I("v_add_u32", vr(vAhr), sr(sT0), vr(vAhr))
        I("v_and_b32", vr(vAuw), 1, vr(vG)); I("v_lshlrev_b32", vr(vAuw), 7, vr(vAuw))
        I("v_lshrrev_b32", vr(vT5), 1, vr(vG)); I("v_lshl_add_u32", vr(vAuw), vr(vT5), 6, vr(vAuw))
        I("v_lshl_add_u32", vr(vAuw), vr(vC), 2, vr(vAuw))
        I("s_lshl_b32", sr(sT0), sr(sW), 8); I("v_add_u32", vr(vAuw), sr(sT0), vr(vAuw))
        I("v_lshlrev_b32", vr(vAur), 2, vr(vLane))
        I("s_lshl_b32", sr(sT0), sr(sW), 7)
        I("v_lshlrev_b32", vr(vAaw), 1, vr(vLane)); I("v_add_u32", vr(vAaw), sr(sT0), vr(vAaw))
        I("v_lshlrev_b32", vr(vAar), 6, vr(vT7)); I("v_lshl_add_u32", vr(vAar), vr(vG), 4, vr(vAar)); I("v_add_u32", vr(vAar), sr(sT0), vr(vAar))
        I("v_and_b32", vr(vAo), 1, vr(vG)); I("s_mov_b32", sr(sT0), 32 * USTR); I("v_mul_lo_u32", vr(vAo), vr(vAo), sr(sT0))
        I("v_lshrrev_b32", vr(vT6), 1, vr(vG)); I("s_movk_i32", sr(sT0), USTR); I("v_mul_lo_u32", vr(vT6), vr(vT6), sr(sT0))
        I("v_add_u32", vr(vAo), vr(vAo), vr(vT6))
        I("v_lshl_add_u32", vr(vAo), vr(vC), 2, vr(vAo))
        I("s_mul_i32", sr(sU1), sr(sW), 8 * USTR)
        I("s_lshl_b32", sr(sT1), sr(sF), 6); I("s_add_u32", sr(sU1), sr(sU1), sr(sT1)); I("s_add_u32", sr(sU1), sr(sU1), hex(UPART))
        I("s_mov_b32", sr(sMask), 0); I("s_mov_b32", sr(sMask + 1), -1)
        I("s_waitcnt", "lgkmcnt(0)")
        H0, H1 = 12, 20
        top = self.dry_top()
        sk = self.skip_if_dry()
        def loads():
            I("buffer_load_dwordx4", vr(H0, 4), vr(vAh), sr(rWS, 4), sr(sU0), mods="offen sc1")
            I("buffer_load_dwordx4", vr(H0 + 4, 4), vr(vAh), sr(rWS, 4), sr(sU0), mods="offen offset:16 sc1")
            I("buffer_load_dwordx4", vr(H1, 4), vr(vAh), sr(rWS, 4), sr(sU0), mods="offen offset:2048 sc1")
            I("buffer_load_dwordx4", vr(H1 + 4, 4), vr(vAh), sr(rWS, 4), sr(sU0), mods="offen offset:2064 sc1")
        self.poll(loads, 4, range(12, 28))
        a.label(sk)
        self.stamp(9)
        A1, A2, B1s, B2s = 28, 29, 30, 31
        I("v_add_f32", vr(A1), vr(H0), vr(H0 + 1)); I("v_add_f32", vr(B1s), vr(H1), vr(H1 + 1))
        I("v_mul_f32", vr(A2), vr(H0), vr(H0)); I("v_mul_f32", vr(B2s), vr(H1), vr(H1))
        I("v_fmac_f32", vr(A2), vr(H0 + 1), vr(H0 + 1)); I("v_fmac_f32", vr(B2s), vr(H1 + 1), vr(H1 + 1))
        for e in range(2, 8):
            I("v_add_f32", vr(A1), vr(A1), vr(H0 + e)); I("v_add_f32", vr(B1s), vr(B1s), vr(H1 + e))
            I("v_fmac_f32", vr(A2), vr(H0 + e), vr(H0 + e)); I("v_fmac_f32", vr(B2s), vr(H1 + e), vr(H1 + e))
        self.wave_reduce63("v_add_f32", [A1, A2, B1s, B2s])
        for (r, s) in ((A1, sT0), (A2, sT1), (B1s, sT2), (B2s, sT3)):
            I("v_readlane_b32", sr(s), vr(r), 63)
        M0, M1, R0, R1, T0, T1 = 28, 29, 30, 31, 32, 33
        self.ln_scalars(sT0, sT1, sT2, sT3, M0, M1, R0, R1, T0, T1)
        I("v_mul_f32", vr(M0), vr(M0), vr(R0)); I("v_mul_f32", vr(M1), vr(M1), vr(R1))
        HN = 36
        for e in range(8):
            I("v_fma_f32", vr(HN + e), vr(H0 + e), vr(R0), f"-{vr(M0)}")
            I("v_fma_f32", vr(HN + 8 + e), vr(H1 + e), vr(R1), f"-{vr(M1)}")
        for k in range(8):
            I("v_cvt_pk_bf16_f32", vr(HN + k), vr(HN + 2 * k), vr(HN + 2 * k + 1))
        I("ds_write_b128", vr(vAhw), vr(HN, 4), mods=f"offset:{L_HN}")
        I("ds_write_b128", vr(vAhw), vr(HN + 4, 4), mods=f"offset:{L_HN + 1024}")
        I("s_waitcnt", "lgkmcnt(0)")
        for ks in range(4):
            I("ds_read_b128", vr(HN + 4 * ks, 4), vr(vAhr), mods=f"offset:{L_HN + ks * 64}")
        I("s_waitcnt", "lgkmcnt(0)")
        D0, D1 = 28, 32
        for ks in range(4):
            I("v_mfma_f32_16x16x32_bf16", vr(D0, 4), vr(HN + 4 * ks, 4), vr(B1 + 8 * ks, 4), (0 if ks == 0 else vr(D0, 4)))
            I("v_mfma_f32_16x16x32_bf16", vr(D1, 4), vr(HN + 4 * ks, 4), vr(B1 + 8 * ks + 4, 4), (0 if ks == 0 else vr(D1, 4)))
        I("v_cndmask_b32", vr(D0), vr(D0), vr(D1), sr(sMask, 2))
        I("ds_write_b32", vr(vAuw), vr(D0), mods=f"offset:{L_UP}")
        I("s_waitcnt", "lgkmcnt(0)")
        I("s_barrier")
        for w in range(4):
            I("ds_read_b32", vr(28 + w), vr(vAur), mods=f"offset:{L_UP + w * 256}")
        I("s_waitcnt", "lgkmcnt(0)")
        I("v_add_f32", vr(28), vr(28), vr(29)); I("v_add_f32", vr(30), vr(30), vr(31))
        I("v_add_f32", vr(28), vr(28), vr(30))
        I("v_cvt_pk_bf16_f32", vr(29), vr(28), vr(28))
        I("v_lshlrev_b32", vr(28), 16, vr(29))
        I("v_mul_f32", vr(29), "0xbfb8aa3b", vr(28))
        I("v_exp_f32", vr(29), vr(29))
        I("v_add_f32", vr(29), 1.0, vr(29))
        I("v_rcp_f32", vr(29), vr(29))
        I("v_mul_f32", vr(28), vr(28), vr(29))
        I("v_cvt_pk_bf16_f32", vr(28), vr(28), vr(28))
        I("ds_write_b16", vr(vAaw), vr(28), mods=f"offset:{L_ACT}")
        I("s_waitcnt", "lgkmcnt(0)")
        I("ds_read_b128", vr(28, 4), vr(vAar), mods=f"offset:{L_ACT}")
        I("s_waitcnt", "lgkmcnt(0)")
        self.stamp(10)
        DD = 32
        assert DD + 20 <= vAhr
        I("s_waitcnt", "vmcnt(0)")
        Dregs = [12, 16, 20, 24, 36, 40, 44, 48]
        for tt in range(8):
            I("v_mfma_f32_16x16x32_bf16", vr(Dregs[tt], 4), vr(28, 4), vr(B2 + 4 * tt, 4), 0)
        for tt in range(0, 8, 2):
            I("v_cndmask_b32", vr(32 + tt // 2), vr(Dregs[tt]), vr(Dregs[tt + 1]), sr(sMask, 2))
        for tt in range(4): self.clamp(32 + tt)
        lab_nb = self.L("NB")
        I("s_cmp_eq_u32", sr(sDry), 0)
        I("s_cbranch_scc1", lab_nb)
        I("s_barrier")
        a.label(lab_nb)
        self.dry_end(top)
        for tt in range(4):
            I("buffer_store_dword", vr(32 + tt), vr(vAo), sr(rWS, 4), sr(sU1), mods="offen sc1")
            if tt < 3: I("s_add_u32", sr(sU1), sr(sU1), 2 * USTR)
        self.stamp(11)

    def finish(self):
        a, I = self.a, self.I
        a.label("L_FIN")
        if self.stamps:
            self.stamp(20)
            I("s_getreg_b32", sr(sT0), "hwreg(HW_REG_HW_ID)")
            I("s_getreg_b32", sr(sT1), "hwreg(HW_REG_XCC_ID)")
            I("v_writelane_b32", "v0", sr(sT0), 30)
            I("v_writelane_b32", "v0", sr(sT1), 31)
            self.execall()
            I("s_lshl_b32", sr(sT0), "s2", 4); I("s_add_u32", sr(sT0), sr(sT0), sr(sW)); I("s_lshl_b32", sr(sT0), sr(sT0), 8)
            I("s_add_u32", sr(sT0), sr(sT0), hex(STAMP))
            I("v_lshlrev_b32", vr(vT5), 2, vr(vLane))
            I("buffer_store_dword", "v0", vr(vT5), sr(rWS, 4), sr(sT0), mods="offen")
        a.label("L_END")
        return self.wrap()

    def wrap(self):
        body = self.a.text()
        hdr = open("sequential_preLN__mha_block_cached__dense_activation_silu__decode.s.ref").read().split("\n")
        top = [l for l in hdr if l.startswith(";") and "@launch" not in l and "Override" not in l and "grid=ceil" not in l][:12]
        out = "\n".join(top) + "\n"
        out += f"; @launch grid=(256,1,1) block=(1024,1,1) lds={LDS_SIZE}\n"
        out += f""".amdgcn_target "amdgcn-amd-amdhsa--gfx950"
.text
.globl {KN}
.p2align 8
.type {KN},@function
{KN}:
{body}  s_endpgm
.section .rodata,"a"
.p2align 6
.amdhsa_kernel {KN}
  .amdhsa_next_free_vgpr 128
  .amdhsa_next_free_sgpr 102
  .amdhsa_accum_offset 128
  .amdhsa_group_segment_fixed_size 0
  .amdhsa_kernarg_size 88
  .amdhsa_user_sgpr_count 2
  .amdhsa_user_sgpr_kernarg_segment_ptr 1
  .amdhsa_system_sgpr_workgroup_id_x 1
.end_amdhsa_kernel
"""
        return out

if __name__ == "__main__":
    kw = {}
    for x in sys.argv[2:]:
        k, v = x.split("=")
        kw[k] = int(v) if v.lstrip("-").isdigit() and k != "prios" else v
    g = Gen(**kw)
    open(sys.argv[1], "w").write(g.build())
    print("nops inserted:", g.a.nops, "lines", len(g.a.lines))
```

```python
import sys
from asmlib import Asm, vr, sr

KN = "sequential_preLN__mha_block_cached__dense_activation_silu__decode_kernel"

ML    = 0x040000
OPART = 0x050000
YPART = 0x080000
HBUF  = 0x100000
UPART = 0x110000
USTR  = 48 * 64
NF    = 43
EPOCH = 0x030000
TAGM = 0x3FF
STAMP = 0x200000
WSSZ  = 0x400000
L_QP = 0
L_OP = 0
L_QB = 8192
L_ML = 8192 + 256
L_CNT = 8192 + 256 + 128
L_QCNT = L_CNT + 4
L_FQ = L_CNT + 8
L_UP = 8192 + 512
L_ACT = 8192 + 512 + 1024
L_HN = 8192 + 2048 + 1024
L_WB = 20480
L_W2 = L_WB + 32768
L_XN = L_WB
WROW = 1056
LDS_SIZE = L_WB + 64 * WROW + 256

LOG2E = 0x3FB8AA3B
SCALE = 0x3DB504F3
SPIN_MAX = 400000
OOB = 0x40000000

sW, sE, sHalf, sBH, sB, sH, sM = 3, 4, 5, 6, 7, 8, 9
sDry = 10
sT0, sT1, sT2, sT3, sT4 = 11, 12, 13, 14, 15
pX, pK, pV, pWQ, pWO, pBX, pW1, pW2, pOUT, pDBG, pWS = 16, 18, 20, 22, 24, 26, 28, 30, 32, 34, 36
sRB = 26
sRole = 27
sHW = 101
rK, rV, rWS, rX, rWQ, rWA, rWB, rOUT, rDBG = 40, 44, 48, 52, 56, 60, 64, 68, 72
sOFF = 76
sN = 93
sSpin = 94
sF = 95
sMask = 96
sU0, sU1, sU2, sU3 = 98, 99, 100, 101
sStamp0 = 38
sEp = 10
sTagM = 76
rT1 = 16
vLane, vC, vG, vKV = 1, 2, 3, 4
vT5, vT6, vT7 = 5, 6, 7
vTag = 4
vCk0, vCk1 = 5, 6
vQ = 8
vD = 12
vS, vS2 = 16, 17
vACC = 20
DATA0 = 28
def kslot(i): return DATA0 + 4 * i
def vslot(i):
    if i < 8: return DATA0 + 4 * (17 + i)
    return DATA0 + 4 * (i - 8)

class Gen:
    def __init__(self, stamps=0, stop=None, skew=0, npre=4, dbgtime=0, nowq=0, prios="32111", nodma=0, noinv=0,
                 dry=0, pipe=0, wqflag="", late_wo=99, earlybar=1, npre2=15, hshift=8, map=1, pat=1, kfirst=1, t1test=0, touch=0, noq=0, bw=4, tags=1, wsplit=16, fearly=0, wo_at=0, rot=2):
        self.a = Asm()
        self.stamps, self.stop, self.skew, self.npre, self.dbgtime = stamps, stop, skew, npre, dbgtime
        self.nowq, self.nodma, self.noinv, self.dry, self.pipe = nowq, nodma, noinv, dry, pipe
        self.prios = [int(c) for c in str(prios).zfill(5)]
        self.wqflag = wqflag
        self.late_wo = late_wo
        self.earlybar = earlybar
        self.npre2 = npre2
        self.hshift = hshift
        self.map = map
        self.pat = pat
        self.kfirst = kfirst
        self.t1test = t1test
        self.touch = touch
        self.noq = noq
        self.bw = bw
        self.tags = tags
        self.wsplit = wsplit
        self.fearly = fearly
        self.wo_at = wo_at
        self.rot = rot
        self.nslot = 17 if skew else 16
        self.issued = []
        self.lab = 0
        self.wo_done = False

    def L(self, p="L"):
        self.lab += 1
        return f"{p}_{self.lab}"
    def I(self, *a, **k): self.a.I(*a, **k)

    def stamp(self, k):
        if not self.stamps: return
        if k == 0:
            self.I("s_memrealtime", sr(sStamp0, 2)); return
        if k == 1:
            self.I("s_waitcnt", "lgkmcnt(0)")
            self.I("v_mov_b32", "v0", 0)
            self.I("v_writelane_b32", "v0", sr(sStamp0), 0)
            self.I("v_writelane_b32", "v0", "s94", 19)
        self.I("s_memrealtime", sr(sStamp0, 2))
        self.I("s_waitcnt", "lgkmcnt(0)")
        self.I("v_writelane_b32", "v0", sr(sStamp0), k)

    def csel(self, dst, x, y):
        self.I("s_mov_b32", sr(dst), x)
        self.I("s_cselect_b32", sr(dst), sr(dst), y)
    def exec63(self):
        self.I("s_mov_b32", "exec_lo", 0); self.I("s_mov_b32", "exec_hi", "0x80000000")
    def execm(self, lo, hi):
        self.I("s_mov_b32", "exec_lo", lo); self.I("s_mov_b32", "exec_hi", hi)
    def execall(self): self.I("s_mov_b64", "exec", -1)

    def srd(self, r, plo, size, addoff=None):
        I = self.I
        if addoff is None:
            I("s_mov_b32", sr(r), sr(plo)); I("s_mov_b32", sr(r + 1), sr(plo + 1))
        else:
            I("s_add_u32", sr(r), sr(plo), addoff); I("s_addc_u32", sr(r + 1), sr(plo + 1), 0)
        I("s_mov_b32", sr(r + 2), size); I("s_mov_b32", sr(r + 3), "0x20000")

    def vm(self, tag, op, *ops, mods=""):
        self.I(op, *ops, mods=mods)
        self.issued.append(tag)
    def wait_vm(self, tag):
        idx = self.issued.index(tag)
        n = len(self.issued) - 1 - idx
        self.I("s_waitcnt", f"vmcnt({min(n, 63)})")

    def dpp(self, op, d, s0, s1, ctrl, rm="0xf"):
        self.I(op + "_dpp", vr(d), vr(s0), vr(s1), mods=f"{ctrl} row_mask:{rm} bank_mask:0xf")
    def row_reduce(self, op, regs):
        for sh in (8, 4, 2, 1):
            for r in regs: self.dpp(op, r, r, r, f"row_ror:{sh}")
    def wave_reduce63(self, op, regs):
        self.row_reduce(op, regs)
        for r in regs: self.dpp(op, r, r, r, "row_bcast:15", "0xa")
        for r in regs: self.dpp(op, r, r, r, "row_bcast:31", "0xc")
    def swap_add(self, which, a, b, d, op="v_add_f32"):
        self.I(f"v_permlane{which}_swap_b32", vr(a), vr(b))
        self.I(op, vr(d), vr(a), vr(b))
    def unpack(self, lo, hi, src):
        self.I("v_lshlrev_b32", vr(lo), 16, vr(src))
        self.I("v_and_b32", vr(hi), "0xffff0000", vr(src))
    def clamp(self, r, src=None):
        src = r if src is None else src
        if self.tags:
            self.I("v_and_or_b32", vr(r), vr(src), sr(sTagM), vr(vTag))
        else:
            self.I("v_min_u32", vr(r), -2, vr(src))
    def perm_g(self, d, t):
        I = self.I
        I("v_and_b32", vr(d), 1, vr(vG)); I("v_lshlrev_b32", vr(d), 1, vr(d))
        I("v_lshrrev_b32", vr(t), 1, vr(vG)); I("v_or_b32", vr(d), vr(d), vr(t))

    def check_regs(self, regs, t, t2=None):
        I = self.I
        rs = list(regs)
        if self.tags:
            for r in rs: I("v_xor_b32", vr(r), vr(vTag), vr(r))
            first = True
            while rs:
                if first:
                    if len(rs) >= 3:
                        I("v_or3_b32", vr(t), vr(rs[0]), vr(rs[1]), vr(rs[2])); rs = rs[3:]
                    elif len(rs) == 2:
                        I("v_or_b32", vr(t), vr(rs[0]), vr(rs[1])); rs = rs[2:]
                    else:
                        I("v_mov_b32", vr(t), vr(rs[0])); rs = rs[1:]
                    first = False
                elif len(rs) >= 2:
                    I("v_or3_b32", vr(t), vr(t), vr(rs[0]), vr(rs[1])); rs = rs[2:]
                else:
                    I("v_or_b32", vr(t), vr(t), vr(rs[0])); rs = rs[1:]
            I("v_and_b32", vr(t), hex(TAGM), vr(t))
            I("v_cmp_ne_u32", "vcc", 0, vr(t))
            return
        if len(rs) == 1:
            I("v_cmp_eq_u32", "vcc", -1, vr(rs[0])); return
        first = True
        while rs:
            if first:
                if len(rs) >= 3:
                    I("v_max3_u32", vr(t), vr(rs[0]), vr(rs[1]), vr(rs[2])); rs = rs[3:]
                else:
                    I("v_max_u32", vr(t), vr(rs[0]), vr(rs[1])); rs = rs[2:]
                first = False
            elif len(rs) >= 2:
                I("v_max3_u32", vr(t), vr(t), vr(rs[0]), vr(rs[1])); rs = rs[2:]
            else:
                I("v_max_u32", vr(t), vr(t), vr(rs[0])); rs = rs[1:]
        I("v_cmp_eq_u32", "vcc", -1, vr(t))

    def poll(self, loads, nloads, regs, t=vT7):
        I = self.I
        lp, ok = self.L("POLL"), self.L("POK")
        I("s_mov_b32", sr(sSpin), SPIN_MAX)
        if self.pipe: loads()
        self.a.label(lp)
        loads()
        I("s_waitcnt", f"vmcnt({nloads if self.pipe else 0})")
        self.check_regs(regs, t)
        I("s_cbranch_vccz", ok)
        I("s_sub_u32", sr(sSpin), sr(sSpin), 1)
        I("s_cbranch_scc0", lp)
        self.a.label(ok)

    def ln_scalars(self, s10, s20, s11, s21, vm0, vm1, vr0, vr1, t0, t1):
        I = self.I
        inv = "0x3b000000"
        I("v_mov_b32", vr(vm0), sr(s10)); I("v_mov_b32", vr(vm1), sr(s11))
        I("v_mov_b32", vr(vr0), sr(s20)); I("v_mov_b32", vr(vr1), sr(s21))
        for r in (vm0, vm1, vr0, vr1): I("v_mul_f32", vr(r), inv, vr(r))
        I("v_fma_f32", vr(vr0), f"-{vr(vm0)}", vr(vm0), vr(vr0))
        I("v_fma_f32", vr(vr1), f"-{vr(vm1)}", vr(vm1), vr(vr1))
        I("v_max_f32", vr(vr0), 0, vr(vr0)); I("v_max_f32", vr(vr1), 0, vr(vr1))
        I("v_cvt_pk_bf16_f32", vr(t0), vr(vm0), vr(vm1))
        I("v_cvt_pk_bf16_f32", vr(t1), vr(vr0), vr(vr1))
        self.unpack(vm0, vm1, t0)
        self.unpack(vr0, vr1, t1)
        I("v_add_f32", vr(vr0), "0x3727c5ac", vr(vr0)); I("v_add_f32", vr(vr1), "0x3727c5ac", vr(vr1))
        I("v_cvt_pk_bf16_f32", vr(t1), vr(vr0), vr(vr1))
        self.unpack(vr0, vr1, t1)
        I("v_sqrt_f32", vr(vr0), vr(vr0)); I("v_sqrt_f32", vr(vr1), vr(vr1))
        I("v_cvt_pk_bf16_f32", vr(t1), vr(vr0), vr(vr1))
        self.unpack(vr0, vr1, t1)
        I("v_rcp_f32", vr(vr0), vr(vr0)); I("v_rcp_f32", vr(vr1), vr(vr1))

    def ln_scalars1(self, s1, s2, vm0, vr0, t0):
        I = self.I
        inv = "0x3b000000"
        I("v_mov_b32", vr(vm0), sr(s1)); I("v_mov_b32", vr(vr0), sr(s2))
        I("v_mul_f32", vr(vm0), inv, vr(vm0)); I("v_mul_f32", vr(vr0), inv, vr(vr0))
        I("v_fma_f32", vr(vr0), f"-{vr(vm0)}", vr(vm0), vr(vr0))
        I("v_max_f32", vr(vr0), 0, vr(vr0))
        I("v_cvt_pk_bf16_f32", vr(t0), vr(vm0), vr(vr0))
        self.unpack(vm0, vr0, t0)
        I("v_add_f32", vr(vr0), "0x3727c5ac", vr(vr0))
        I("v_cvt_pk_bf16_f32", vr(t0), vr(vr0), vr(vr0))
        I("v_lshlrev_b32", vr(vr0), 16, vr(t0))
        I("v_sqrt_f32", vr(vr0), vr(vr0))
        I("v_cvt_pk_bf16_f32", vr(t0), vr(vr0), vr(vr0))
        I("v_lshlrev_b32", vr(vr0), 16, vr(t0))
        I("v_rcp_f32", vr(vr0), vr(vr0))

    def lds_set(self, off, val_sgpr_or_imm):
        I = self.I
        I("v_mov_b32", vr(vT6), off); I("v_mov_b32", vr(vT7), val_sgpr_or_imm)
        I("ds_write_b32", vr(vT6), vr(vT7))

    def lds_wait(self, off, val, sleep=1):
        I = self.I
        lp, ok = self.L("LW"), self.L("LWOK")
        I("v_mov_b32", vr(vT6), off)
        self.a.label(lp)
        I("ds_read_b32", vr(vT7), vr(vT6))
        I("s_waitcnt", "lgkmcnt(0)")
        I("v_readfirstlane_b32", sr(sT4), vr(vT7))
        I("s_cmp_ge_u32", sr(sT4), val)
        I("s_cbranch_scc1", ok)
        if sleep: I("s_sleep", sleep)
        I("s_branch", lp)
        self.a.label(ok)

    def invalidate(self):
        I = self.I
        for k in range(4): I("v_mov_b32", vr(20 + k), -1)
        I("v_lshlrev_b32", vr(vT5), 4, vr(vLane))
        I("s_lshl_b32", sr(sT0), sr(sBH), 2); I("s_add_u32", sr(sT0), sr(sT0), sr(sM))
        I("s_lshl_b32", sr(sT1), sr(sT0), 9); I("s_add_u32", sr(sT1), sr(sT1), hex(OPART))
        I("s_lshl_b32", sr(sT2), sr(sT0), 3); I("s_add_u32", sr(sT2), sr(sT2), hex(ML))
        self.execm(-1, 0)
        I("buffer_store_dwordx4", vr(20, 4), vr(vT5), sr(rWS, 4), sr(sT1), mods="offen sc1")
        I("s_mov_b64", "exec", 1)
        I("buffer_store_dwordx2", vr(20, 2), vr(vT5), sr(rWS, 4), sr(sT2), mods="offen sc1")
        I("s_lshl_b32", sr(sT1), sr(sBH), 6); I("s_add_u32", sr(sT1), sr(sT1), hex(HBUF))
        I("s_cmp_eq_u32", sr(sRole), 3)
        I("s_cselect_b32", sr(sT1), sr(sT1), hex(OOB))
        I("s_mov_b64", "exec", 15)
        I("buffer_store_dwordx4", vr(20, 4), vr(vT5), sr(rWS, 4), sr(sT1), mods="offen sc1")
        self.execall()
        I("s_cmp_eq_u32", sr(sRole), 1)
        self.csel(sT0, 4096, USTR)
        self.csel(sT1, hex(YPART), hex(UPART))
        I("s_lshl_b32", sr(sT2), sr(sF), 6); I("s_add_u32", sr(sT1), sr(sT1), sr(sT2))
        I("s_cmp_eq_u32", sr(sRole), 0); I("s_cselect_b32", sr(sT1), hex(OOB), sr(sT1))
        I("s_cmp_eq_u32", sr(sRole), 3); I("s_cselect_b32", sr(sT1), hex(OOB), sr(sT1))
        I("v_lshrrev_b32", vr(vT6), 2, vr(vLane))
        I("v_mul_lo_u32", vr(vT6), vr(vT6), sr(sT0))
        I("v_and_b32", vr(vT7), 3, vr(vLane)); I("v_lshlrev_b32", vr(vT7), 4, vr(vT7))
        I("v_add_u32", vr(vT6), vr(vT6), vr(vT7))
        I("s_lshl_b32", sr(sT0), sr(sT0), 4)
        for k in range(4):
            I("buffer_store_dwordx4", vr(20, 4), vr(vT6), sr(rWS, 4), sr(sT1), mods="offen sc1")
            if k < 3: I("s_add_u32", sr(sT1), sr(sT1), sr(sT0))

    def roles(self):
        a, I = self.a, self.I
        self.srd(rWS, pWS, hex(WSSZ))
        self.srd(rDBG, pDBG, 256)
        self.srd(rOUT, pOUT, 2048)
        I("s_and_b32", sr(sT0), "s2", 7); I("s_lshr_b32", sr(sT1), sr(sT0), 1); I("s_lshl_b32", sr(sT1), sr(sT1), 4)
        I("s_lshr_b32", sr(sT2), "s2", 4); I("s_add_u32", sr(sT1), sr(sT1), sr(sT2))
        I("s_and_b32", sr(sT0), sr(sT0), 1)
        I("s_bfe_u32", sr(sT2), "s2", "0x10003")
        I("s_lshl_b32", sr(sT2), sr(sT2), 1); I("s_add_u32", sr(sT0), sr(sT0), sr(sT2))
        I("s_mov_b32", sr(sRole), 0)
        I("s_mov_b32", sr(sF), sr(sT1))
        I("s_cmp_eq_u32", sr(sT0), 1); I("s_cselect_b32", sr(sRole), 3, sr(sRole))
        I("s_cmp_lt_u32", sr(sT1), NF); I("s_cselect_b32", sr(sT2), 2, 0)
        I("s_cmp_eq_u32", sr(sT0), 2); I("s_cselect_b32", sr(sRole), sr(sT2), sr(sRole))
        I("s_add_u32", sr(sT2), sr(sT1), 2 * self.hshift); I("s_and_b32", sr(sT2), sr(sT2), 63)
        I("s_cmp_eq_u32", sr(sT0), 0); I("s_cselect_b32", sr(sRole), 1, sr(sRole)); I("s_cselect_b32", sr(sF), sr(sT2), sr(sF))
        I("s_lshr_b32", sr(sHW), sr(sF), 1)
        lab_f, lab_done = self.L("RF"), self.L("RDONE")
        I("s_cmp_eq_u32", sr(sRole), 2)
        I("s_cbranch_scc1", lab_f)
        I("s_lshl_b32", sr(sT0), sr(sF), 16)
        self.srd(rWA, pWO, (65536 if not self.nodma else 0), sr(sT0))
        self.srd(rWB, pWO, 0, sr(sT0))
        I("s_branch", lab_done)
        a.label(lab_f)
        I("s_lshl_b32", sr(sT0), sr(sF), 6)
        I("s_sub_u32", sr(sT1), hex(512 * 2752), sr(sT0))
        self.srd(rWA, pW1, sr(sT1), sr(sT0))
        I("s_lshl_b32", sr(sT0), sr(sF), 15)
        self.srd(rWB, pW2, 32768, sr(sT0))
        a.label(lab_done)

    def build(self):
        a, I = self.a, self.I
        self.stamp(0)
        if self.dbgtime: I("s_memrealtime", "s[38:39]")
        I("s_load_dwordx16", sr(16, 16), "s[0:1]", 0)
        I("s_load_dwordx4", sr(32, 4), "s[0:1]", 64)
        I("s_load_dwordx2", sr(36, 2), "s[0:1]", 80)
        I("s_cmp_ge_u32", "s2", 256)
        I("s_cbranch_scc1", "L_END")
        I("v_and_b32", vr(vLane), 63, "v0")
        I("v_lshrrev_b32", vr(vT5), 6, "v0")
        I("v_and_b32", vr(vC), 15, "v0")
        I("v_readfirstlane_b32", sr(sW), vr(vT5))
        I("v_bfe_u32", vr(vG), "v0", 4, 2)
        I("s_and_b32", sr(sT0), "s2", 7)
        I("s_lshr_b32", sr(sT1), "s2", 3)
        if self.map == 0:
            I("s_and_b32", sr(sE), sr(sT0), 1)
            I("s_lshr_b32", sr(sT0), sr(sT0), 1)
            I("s_and_b32", sr(sHalf), sr(sT1), 1)
            I("s_lshr_b32", sr(sT2), sr(sT1), 1)
            I("s_lshr_b32", sr(sB), sr(sT2), 3)
            I("s_and_b32", sr(sT2), sr(sT2), 7)
            I("s_lshl_b32", sr(sH), sr(sT0), 3); I("s_add_u32", sr(sH), sr(sH), sr(sT2))
        else:
            I("s_and_b32", sr(sE), sr(sT1), 1)
            I("s_bfe_u32", sr(sHalf), sr(sT1), "0x10001")
            I("s_bfe_u32", sr(sB), sr(sT1), "0x10002")
            I("s_lshr_b32", sr(sT2), sr(sT1), 3)
            I("s_lshl_b32", sr(sH), sr(sT0), 2); I("s_add_u32", sr(sH), sr(sH), sr(sT2))
        I("s_lshl_b32", sr(sBH), sr(sB), 5); I("s_add_u32", sr(sBH), sr(sBH), sr(sH))
        I("s_lshl_b32", sr(sM), sr(sHalf), 1); I("s_add_u32", sr(sM), sr(sM), sr(sE))
        I("v_lshlrev_b32", vr(vKV), 4, vr(vLane))
        if self.pat == 1:
            I("s_lshl_b32", sr(sT0), sr(sW), 15)
            I("v_add_u32", vr(vKV), sr(sT0), vr(vKV))
            I("s_cmp_eq_u32", sr(sE), 0)
            self.csel(sT0, 1024, -1024)
            self.csel(sN, 16 + self.skew, 16 - self.skew)
            I("s_mul_i32", sr(sOFF), sr(sE), 31744)
        else:
            I("s_cmp_eq_u32", sr(sE), 0)
            self.csel(sN, 16 + self.skew, 16 - self.skew)
            I("s_mul_i32", sr(sT0), sr(sN), sr(sW)); I("s_lshl_b32", sr(sT0), sr(sT0), 10)
            I("v_add_u32", vr(vKV), sr(sT0), vr(vKV))
            I("s_movk_i32", sr(sT0), 1024)
            I("s_mul_i32", sr(sOFF), sr(sE), 16 * (16 + self.skew) * 1024)
        for i in range(1, self.nslot):
            I("s_add_u32", sr(sOFF + i), sr(sOFF + i - 1), sr(sT0))
        if self.skew:
            for i in (15, 16):
                I("s_cmp_gt_u32", sr(sN), i)
                I("s_cselect_b32", sr(sOFF + i), sr(sOFF + i), hex(OOB))
        I("s_waitcnt", "lgkmcnt(0)")
        if self.tags: I("s_load_dword", sr(sEp), sr(pWS, 2), hex(EPOCH))
        I("s_setprio", self.prios[0])
        if not self.tags:
            lab_r1 = self.L("RL1")
            I("s_cmp_eq_u32", sr(sW), 0)
            I("s_cbranch_scc0", lab_r1)
            self.roles()
            if not self.noinv: self.invalidate()
            a.label(lab_r1)
        NP = self.npre
        XF, WQ = 8, kslot(17)
        I("s_lshl_b32", sr(sT0), sr(sBH), 20); I("s_lshl_b32", sr(sT1), sr(sHalf), 19); I("s_add_u32", sr(sT0), sr(sT0), sr(sT1))
        self.srd(rK, pK, "0x80000", sr(sT0))
        for kq in range(NP):
            self.vm(f"K{kq}", "buffer_load_dwordx4", vr(kslot(kq), 4), vr(vKV), sr(rK, 4), sr(sOFF + kq), mods="offen nt")
        if self.stamps:
            I("s_memrealtime", "s[94:95]")
        self.srd(rV, pV, "0x80000", sr(sT0))
        self.srd(rX, pX, 2048)
        I("s_lshl_b32", sr(sT0), sr(sH), 8)
        I("s_sub_u32", sr(sT1), hex(512 * 8192), sr(sT0))
        self.srd(rWQ, pWQ, sr(sT1), sr(sT0))
        if not self.tags:
            raise SystemExit("tags=0 no longer supported with this ordering")
        if self.map == 0:
            I("s_lshl_b32", sr(sT0), sr(sB), 1); I("s_add_u32", sr(sT0), sr(sT0), sr(sHalf)); I("s_lshl_b32", sr(sT0), sr(sT0), 2)
        else:
            I("s_lshr_b32", sr(sT0), "s2", 3); I("s_and_b32", sr(sT0), sr(sT0), 7); I("s_mul_i32", sr(sT0), sr(sT0), self.rot)
        I("s_add_u32", sr(sT0), sr(sT0), sr(sW)); I("s_and_b32", sr(sRB), sr(sT0), 15)
        I("v_lshlrev_b32", vr(vT5), 4, vr(vLane))
        I("s_lshl_b32", sr(sT1), sr(sB), 10)
        self.vm("xf", "buffer_load_dwordx4", vr(XF, 4), vr(vT5), sr(rX, 4), sr(sT1), mods="offen")
        I("s_lshl_b32", sr(sT0), sr(sRB), 5)
        I("v_lshl_add_u32", vr(vT6), vr(vG), 1, sr(sT0))
        I("v_lshlrev_b32", vr(vT7), 13, vr(vT6))
        I("v_lshl_add_u32", vr(vT7), vr(vC), 4, vr(vT7))
        for i in range(8):
            off = (8 * (i >> 1) + (i & 1)) * 8192
            I("s_mov_b32", sr(sT2), off if not self.nowq else OOB)
            self.vm(f"wq{i}", "buffer_load_dwordx4", vr(WQ + 4 * i, 4), vr(vT7), sr(rWQ, 4), sr(sT2), mods=("offen " + self.wqflag).strip())
            if i == 1:
                I("v_lshlrev_b32", vr(vT5), 2, vr(vLane)); I("v_mov_b32", vr(vT6), 0)
                I("s_mov_b64", "exec", 15)
                I("ds_write_b32", vr(vT5), vr(vT6), mods=f"offset:{L_CNT}")
                self.execall()
                I("s_waitcnt", "lgkmcnt(0)")
                I("s_barrier")
        I("s_setprio", self.prios[1])
        nK2 = self.npre2 - NP
        if self.bw:
            lab_b = self.L("BW")
            I("s_cmp_ge_u32", sr(sW), self.bw)
            I("s_cbranch_scc1", lab_b)
        for kq in range(NP, self.npre2):
            self.vm(f"K{kq}", "buffer_load_dwordx4", vr(kslot(kq), 4), vr(vKV), sr(rK, 4), sr(sOFF + kq), mods="offen nt")
        if self.bw:
            a.label(lab_b)
        def wait_dual(tag):
            if not self.bw:
                self.wait_vm(tag); return
            idx = self.issued.index(tag)
            n = len(self.issued) - 1 - idx
            l0, l1 = self.L("WD"), self.L("WDJ")
            I("s_cmp_ge_u32", sr(sW), self.bw)
            I("s_cbranch_scc1", l0)
            I("s_waitcnt", f"vmcnt({n})")
            I("s_branch", l1)
            a.label(l0)
            I("s_waitcnt", f"vmcnt({n - nK2})")
            a.label(l1)
        self.stamp(1)
        self.roles()
        if self.touch and not self.stamps:
            lab_nt = self.L("NT")
            I("s_cmp_eq_u32", sr(sW), 1)
            I("s_cbranch_scc0", lab_nt)
            I("v_mov_b32", vr(vT5), 0)
            I("s_mov_b64", "exec", 1)
            I("s_mov_b32", sr(sT0), hex(OPART))
            I("buffer_load_dword", "v0", vr(vT5), sr(rWS, 4), sr(sT0), mods="offen sc1")
            I("buffer_load_dword", "v0", vr(vT5), sr(rWA, 4), 0, mods="offen nt")
            I("buffer_load_dword", "v0", vr(vT5), sr(rWB, 4), 0, mods="offen nt")
            I("buffer_load_dword", "v0", vr(vT5), sr(rOUT, 4), 0, mods="offen nt")
            self.execall()
            I("s_waitcnt", "vmcnt(63)")
            a.label(lab_nt)
        if self.noq:
            I("s_branch", "L_NOQ")
        I("s_mov_b32", sr(sT4), "0x3f803f80")
        wait_dual("xf")
        if not self.tags:
            lab_noat = self.L("NOAT")
            I("s_cmp_eq_u32", sr(sW), 0)
            I("s_cbranch_scc0", lab_noat)
            self.stamp(17)
            I("v_mov_b32", vr(vT5), 0); I("v_mov_b32", vr(vT6), 1)
            I("s_lshl_b32", sr(sT0), sr(sH), 2)
            I("s_mov_b64", "exec", 1)
            I("buffer_atomic_add", vr(vT6), vr(vT5), sr(rDBG, 4), sr(sT0), mods="offen sc1")
            self.execall()
            a.label(lab_noat)
        I("s_mov_b32", sr(sT4), "0x3f803f80")
        A1, A2, T0 = 22, 23, 26
        for k in range(4):
            I("v_dot2_f32_bf16", vr(A1), vr(XF + k), sr(sT4), (0 if k == 0 else vr(A1)))
            I("v_dot2_f32_bf16", vr(A2), vr(XF + k), vr(XF + k), (0 if k == 0 else vr(A2)))
        self.wave_reduce63("v_add_f32", [A1, A2])
        I("v_readlane_b32", sr(sT0), vr(A1), 63); I("v_readlane_b32", sr(sT1), vr(A2), 63)
        M0, R0 = 22, 23
        self.ln_scalars1(sT0, sT1, M0, R0, T0)
        XU = 12
        for k in range(4): self.unpack(XU + 2 * k, XU + 2 * k + 1, XF + k)
        for e in range(8): I("v_sub_f32", vr(XU + e), vr(XU + e), vr(M0))
        for k in range(4): I("v_cvt_pk_bf16_f32", vr(XF + k), vr(XU + 2 * k), vr(XU + 2 * k + 1))
        for k in range(4): self.unpack(XU + 2 * k, XU + 2 * k + 1, XF + k)
        for e in range(8): I("v_mul_f32", vr(XU + e), vr(XU + e), vr(R0))
        for k in range(4): I("v_cvt_pk_bf16_f32", vr(XF + k), vr(XU + 2 * k), vr(XU + 2 * k + 1))
        I("v_lshlrev_b32", vr(vT5), 4, vr(vLane))
        I("s_lshl_b32", sr(sT0), sr(sW), 10)
        I("v_add_u32", vr(vT5), sr(sT0), vr(vT5))
        I("ds_write_b128", vr(vT5), vr(XF, 4), mods=f"offset:{L_XN}")
        I("s_lshl_b32", sr(sT1), sr(sRB), 6); I("s_add_u32", sr(sT0), sr(sT0), sr(sT1))
        I("v_lshlrev_b32", vr(vT5), 2, vr(vG))
        I("v_add_u32", vr(vT5), sr(sT0), vr(vT5))
        I("s_waitcnt", "lgkmcnt(0)")
        for ip in range(4):
            I("ds_read_b32", vr(12 + ip), vr(vT5), mods=f"offset:{L_XN + 16 * ip}")
        P = vACC
        PT = kslot(15)
        I("s_mov_b32", sr(sT2), "0x05040100"); I("s_mov_b32", sr(sT3), "0x07060302")
        I("s_waitcnt", "lgkmcnt(0)")
        for ip in range(4):
            wait_dual(f"wq{2 * ip + 1}")
            wa, wb = WQ + 8 * ip, WQ + 8 * ip + 4
            for k in range(4):
                I("v_perm_b32", vr(PT + 2 * k), vr(wb + k), vr(wa + k), sr(sT2))
                I("v_perm_b32", vr(PT + 2 * k + 1), vr(wb + k), vr(wa + k), sr(sT3))
            for e in range(8):
                I("v_dot2_f32_bf16", vr(P + e), vr(PT + e), vr(12 + ip), (0 if ip == 0 else vr(P + e)))
        for i in range(4): I("v_permlane32_swap_b32", vr(P + 2 * i), vr(P + 2 * i + 1))
        for i in range(4): I("v_add_f32", vr(P + 2 * i), vr(P + 2 * i), vr(P + 2 * i + 1))
        for i in range(2): I("v_permlane16_swap_b32", vr(P + 4 * i), vr(P + 4 * i + 2))
        for i in range(2): I("v_add_f32", vr(8 + i), vr(P + 4 * i), vr(P + 4 * i + 2))
        self.perm_g(vT6, vT7)
        I("v_lshl_add_u32", vr(vT5), vr(vC), 3, vr(vT6))
        I("v_lshlrev_b32", vr(vT5), 2, vr(vT5))
        I("s_lshl_b32", sr(sT0), sr(sW), 9)
        I("v_add_u32", vr(vT5), sr(sT0), vr(vT5))
        I("ds_write_b32", vr(vT5), vr(8), mods=f"offset:{L_QP}")
        I("ds_write_b32", vr(vT5), vr(9), mods=f"offset:{L_QP + 16}")
        I("s_waitcnt", "lgkmcnt(0)")
        I("v_mov_b32", vr(vT6), L_QCNT); I("v_mov_b32", vr(vT7), 1)
        I("s_mov_b64", "exec", 1)
        I("ds_add_rtn_u32", vr(vT5), vr(vT6), vr(vT7))
        self.execall()
        I("s_waitcnt", "lgkmcnt(0)")
        I("v_readfirstlane_b32", sr(sT0), vr(vT5))
        self.stamp(2)
        lab_notlast = self.L("NOTLAST")
        I("s_cmp_eq_u32", sr(sT0), 15)
        I("s_cbranch_scc0", lab_notlast)
        I("v_and_b32", vr(vT5), 31, vr(vLane)); I("v_lshlrev_b32", vr(vT5), 4, vr(vT5))
        I("v_lshrrev_b32", vr(vT6), 5, vr(vLane)); I("v_lshlrev_b32", vr(vT6), 12, vr(vT6))
        I("v_add_u32", vr(vT5), vr(vT5), vr(vT6))
        RB = WQ
        for k in range(8):
            I("ds_read_b128", vr(RB + 4 * k, 4), vr(vT5), mods=f"offset:{L_QP + 512 * k}")
        I("s_waitcnt", "lgkmcnt(0)")
        for e in range(4):
            for k in (0, 2, 4, 6): I("v_add_f32", vr(RB + 4 * k + e), vr(RB + 4 * k + e), vr(RB + 4 * k + 4 + e))
        for e in range(4):
            I("v_add_f32", vr(RB + e), vr(RB + e), vr(RB + 8 + e)); I("v_add_f32", vr(RB + 16 + e), vr(RB + 16 + e), vr(RB + 24 + e))
        for e in range(4): I("v_add_f32", vr(RB + e), vr(RB + e), vr(RB + 16 + e))
        for e in range(4): I("v_mov_b32", vr(RB + 4 + e), vr(RB + e))
        for e in range(4): I("v_permlane32_swap_b32", vr(RB + e), vr(RB + 4 + e))
        for e in range(4): I("v_add_f32", vr(RB + e), vr(RB + e), vr(RB + 4 + e))
        I("v_cvt_pk_bf16_f32", vr(RB + 8), vr(RB), vr(RB + 1)); I("v_cvt_pk_bf16_f32", vr(RB + 9), vr(RB + 2), vr(RB + 3))
        I("v_and_b32", vr(vT5), 31, vr(vLane)); I("v_lshlrev_b32", vr(vT5), 3, vr(vT5))
        I("ds_write_b64", vr(vT5), vr(RB + 8, 2), mods=f"offset:{L_QB}")
        I("s_waitcnt", "lgkmcnt(0)")
        self.lds_set(L_FQ, 1)
        a.label(lab_notlast)
        if self.noq:
            a.label("L_NOQ")
            self.lds_set(L_FQ, 1)
        if self.bw:
            lab_b2 = self.L("BW2")
            I("s_cmp_ge_u32", sr(sW), self.bw)
            I("s_cbranch_scc0", lab_b2)
            I("s_setprio", self.prios[1])
            for kq in range(NP, self.npre2):
                I("buffer_load_dwordx4", vr(kslot(kq), 4), vr(vKV), sr(rK, 4), sr(sOFF + kq), mods="offen nt")
            a.label(lab_b2)
        I("s_setprio", self.prios[2])
        for i in range(self.npre2, self.nslot):
            self.vm(f"K{i}", "buffer_load_dwordx4", vr(kslot(i), 4), vr(vKV), sr(rK, 4), sr(sOFF + i), mods="offen nt")
        if self.t1test:
            I("s_lshl_b32", sr(sT0), sr(sH), 17)
            I("s_add_u32", "s84", sr(pWO), sr(sT0)) if False else None
            I("v_lshrrev_b32", vr(vT5), 2, vr(vLane)); I("v_lshlrev_b32", vr(vT5), 10, vr(vT5))
            I("v_and_b32", vr(vT6), 3, vr(vLane)); I("v_lshl_add_u32", vr(vT5), vr(vT6), 4, vr(vT5))
            I("s_lshl_b32", sr(sT1), sr(sW), 6); I("v_add_u32", vr(vT5), sr(sT1), vr(vT5))
            I("s_mov_b32", sr(sT2), 0)
            I("s_lshl_b32", sr(sT1), sr(sW), 12); I("s_add_u32", sr(sT1), sr(sT1), 20480)
            for k in range(8):
                I("s_mov_b32", "m0", sr(sT1))
                self.vm(f"T1_{k}", "buffer_load_dwordx4", vr(vT5), sr(rT1, 4), sr(sT2), mods=("offen lds" if self.t1test == 1 else "offen nt lds"))
                I("s_add_u32", sr(sT2), sr(sT2), 16 * 1024)
        if not self.kfirst:
            I("s_setprio", self.prios[3])
            for i in range(8):
                self.vm(f"V{i}", "buffer_load_dwordx4", vr(vslot(i), 4), vr(vKV), sr(rV, 4), sr(sOFF + i), mods="offen nt")
            self.stamp(16)
            self.lds_wait(L_FQ, 1)
            I("s_setprio", self.prios[4])
            self.stamp(4)
            I("v_lshlrev_b32", vr(vT5), 4, vr(vC))
            I("ds_read_b128", vr(vQ, 4), vr(vT5), mods=f"offset:{L_QB}")
            I("s_mov_b32", sr(sMask), "0x00010001"); I("s_mov_b32", sr(sMask + 1), "0x00010001")
            I("v_mov_b32", vr(vS), 0)
            I("s_waitcnt", "lgkmcnt(0)")
            groups = [[0, 1, 2, 3], [4, 5, 6, 7], [8, 9, 10, 11], [12, 13, 14], [15, 16]]
            nextv = 8
            for grp in groups:
                self.wait_vm(f"K{grp[-1]}")
                for n, i in enumerate(grp):
                    I("v_dot2_f32_bf16", vr(vD + n), vr(kslot(i)), vr(vQ), 0)
                for k in range(1, 4):
                    for n, i in enumerate(grp):
                        I("v_dot2_f32_bf16", vr(vD + n), vr(kslot(i) + k), vr(vQ + k), vr(vD + n))
                for i in grp:
                    if i <= 8 and nextv <= 16:
                        assert vslot(nextv) == kslot(i)
                        self.vm(f"V{nextv}", "buffer_load_dwordx4", vr(vslot(nextv), 4), vr(vKV), sr(rV, 4), sr(sOFF + nextv), mods="offen nt")
                        nextv += 1
                self.row_reduce("v_add_f32", [vD + n for n in range(len(grp))])
                for n, i in enumerate(grp):
                    if i < 16:
                        I("v_cndmask_b32", vr(vS), vr(vS), vr(vD + n), sr(sMask, 2))
                        if i < 15: I("s_lshl_b64", sr(sMask, 2), sr(sMask, 2), 1)
                    else:
                        I("v_mov_b32", vr(vS2), vr(vD + n))
                if nextv == 17 and not self.wo_done and not self.late_wo:
                    self.wo_dma()
        else:
            lab_qok, lab_kph, lab_vdone = self.L("QOK"), self.L("KPH"), self.L("VD")
            I("s_setprio", self.prios[3])
            I("v_mov_b32", vr(vT6), L_FQ)
            I("ds_read_b32", vr(vT7), vr(vT6))
            I("s_waitcnt", "lgkmcnt(0)")
            I("v_readfirstlane_b32", sr(sU3 - 1), vr(vT7))
            I("s_cmp_ge_u32", sr(sU3 - 1), 1)
            I("s_cbranch_scc1", lab_kph)
            for i in range(8):
                I("buffer_load_dwordx4", vr(vslot(i), 4), vr(vKV), sr(rV, 4), sr(sOFF + i), mods="offen nt")
            self.stamp(16)
            self.lds_wait(L_FQ, 1)
            a.label(lab_kph)
            I("s_setprio", self.prios[4])
            self.stamp(4)
            I("v_lshlrev_b32", vr(vT5), 4, vr(vC))
            I("ds_read_b128", vr(vQ, 4), vr(vT5), mods=f"offset:{L_QB}")
            I("s_mov_b32", sr(sMask), "0x00010001"); I("s_mov_b32", sr(sMask + 1), "0x00010001")
            I("v_mov_b32", vr(vS), 0)
            I("s_waitcnt", "lgkmcnt(0)")
            groups = [[0, 1, 2, 3], [4, 5, 6, 7], [8, 9, 10, 11], [12, 13, 14], [15, 16]]
            if self.nslot == 16:
                groups = [[0, 1, 2, 3], [4, 5, 6, 7], [8, 9, 10, 11], [12, 13, 14, 15]]
                I("v_mov_b32", vr(vS2), 0)
            for grp in groups:
                self.wait_vm(f"K{grp[-1]}")
                for n, i in enumerate(grp):
                    I("v_dot2_f32_bf16", vr(vD + n), vr(kslot(i)), vr(vQ), 0)
                for k in range(1, 4):
                    for n, i in enumerate(grp):
                        I("v_dot2_f32_bf16", vr(vD + n), vr(kslot(i) + k), vr(vQ + k), vr(vD + n))
                if grp[-1] == self.nslot - 1:
                    I("s_cmp_ge_u32", sr(sU3 - 1), 1)
                    I("s_cbranch_scc0", lab_vdone)
                    for i in range(8):
                        I("buffer_load_dwordx4", vr(vslot(i), 4), vr(vKV), sr(rV, 4), sr(sOFF + i), mods="offen nt")
                    a.label(lab_vdone)
                    for i in range(8): self.issued.append(f"V{i}")
                    for i in range(8, self.nslot):
                        self.vm(f"V{i}", "buffer_load_dwordx4", vr(vslot(i), 4), vr(vKV), sr(rV, 4), sr(sOFF + i), mods="offen nt")
                self.row_reduce("v_add_f32", [vD + n for n in range(len(grp))])
                for n, i in enumerate(grp):
                    if i < 16:
                        I("v_cndmask_b32", vr(vS), vr(vS), vr(vD + n), sr(sMask, 2))
                        if i < 15: I("s_lshl_b64", sr(sMask, 2), sr(sMask, 2), 1)
                    else:
                        I("v_mov_b32", vr(vS2), vr(vD + n))
            if not self.wo_done and not self.late_wo:
                self.wo_dma()
        T0, T1 = 18, 19
        I("v_cvt_pk_bf16_f32", vr(T0), vr(vS), vr(vS2))
        self.unpack(vS, vS2, T0)
        I("v_mul_f32", vr(vS), hex(SCALE), vr(vS)); I("v_mul_f32", vr(vS2), hex(SCALE), vr(vS2))
        I("v_cvt_pk_bf16_f32", vr(T0), vr(vS), vr(vS2))
        self.unpack(vS, vS2, T0)
        I("v_mov_b32", vr(T1), "0xff800000")
        I("v_cmp_gt_u32", "vcc", sr(sN), vr(vC))
        I("v_cndmask_b32", vr(vS), vr(T1), vr(vS), "vcc")
        I("s_cmp_gt_u32", sr(sN), 16)
        self.csel(sT0, "0x7f800000", "0xff800000")
        I("v_min_f32", vr(vS2), sr(sT0), vr(vS2))
        I("v_max_f32", vr(T0), vr(vS), vr(vS2))
        self.wave_reduce63("v_max_f32", [T0])
        I("v_readlane_b32", sr(sT0), vr(T0), 63)
        I("v_subrev_f32", vr(vS), sr(sT0), vr(vS)); I("v_subrev_f32", vr(vS2), sr(sT0), vr(vS2))
        I("v_mul_f32", vr(vS), hex(LOG2E), vr(vS)); I("v_mul_f32", vr(vS2), hex(LOG2E), vr(vS2))
        I("v_exp_f32", vr(vS), vr(vS)); I("v_exp_f32", vr(vS2), vr(vS2))
        I("v_mov_b32", vr(T0), vr(vS))
        I("v_fmac_f32", vr(T0), "0x3d800000", vr(vS2))
        self.wave_reduce63("v_add_f32", [T0])
        I("v_mov_b32", vr(T1), vr(T0))
        I("v_mov_b32", vr(T0), sr(sT0))
        I("s_lshl_b32", sr(sT1), sr(sW), 3)
        I("v_mov_b32", vr(vT5), sr(sT1))
        self.exec63()
        I("ds_write_b64", vr(vT5), vr(T0, 2), mods=f"offset:{L_ML}")
        I("s_waitcnt", "lgkmcnt(0)")
        I("v_mov_b32", vr(vT5), L_CNT); I("v_mov_b32", vr(vT6), 1)
        I("ds_add_u32", vr(vT5), vr(vT6))
        self.execall()
        self.stamp(5)
        for e in range(8): I("v_mov_b32", vr(vACC + e), 0)
        for i in range(self.nslot):
            if self.wo_at and i > self.wo_at:
                idx = self.issued.index(f"V{i}")
                n = len(self.issued) - 1 - idx
                l0, l1 = self.L("WV"), self.L("WVJ")
                I("s_cmp_eq_u32", sr(sRole), 1)
                I("s_cbranch_scc1", l0)
                I("s_waitcnt", f"vmcnt({n})")
                I("s_branch", l1)
                a.label(l0)
                I("s_waitcnt", f"vmcnt({n + 4})")
                a.label(l1)
            else:
                self.wait_vm(f"V{i}")
            for k in range(4):
                self.unpack(8 + 2 * k, 9 + 2 * k, vslot(i) + k)
            for k in range(4):
                for hh in range(2):
                    if i < 16:
                        I("v_fmac_f32_dpp", vr(vACC + 2 * k + hh), vr(vS), vr(8 + 2 * k + hh), mods=f"row_newbcast:{i} row_mask:0xf bank_mask:0xf")
                    else:
                        I("v_fmac_f32", vr(vACC + 2 * k + hh), vr(vS2), vr(8 + 2 * k + hh))
            if self.wo_at and i == self.wo_at:
                self.wo_dma()
        self.stamp(6)
        if self.tags:
            I("s_add_u32", sr(sEp), sr(sEp), 1)
            I("s_and_b32", sr(sT0), sr(sEp), hex(TAGM))
            I("v_mov_b32", vr(vTag), sr(sT0))
            I("s_mov_b32", sr(sTagM), hex(0xFFFFFFFF ^ TAGM))
        for i in range(4): I("v_permlane32_swap_b32", vr(vACC + 2 * i), vr(vACC + 2 * i + 1))
        for i in range(4): I("v_add_f32", vr(vACC + 2 * i), vr(vACC + 2 * i), vr(vACC + 2 * i + 1))
        for i in range(2): I("v_permlane16_swap_b32", vr(vACC + 4 * i), vr(vACC + 4 * i + 2))
        for i in range(2): I("v_add_f32", vr(8 + i), vr(vACC + 4 * i), vr(vACC + 4 * i + 2))
        self.perm_g(vT6, vT7)
        I("v_lshl_add_u32", vr(vT5), vr(vC), 3, vr(vT6))
        I("v_lshlrev_b32", vr(vT5), 2, vr(vT5))
        I("s_lshl_b32", sr(sT0), sr(sW), 9)
        I("v_add_u32", vr(vT5), sr(sT0), vr(vT5))
        I("ds_write_b32", vr(vT5), vr(8), mods=f"offset:{L_OP}")
        I("ds_write_b32", vr(vT5), vr(9), mods=f"offset:{L_OP + 16}")
        if self.wsplit and not self.wo_at:
            lab_ws = self.L("WSP")
            I("s_cmp_lt_u32", sr(sW), self.wsplit)
            I("s_cbranch_scc0", lab_ws)
            self.wo_dma()
            a.label(lab_ws)
        if self.fearly: self.ffn_dma()
        lab_w4 = self.L("W4")
        I("s_cmp_lt_u32", sr(sW), 4)
        I("s_cbranch_scc0", lab_w4)
        self.lds_wait(L_CNT, 16, sleep=1)
        I("v_lshrrev_b32", vr(vT7), 3, vr(vLane))
        I("v_lshlrev_b32", vr(13), 4, vr(vT7))
        I("ds_read_b128", vr(12, 4), vr(13), mods=f"offset:{L_ML}")
        I("s_waitcnt", "lgkmcnt(0)")
        I("v_max_f32", vr(16), vr(12), vr(14))
        self.wave_reduce63("v_max_f32", [16])
        I("v_readlane_b32", sr(sT0), vr(16), 63)
        I("v_subrev_f32", vr(12), sr(sT0), vr(12)); I("v_subrev_f32", vr(14), sr(sT0), vr(14))
        I("v_mul_f32", vr(12), hex(LOG2E), vr(12)); I("v_mul_f32", vr(14), hex(LOG2E), vr(14))
        I("v_exp_f32", vr(12), vr(12)); I("v_exp_f32", vr(14), vr(14))
        I("v_mul_f32", vr(16), vr(12), vr(13)); I("v_fmac_f32", vr(16), vr(14), vr(15))
        I("v_mul_f32", vr(16), "0x3e000000", vr(16))
        self.wave_reduce63("v_add_f32", [16])
        lab_noml = self.L("NOML")
        I("s_cmp_eq_u32", sr(sW), 0)
        I("s_cbranch_scc0", lab_noml)
        I("v_mov_b32", vr(17), vr(16))
        I("v_mov_b32", vr(16), sr(sT0))
        self.clamp(16); self.clamp(17)
        I("s_lshl_b32", sr(sT1), sr(sBH), 2); I("s_add_u32", sr(sT1), sr(sT1), sr(sM)); I("s_lshl_b32", sr(sT1), sr(sT1), 3)
        I("s_add_u32", sr(sT1), sr(sT1), hex(ML))
        I("v_mov_b32", vr(vT5), 0)
        self.exec63()
        I("buffer_store_dwordx2", vr(16, 2), vr(vT5), sr(rWS, 4), sr(sT1), mods="offen sc1")
        self.execall()
        a.label(lab_noml)
        if not self.tags: self.check_all_counters()
        self.stamp(18)
        I("v_and_b32", vr(vT5), 7, vr(vLane)); I("v_lshlrev_b32", vr(16), 4, vr(vT5))
        I("v_lshrrev_b32", vr(vT7), 3, vr(vLane)); I("v_lshlrev_b32", vr(vT6), 10, vr(vT7))
        I("v_add_u32", vr(16), vr(16), vr(vT6))
        I("s_lshl_b32", sr(sT0), sr(sW), 7)
        I("v_add_u32", vr(16), sr(sT0), vr(16))
        self.perm_g(vT6, vT7)
        I("v_lshl_add_u32", vr(17), vr(vT5), 2, vr(vT6))
        I("v_lshlrev_b32", vr(17), 2, vr(17))
        I("s_lshl_b32", sr(sU0), sr(sBH), 2); I("s_add_u32", sr(sU0), sr(sU0), sr(sM)); I("s_lshl_b32", sr(sU0), sr(sU0), 9)
        I("s_add_u32", sr(sU0), sr(sU0), sr(sT0)); I("s_add_u32", sr(sU0), sr(sU0), hex(OPART))
        a.label(lab_w4)
        I("s_waitcnt", "lgkmcnt(0)")
        I("s_barrier")
        self.stamp(7)
        lab_exit_wait = self.L("XW")
        I("s_cmp_lt_u32", sr(sW), 4)
        I("s_cbranch_scc0", lab_exit_wait)
        I("ds_read_b128", vr(20, 4), vr(16), mods=f"offset:{L_OP}")
        I("ds_read_b128", vr(24, 4), vr(16), mods=f"offset:{L_OP + 512}")
        I("s_waitcnt", "lgkmcnt(0)")
        for e in range(4): I("v_mul_f32", vr(20 + e), vr(20 + e), vr(12))
        for e in range(4): I("v_fmac_f32", vr(20 + e), vr(24 + e), vr(14))
        I("v_permlane32_swap_b32", vr(20), vr(21)); I("v_permlane32_swap_b32", vr(22), vr(23))
        I("v_add_f32", vr(20), vr(20), vr(21)); I("v_add_f32", vr(22), vr(22), vr(23))
        self.swap_add(16, 20, 22, 20)
        self.dpp("v_add_f32", 20, 20, 20, "row_ror:8")
        self.clamp(20)
        self.execm("0x00ff00ff", "0x00ff00ff")
        I("buffer_store_dword", vr(20), vr(17), sr(rWS, 4), sr(sU0), mods="offen sc1")
        self.execall()
        self.stamp(8)
        if self.stop == "attn":
            a.label(lab_exit_wait)
            return self.finish()
        self.tail(lab_exit_wait)
        return self.finish()

    def wo_dma(self):
        I = self.I
        skip = self.L("NWD")
        self.wo_done = True
        I("s_cmp_eq_u32", sr(sRole), 1)
        I("s_cbranch_scc0", skip)
        I("s_lshl_b32", sr(sT2), sr(sW), 12)
        I("v_lshlrev_b32", vr(vT5), 4, vr(vLane))
        I("s_mul_i32", sr(sT1), sr(sW), 4 * WROW); I("s_add_u32", sr(sT1), sr(sT1), L_WB)
        for k in range(4):
            I("s_mov_b32", "m0", sr(sT1))
            I("buffer_load_dwordx4", vr(vT5), sr(rWA, 4), sr(sT2), mods="offen nt lds")
            if k < 3:
                I("s_add_u32", sr(sT1), sr(sT1), WROW); I("s_add_u32", sr(sT2), sr(sT2), 1024)
        self.a.label(skip)

    def ffn_dma(self):
        I = self.I
        skip = self.L("NFD")
        I("s_cmp_eq_u32", sr(sRole), 2)
        I("s_cbranch_scc0", skip)
        I("s_lshl_b32", sr(sT0), sr(sW), 5)
        I("v_lshrrev_b32", vr(vT5), 2, vr(vLane)); I("v_add_u32", vr(vT5), sr(sT0), vr(vT5))
        I("s_movk_i32", sr(sT1), 2752)
        I("v_mul_lo_u32", vr(vT5), vr(vT5), sr(sT1))
        I("v_and_b32", vr(vT6), 3, vr(vLane))
        I("v_lshl_add_u32", vr(vT5), vr(vT6), 4, vr(vT5))
        I("s_lshl_b32", sr(sT0), sr(sW), 11); I("s_add_u32", sr(sT1), sr(sT0), L_WB)
        I("s_mov_b32", "m0", sr(sT1))
        I("buffer_load_dwordx4", vr(vT5), sr(rWA, 4), 0, mods="offen lds")
        I("s_add_u32", sr(sT1), sr(sT1), 1024)
        I("s_mov_b32", sr(sT2), 16 * 2752)
        I("s_mov_b32", "m0", sr(sT1))
        I("buffer_load_dwordx4", vr(vT5), sr(rWA, 4), sr(sT2), mods="offen lds")
        I("v_lshlrev_b32", vr(vT6), 4, vr(vLane)); I("v_add_u32", vr(vT6), sr(sT0), vr(vT6))
        I("s_mul_i32", sr(sT1), sr(sW), 2 * WROW); I("s_add_u32", sr(sT1), sr(sT1), L_W2)
        I("s_mov_b32", "m0", sr(sT1))
        I("buffer_load_dwordx4", vr(vT6), sr(rWB, 4), 0, mods="offen nt lds")
        I("s_add_u32", sr(sT1), sr(sT1), WROW)
        I("s_movk_i32", sr(sT2), 1024)
        I("s_mov_b32", "m0", sr(sT1))
        I("buffer_load_dwordx4", vr(vT6), sr(rWB, 4), sr(sT2), mods="offen nt lds")
        self.a.label(skip)

    def check_all_counters(self):
        a, I = self.a, self.I
        lp, ok = self.L("CA"), self.L("CAOK")
        I("s_mov_b32", sr(sSpin), SPIN_MAX)
        I("v_and_b32", vr(vT5), 31, vr(vLane)); I("v_lshlrev_b32", vr(vT5), 2, vr(vT5))
        a.label(lp)
        I("buffer_load_dword", vr(vT6), vr(vT5), sr(rDBG, 4), 0, mods="offen sc1")
        I("s_waitcnt", "vmcnt(0)")
        I("v_cmp_gt_u32", "vcc", 8, vr(vT6))
        I("s_cbranch_vccz", ok)
        I("s_sub_u32", sr(sSpin), sr(sSpin), 1)
        I("s_cbranch_scc0", lp)
        a.label(ok)

    def tail(self, lab_exit_wait):
        a, I = self.a, self.I
        if self.late_wo == 99 and self.wsplit < 4: self.wo_dma()
        if not self.fearly: self.ffn_dma()
        lab_ffn, lab_red = self.L("FFN"), self.L("RED")
        I("s_cmp_eq_u32", sr(sRole), 0)
        I("s_cbranch_scc1", "L_FIN")
        I("s_cmp_eq_u32", sr(sRole), 3)
        I("s_cbranch_scc1", lab_red)
        I("s_cmp_eq_u32", sr(sRole), 1)
        I("s_cbranch_scc0", lab_ffn)
        self.wo_stage()
        a.label(lab_ffn)
        self.ffn_stage()
        I("s_branch", "L_FIN")
        a.label(lab_red)
        I("s_cmp_eq_u32", sr(sW), 0)
        I("s_cbranch_scc0", "L_FIN")
        self.reducer()
        I("s_branch", "L_FIN")
        a.label(lab_exit_wait)
        if self.late_wo == 99:
            lab_ws2 = self.L("WSP2")
            I("s_cmp_ge_u32", sr(sW), self.wsplit)
            I("s_cbranch_scc0", lab_ws2)
            self.wo_dma()
            a.label(lab_ws2)
        if not self.fearly: self.ffn_dma()
        I("s_cmp_eq_u32", sr(sRole), 0)
        I("s_cbranch_scc1", "L_FIN")
        I("s_cmp_eq_u32", sr(sRole), 3)
        I("s_cbranch_scc1", "L_FIN")
        I("s_waitcnt", "vmcnt(0)")
        I("s_barrier")
        I("s_branch", "L_FIN")

    def dry_top(self):
        top = self.L("TOP")
        self.I("s_mov_b32", sr(sDry), 1 if self.dry else 0)
        self.a.label(top)
        return top
    def skip_if_dry(self):
        lab = self.L("SK")
        self.I("s_cmp_eq_u32", sr(sDry), 1)
        self.I("s_cbranch_scc1", lab)
        return lab
    def dry_end(self, top):
        lab = self.L("REAL")
        self.I("s_cmp_eq_u32", sr(sDry), 0)
        self.I("s_cbranch_scc1", lab)
        self.I("s_mov_b32", sr(sDry), 0)
        self.I("s_branch", top)
        self.a.label(lab)

    def wo_stage(self):
        a, I = self.a, self.I
        vI4, vI2 = 8, 9
        BW = 64
        vBS, vMS = 10, 11
        vAml, vAown, vAo, vAy = 40, 41, 42, 43
        ML0, O0 = 12, 44
        I("v_bfe_u32", vr(vBS), vr(vC), 2, 1); I("v_and_b32", vr(vMS), 3, vr(vC))
        I("v_lshlrev_b32", vr(vAml), 10, vr(vBS))
        I("v_lshl_add_u32", vr(vAown), vr(vMS), 3, vr(vAml))
        I("s_lshl_b32", sr(sU0), sr(sHW), 5); I("s_add_u32", sr(sU0), sr(sU0), hex(ML))
        I("v_lshlrev_b32", vr(vAo), 16, vr(vBS))
        I("v_lshl_add_u32", vr(vAo), vr(vMS), 9, vr(vAo))
        I("v_lshl_add_u32", vr(vAo), vr(vG), 5, vr(vAo))
        I("s_lshl_b32", sr(sU1), sr(sHW), 11)
        I("s_and_b32", sr(sT1), sr(sF), 1); I("s_lshl_b32", sr(sT1), sr(sT1), 8)
        I("s_add_u32", sr(sU1), sr(sU1), sr(sT1)); I("s_add_u32", sr(sU1), sr(sU1), hex(OPART))
        def loads():
            for k in range(4):
                I("buffer_load_dwordx4", vr(O0 + 4 * k, 4), vr(vAo), sr(rWS, 4), sr(sU1), mods=f"offen offset:{(k >> 1) * 128 + (k & 1) * 16} sc1")
            I("buffer_load_dwordx4", vr(ML0, 4), vr(vAml), sr(rWS, 4), sr(sU0), mods="offen sc1")
            I("buffer_load_dwordx4", vr(ML0 + 4, 4), vr(vAml), sr(rWS, 4), sr(sU0), mods="offen offset:16 sc1")
            I("buffer_load_dwordx2", vr(ML0 + 8, 2), vr(vAown), sr(rWS, 4), sr(sU0), mods="offen sc1")
        loads()
        I("v_lshrrev_b32", vr(vI4), 2, vr(vC)); I("v_and_b32", vr(vI2), 3, vr(vC))
        I("v_lshl_add_u32", vr(vT5), vr(vG), 3, vr(vI4))
        I("s_movk_i32", sr(sT0), WROW)
        I("v_mul_lo_u32", vr(vT5), vr(vT5), sr(sT0))
        I("v_lshl_add_u32", vr(vT5), vr(vI2), 3, vr(vT5))
        I("s_lshl_b32", sr(sT0), sr(sW), 8)
        I("v_add_u32", vr(vT5), sr(sT0), vr(vT5))
        I("v_add_u32", vr(vT5), L_WB, vr(vT5))
        I("s_waitcnt", "vmcnt(7)")
        I("s_barrier")
        self.stamp(23)
        for ks in range(2):
            for tt in range(8):
                I("ds_read_b64_tr_b16", vr(BW + 32 * ks + 4 * tt, 2), vr(vT5), mods=f"offset:{32 * ks * WROW + 32 * tt}")
                I("ds_read_b64_tr_b16", vr(BW + 32 * ks + 4 * tt + 2, 2), vr(vT5), mods=f"offset:{(32 * ks + 4) * WROW + 32 * tt}")
        I("v_and_b32", vr(vAy), 1, vr(vG)); I("v_lshlrev_b32", vr(vAy), 17, vr(vAy))
        I("v_lshrrev_b32", vr(vT6), 1, vr(vG)); I("v_lshlrev_b32", vr(vT6), 12, vr(vT6))
        I("v_add_u32", vr(vAy), vr(vAy), vr(vT6))
        I("v_lshl_add_u32", vr(vAy), vr(vC), 2, vr(vAy))
        I("s_lshl_b32", sr(sU2), sr(sW), 15)
        I("s_lshl_b32", sr(sT1), sr(sF), 6); I("s_add_u32", sr(sU2), sr(sU2), sr(sT1)); I("s_add_u32", sr(sU2), sr(sU2), hex(YPART))
        I("s_mov_b32", sr(sMask), 0); I("s_mov_b32", sr(sMask + 1), -1)
        regs = list(range(ML0, ML0 + 10)) + list(range(O0, O0 + 16))
        lp, ok = self.L("POLL"), self.L("POK")
        I("s_mov_b32", sr(sSpin), SPIN_MAX)
        I("s_waitcnt", "vmcnt(0)")
        self.check_regs(regs, vT7)
        I("s_cbranch_vccz", ok)
        a.label(lp)
        loads()
        I("s_waitcnt", "vmcnt(0)")
        self.check_regs(regs, vT7)
        I("s_cbranch_vccz", ok)
        I("s_sub_u32", sr(sSpin), sr(sSpin), 1)
        I("s_cbranch_scc0", lp)
        a.label(ok)
        self.stamp(21)
        T = 22
        I("v_max3_f32", vr(T), vr(ML0), vr(ML0 + 2), vr(ML0 + 4)); I("v_max_f32", vr(T), vr(T), vr(ML0 + 6))
        for n in range(5): I("v_sub_f32", vr(T + 1 + n), vr(ML0 + 2 * n), vr(T))
        for n in range(5): I("v_mul_f32", vr(T + 1 + n), hex(LOG2E), vr(T + 1 + n))
        for n in range(5): I("v_exp_f32", vr(T + 1 + n), vr(T + 1 + n))
        I("v_mul_f32", vr(T), vr(T + 1), vr(ML0 + 1))
        I("v_fmac_f32", vr(T), vr(T + 2), vr(ML0 + 3)); I("v_fmac_f32", vr(T), vr(T + 3), vr(ML0 + 5)); I("v_fmac_f32", vr(T), vr(T + 4), vr(ML0 + 7))
        I("v_rcp_f32", vr(T), vr(T))
        I("v_mul_f32", vr(T), vr(T), vr(T + 5))
        for e in range(16): I("v_mul_f32", vr(O0 + e), vr(O0 + e), vr(T))
        for e in range(16): self.dpp("v_add_f32", O0 + e, O0 + e, O0 + e, "quad_perm:[1,0,3,2]")
        for e in range(16): self.dpp("v_add_f32", O0 + e, O0 + e, O0 + e, "quad_perm:[2,3,0,1]")
        AO = 28
        for k in range(8): I("v_cvt_pk_bf16_f32", vr(AO + k), vr(O0 + 2 * k), vr(O0 + 2 * k + 1))
        I("s_waitcnt", "lgkmcnt(0)")
        Dr = [44, 48, 52, 56, 12, 16, 20, 24]
        for tt in range(8):
            I("v_mfma_f32_16x16x32_bf16", vr(Dr[tt], 4), vr(AO, 4), vr(BW + 4 * tt, 4), 0)
        for tt in range(8):
            I("v_mfma_f32_16x16x32_bf16", vr(Dr[tt], 4), vr(AO + 4, 4), vr(BW + 32 + 4 * tt, 4), vr(Dr[tt], 4))
        for tt in range(0, 8, 2):
            I("v_cndmask_b32", vr(36 + tt // 2), vr(Dr[tt]), vr(Dr[tt + 1]), sr(sMask, 2))
        for tt in range(4): self.clamp(36 + tt)
        for tt in range(4):
            I("buffer_store_dword", vr(36 + tt), vr(vAy), sr(rWS, 4), sr(sU2), mods="offen sc1")
            if tt < 3: I("s_add_u32", sr(sU2), sr(sU2), 8192)
        self.stamp(22)
        I("s_branch", "L_FIN")

    def reduce16(self, r0, out):
        I = self.I
        I("v_permlane32_swap_b32", vr(r0), vr(r0 + 1)); I("v_permlane32_swap_b32", vr(r0 + 2), vr(r0 + 3))
        I("v_add_f32", vr(r0), vr(r0), vr(r0 + 1)); I("v_add_f32", vr(r0 + 2), vr(r0 + 2), vr(r0 + 3))
        self.swap_add(16, r0, r0 + 2, out)
        self.dpp("v_add_f32", out, out, out, "row_ror:8")
        self.dpp("v_add_f32", out, out, out, "row_ror:4")

    def reducer(self):
        a, I = self.a, self.I
        vCol, vX, vAo, vH, vA, vAh = 60, 61, 62, 63, 8, 9
        Y, S, U3 = 64, 96, 112
        self.perm_g(vT6, vT7)
        I("v_and_b32", vr(vCol), 3, vr(vLane))
        I("v_lshl_add_u32", vr(vCol), vr(vCol), 2, vr(vT6))
        I("v_lshlrev_b32", vr(vAo), 1, vr(vCol))
        I("s_lshl_b32", sr(sT0), sr(sF), 5)
        I("buffer_load_ushort", vr(vX), vr(vAo), sr(rX, 4), sr(sT0), mods="offen")
        I("v_lshlrev_b32", vr(vA), 4, vr(vLane))
        I("v_lshlrev_b32", vr(vAh), 2, vr(vCol))
        I("s_lshl_b32", sr(sU0), sr(sF), 12); I("s_add_u32", sr(sU0), sr(sU0), hex(YPART))
        I("s_lshl_b32", sr(sU2), sr(sF), 6); I("s_add_u32", sr(sU2), sr(sU2), hex(HBUF))
        I("s_lshl_b32", sr(sU3), sr(sF), 5)
        I("s_mul_i32", sr(sT0), sr(sF), USTR); I("s_add_u32", sr(sT0), sr(sT0), hex(UPART))
        I("s_add_u32", sr(rWA), sr(pWS), sr(sT0)); I("s_addc_u32", sr(rWA + 1), sr(pWS + 1), 0)
        I("s_mov_b32", sr(rWA + 2), NF * 64); I("s_mov_b32", sr(rWA + 3), "0x20000")
        def loads():
            for k in range(4):
                I("buffer_load_dwordx4", vr(Y + 4 * k, 4), vr(vA), sr(rWS, 4), sr(sU0), mods=f"offen offset:{k * 1024} sc1")
        self.poll(loads, 4, range(Y, Y + 16))
        self.stamp(12)
        I("s_waitcnt", "vmcnt(0)")
        I("v_lshlrev_b32", vr(vX), 16, vr(vX))
        for e in range(4):
            I("v_add_f32", vr(S + e), vr(Y + e), vr(Y + 4 + e)); I("v_add_f32", vr(S + 4 + e), vr(Y + 8 + e), vr(Y + 12 + e))
        for e in range(4): I("v_add_f32", vr(S + e), vr(S + e), vr(S + 4 + e))
        self.reduce16(S, vH)
        I("v_cvt_pk_bf16_f32", vr(vH), vr(vH), vr(vH))
        I("v_lshlrev_b32", vr(vH), 16, vr(vH))
        I("v_add_f32", vr(vH), vr(vH), vr(vX))
        I("v_cvt_pk_bf16_f32", vr(vH), vr(vH), vr(vH))
        I("v_lshlrev_b32", vr(vH), 16, vr(vH))
        self.clamp(12, vH)
        self.execm("0x000f000f", "0x000f000f")
        I("buffer_store_dword", vr(12), vr(vAh), sr(rWS, 4), sr(sU2), mods="offen sc1")
        self.execall()
        self.stamp(13)
        I("s_mov_b32", sr(sMask), 0); I("s_mov_b32", sr(sMask + 1), "0xfffff000")
        def loads3():
            for k in range(3):
                I("buffer_load_dwordx4", vr(U3 + 4 * k, 4), vr(vA), sr(rWA, 4), 0, mods=f"offen offset:{k * 1024} sc1")
        if self.tags:
            lp, ok = self.L("POLL"), self.L("POK")
            I("s_mov_b32", sr(sSpin), SPIN_MAX)
            a.label(lp)
            loads3()
            I("s_waitcnt", "vmcnt(0)")
            for k in range(4):
                I("v_cndmask_b32", vr(U3 + 8 + k), vr(U3 + 8 + k), vr(vTag), sr(sMask, 2))
            self.check_regs(list(range(U3, U3 + 12)), vT7)
            I("s_cbranch_vccz", ok)
            I("s_sub_u32", sr(sSpin), sr(sSpin), 1)
            I("s_cbranch_scc0", lp)
            a.label(ok)
        else:
            self.poll(loads3, 3, range(U3, U3 + 12))
        self.stamp(14)
        for e in range(4):
            I("v_add_f32", vr(S + e), vr(U3 + e), vr(U3 + 4 + e))
        for e in range(4): I("v_add_f32", vr(S + e), vr(S + e), vr(U3 + 8 + e))
        self.reduce16(S, 12)
        I("v_cvt_pk_bf16_f32", vr(12), vr(12), vr(12))
        I("v_lshlrev_b32", vr(12), 16, vr(12))
        I("v_add_f32", vr(12), vr(12), vr(vH))
        I("v_cvt_pk_bf16_f32", vr(12), vr(12), vr(12))
        self.execm("0x000f000f", "0x000f000f")
        I("buffer_store_short", vr(12), vr(vAo), sr(rOUT, 4), sr(sU3), mods="offen")
        self.execall()
        if self.tags:
            lab_ne = self.L("NEP")
            I("s_cmp_eq_u32", sr(sF), 0)
            I("s_cbranch_scc0", lab_ne)
            I("v_mov_b32", vr(13), sr(sEp)); I("v_mov_b32", vr(14), 0)
            I("s_mov_b32", sr(sT0), hex(EPOCH))
            I("s_mov_b64", "exec", 1)
            I("buffer_store_dword", vr(13), vr(14), sr(rWS, 4), sr(sT0), mods="offen sc1")
            self.execall()
            a.label(lab_ne)
        if self.dbgtime:
            I("s_memrealtime", "s[12:13]")
            I("s_waitcnt", "lgkmcnt(0)")
            I("s_sub_u32", sr(sT1), sr(sT1), "s38")
            I("v_mov_b32", vr(12), sr(sT1)); I("v_mov_b32", vr(vT6), 0)
            I("s_lshl_b32", sr(sT0), sr(sF), 2)
            I("s_mov_b64", "exec", 1)
            I("buffer_store_dword", vr(12), vr(vT6), sr(rDBG, 4), sr(sT0), mods="offen")
            self.execall()
        self.stamp(15)

    def ffn_stage(self):
        a, I = self.a, self.I
        if self.stop in ("y", "h"):
            I("s_waitcnt", "vmcnt(0)"); I("s_barrier"); return
        vI4, vI2 = 8, 9
        B1, B2 = 64, 96
        I("s_waitcnt", "vmcnt(0)")
        I("s_barrier")
        I("v_lshrrev_b32", vr(vI4), 2, vr(vC)); I("v_and_b32", vr(vI2), 3, vr(vC))
        I("v_lshl_add_u32", vr(vT5), vr(vG), 3, vr(vI4)); I("v_lshlrev_b32", vr(vT5), 6, vr(vT5))
        I("v_lshl_add_u32", vr(vT5), vr(vI2), 3, vr(vT5))
        I("s_lshl_b32", sr(sT0), sr(sW), 13)
        I("v_add_u32", vr(vT5), sr(sT0), vr(vT5))
        for ks in range(4):
            for nt in range(2):
                o = L_WB + ks * 2048 + nt * 32
                I("ds_read_b64_tr_b16", vr(B1 + 8 * ks + 4 * nt, 2), vr(vT5), mods=f"offset:{o}")
                I("ds_read_b64_tr_b16", vr(B1 + 8 * ks + 4 * nt + 2, 2), vr(vT5), mods=f"offset:{o + 256}")
        I("v_lshl_add_u32", vr(vT6), vr(vG), 3, vr(vI4))
        I("s_movk_i32", sr(sT0), WROW)
        I("v_mul_lo_u32", vr(vT6), vr(vT6), sr(sT0))
        I("v_lshl_add_u32", vr(vT6), vr(vI2), 3, vr(vT6))
        I("s_lshl_b32", sr(sT0), sr(sW), 8)
        I("v_add_u32", vr(vT6), sr(sT0), vr(vT6))
        I("v_add_u32", vr(vT6), L_W2, vr(vT6))
        for tt in range(8):
            I("ds_read_b64_tr_b16", vr(B2 + 4 * tt, 2), vr(vT6), mods=f"offset:{32 * tt}")
            I("ds_read_b64_tr_b16", vr(B2 + 4 * tt + 2, 2), vr(vT6), mods=f"offset:{4 * WROW + 32 * tt}")
        vAh, vAhw, vAhr, vAuw, vAur, vAaw, vAar, vAo = 10, 11, 52, 53, 54, 55, 56, 57
        I("v_lshlrev_b32", vr(vAh), 5, vr(vLane))
        I("s_mov_b32", sr(sU0), hex(HBUF))
        I("v_lshlrev_b32", vr(vAhw), 4, vr(vLane)); I("s_lshl_b32", sr(sT0), sr(sW), 11); I("v_add_u32", vr(vAhw), sr(sT0), vr(vAhw))
        I("v_bfe_u32", vr(vT7), vr(vC), 2, 1)
        I("v_lshlrev_b32", vr(vAhr), 10, vr(vT7)); I("v_lshl_add_u32", vr(vAhr), vr(vG), 4, vr(vAhr))
        I("s_mul_i32", sr(sT0), sr(sW), 2048 + 256); I("v_add_u32", vr(vAhr), sr(sT0), vr(vAhr))
        I("v_and_b32", vr(vAuw), 1, vr(vG)); I("v_lshlrev_b32", vr(vAuw), 7, vr(vAuw))
        I("v_lshrrev_b32", vr(vT5), 1, vr(vG)); I("v_lshl_add_u32", vr(vAuw), vr(vT5), 6, vr(vAuw))
        I("v_lshl_add_u32", vr(vAuw), vr(vC), 2, vr(vAuw))
        I("s_lshl_b32", sr(sT0), sr(sW), 8); I("v_add_u32", vr(vAuw), sr(sT0), vr(vAuw))
        I("v_lshlrev_b32", vr(vAur), 2, vr(vLane))
        I("s_lshl_b32", sr(sT0), sr(sW), 7)
        I("v_lshlrev_b32", vr(vAaw), 1, vr(vLane)); I("v_add_u32", vr(vAaw), sr(sT0), vr(vAaw))
        I("v_lshlrev_b32", vr(vAar), 6, vr(vT7)); I("v_lshl_add_u32", vr(vAar), vr(vG), 4, vr(vAar)); I("v_add_u32", vr(vAar), sr(sT0), vr(vAar))
        I("v_and_b32", vr(vAo), 1, vr(vG)); I("s_mov_b32", sr(sT0), 32 * USTR); I("v_mul_lo_u32", vr(vAo), vr(vAo), sr(sT0))
        I("v_lshrrev_b32", vr(vT6), 1, vr(vG)); I("s_movk_i32", sr(sT0), USTR); I("v_mul_lo_u32", vr(vT6), vr(vT6), sr(sT0))
        I("v_add_u32", vr(vAo), vr(vAo), vr(vT6))
        I("v_lshl_add_u32", vr(vAo), vr(vC), 2, vr(vAo))
        I("s_mul_i32", sr(sU1), sr(sW), 8 * USTR)
        I("s_lshl_b32", sr(sT1), sr(sF), 6); I("s_add_u32", sr(sU1), sr(sU1), sr(sT1)); I("s_add_u32", sr(sU1), sr(sU1), hex(UPART))
        I("s_mov_b32", sr(sMask), 0); I("s_mov_b32", sr(sMask + 1), -1)
        I("s_waitcnt", "lgkmcnt(0)")
        vCS = 58
        for k in range(4): I("v_mov_b32", vr(36 + k), "0x3f803f80")
        for ks in range(4):
            I("v_mfma_f32_16x16x32_bf16", vr(28, 4), vr(36, 4), vr(B1 + 8 * ks, 4), (0 if ks == 0 else vr(28, 4)))
            I("v_mfma_f32_16x16x32_bf16", vr(32, 4), vr(36, 4), vr(B1 + 8 * ks + 4, 4), (0 if ks == 0 else vr(32, 4)))
        I("v_cndmask_b32", vr(vCS), vr(28), vr(32), sr(sMask, 2))
        I("s_mov_b32", sr(sU2), "0xffff0000"); I("s_mov_b32", sr(sU3), "0xffff0000")
        H0, H1 = 12, 20
        top = self.dry_top()
        sk = self.skip_if_dry()
        def loads():
            I("buffer_load_dwordx4", vr(H0, 4), vr(vAh), sr(rWS, 4), sr(sU0), mods="offen sc1")
            I("buffer_load_dwordx4", vr(H0 + 4, 4), vr(vAh), sr(rWS, 4), sr(sU0), mods="offen offset:16 sc1")
            I("buffer_load_dwordx4", vr(H1, 4), vr(vAh), sr(rWS, 4), sr(sU0), mods="offen offset:2048 sc1")
            I("buffer_load_dwordx4", vr(H1 + 4, 4), vr(vAh), sr(rWS, 4), sr(sU0), mods="offen offset:2064 sc1")
        self.poll(loads, 4, range(12, 28))
        a.label(sk)
        self.stamp(9)
        HN = 36
        for k in range(4):
            I("v_cvt_pk_bf16_f32", vr(HN + k), vr(H0 + 2 * k), vr(H0 + 2 * k + 1))
            I("v_cvt_pk_bf16_f32", vr(HN + 4 + k), vr(H1 + 2 * k), vr(H1 + 2 * k + 1))
        I("ds_write_b128", vr(vAhw), vr(HN, 4), mods=f"offset:{L_HN}")
        I("ds_write_b128", vr(vAhw), vr(HN + 4, 4), mods=f"offset:{L_HN + 1024}")
        A1, A2, B1s, B2s = 28, 29, 30, 31
        for (H, P1, P2) in ((H0, 60, 32), (H1, 62, 34)):
            I("v_pk_add_f32", vr(P1, 2), vr(H, 2), vr(H + 2, 2))
            I("v_pk_mul_f32", vr(P2, 2), vr(H, 2), vr(H, 2))
        for j in (4, 6):
            for (H, P1, P2) in ((H0, 60, 32), (H1, 62, 34)):
                I("v_pk_add_f32", vr(P1, 2), vr(P1, 2), vr(H + j, 2))
        for j in (2, 4, 6):
            for (H, P1, P2) in ((H0, 60, 32), (H1, 62, 34)):
                I("v_pk_fma_f32", vr(P2, 2), vr(H + j, 2), vr(H + j, 2), vr(P2, 2))
        I("v_add_f32", vr(A1), vr(60), vr(61)); I("v_add_f32", vr(A2), vr(32), vr(33))
        I("v_add_f32", vr(B1s), vr(62), vr(63)); I("v_add_f32", vr(B2s), vr(34), vr(35))
        I("s_waitcnt", "lgkmcnt(0)")
        for ks in range(4):
            I("ds_read_b128", vr(HN + 4 * ks, 4), vr(vAhr), mods=f"offset:{L_HN + ks * 64}")
        self.wave_reduce63("v_add_f32", [A1, A2, B1s, B2s])
        for (r, s) in ((A1, sT0), (A2, sT1), (B1s, sT2), (B2s, sT3)):
            I("v_readlane_b32", sr(s), vr(r), 63)
        I("s_waitcnt", "lgkmcnt(0)")
        D0, D1 = 12, 16
        for ks in range(4):
            I("v_mfma_f32_16x16x32_bf16", vr(D0, 4), vr(HN + 4 * ks, 4), vr(B1 + 8 * ks, 4), (0 if ks == 0 else vr(D0, 4)))
            I("v_mfma_f32_16x16x32_bf16", vr(D1, 4), vr(HN + 4 * ks, 4), vr(B1 + 8 * ks + 4, 4), (0 if ks == 0 else vr(D1, 4)))
        M0, M1, R0, R1, T0, T1 = 28, 29, 30, 31, 32, 33
        self.ln_scalars(sT0, sT1, sT2, sT3, M0, M1, R0, R1, T0, T1)
        I("v_cndmask_b32", vr(M0), vr(M0), vr(M1), sr(sU2, 2))
        I("v_cndmask_b32", vr(R0), vr(R0), vr(R1), sr(sU2, 2))
        I("v_cndmask_b32", vr(D0), vr(D0), vr(D1), sr(sMask, 2))
        I("v_fma_f32", vr(D0), f"-{vr(M0)}", vr(vCS), vr(D0))
        I("v_mul_f32", vr(D0), vr(D0), vr(R0))
        I("ds_write_b32", vr(vAuw), vr(D0), mods=f"offset:{L_UP}")
        I("s_waitcnt", "lgkmcnt(0)")
        I("s_barrier")
        for w in range(4):
            I("ds_read_b32", vr(28 + w), vr(vAur), mods=f"offset:{L_UP + w * 256}")
        I("s_waitcnt", "lgkmcnt(0)")
        I("v_add_f32", vr(28), vr(28), vr(29)); I("v_add_f32", vr(30), vr(30), vr(31))
        I("v_add_f32", vr(28), vr(28), vr(30))
        I("v_cvt_pk_bf16_f32", vr(29), vr(28), vr(28))
        I("v_lshlrev_b32", vr(28), 16, vr(29))
        I("v_mul_f32", vr(29), "0xbfb8aa3b", vr(28))
        I("v_exp_f32", vr(29), vr(29))
        I("v_add_f32", vr(29), 1.0, vr(29))
        I("v_rcp_f32", vr(29), vr(29))
        I("v_mul_f32", vr(28), vr(28), vr(29))
        I("v_cvt_pk_bf16_f32", vr(28), vr(28), vr(28))
        I("ds_write_b16", vr(vAaw), vr(28), mods=f"offset:{L_ACT}")
        I("s_waitcnt", "lgkmcnt(0)")
        I("ds_read_b128", vr(28, 4), vr(vAar), mods=f"offset:{L_ACT}")
        I("s_waitcnt", "lgkmcnt(0)")
        self.stamp(10)
        DD = 32
        assert DD + 20 <= vAhr
        I("s_waitcnt", "vmcnt(0)")
        Dregs = [12, 16, 20, 24, 36, 40, 44, 48]
        for tt in range(8):
            I("v_mfma_f32_16x16x32_bf16", vr(Dregs[tt], 4), vr(28, 4), vr(B2 + 4 * tt, 4), 0)
        for tt in range(0, 8, 2):
            I("v_cndmask_b32", vr(32 + tt // 2), vr(Dregs[tt]), vr(Dregs[tt + 1]), sr(sMask, 2))
        for tt in range(4): self.clamp(32 + tt)
        lab_nb = self.L("NB")
        I("s_cmp_eq_u32", sr(sDry), 0)
        I("s_cbranch_scc1", lab_nb)
        I("s_barrier")
        a.label(lab_nb)
        self.dry_end(top)
        for tt in range(4):
            I("buffer_store_dword", vr(32 + tt), vr(vAo), sr(rWS, 4), sr(sU1), mods="offen sc1")
            if tt < 3: I("s_add_u32", sr(sU1), sr(sU1), 2 * USTR)
        self.stamp(11)

    def finish(self):
        a, I = self.a, self.I
        a.label("L_FIN")
        if self.stamps:
            self.stamp(20)
            I("s_getreg_b32", sr(sT0), "hwreg(HW_REG_HW_ID)")
            I("s_getreg_b32", sr(sT1), "hwreg(HW_REG_XCC_ID)")
            I("v_writelane_b32", "v0", sr(sT0), 30)
            I("v_writelane_b32", "v0", sr(sT1), 31)
            self.execall()
            I("s_lshl_b32", sr(sT0), "s2", 4); I("s_add_u32", sr(sT0), sr(sT0), sr(sW)); I("s_lshl_b32", sr(sT0), sr(sT0), 8)
            I("s_add_u32", sr(sT0), sr(sT0), hex(STAMP))
            I("v_lshlrev_b32", vr(vT5), 2, vr(vLane))
            I("buffer_store_dword", "v0", vr(vT5), sr(rWS, 4), sr(sT0), mods="offen")
        a.label("L_END")
        return self.wrap()

    def wrap(self):
        body = self.a.text()
        hdr = open("sequential_preLN__mha_block_cached__dense_activation_silu__decode.s.ref").read().split("\n")
        top = [l for l in hdr if l.startswith(";") and "@launch" not in l and "Override" not in l and "grid=ceil" not in l][:12]
        out = "\n".join(top) + "\n"
        out += f"; @launch grid=(256,1,1) block=(1024,1,1) lds={LDS_SIZE}\n"
        out += f""".amdgcn_target "amdgcn-amd-amdhsa--gfx950"
.text
.globl {KN}
.p2align 8
.type {KN},@function
{KN}:
{body}  s_endpgm
.section .rodata,"a"
.p2align 6
.amdhsa_kernel {KN}
  .amdhsa_next_free_vgpr 128
  .amdhsa_next_free_sgpr 102
  .amdhsa_accum_offset 128
  .amdhsa_group_segment_fixed_size 0
  .amdhsa_kernarg_size 88
  .amdhsa_user_sgpr_count 2
  .amdhsa_user_sgpr_kernarg_segment_ptr 1
  .amdhsa_system_sgpr_workgroup_id_x 1
.end_amdhsa_kernel
"""
        return out

if __name__ == "__main__":
    kw = {}
    for x in sys.argv[2:]:
        k, v = x.split("=")
        kw[k] = int(v) if v.lstrip("-").isdigit() and k != "prios" else v
    g = Gen(**kw)
    open(sys.argv[1], "w").write(g.build())
    print("nops inserted:", g.a.nops, "lines", len(g.a.lines))
```

```python
import sys
from asmlib import Asm, vr, sr

KN = "sequential_preLN__mha_block_cached__dense_activation_silu__decode_kernel"

ML    = 0x040000
OPART = 0x050000
YPART = 0x080000
HBUF  = 0x100000
UPART = 0x110000
USTR  = 48 * 64
NF    = 43
EPOCH = 0x030000
TAGM = 0x3FF
STAMP = 0x200000
WSSZ  = 0x400000
L_QP = 0
L_OP = 0
L_QB = 8192
L_ML = 8192 + 256
L_CNT = 8192 + 256 + 128
L_QCNT = L_CNT + 4
L_FQ = L_CNT + 8
L_UP = 8192 + 512
L_ACT = 8192 + 512 + 1024
L_HN = 8192 + 2048 + 1024
L_WB = 20480
L_W2 = L_WB + 32768
L_XN = L_WB
WROW = 1056
LDS_SIZE = L_WB + 64 * WROW + 256

LOG2E = 0x3FB8AA3B
SCALE = 0x3DB504F3
SPIN_MAX = 400000
OOB = 0x40000000

sW, sE, sHalf, sBH, sB, sH, sM = 3, 4, 5, 6, 7, 8, 9
sDry = 10
sT0, sT1, sT2, sT3, sT4 = 11, 12, 13, 14, 15
pX, pK, pV, pWQ, pWO, pBX, pW1, pW2, pOUT, pDBG, pWS = 16, 18, 20, 22, 24, 26, 28, 30, 32, 34, 36
sRB = 26
sRole = 27
sHW = 101
rK, rV, rWS, rX, rWQ, rWA, rWB, rOUT, rDBG = 40, 44, 48, 52, 56, 60, 64, 68, 72
sOFF = 76
sN = 93
sSpin = 94
sF = 95
sMask = 96
sU0, sU1, sU2, sU3 = 98, 99, 100, 101
sStamp0 = 38
sEp = 10
sTagM = 76
rT1 = 16
vLane, vC, vG, vKV = 1, 2, 3, 4
vT5, vT6, vT7 = 5, 6, 7
vTag = 4
vCk0, vCk1 = 5, 6
vQ = 8
vD = 12
vS, vS2 = 16, 17
vACC = 20
DATA0 = 28
def kslot(i): return DATA0 + 4 * i
def vslot(i):
    if i < 8: return DATA0 + 4 * (17 + i)
    return DATA0 + 4 * (i - 8)

class Gen:
    def __init__(self, stamps=0, stop=None, skew=0, npre=4, dbgtime=0, nowq=0, prios="32111", nodma=0, noinv=0,
                 dry=0, pipe=0, wqflag="", late_wo=99, earlybar=1, npre2=15, hshift=8, map=1, pat=1, kfirst=1, t1test=0, touch=0, noq=0, bw=4, tags=1, wsplit=16, fearly=0, wo_at=0, rot=2):
        self.a = Asm()
        self.stamps, self.stop, self.skew, self.npre, self.dbgtime = stamps, stop, skew, npre, dbgtime
        self.nowq, self.nodma, self.noinv, self.dry, self.pipe = nowq, nodma, noinv, dry, pipe
        self.prios = [int(c) for c in str(prios).zfill(5)]
        self.wqflag = wqflag
        self.late_wo = late_wo
        self.earlybar = earlybar
        self.npre2 = npre2
        self.hshift = hshift
        self.map = map
        self.pat = pat
        self.kfirst = kfirst
        self.t1test = t1test
        self.touch = touch
        self.noq = noq
        self.bw = bw
        self.tags = tags
        self.wsplit = wsplit
        self.fearly = fearly
        self.wo_at = wo_at
        self.rot = rot
        self.nslot = 17 if skew else 16
        self.issued = []
        self.lab = 0
        self.wo_done = False

    def L(self, p="L"):
        self.lab += 1
        return f"{p}_{self.lab}"
    def I(self, *a, **k): self.a.I(*a, **k)

    def stamp(self, k):
        if not self.stamps: return
        if k == 0:
            self.I("s_memrealtime", sr(sStamp0, 2)); return
        if k == 1:
            self.I("s_waitcnt", "lgkmcnt(0)")
            self.I("v_mov_b32", "v0", 0)
            self.I("v_writelane_b32", "v0", sr(sStamp0), 0)
            self.I("v_writelane_b32", "v0", "s94", 19)
        self.I("s_memrealtime", sr(sStamp0, 2))
        self.I("s_waitcnt", "lgkmcnt(0)")
        self.I("v_writelane_b32", "v0", sr(sStamp0), k)

    def csel(self, dst, x, y):
        self.I("s_mov_b32", sr(dst), x)
        self.I("s_cselect_b32", sr(dst), sr(dst), y)
    def exec63(self):
        self.I("s_mov_b32", "exec_lo", 0); self.I("s_mov_b32", "exec_hi", "0x80000000")
    def execm(self, lo, hi):
        self.I("s_mov_b32", "exec_lo", lo); self.I("s_mov_b32", "exec_hi", hi)
    def execall(self): self.I("s_mov_b64", "exec", -1)

    def srd(self, r, plo, size, addoff=None):
        I = self.I
        if addoff is None:
            I("s_mov_b32", sr(r), sr(plo)); I("s_mov_b32", sr(r + 1), sr(plo + 1))
        else:
            I("s_add_u32", sr(r), sr(plo), addoff); I("s_addc_u32", sr(r + 1), sr(plo + 1), 0)
        I("s_mov_b32", sr(r + 2), size); I("s_mov_b32", sr(r + 3), "0x20000")

    def vm(self, tag, op, *ops, mods=""):
        self.I(op, *ops, mods=mods)
        self.issued.append(tag)
    def wait_vm(self, tag):
        idx = self.issued.index(tag)
        n = len(self.issued) - 1 - idx
        self.I("s_waitcnt", f"vmcnt({min(n, 63)})")

    def dpp(self, op, d, s0, s1, ctrl, rm="0xf"):
        self.I(op + "_dpp", vr(d), vr(s0), vr(s1), mods=f"{ctrl} row_mask:{rm} bank_mask:0xf")
    def row_reduce(self, op, regs):
        for sh in (8, 4, 2, 1):
            for r in regs: self.dpp(op, r, r, r, f"row_ror:{sh}")
    def wave_reduce63(self, op, regs):
        self.row_reduce(op, regs)
        for r in regs: self.dpp(op, r, r, r, "row_bcast:15", "0xa")
        for r in regs: self.dpp(op, r, r, r, "row_bcast:31", "0xc")
    def swap_add(self, which, a, b, d, op="v_add_f32"):
        self.I(f"v_permlane{which}_swap_b32", vr(a), vr(b))
        self.I(op, vr(d), vr(a), vr(b))
    def unpack(self, lo, hi, src):
        self.I("v_lshlrev_b32", vr(lo), 16, vr(src))
        self.I("v_and_b32", vr(hi), "0xffff0000", vr(src))
    def clamp(self, r, src=None):
        src = r if src is None else src
        if self.tags:
            self.I("v_and_or_b32", vr(r), vr(src), sr(sTagM), vr(vTag))
        else:
            self.I("v_min_u32", vr(r), -2, vr(src))
    def perm_g(self, d, t):
        I = self.I
        I("v_and_b32", vr(d), 1, vr(vG)); I("v_lshlrev_b32", vr(d), 1, vr(d))
        I("v_lshrrev_b32", vr(t), 1, vr(vG)); I("v_or_b32", vr(d), vr(d), vr(t))

    def check_regs(self, regs, t, t2=None):
        I = self.I
        rs = list(regs)
        if self.tags:
            for r in rs: I("v_xor_b32", vr(r), vr(vTag), vr(r))
            first = True
            while rs:
                if first:
                    if len(rs) >= 3:
                        I("v_or3_b32", vr(t), vr(rs[0]), vr(rs[1]), vr(rs[2])); rs = rs[3:]
                    elif len(rs) == 2:
                        I("v_or_b32", vr(t), vr(rs[0]), vr(rs[1])); rs = rs[2:]
                    else:
                        I("v_mov_b32", vr(t), vr(rs[0])); rs = rs[1:]
                    first = False
                elif len(rs) >= 2:
                    I("v_or3_b32", vr(t), vr(t), vr(rs[0]), vr(rs[1])); rs = rs[2:]
                else:
                    I("v_or_b32", vr(t), vr(t), vr(rs[0])); rs = rs[1:]
            I("v_and_b32", vr(t), hex(TAGM), vr(t))
            I("v_cmp_ne_u32", "vcc", 0, vr(t))
            return
        if len(rs) == 1:
            I("v_cmp_eq_u32", "vcc", -1, vr(rs[0])); return
        first = True
        while rs:
            if first:
                if len(rs) >= 3:
                    I("v_max3_u32", vr(t), vr(rs[0]), vr(rs[1]), vr(rs[2])); rs = rs[3:]
                else:
                    I("v_max_u32", vr(t), vr(rs[0]), vr(rs[1])); rs = rs[2:]
                first = False
            elif len(rs) >= 2:
                I("v_max3_u32", vr(t), vr(t), vr(rs[0]), vr(rs[1])); rs = rs[2:]
            else:
                I("v_max_u32", vr(t), vr(t), vr(rs[0])); rs = rs[1:]
        I("v_cmp_eq_u32", "vcc", -1, vr(t))

    def poll(self, loads, nloads, regs, t=vT7):
        I = self.I
        lp, ok = self.L("POLL"), self.L("POK")
        I("s_mov_b32", sr(sSpin), SPIN_MAX)
        if self.pipe: loads()
        self.a.label(lp)
        loads()
        I("s_waitcnt", f"vmcnt({nloads if self.pipe else 0})")
        self.check_regs(regs, t)
        I("s_cbranch_vccz", ok)
        I("s_sub_u32", sr(sSpin), sr(sSpin), 1)
        I("s_cbranch_scc0", lp)
        self.a.label(ok)

    def ln_scalars(self, s10, s20, s11, s21, vm0, vm1, vr0, vr1, t0, t1):
        I = self.I
        inv = "0x3b000000"
        I("v_mov_b32", vr(vm0), sr(s10)); I("v_mov_b32", vr(vm1), sr(s11))
        I("v_mov_b32", vr(vr0), sr(s20)); I("v_mov_b32", vr(vr1), sr(s21))
        for r in (vm0, vm1, vr0, vr1): I("v_mul_f32", vr(r), inv, vr(r))
        I("v_fma_f32", vr(vr0), f"-{vr(vm0)}", vr(vm0), vr(vr0))
        I("v_fma_f32", vr(vr1), f"-{vr(vm1)}", vr(vm1), vr(vr1))
        I("v_max_f32", vr(vr0), 0, vr(vr0)); I("v_max_f32", vr(vr1), 0, vr(vr1))
        I("v_cvt_pk_bf16_f32", vr(t0), vr(vm0), vr(vm1))
        I("v_cvt_pk_bf16_f32", vr(t1), vr(vr0), vr(vr1))
        self.unpack(vm0, vm1, t0)
        self.unpack(vr0, vr1, t1)
        I("v_add_f32", vr(vr0), "0x3727c5ac", vr(vr0)); I("v_add_f32", vr(vr1), "0x3727c5ac", vr(vr1))
        I("v_cvt_pk_bf16_f32", vr(t1), vr(vr0), vr(vr1))
        self.unpack(vr0, vr1, t1)
        I("v_sqrt_f32", vr(vr0), vr(vr0)); I("v_sqrt_f32", vr(vr1), vr(vr1))
        I("v_cvt_pk_bf16_f32", vr(t1), vr(vr0), vr(vr1))
        self.unpack(vr0, vr1, t1)
        I("v_rcp_f32", vr(vr0), vr(vr0)); I("v_rcp_f32", vr(vr1), vr(vr1))

    def ln_scalars1(self, s1, s2, vm0, vr0, t0):
        I = self.I
        inv = "0x3b000000"
        I("v_mov_b32", vr(vm0), sr(s1)); I("v_mov_b32", vr(vr0), sr(s2))
        I("v_mul_f32", vr(vm0), inv, vr(vm0)); I("v_mul_f32", vr(vr0), inv, vr(vr0))
        I("v_fma_f32", vr(vr0), f"-{vr(vm0)}", vr(vm0), vr(vr0))
        I("v_max_f32", vr(vr0), 0, vr(vr0))
        I("v_cvt_pk_bf16_f32", vr(t0), vr(vm0), vr(vr0))
        self.unpack(vm0, vr0, t0)
        I("v_add_f32", vr(vr0), "0x3727c5ac", vr(vr0))
        I("v_cvt_pk_bf16_f32", vr(t0), vr(vr0), vr(vr0))
        I("v_lshlrev_b32", vr(vr0), 16, vr(t0))
        I("v_sqrt_f32", vr(vr0), vr(vr0))
        I("v_cvt_pk_bf16_f32", vr(t0), vr(vr0), vr(vr0))
        I("v_lshlrev_b32", vr(vr0), 16, vr(t0))
        I("v_rcp_f32", vr(vr0), vr(vr0))

    def lds_set(self, off, val_sgpr_or_imm):
        I = self.I
        I("v_mov_b32", vr(vT6), off); I("v_mov_b32", vr(vT7), val_sgpr_or_imm)
        I("ds_write_b32", vr(vT6), vr(vT7))

    def lds_wait(self, off, val, sleep=1):
        I = self.I
        lp, ok = self.L("LW"), self.L("LWOK")
        I("v_mov_b32", vr(vT6), off)
        self.a.label(lp)
        I("ds_read_b32", vr(vT7), vr(vT6))
        I("s_waitcnt", "lgkmcnt(0)")
        I("v_readfirstlane_b32", sr(sT4), vr(vT7))
        I("s_cmp_ge_u32", sr(sT4), val)
        I("s_cbranch_scc1", ok)
        if sleep: I("s_sleep", sleep)
        I("s_branch", lp)
        self.a.label(ok)

    def invalidate(self):
        I = self.I
        for k in range(4): I("v_mov_b32", vr(20 + k), -1)
        I("v_lshlrev_b32", vr(vT5), 4, vr(vLane))
        I("s_lshl_b32", sr(sT0), sr(sBH), 2); I("s_add_u32", sr(sT0), sr(sT0), sr(sM))
        I("s_lshl_b32", sr(sT1), sr(sT0), 9); I("s_add_u32", sr(sT1), sr(sT1), hex(OPART))
        I("s_lshl_b32", sr(sT2), sr(sT0), 3); I("s_add_u32", sr(sT2), sr(sT2), hex(ML))
        self.execm(-1, 0)
        I("buffer_store_dwordx4", vr(20, 4), vr(vT5), sr(rWS, 4), sr(sT1), mods="offen sc1")
        I("s_mov_b64", "exec", 1)
        I("buffer_store_dwordx2", vr(20, 2), vr(vT5), sr(rWS, 4), sr(sT2), mods="offen sc1")
        I("s_lshl_b32", sr(sT1), sr(sBH), 6); I("s_add_u32", sr(sT1), sr(sT1), hex(HBUF))
        I("s_cmp_eq_u32", sr(sRole), 3)
        I("s_cselect_b32", sr(sT1), sr(sT1), hex(OOB))
        I("s_mov_b64", "exec", 15)
        I("buffer_store_dwordx4", vr(20, 4), vr(vT5), sr(rWS, 4), sr(sT1), mods="offen sc1")
        self.execall()
        I("s_cmp_eq_u32", sr(sRole), 1)
        self.csel(sT0, 4096, USTR)
        self.csel(sT1, hex(YPART), hex(UPART))
        I("s_lshl_b32", sr(sT2), sr(sF), 6); I("s_add_u32", sr(sT1), sr(sT1), sr(sT2))
        I("s_cmp_eq_u32", sr(sRole), 0); I("s_cselect_b32", sr(sT1), hex(OOB), sr(sT1))
        I("s_cmp_eq_u32", sr(sRole), 3); I("s_cselect_b32", sr(sT1), hex(OOB), sr(sT1))
        I("v_lshrrev_b32", vr(vT6), 2, vr(vLane))
        I("v_mul_lo_u32", vr(vT6), vr(vT6), sr(sT0))
        I("v_and_b32", vr(vT7), 3, vr(vLane)); I("v_lshlrev_b32", vr(vT7), 4, vr(vT7))
        I("v_add_u32", vr(vT6), vr(vT6), vr(vT7))
        I("s_lshl_b32", sr(sT0), sr(sT0), 4)
        for k in range(4):
            I("buffer_store_dwordx4", vr(20, 4), vr(vT6), sr(rWS, 4), sr(sT1), mods="offen sc1")
            if k < 3: I("s_add_u32", sr(sT1), sr(sT1), sr(sT0))

    def roles(self):
        a, I = self.a, self.I
        self.srd(rWS, pWS, hex(WSSZ))
        self.srd(rDBG, pDBG, 256)
        self.srd(rOUT, pOUT, 2048)
        I("s_and_b32", sr(sT0), "s2", 7); I("s_lshr_b32", sr(sT1), sr(sT0), 1); I("s_lshl_b32", sr(sT1), sr(sT1), 4)
        I("s_lshr_b32", sr(sT2), "s2", 4); I("s_add_u32", sr(sT1), sr(sT1), sr(sT2))
        I("s_and_b32", sr(sT0), sr(sT0), 1)
        I("s_bfe_u32", sr(sT2), "s2", "0x10003")
        I("s_lshl_b32", sr(sT2), sr(sT2), 1); I("s_add_u32", sr(sT0), sr(sT0), sr(sT2))
        I("s_mov_b32", sr(sRole), 0)
        I("s_mov_b32", sr(sF), sr(sT1))
        I("s_cmp_eq_u32", sr(sT0), 1); I("s_cselect_b32", sr(sRole), 3, sr(sRole))
        I("s_cmp_lt_u32", sr(sT1), NF); I("s_cselect_b32", sr(sT2), 2, 0)
        I("s_cmp_eq_u32", sr(sT0), 2); I("s_cselect_b32", sr(sRole), sr(sT2), sr(sRole))
        I("s_add_u32", sr(sT2), sr(sT1), 2 * self.hshift); I("s_and_b32", sr(sT2), sr(sT2), 63)
        I("s_cmp_eq_u32", sr(sT0), 0); I("s_cselect_b32", sr(sRole), 1, sr(sRole)); I("s_cselect_b32", sr(sF), sr(sT2), sr(sF))
        I("s_lshr_b32", sr(sHW), sr(sF), 1)
        lab_f, lab_done = self.L("RF"), self.L("RDONE")
        I("s_cmp_eq_u32", sr(sRole), 2)
        I("s_cbranch_scc1", lab_f)
        I("s_lshl_b32", sr(sT0), sr(sF), 16)
        self.srd(rWA, pWO, (65536 if not self.nodma else 0), sr(sT0))
        self.srd(rWB, pWO, 0, sr(sT0))
        I("s_branch", lab_done)
        a.label(lab_f)
        I("s_lshl_b32", sr(sT0), sr(sF), 6)
        I("s_sub_u32", sr(sT1), hex(512 * 2752), sr(sT0))
        self.srd(rWA, pW1, sr(sT1), sr(sT0))
        I("s_lshl_b32", sr(sT0), sr(sF), 15)
        self.srd(rWB, pW2, 32768, sr(sT0))
        a.label(lab_done)

    def build(self):
        a, I = self.a, self.I
        self.stamp(0)
        if self.dbgtime: I("s_memrealtime", "s[38:39]")
        I("s_load_dwordx16", sr(16, 16), "s[0:1]", 0)
        I("s_load_dwordx4", sr(32, 4), "s[0:1]", 64)
        I("s_load_dwordx2", sr(36, 2), "s[0:1]", 80)
        I("s_cmp_ge_u32", "s2", 256)
        I("s_cbranch_scc1", "L_END")
        I("v_and_b32", vr(vLane), 63, "v0")
        I("v_lshrrev_b32", vr(vT5), 6, "v0")
        I("v_and_b32", vr(vC), 15, "v0")
        I("v_readfirstlane_b32", sr(sW), vr(vT5))
        I("v_bfe_u32", vr(vG), "v0", 4, 2)
        I("s_and_b32", sr(sT0), "s2", 7)
        I("s_lshr_b32", sr(sT1), "s2", 3)
        if self.map == 0:
            I("s_and_b32", sr(sE), sr(sT0), 1)
            I("s_lshr_b32", sr(sT0), sr(sT0), 1)
            I("s_and_b32", sr(sHalf), sr(sT1), 1)
            I("s_lshr_b32", sr(sT2), sr(sT1), 1)
            I("s_lshr_b32", sr(sB), sr(sT2), 3)
            I("s_and_b32", sr(sT2), sr(sT2), 7)
            I("s_lshl_b32", sr(sH), sr(sT0), 3); I("s_add_u32", sr(sH), sr(sH), sr(sT2))
        else:
            I("s_and_b32", sr(sE), sr(sT1), 1)
            I("s_bfe_u32", sr(sHalf), sr(sT1), "0x10001")
            I("s_bfe_u32", sr(sB), sr(sT1), "0x10002")
            I("s_lshr_b32", sr(sT2), sr(sT1), 3)
            I("s_lshl_b32", sr(sH), sr(sT0), 2); I("s_add_u32", sr(sH), sr(sH), sr(sT2))
        I("s_lshl_b32", sr(sBH), sr(sB), 5); I("s_add_u32", sr(sBH), sr(sBH), sr(sH))
        I("s_lshl_b32", sr(sM), sr(sHalf), 1); I("s_add_u32", sr(sM), sr(sM), sr(sE))
        I("v_lshlrev_b32", vr(vKV), 4, vr(vLane))
        if self.pat == 1:
            I("s_lshl_b32", sr(sT0), sr(sW), 15)
            I("v_add_u32", vr(vKV), sr(sT0), vr(vKV))
            I("s_cmp_eq_u32", sr(sE), 0)
            self.csel(sT0, 1024, -1024)
            self.csel(sN, 16 + self.skew, 16 - self.skew)
            I("s_mul_i32", sr(sOFF), sr(sE), 31744)
        else:
            I("s_cmp_eq_u32", sr(sE), 0)
            self.csel(sN, 16 + self.skew, 16 - self.skew)
            I("s_mul_i32", sr(sT0), sr(sN), sr(sW)); I("s_lshl_b32", sr(sT0), sr(sT0), 10)
            I("v_add_u32", vr(vKV), sr(sT0), vr(vKV))
            I("s_movk_i32", sr(sT0), 1024)
            I("s_mul_i32", sr(sOFF), sr(sE), 16 * (16 + self.skew) * 1024)
        for i in range(1, self.nslot):
            I("s_add_u32", sr(sOFF + i), sr(sOFF + i - 1), sr(sT0))
        if self.skew:
            for i in (15, 16):
                I("s_cmp_gt_u32", sr(sN), i)
                I("s_cselect_b32", sr(sOFF + i), sr(sOFF + i), hex(OOB))
        I("s_waitcnt", "lgkmcnt(0)")
        if self.tags: I("s_load_dword", sr(sEp), sr(pWS, 2), hex(EPOCH))
        I("s_setprio", self.prios[0])
        if not self.tags:
            lab_r1 = self.L("RL1")
            I("s_cmp_eq_u32", sr(sW), 0)
            I("s_cbranch_scc0", lab_r1)
            self.roles()
            if not self.noinv: self.invalidate()
            a.label(lab_r1)
        NP = self.npre
        XF, WQ = 8, kslot(17)
        I("s_lshl_b32", sr(sT0), sr(sBH), 20); I("s_lshl_b32", sr(sT1), sr(sHalf), 19); I("s_add_u32", sr(sT0), sr(sT0), sr(sT1))
        self.srd(rK, pK, "0x80000", sr(sT0))
        for kq in range(NP):
            self.vm(f"K{kq}", "buffer_load_dwordx4", vr(kslot(kq), 4), vr(vKV), sr(rK, 4), sr(sOFF + kq), mods="offen nt")
        if self.stamps:
            I("s_memrealtime", "s[94:95]")
        self.srd(rV, pV, "0x80000", sr(sT0))
        self.srd(rX, pX, 2048)
        I("s_lshl_b32", sr(sT0), sr(sH), 8)
        I("s_sub_u32", sr(sT1), hex(512 * 8192), sr(sT0))
        self.srd(rWQ, pWQ, sr(sT1), sr(sT0))
        if not self.tags:
            raise SystemExit("tags=0 no longer supported with this ordering")
        if self.map == 0:
            I("s_lshl_b32", sr(sT0), sr(sB), 1); I("s_add_u32", sr(sT0), sr(sT0), sr(sHalf)); I("s_lshl_b32", sr(sT0), sr(sT0), 2)
        else:
            I("s_lshr_b32", sr(sT0), "s2", 3); I("s_and_b32", sr(sT0), sr(sT0), 7); I("s_mul_i32", sr(sT0), sr(sT0), self.rot)
        I("s_add_u32", sr(sT0), sr(sT0), sr(sW)); I("s_and_b32", sr(sRB), sr(sT0), 15)
        I("v_lshlrev_b32", vr(vT5), 4, vr(vLane))
        I("s_lshl_b32", sr(sT1), sr(sB), 10)
        self.vm("xf", "buffer_load_dwordx4", vr(XF, 4), vr(vT5), sr(rX, 4), sr(sT1), mods="offen")
        I("s_lshl_b32", sr(sT0), sr(sRB), 5)
        I("v_lshl_add_u32", vr(vT6), vr(vG), 1, sr(sT0))
        I("v_lshlrev_b32", vr(vT7), 13, vr(vT6))
        I("v_lshl_add_u32", vr(vT7), vr(vC), 4, vr(vT7))
        for i in range(8):
            off = (8 * (i >> 1) + (i & 1)) * 8192
            I("s_mov_b32", sr(sT2), off if not self.nowq else OOB)
            self.vm(f"wq{i}", "buffer_load_dwordx4", vr(WQ + 4 * i, 4), vr(vT7), sr(rWQ, 4), sr(sT2), mods=("offen " + self.wqflag).strip())
            if i == 1:
                I("v_lshlrev_b32", vr(vT5), 2, vr(vLane)); I("v_mov_b32", vr(vT6), 0)
                I("s_mov_b64", "exec", 15)
                I("ds_write_b32", vr(vT5), vr(vT6), mods=f"offset:{L_CNT}")
                self.execall()
                I("s_waitcnt", "lgkmcnt(0)")
                I("s_barrier")
        I("s_setprio", self.prios[1])
        nK2 = self.npre2 - NP
        if self.bw:
            lab_b = self.L("BW")
            I("s_cmp_ge_u32", sr(sW), self.bw)
            I("s_cbranch_scc1", lab_b)
        for kq in range(NP, self.npre2):
            self.vm(f"K{kq}", "buffer_load_dwordx4", vr(kslot(kq), 4), vr(vKV), sr(rK, 4), sr(sOFF + kq), mods="offen nt")
        if self.bw:
            a.label(lab_b)
        def wait_dual(tag):
            if not self.bw:
                self.wait_vm(tag); return
            idx = self.issued.index(tag)
            n = len(self.issued) - 1 - idx
            l0, l1 = self.L("WD"), self.L("WDJ")
            I("s_cmp_ge_u32", sr(sW), self.bw)
            I("s_cbranch_scc1", l0)
            I("s_waitcnt", f"vmcnt({n})")
            I("s_branch", l1)
            a.label(l0)
            I("s_waitcnt", f"vmcnt({n - nK2})")
            a.label(l1)
        self.stamp(1)
        self.roles()
        if self.touch and not self.stamps:
            lab_nt = self.L("NT")
            I("s_cmp_eq_u32", sr(sW), 1)
            I("s_cbranch_scc0", lab_nt)
            I("v_mov_b32", vr(vT5), 0)
            I("s_mov_b64", "exec", 1)
            I("s_mov_b32", sr(sT0), hex(OPART))
            I("buffer_load_dword", "v0", vr(vT5), sr(rWS, 4), sr(sT0), mods="offen sc1")
            I("buffer_load_dword", "v0", vr(vT5), sr(rWA, 4), 0, mods="offen nt")
            I("buffer_load_dword", "v0", vr(vT5), sr(rWB, 4), 0, mods="offen nt")
            I("buffer_load_dword", "v0", vr(vT5), sr(rOUT, 4), 0, mods="offen nt")
            self.execall()
            I("s_waitcnt", "vmcnt(63)")
            a.label(lab_nt)
        if self.noq:
            I("s_branch", "L_NOQ")
        I("s_mov_b32", sr(sT4), "0x3f803f80")
        wait_dual("xf")
        if not self.tags:
            lab_noat = self.L("NOAT")
            I("s_cmp_eq_u32", sr(sW), 0)
            I("s_cbranch_scc0", lab_noat)
            self.stamp(17)
            I("v_mov_b32", vr(vT5), 0); I("v_mov_b32", vr(vT6), 1)
            I("s_lshl_b32", sr(sT0), sr(sH), 2)
            I("s_mov_b64", "exec", 1)
            I("buffer_atomic_add", vr(vT6), vr(vT5), sr(rDBG, 4), sr(sT0), mods="offen sc1")
            self.execall()
            a.label(lab_noat)
        I("s_mov_b32", sr(sT4), "0x3f803f80")
        A1, A2, T0 = 22, 23, 26
        for k in range(4):
            I("v_dot2_f32_bf16", vr(A1), vr(XF + k), sr(sT4), (0 if k == 0 else vr(A1)))
            I("v_dot2_f32_bf16", vr(A2), vr(XF + k), vr(XF + k), (0 if k == 0 else vr(A2)))
        self.wave_reduce63("v_add_f32", [A1, A2])
        I("v_readlane_b32", sr(sT0), vr(A1), 63); I("v_readlane_b32", sr(sT1), vr(A2), 63)
        M0, R0 = 22, 23
        self.ln_scalars1(sT0, sT1, M0, R0, T0)
        XU = 12
        for k in range(4): self.unpack(XU + 2 * k, XU + 2 * k + 1, XF + k)
        for e in range(8): I("v_sub_f32", vr(XU + e), vr(XU + e), vr(M0))
        for k in range(4): I("v_cvt_pk_bf16_f32", vr(XF + k), vr(XU + 2 * k), vr(XU + 2 * k + 1))
        for k in range(4): self.unpack(XU + 2 * k, XU + 2 * k + 1, XF + k)
        for e in range(8): I("v_mul_f32", vr(XU + e), vr(XU + e), vr(R0))
        for k in range(4): I("v_cvt_pk_bf16_f32", vr(XF + k), vr(XU + 2 * k), vr(XU + 2 * k + 1))
        I("v_lshlrev_b32", vr(vT5), 4, vr(vLane))
        I("s_lshl_b32", sr(sT0), sr(sW), 10)
        I("v_add_u32", vr(vT5), sr(sT0), vr(vT5))
        I("ds_write_b128", vr(vT5), vr(XF, 4), mods=f"offset:{L_XN}")
        I("s_lshl_b32", sr(sT1), sr(sRB), 6); I("s_add_u32", sr(sT0), sr(sT0), sr(sT1))
        I("v_lshlrev_b32", vr(vT5), 2, vr(vG))
        I("v_add_u32", vr(vT5), sr(sT0), vr(vT5))
        I("s_waitcnt", "lgkmcnt(0)")
        for ip in range(4):
            I("ds_read_b32", vr(12 + ip), vr(vT5), mods=f"offset:{L_XN + 16 * ip}")
        P = vACC
        PT = kslot(15)
        I("s_mov_b32", sr(sT2), "0x05040100"); I("s_mov_b32", sr(sT3), "0x07060302")
        I("s_waitcnt", "lgkmcnt(0)")
        for ip in range(4):
            wait_dual(f"wq{2 * ip + 1}")
            wa, wb = WQ + 8 * ip, WQ + 8 * ip + 4
            for k in range(4):
                I("v_perm_b32", vr(PT + 2 * k), vr(wb + k), vr(wa + k), sr(sT2))
                I("v_perm_b32", vr(PT + 2 * k + 1), vr(wb + k), vr(wa + k), sr(sT3))
            for e in range(8):
                I("v_dot2_f32_bf16", vr(P + e), vr(PT + e), vr(12 + ip), (0 if ip == 0 else vr(P + e)))
        for i in range(4): I("v_permlane32_swap_b32", vr(P + 2 * i), vr(P + 2 * i + 1))
        for i in range(4): I("v_add_f32", vr(P + 2 * i), vr(P + 2 * i), vr(P + 2 * i + 1))
        for i in range(2): I("v_permlane16_swap_b32", vr(P + 4 * i), vr(P + 4 * i + 2))
        for i in range(2): I("v_add_f32", vr(8 + i), vr(P + 4 * i), vr(P + 4 * i + 2))
        self.perm_g(vT6, vT7)
        I("v_lshl_add_u32", vr(vT5), vr(vC), 3, vr(vT6))
        I("v_lshlrev_b32", vr(vT5), 2, vr(vT5))
        I("s_lshl_b32", sr(sT0), sr(sW), 9)
        I("v_add_u32", vr(vT5), sr(sT0), vr(vT5))
        I("ds_write_b32", vr(vT5), vr(8), mods=f"offset:{L_QP}")
        I("ds_write_b32", vr(vT5), vr(9), mods=f"offset:{L_QP + 16}")
        I("s_waitcnt", "lgkmcnt(0)")
        I("v_mov_b32", vr(vT6), L_QCNT); I("v_mov_b32", vr(vT7), 1)
        I("s_mov_b64", "exec", 1)
        I("ds_add_rtn_u32", vr(vT5), vr(vT6), vr(vT7))
        self.execall()
        I("s_waitcnt", "lgkmcnt(0)")
        I("v_readfirstlane_b32", sr(sT0), vr(vT5))
        self.stamp(2)
        lab_notlast = self.L("NOTLAST")
        I("s_cmp_eq_u32", sr(sT0), 15)
        I("s_cbranch_scc0", lab_notlast)
        I("v_and_b32", vr(vT5), 31, vr(vLane)); I("v_lshlrev_b32", vr(vT5), 4, vr(vT5))
        I("v_lshrrev_b32", vr(vT6), 5, vr(vLane)); I("v_lshlrev_b32", vr(vT6), 12, vr(vT6))
        I("v_add_u32", vr(vT5), vr(vT5), vr(vT6))
        RB = WQ
        for k in range(8):
            I("ds_read_b128", vr(RB + 4 * k, 4), vr(vT5), mods=f"offset:{L_QP + 512 * k}")
        I("s_waitcnt", "lgkmcnt(0)")
        for e in range(4):
            for k in (0, 2, 4, 6): I("v_add_f32", vr(RB + 4 * k + e), vr(RB + 4 * k + e), vr(RB + 4 * k + 4 + e))
        for e in range(4):
            I("v_add_f32", vr(RB + e), vr(RB + e), vr(RB + 8 + e)); I("v_add_f32", vr(RB + 16 + e), vr(RB + 16 + e), vr(RB + 24 + e))
        for e in range(4): I("v_add_f32", vr(RB + e), vr(RB + e), vr(RB + 16 + e))
        for e in range(4): I("v_mov_b32", vr(RB + 4 + e), vr(RB + e))
        for e in range(4): I("v_permlane32_swap_b32", vr(RB + e), vr(RB + 4 + e))
        for e in range(4): I("v_add_f32", vr(RB + e), vr(RB + e), vr(RB + 4 + e))
        I("v_cvt_pk_bf16_f32", vr(RB + 8), vr(RB), vr(RB + 1)); I("v_cvt_pk_bf16_f32", vr(RB + 9), vr(RB + 2), vr(RB + 3))
        I("v_and_b32", vr(vT5), 31, vr(vLane)); I("v_lshlrev_b32", vr(vT5), 3, vr(vT5))
        I("ds_write_b64", vr(vT5), vr(RB + 8, 2), mods=f"offset:{L_QB}")
        I("s_waitcnt", "lgkmcnt(0)")
        self.lds_set(L_FQ, 1)
        a.label(lab_notlast)
        if self.noq:
            a.label("L_NOQ")
            self.lds_set(L_FQ, 1)
        if self.bw:
            lab_b2 = self.L("BW2")
            I("s_cmp_ge_u32", sr(sW), self.bw)
            I("s_cbranch_scc0", lab_b2)
            I("s_setprio", self.prios[1])
            for kq in range(NP, self.npre2):
                I("buffer_load_dwordx4", vr(kslot(kq), 4), vr(vKV), sr(rK, 4), sr(sOFF + kq), mods="offen nt")
            a.label(lab_b2)
        I("s_setprio", self.prios[2])
        for i in range(self.npre2, self.nslot):
            self.vm(f"K{i}", "buffer_load_dwordx4", vr(kslot(i), 4), vr(vKV), sr(rK, 4), sr(sOFF + i), mods="offen nt")
        if self.t1test:
            I("s_lshl_b32", sr(sT0), sr(sH), 17)
            I("s_add_u32", "s84", sr(pWO), sr(sT0)) if False else None
            I("v_lshrrev_b32", vr(vT5), 2, vr(vLane)); I("v_lshlrev_b32", vr(vT5), 10, vr(vT5))
            I("v_and_b32", vr(vT6), 3, vr(vLane)); I("v_lshl_add_u32", vr(vT5), vr(vT6), 4, vr(vT5))
            I("s_lshl_b32", sr(sT1), sr(sW), 6); I("v_add_u32", vr(vT5), sr(sT1), vr(vT5))
            I("s_mov_b32", sr(sT2), 0)
            I("s_lshl_b32", sr(sT1), sr(sW), 12); I("s_add_u32", sr(sT1), sr(sT1), 20480)
            for k in range(8):
                I("s_mov_b32", "m0", sr(sT1))
                self.vm(f"T1_{k}", "buffer_load_dwordx4", vr(vT5), sr(rT1, 4), sr(sT2), mods=("offen lds" if self.t1test == 1 else "offen nt lds"))
                I("s_add_u32", sr(sT2), sr(sT2), 16 * 1024)
        if not self.kfirst:
            I("s_setprio", self.prios[3])
            for i in range(8):
                self.vm(f"V{i}", "buffer_load_dwordx4", vr(vslot(i), 4), vr(vKV), sr(rV, 4), sr(sOFF + i), mods="offen nt")
            self.stamp(16)
            self.lds_wait(L_FQ, 1)
            I("s_setprio", self.prios[4])
            self.stamp(4)
            I("v_lshlrev_b32", vr(vT5), 4, vr(vC))
            I("ds_read_b128", vr(vQ, 4), vr(vT5), mods=f"offset:{L_QB}")
            I("s_mov_b32", sr(sMask), "0x00010001"); I("s_mov_b32", sr(sMask + 1), "0x00010001")
            I("v_mov_b32", vr(vS), 0)
            I("s_waitcnt", "lgkmcnt(0)")
            groups = [[0, 1, 2, 3], [4, 5, 6, 7], [8, 9, 10, 11], [12, 13, 14], [15, 16]]
            nextv = 8
            for grp in groups:
                self.wait_vm(f"K{grp[-1]}")
                for n, i in enumerate(grp):
                    I("v_dot2_f32_bf16", vr(vD + n), vr(kslot(i)), vr(vQ), 0)
                for k in range(1, 4):
                    for n, i in enumerate(grp):
                        I("v_dot2_f32_bf16", vr(vD + n), vr(kslot(i) + k), vr(vQ + k), vr(vD + n))
                for i in grp:
                    if i <= 8 and nextv <= 16:
                        assert vslot(nextv) == kslot(i)
                        self.vm(f"V{nextv}", "buffer_load_dwordx4", vr(vslot(nextv), 4), vr(vKV), sr(rV, 4), sr(sOFF + nextv), mods="offen nt")
                        nextv += 1
                self.row_reduce("v_add_f32", [vD + n for n in range(len(grp))])
                for n, i in enumerate(grp):
                    if i < 16:
                        I("v_cndmask_b32", vr(vS), vr(vS), vr(vD + n), sr(sMask, 2))
                        if i < 15: I("s_lshl_b64", sr(sMask, 2), sr(sMask, 2), 1)
                    else:
                        I("v_mov_b32", vr(vS2), vr(vD + n))
                if nextv == 17 and not self.wo_done and not self.late_wo:
                    self.wo_dma()
        else:
            lab_qok, lab_kph, lab_vdone = self.L("QOK"), self.L("KPH"), self.L("VD")
            I("s_setprio", self.prios[3])
            I("v_mov_b32", vr(vT6), L_FQ)
            I("ds_read_b32", vr(vT7), vr(vT6))
            I("s_waitcnt", "lgkmcnt(0)")
            I("v_readfirstlane_b32", sr(sU3 - 1), vr(vT7))
            I("s_cmp_ge_u32", sr(sU3 - 1), 1)
            I("s_cbranch_scc1", lab_kph)
            for i in range(8):
                I("buffer_load_dwordx4", vr(vslot(i), 4), vr(vKV), sr(rV, 4), sr(sOFF + i), mods="offen nt")
            self.stamp(16)
            self.lds_wait(L_FQ, 1)
            a.label(lab_kph)
            I("s_setprio", self.prios[4])
            self.stamp(4)
            I("v_lshlrev_b32", vr(vT5), 4, vr(vC))
            I("ds_read_b128", vr(vQ, 4), vr(vT5), mods=f"offset:{L_QB}")
            I("s_mov_b32", sr(sMask), "0x00010001"); I("s_mov_b32", sr(sMask + 1), "0x00010001")
            I("v_mov_b32", vr(vS), 0)
            I("s_waitcnt", "lgkmcnt(0)")
            groups = [[0, 1, 2, 3], [4, 5, 6, 7], [8, 9, 10, 11], [12, 13, 14], [15, 16]]
            if self.nslot == 16:
                groups = [[0, 1, 2, 3], [4, 5, 6, 7], [8, 9, 10, 11], [12, 13, 14, 15]]
                I("v_mov_b32", vr(vS2), 0)
            for grp in groups:
                self.wait_vm(f"K{grp[-1]}")
                for n, i in enumerate(grp):
                    I("v_dot2_f32_bf16", vr(vD + n), vr(kslot(i)), vr(vQ), 0)
                for k in range(1, 4):
                    for n, i in enumerate(grp):
                        I("v_dot2_f32_bf16", vr(vD + n), vr(kslot(i) + k), vr(vQ + k), vr(vD + n))
                if grp[-1] == self.nslot - 1:
                    I("s_cmp_ge_u32", sr(sU3 - 1), 1)
                    I("s_cbranch_scc0", lab_vdone)
                    for i in range(8):
                        I("buffer_load_dwordx4", vr(vslot(i), 4), vr(vKV), sr(rV, 4), sr(sOFF + i), mods="offen nt")
                    a.label(lab_vdone)
                    for i in range(8): self.issued.append(f"V{i}")
                    for i in range(8, self.nslot):
                        self.vm(f"V{i}", "buffer_load_dwordx4", vr(vslot(i), 4), vr(vKV), sr(rV, 4), sr(sOFF + i), mods="offen nt")
                self.row_reduce("v_add_f32", [vD + n for n in range(len(grp))])
                for n, i in enumerate(grp):
                    if i < 16:
                        I("v_cndmask_b32", vr(vS), vr(vS), vr(vD + n), sr(sMask, 2))
                        if i < 15: I("s_lshl_b64", sr(sMask, 2), sr(sMask, 2), 1)
                    else:
                        I("v_mov_b32", vr(vS2), vr(vD + n))
            if not self.wo_done and not self.late_wo:
                self.wo_dma()
        T0, T1 = 18, 19
        I("v_cvt_pk_bf16_f32", vr(T0), vr(vS), vr(vS2))
        self.unpack(vS, vS2, T0)
        I("v_mul_f32", vr(vS), hex(SCALE), vr(vS)); I("v_mul_f32", vr(vS2), hex(SCALE), vr(vS2))
        I("v_cvt_pk_bf16_f32", vr(T0), vr(vS), vr(vS2))
        self.unpack(vS, vS2, T0)
        I("v_mov_b32", vr(T1), "0xff800000")
        I("v_cmp_gt_u32", "vcc", sr(sN), vr(vC))
        I("v_cndmask_b32", vr(vS), vr(T1), vr(vS), "vcc")
        I("s_cmp_gt_u32", sr(sN), 16)
        self.csel(sT0, "0x7f800000", "0xff800000")
        I("v_min_f32", vr(vS2), sr(sT0), vr(vS2))
        I("v_max_f32", vr(T0), vr(vS), vr(vS2))
        self.wave_reduce63("v_max_f32", [T0])
        I("v_readlane_b32", sr(sT0), vr(T0), 63)
        I("v_subrev_f32", vr(vS), sr(sT0), vr(vS)); I("v_subrev_f32", vr(vS2), sr(sT0), vr(vS2))
        I("v_mul_f32", vr(vS), hex(LOG2E), vr(vS)); I("v_mul_f32", vr(vS2), hex(LOG2E), vr(vS2))
        I("v_exp_f32", vr(vS), vr(vS)); I("v_exp_f32", vr(vS2), vr(vS2))
        I("v_mov_b32", vr(T0), vr(vS))
        I("v_fmac_f32", vr(T0), "0x3d800000", vr(vS2))
        self.wave_reduce63("v_add_f32", [T0])
        I("v_mov_b32", vr(T1), vr(T0))
        I("v_mov_b32", vr(T0), sr(sT0))
        I("s_lshl_b32", sr(sT1), sr(sW), 3)
        I("v_mov_b32", vr(vT5), sr(sT1))
        self.exec63()
        I("ds_write_b64", vr(vT5), vr(T0, 2), mods=f"offset:{L_ML}")
        I("s_waitcnt", "lgkmcnt(0)")
        I("v_mov_b32", vr(vT5), L_CNT); I("v_mov_b32", vr(vT6), 1)
        I("ds_add_u32", vr(vT5), vr(vT6))
        self.execall()
        self.stamp(5)
        if self.tags:
            I("s_add_u32", sr(sEp), sr(sEp), 1)
            I("s_and_b32", sr(sT0), sr(sEp), hex(TAGM))
            I("v_mov_b32", vr(vTag), sr(sT0))
            I("s_mov_b32", sr(sTagM), hex(0xFFFFFFFF ^ TAGM))
        self.perm_g(vT6, vT7)
        I("v_lshl_add_u32", vr(19), vr(vC), 3, vr(vT6))
        I("v_lshlrev_b32", vr(19), 2, vr(19))
        I("s_lshl_b32", sr(sT0), sr(sW), 9)
        I("v_add_u32", vr(19), sr(sT0), vr(19))
        for e in range(8): I("v_mov_b32", vr(vACC + e), 0)
        for i in range(self.nslot):
            if self.wo_at and i > self.wo_at:
                idx = self.issued.index(f"V{i}")
                n = len(self.issued) - 1 - idx
                l0, l1 = self.L("WV"), self.L("WVJ")
                I("s_cmp_eq_u32", sr(sRole), 1)
                I("s_cbranch_scc1", l0)
                I("s_waitcnt", f"vmcnt({n})")
                I("s_branch", l1)
                a.label(l0)
                I("s_waitcnt", f"vmcnt({n + 4})")
                a.label(l1)
            else:
                self.wait_vm(f"V{i}")
            for k in range(4):
                self.unpack(8 + 2 * k, 9 + 2 * k, vslot(i) + k)
            for k in range(4):
                for hh in range(2):
                    if i < 16:
                        I("v_fmac_f32_dpp", vr(vACC + 2 * k + hh), vr(vS), vr(8 + 2 * k + hh), mods=f"row_newbcast:{i} row_mask:0xf bank_mask:0xf")
                    else:
                        I("v_fmac_f32", vr(vACC + 2 * k + hh), vr(vS2), vr(8 + 2 * k + hh))
            if self.wo_at and i == self.wo_at:
                self.wo_dma()
        self.stamp(6)
        for i in range(4): I("v_permlane32_swap_b32", vr(vACC + 2 * i), vr(vACC + 2 * i + 1))
        for i in range(4): I("v_add_f32", vr(vACC + 2 * i), vr(vACC + 2 * i), vr(vACC + 2 * i + 1))
        for i in range(2): I("v_permlane16_swap_b32", vr(vACC + 4 * i), vr(vACC + 4 * i + 2))
        for i in range(2): I("v_add_f32", vr(8 + i), vr(vACC + 4 * i), vr(vACC + 4 * i + 2))
        I("ds_write_b32", vr(19), vr(8), mods=f"offset:{L_OP}")
        I("ds_write_b32", vr(19), vr(9), mods=f"offset:{L_OP + 16}")
        if self.wsplit and not self.wo_at:
            lab_ws = self.L("WSP")
            I("s_cmp_lt_u32", sr(sW), self.wsplit)
            I("s_cbranch_scc0", lab_ws)
            self.wo_dma()
            a.label(lab_ws)
        if self.fearly: self.ffn_dma()
        lab_w4 = self.L("W4")
        I("s_cmp_lt_u32", sr(sW), 4)
        I("s_cbranch_scc0", lab_w4)
        self.lds_wait(L_CNT, 16, sleep=1)
        I("v_lshrrev_b32", vr(vT7), 3, vr(vLane))
        I("v_lshlrev_b32", vr(13), 4, vr(vT7))
        I("ds_read_b128", vr(12, 4), vr(13), mods=f"offset:{L_ML}")
        I("s_waitcnt", "lgkmcnt(0)")
        I("v_max_f32", vr(16), vr(12), vr(14))
        self.wave_reduce63("v_max_f32", [16])
        I("v_readlane_b32", sr(sT0), vr(16), 63)
        I("v_subrev_f32", vr(12), sr(sT0), vr(12)); I("v_subrev_f32", vr(14), sr(sT0), vr(14))
        I("v_mul_f32", vr(12), hex(LOG2E), vr(12)); I("v_mul_f32", vr(14), hex(LOG2E), vr(14))
        I("v_exp_f32", vr(12), vr(12)); I("v_exp_f32", vr(14), vr(14))
        I("v_mul_f32", vr(16), vr(12), vr(13)); I("v_fmac_f32", vr(16), vr(14), vr(15))
        I("v_mul_f32", vr(16), "0x3e000000", vr(16))
        self.wave_reduce63("v_add_f32", [16])
        lab_noml = self.L("NOML")
        I("s_cmp_eq_u32", sr(sW), 0)
        I("s_cbranch_scc0", lab_noml)
        I("v_mov_b32", vr(17), vr(16))
        I("v_mov_b32", vr(16), sr(sT0))
        self.clamp(16); self.clamp(17)
        I("s_lshl_b32", sr(sT1), sr(sBH), 2); I("s_add_u32", sr(sT1), sr(sT1), sr(sM)); I("s_lshl_b32", sr(sT1), sr(sT1), 3)
        I("s_add_u32", sr(sT1), sr(sT1), hex(ML))
        I("v_mov_b32", vr(vT5), 0)
        self.exec63()
        I("buffer_store_dwordx2", vr(16, 2), vr(vT5), sr(rWS, 4), sr(sT1), mods="offen sc1")
        self.execall()
        a.label(lab_noml)
        if not self.tags: self.check_all_counters()
        self.stamp(18)
        I("v_and_b32", vr(vT5), 7, vr(vLane)); I("v_lshlrev_b32", vr(16), 4, vr(vT5))
        I("v_lshrrev_b32", vr(vT7), 3, vr(vLane)); I("v_lshlrev_b32", vr(vT6), 10, vr(vT7))
        I("v_add_u32", vr(16), vr(16), vr(vT6))
        I("s_lshl_b32", sr(sT0), sr(sW), 7)
        I("v_add_u32", vr(16), sr(sT0), vr(16))
        self.perm_g(vT6, vT7)
        I("v_lshl_add_u32", vr(17), vr(vT5), 2, vr(vT6))
        I("v_lshlrev_b32", vr(17), 2, vr(17))
        I("s_lshl_b32", sr(sU0), sr(sBH), 2); I("s_add_u32", sr(sU0), sr(sU0), sr(sM)); I("s_lshl_b32", sr(sU0), sr(sU0), 9)
        I("s_add_u32", sr(sU0), sr(sU0), sr(sT0)); I("s_add_u32", sr(sU0), sr(sU0), hex(OPART))
        a.label(lab_w4)
        I("s_waitcnt", "lgkmcnt(0)")
        I("s_barrier")
        self.stamp(7)
        lab_exit_wait = self.L("XW")
        I("s_cmp_lt_u32", sr(sW), 4)
        I("s_cbranch_scc0", lab_exit_wait)
        I("ds_read_b128", vr(20, 4), vr(16), mods=f"offset:{L_OP}")
        I("ds_read_b128", vr(24, 4), vr(16), mods=f"offset:{L_OP + 512}")
        I("s_waitcnt", "lgkmcnt(0)")
        for e in range(4): I("v_mul_f32", vr(20 + e), vr(20 + e), vr(12))
        for e in range(4): I("v_fmac_f32", vr(20 + e), vr(24 + e), vr(14))
        I("v_permlane32_swap_b32", vr(20), vr(21)); I("v_permlane32_swap_b32", vr(22), vr(23))
        I("v_add_f32", vr(20), vr(20), vr(21)); I("v_add_f32", vr(22), vr(22), vr(23))
        self.swap_add(16, 20, 22, 20)
        self.dpp("v_add_f32", 20, 20, 20, "row_ror:8")
        self.clamp(20)
        self.execm("0x00ff00ff", "0x00ff00ff")
        I("buffer_store_dword", vr(20), vr(17), sr(rWS, 4), sr(sU0), mods="offen sc1")
        self.execall()
        self.stamp(8)
        if self.stop == "attn":
            a.label(lab_exit_wait)
            return self.finish()
        self.tail(lab_exit_wait)
        return self.finish()

    def wo_dma(self):
        I = self.I
        skip = self.L("NWD")
        self.wo_done = True
        I("s_cmp_eq_u32", sr(sRole), 1)
        I("s_cbranch_scc0", skip)
        I("s_lshl_b32", sr(sT2), sr(sW), 12)
        I("v_lshlrev_b32", vr(vT5), 4, vr(vLane))
        I("s_mul_i32", sr(sT1), sr(sW), 4 * WROW); I("s_add_u32", sr(sT1), sr(sT1), L_WB)
        for k in range(4):
            I("s_mov_b32", "m0", sr(sT1))
            I("buffer_load_dwordx4", vr(vT5), sr(rWA, 4), sr(sT2), mods="offen nt lds")
            if k < 3:
                I("s_add_u32", sr(sT1), sr(sT1), WROW); I("s_add_u32", sr(sT2), sr(sT2), 1024)
        self.a.label(skip)

    def ffn_dma(self):
        I = self.I
        skip = self.L("NFD")
        I("s_cmp_eq_u32", sr(sRole), 2)
        I("s_cbranch_scc0", skip)
        I("s_lshl_b32", sr(sT0), sr(sW), 5)
        I("v_lshrrev_b32", vr(vT5), 2, vr(vLane)); I("v_add_u32", vr(vT5), sr(sT0), vr(vT5))
        I("s_movk_i32", sr(sT1), 2752)
        I("v_mul_lo_u32", vr(vT5), vr(vT5), sr(sT1))
        I("v_and_b32", vr(vT6), 3, vr(vLane))
        I("v_lshl_add_u32", vr(vT5), vr(vT6), 4, vr(vT5))
        I("s_lshl_b32", sr(sT0), sr(sW), 11); I("s_add_u32", sr(sT1), sr(sT0), L_WB)
        I("s_mov_b32", "m0", sr(sT1))
        I("buffer_load_dwordx4", vr(vT5), sr(rWA, 4), 0, mods="offen lds")
        I("s_add_u32", sr(sT1), sr(sT1), 1024)
        I("s_mov_b32", sr(sT2), 16 * 2752)
        I("s_mov_b32", "m0", sr(sT1))
        I("buffer_load_dwordx4", vr(vT5), sr(rWA, 4), sr(sT2), mods="offen lds")
        I("v_lshlrev_b32", vr(vT6), 4, vr(vLane)); I("v_add_u32", vr(vT6), sr(sT0), vr(vT6))
        I("s_mul_i32", sr(sT1), sr(sW), 2 * WROW); I("s_add_u32", sr(sT1), sr(sT1), L_W2)
        I("s_mov_b32", "m0", sr(sT1))
        I("buffer_load_dwordx4", vr(vT6), sr(rWB, 4), 0, mods="offen nt lds")
        I("s_add_u32", sr(sT1), sr(sT1), WROW)
        I("s_movk_i32", sr(sT2), 1024)
        I("s_mov_b32", "m0", sr(sT1))
        I("buffer_load_dwordx4", vr(vT6), sr(rWB, 4), sr(sT2), mods="offen nt lds")
        self.a.label(skip)

    def check_all_counters(self):
        a, I = self.a, self.I
        lp, ok = self.L("CA"), self.L("CAOK")
        I("s_mov_b32", sr(sSpin), SPIN_MAX)
        I("v_and_b32", vr(vT5), 31, vr(vLane)); I("v_lshlrev_b32", vr(vT5), 2, vr(vT5))
        a.label(lp)
        I("buffer_load_dword", vr(vT6), vr(vT5), sr(rDBG, 4), 0, mods="offen sc1")
        I("s_waitcnt", "vmcnt(0)")
        I("v_cmp_gt_u32", "vcc", 8, vr(vT6))
        I("s_cbranch_vccz", ok)
        I("s_sub_u32", sr(sSpin), sr(sSpin), 1)
        I("s_cbranch_scc0", lp)
        a.label(ok)

    def tail(self, lab_exit_wait):
        a, I = self.a, self.I
        if self.late_wo == 99 and self.wsplit < 4: self.wo_dma()
        if not self.fearly: self.ffn_dma()
        lab_ffn, lab_red = self.L("FFN"), self.L("RED")
        I("s_cmp_eq_u32", sr(sRole), 0)
        I("s_cbranch_scc1", "L_FIN")
        I("s_cmp_eq_u32", sr(sRole), 3)
        I("s_cbranch_scc1", lab_red)
        I("s_cmp_eq_u32", sr(sRole), 1)
        I("s_cbranch_scc0", lab_ffn)
        self.wo_stage()
        a.label(lab_ffn)
        self.ffn_stage()
        I("s_branch", "L_FIN")
        a.label(lab_red)
        I("s_cmp_eq_u32", sr(sW), 0)
        I("s_cbranch_scc0", "L_FIN")
        self.reducer()
        I("s_branch", "L_FIN")
        a.label(lab_exit_wait)
        if self.late_wo == 99:
            lab_ws2 = self.L("WSP2")
            I("s_cmp_ge_u32", sr(sW), self.wsplit)
            I("s_cbranch_scc0", lab_ws2)
            self.wo_dma()
            a.label(lab_ws2)
        if not self.fearly: self.ffn_dma()
        I("s_cmp_eq_u32", sr(sRole), 0)
        I("s_cbranch_scc1", "L_FIN")
        I("s_cmp_eq_u32", sr(sRole), 3)
        I("s_cbranch_scc1", "L_FIN")
        I("s_waitcnt", "vmcnt(0)")
        I("s_barrier")
        I("s_branch", "L_FIN")

    def dry_top(self):
        top = self.L("TOP")
        self.I("s_mov_b32", sr(sDry), 1 if self.dry else 0)
        self.a.label(top)
        return top
    def skip_if_dry(self):
        lab = self.L("SK")
        self.I("s_cmp_eq_u32", sr(sDry), 1)
        self.I("s_cbranch_scc1", lab)
        return lab
    def dry_end(self, top):
        lab = self.L("REAL")
        self.I("s_cmp_eq_u32", sr(sDry), 0)
        self.I("s_cbranch_scc1", lab)
        self.I("s_mov_b32", sr(sDry), 0)
        self.I("s_branch", top)
        self.a.label(lab)

    def wo_stage(self):
        a, I = self.a, self.I
        vI4, vI2 = 8, 9
        BW = 64
        vBS, vMS = 10, 11
        vAml, vAown, vAo, vAy = 40, 41, 42, 43
        ML0, O0 = 12, 44
        I("v_bfe_u32", vr(vBS), vr(vC), 2, 1); I("v_and_b32", vr(vMS), 3, vr(vC))
        I("v_lshlrev_b32", vr(vAml), 10, vr(vBS))
        I("v_lshl_add_u32", vr(vAown), vr(vMS), 3, vr(vAml))
        I("s_lshl_b32", sr(sU0), sr(sHW), 5); I("s_add_u32", sr(sU0), sr(sU0), hex(ML))
        I("v_lshlrev_b32", vr(vAo), 16, vr(vBS))
        I("v_lshl_add_u32", vr(vAo), vr(vMS), 9, vr(vAo))
        I("v_lshl_add_u32", vr(vAo), vr(vG), 5, vr(vAo))
        I("s_lshl_b32", sr(sU1), sr(sHW), 11)
        I("s_and_b32", sr(sT1), sr(sF), 1); I("s_lshl_b32", sr(sT1), sr(sT1), 8)
        I("s_add_u32", sr(sU1), sr(sU1), sr(sT1)); I("s_add_u32", sr(sU1), sr(sU1), hex(OPART))
        def loads_o():
            for k in range(4):
                I("buffer_load_dwordx4", vr(O0 + 4 * k, 4), vr(vAo), sr(rWS, 4), sr(sU1), mods=f"offen offset:{(k >> 1) * 128 + (k & 1) * 16} sc1")
        def loads_ml():
            I("buffer_load_dwordx4", vr(ML0, 4), vr(vAml), sr(rWS, 4), sr(sU0), mods="offen sc1")
            I("buffer_load_dwordx4", vr(ML0 + 4, 4), vr(vAml), sr(rWS, 4), sr(sU0), mods="offen offset:16 sc1")
            I("buffer_load_dwordx2", vr(ML0 + 8, 2), vr(vAown), sr(rWS, 4), sr(sU0), mods="offen sc1")
        def loads():
            loads_o(); loads_ml()
        loads()
        I("v_lshrrev_b32", vr(vI4), 2, vr(vC)); I("v_and_b32", vr(vI2), 3, vr(vC))
        I("v_lshl_add_u32", vr(vT5), vr(vG), 3, vr(vI4))
        I("s_movk_i32", sr(sT0), WROW)
        I("v_mul_lo_u32", vr(vT5), vr(vT5), sr(sT0))
        I("v_lshl_add_u32", vr(vT5), vr(vI2), 3, vr(vT5))
        I("s_lshl_b32", sr(sT0), sr(sW), 8)
        I("v_add_u32", vr(vT5), sr(sT0), vr(vT5))
        I("v_add_u32", vr(vT5), L_WB, vr(vT5))
        I("s_waitcnt", "vmcnt(7)")
        I("s_barrier")
        self.stamp(23)
        for ks in range(2):
            for tt in range(8):
                I("ds_read_b64_tr_b16", vr(BW + 32 * ks + 4 * tt, 2), vr(vT5), mods=f"offset:{32 * ks * WROW + 32 * tt}")
                I("ds_read_b64_tr_b16", vr(BW + 32 * ks + 4 * tt + 2, 2), vr(vT5), mods=f"offset:{(32 * ks + 4) * WROW + 32 * tt}")
        I("v_and_b32", vr(vAy), 1, vr(vG)); I("v_lshlrev_b32", vr(vAy), 17, vr(vAy))
        I("v_lshrrev_b32", vr(vT6), 1, vr(vG)); I("v_lshlrev_b32", vr(vT6), 12, vr(vT6))
        I("v_add_u32", vr(vAy), vr(vAy), vr(vT6))
        I("v_lshl_add_u32", vr(vAy), vr(vC), 2, vr(vAy))
        I("s_lshl_b32", sr(sU2), sr(sW), 15)
        I("s_lshl_b32", sr(sT1), sr(sF), 6); I("s_add_u32", sr(sU2), sr(sU2), sr(sT1)); I("s_add_u32", sr(sU2), sr(sU2), hex(YPART))
        I("s_mov_b32", sr(sMask), 0); I("s_mov_b32", sr(sMask + 1), -1)
        lp_all, lp_first, lp_chk, lp_o, ok, bail = (self.L(n) for n in ("PA", "PF", "PC", "PO", "POK", "PB"))
        T = 22
        I("s_mov_b32", sr(sSpin), SPIN_MAX)
        I("s_branch", lp_first)
        a.label(lp_all)
        loads()
        a.label(lp_first)
        I("s_waitcnt", "vmcnt(0)")
        self.check_regs(range(ML0, ML0 + 10), vT7)
        I("s_cbranch_vccz", bail)
        I("s_sub_u32", sr(sSpin), sr(sSpin), 1)
        I("s_cbranch_scc0", lp_all)
        a.label(bail)
        I("v_max3_f32", vr(T), vr(ML0), vr(ML0 + 2), vr(ML0 + 4)); I("v_max_f32", vr(T), vr(T), vr(ML0 + 6))
        for n in range(5): I("v_sub_f32", vr(T + 1 + n), vr(ML0 + 2 * n), vr(T))
        for n in range(5): I("v_mul_f32", vr(T + 1 + n), hex(LOG2E), vr(T + 1 + n))
        for n in range(5): I("v_exp_f32", vr(T + 1 + n), vr(T + 1 + n))
        I("v_mul_f32", vr(T), vr(T + 1), vr(ML0 + 1))
        I("v_fmac_f32", vr(T), vr(T + 2), vr(ML0 + 3)); I("v_fmac_f32", vr(T), vr(T + 3), vr(ML0 + 5)); I("v_fmac_f32", vr(T), vr(T + 4), vr(ML0 + 7))
        I("v_rcp_f32", vr(T), vr(T))
        I("v_mul_f32", vr(T), vr(T), vr(T + 5))
        I("s_branch", lp_chk)
        a.label(lp_o)
        loads_o()
        I("s_waitcnt", "vmcnt(0)")
        a.label(lp_chk)
        self.check_regs(range(O0, O0 + 16), vT7)
        I("s_cbranch_vccz", ok)
        I("s_sub_u32", sr(sSpin), sr(sSpin), 1)
        I("s_cbranch_scc0", lp_o)
        a.label(ok)
        self.stamp(21)
        for e in range(16): I("v_mul_f32", vr(O0 + e), vr(O0 + e), vr(T))
        for e in range(16): self.dpp("v_add_f32", O0 + e, O0 + e, O0 + e, "quad_perm:[1,0,3,2]")
        for e in range(16): self.dpp("v_add_f32", O0 + e, O0 + e, O0 + e, "quad_perm:[2,3,0,1]")
        AO = 28
        for k in range(8): I("v_cvt_pk_bf16_f32", vr(AO + k), vr(O0 + 2 * k), vr(O0 + 2 * k + 1))
        I("s_waitcnt", "lgkmcnt(0)")
        Dr = [44, 48, 52, 56, 12, 16, 20, 24]
        for tt in range(8):
            I("v_mfma_f32_16x16x32_bf16", vr(Dr[tt], 4), vr(AO, 4), vr(BW + 4 * tt, 4), 0)
        for tt in range(8):
            I("v_mfma_f32_16x16x32_bf16", vr(Dr[tt], 4), vr(AO + 4, 4), vr(BW + 32 + 4 * tt, 4), vr(Dr[tt], 4))
        for tt in range(0, 8, 2):
            I("v_cndmask_b32", vr(36 + tt // 2), vr(Dr[tt]), vr(Dr[tt + 1]), sr(sMask, 2))
        for tt in range(4): self.clamp(36 + tt)
        for tt in range(4):
            I("buffer_store_dword", vr(36 + tt), vr(vAy), sr(rWS, 4), sr(sU2), mods="offen sc1")
            if tt < 3: I("s_add_u32", sr(sU2), sr(sU2), 8192)
        self.stamp(22)
        I("s_branch", "L_FIN")

    def reduce16(self, r0, out):
        I = self.I
        I("v_permlane32_swap_b32", vr(r0), vr(r0 + 1)); I("v_permlane32_swap_b32", vr(r0 + 2), vr(r0 + 3))
        I("v_add_f32", vr(r0), vr(r0), vr(r0 + 1)); I("v_add_f32", vr(r0 + 2), vr(r0 + 2), vr(r0 + 3))
        self.swap_add(16, r0, r0 + 2, out)
        self.dpp("v_add_f32", out, out, out, "row_ror:8")
        self.dpp("v_add_f32", out, out, out, "row_ror:4")

    def reducer(self):
        a, I = self.a, self.I
        vCol, vX, vAo, vH, vA, vAh = 60, 61, 62, 63, 8, 9
        Y, S, U3 = 64, 96, 112
        self.perm_g(vT6, vT7)
        I("v_and_b32", vr(vCol), 3, vr(vLane))
        I("v_lshl_add_u32", vr(vCol), vr(vCol), 2, vr(vT6))
        I("v_lshlrev_b32", vr(vAo), 1, vr(vCol))
        I("s_lshl_b32", sr(sT0), sr(sF), 5)
        I("buffer_load_ushort", vr(vX), vr(vAo), sr(rX, 4), sr(sT0), mods="offen")
        I("v_lshlrev_b32", vr(vA), 4, vr(vLane))
        I("v_lshlrev_b32", vr(vAh), 2, vr(vCol))
        I("s_lshl_b32", sr(sU0), sr(sF), 12); I("s_add_u32", sr(sU0), sr(sU0), hex(YPART))
        I("s_lshl_b32", sr(sU2), sr(sF), 6); I("s_add_u32", sr(sU2), sr(sU2), hex(HBUF))
        I("s_lshl_b32", sr(sU3), sr(sF), 5)
        I("s_mul_i32", sr(sT0), sr(sF), USTR); I("s_add_u32", sr(sT0), sr(sT0), hex(UPART))
        I("s_add_u32", sr(rWA), sr(pWS), sr(sT0)); I("s_addc_u32", sr(rWA + 1), sr(pWS + 1), 0)
        I("s_mov_b32", sr(rWA + 2), NF * 64); I("s_mov_b32", sr(rWA + 3), "0x20000")
        def loads():
            for k in range(4):
                I("buffer_load_dwordx4", vr(Y + 4 * k, 4), vr(vA), sr(rWS, 4), sr(sU0), mods=f"offen offset:{k * 1024} sc1")
        self.poll(loads, 4, range(Y, Y + 16))
        self.stamp(12)
        I("s_waitcnt", "vmcnt(0)")
        I("v_lshlrev_b32", vr(vX), 16, vr(vX))
        for e in range(4):
            I("v_add_f32", vr(S + e), vr(Y + e), vr(Y + 4 + e)); I("v_add_f32", vr(S + 4 + e), vr(Y + 8 + e), vr(Y + 12 + e))
        for e in range(4): I("v_add_f32", vr(S + e), vr(S + e), vr(S + 4 + e))
        self.reduce16(S, vH)
        I("v_cvt_pk_bf16_f32", vr(vH), vr(vH), vr(vH))
        I("v_lshlrev_b32", vr(vH), 16, vr(vH))
        I("v_add_f32", vr(vH), vr(vH), vr(vX))
        I("v_cvt_pk_bf16_f32", vr(vH), vr(vH), vr(vH))
        I("v_lshlrev_b32", vr(vH), 16, vr(vH))
        self.clamp(12, vH)
        self.execm("0x000f000f", "0x000f000f")
        I("buffer_store_dword", vr(12), vr(vAh), sr(rWS, 4), sr(sU2), mods="offen sc1")
        self.execall()
        self.stamp(13)
        I("s_mov_b32", sr(sMask), 0); I("s_mov_b32", sr(sMask + 1), "0xfffff000")
        def loads3():
            for k in range(3):
                I("buffer_load_dwordx4", vr(U3 + 4 * k, 4), vr(vA), sr(rWA, 4), 0, mods=f"offen offset:{k * 1024} sc1")
        if self.tags:
            lp, ok = self.L("POLL"), self.L("POK")
            I("s_mov_b32", sr(sSpin), SPIN_MAX)
            a.label(lp)
            loads3()
            I("s_waitcnt", "vmcnt(0)")
            for k in range(4):
                I("v_cndmask_b32", vr(U3 + 8 + k), vr(U3 + 8 + k), vr(vTag), sr(sMask, 2))
            self.check_regs(list(range(U3, U3 + 12)), vT7)
            I("s_cbranch_vccz", ok)
            I("s_sub_u32", sr(sSpin), sr(sSpin), 1)
            I("s_cbranch_scc0", lp)
            a.label(ok)
        else:
            self.poll(loads3, 3, range(U3, U3 + 12))
        self.stamp(14)
        for e in range(4):
            I("v_add_f32", vr(S + e), vr(U3 + e), vr(U3 + 4 + e))
        for e in range(4): I("v_add_f32", vr(S + e), vr(S + e), vr(U3 + 8 + e))
        self.reduce16(S, 12)
        I("v_cvt_pk_bf16_f32", vr(12), vr(12), vr(12))
        I("v_lshlrev_b32", vr(12), 16, vr(12))
        I("v_add_f32", vr(12), vr(12), vr(vH))
        I("v_cvt_pk_bf16_f32", vr(12), vr(12), vr(12))
        self.execm("0x000f000f", "0x000f000f")
        I("buffer_store_short", vr(12), vr(vAo), sr(rOUT, 4), sr(sU3), mods="offen")
        self.execall()
        if self.tags:
            lab_ne = self.L("NEP")
            I("s_cmp_eq_u32", sr(sF), 0)
            I("s_cbranch_scc0", lab_ne)
            I("v_mov_b32", vr(13), sr(sEp)); I("v_mov_b32", vr(14), 0)
            I("s_mov_b32", sr(sT0), hex(EPOCH))
            I("s_mov_b64", "exec", 1)
            I("buffer_store_dword", vr(13), vr(14), sr(rWS, 4), sr(sT0), mods="offen sc1")
            self.execall()
            a.label(lab_ne)
        if self.dbgtime:
            I("s_memrealtime", "s[12:13]")
            I("s_waitcnt", "lgkmcnt(0)")
            I("s_sub_u32", sr(sT1), sr(sT1), "s38")
            I("v_mov_b32", vr(12), sr(sT1)); I("v_mov_b32", vr(vT6), 0)
            I("s_lshl_b32", sr(sT0), sr(sF), 2)
            I("s_mov_b64", "exec", 1)
            I("buffer_store_dword", vr(12), vr(vT6), sr(rDBG, 4), sr(sT0), mods="offen")
            self.execall()
        self.stamp(15)

    def ffn_stage(self):
        a, I = self.a, self.I
        if self.stop in ("y", "h"):
            I("s_waitcnt", "vmcnt(0)"); I("s_barrier"); return
        vI4, vI2 = 8, 9
        B1, B2 = 64, 96
        I("s_waitcnt", "vmcnt(0)")
        I("s_barrier")
        I("v_lshrrev_b32", vr(vI4), 2, vr(vC)); I("v_and_b32", vr(vI2), 3, vr(vC))
        I("v_lshl_add_u32", vr(vT5), vr(vG), 3, vr(vI4)); I("v_lshlrev_b32", vr(vT5), 6, vr(vT5))
        I("v_lshl_add_u32", vr(vT5), vr(vI2), 3, vr(vT5))
        I("s_lshl_b32", sr(sT0), sr(sW), 13)
        I("v_add_u32", vr(vT5), sr(sT0), vr(vT5))
        for ks in range(4):
            for nt in range(2):
                o = L_WB + ks * 2048 + nt * 32
                I("ds_read_b64_tr_b16", vr(B1 + 8 * ks + 4 * nt, 2), vr(vT5), mods=f"offset:{o}")
                I("ds_read_b64_tr_b16", vr(B1 + 8 * ks + 4 * nt + 2, 2), vr(vT5), mods=f"offset:{o + 256}")
        I("v_lshl_add_u32", vr(vT6), vr(vG), 3, vr(vI4))
        I("s_movk_i32", sr(sT0), WROW)
        I("v_mul_lo_u32", vr(vT6), vr(vT6), sr(sT0))
        I("v_lshl_add_u32", vr(vT6), vr(vI2), 3, vr(vT6))
        I("s_lshl_b32", sr(sT0), sr(sW), 8)
        I("v_add_u32", vr(vT6), sr(sT0), vr(vT6))
        I("v_add_u32", vr(vT6), L_W2, vr(vT6))
        for tt in range(8):
            I("ds_read_b64_tr_b16", vr(B2 + 4 * tt, 2), vr(vT6), mods=f"offset:{32 * tt}")
            I("ds_read_b64_tr_b16", vr(B2 + 4 * tt + 2, 2), vr(vT6), mods=f"offset:{4 * WROW + 32 * tt}")
        vAh, vAhw, vAhr, vAuw, vAur, vAaw, vAar, vAo = 10, 11, 52, 53, 54, 55, 56, 57
        I("v_lshlrev_b32", vr(vAh), 5, vr(vLane))
        I("s_mov_b32", sr(sU0), hex(HBUF))
        I("v_lshlrev_b32", vr(vAhw), 4, vr(vLane)); I("s_lshl_b32", sr(sT0), sr(sW), 11); I("v_add_u32", vr(vAhw), sr(sT0), vr(vAhw))
        I("v_bfe_u32", vr(vT7), vr(vC), 2, 1)
        I("v_lshlrev_b32", vr(vAhr), 10, vr(vT7)); I("v_lshl_add_u32", vr(vAhr), vr(vG), 4, vr(vAhr))
        I("s_mul_i32", sr(sT0), sr(sW), 2048 + 256); I("v_add_u32", vr(vAhr), sr(sT0), vr(vAhr))
        I("v_and_b32", vr(vAuw), 1, vr(vG)); I("v_lshlrev_b32", vr(vAuw), 7, vr(vAuw))
        I("v_lshrrev_b32", vr(vT5), 1, vr(vG)); I("v_lshl_add_u32", vr(vAuw), vr(vT5), 6, vr(vAuw))
        I("v_lshl_add_u32", vr(vAuw), vr(vC), 2, vr(vAuw))
        I("s_lshl_b32", sr(sT0), sr(sW), 8); I("v_add_u32", vr(vAuw), sr(sT0), vr(vAuw))
        I("v_lshlrev_b32", vr(vAur), 2, vr(vLane))
        I("s_lshl_b32", sr(sT0), sr(sW), 7)
        I("v_lshlrev_b32", vr(vAaw), 1, vr(vLane)); I("v_add_u32", vr(vAaw), sr(sT0), vr(vAaw))
        I("v_lshlrev_b32", vr(vAar), 6, vr(vT7)); I("v_lshl_add_u32", vr(vAar), vr(vG), 4, vr(vAar)); I("v_add_u32", vr(vAar), sr(sT0), vr(vAar))
        I("v_and_b32", vr(vAo), 1, vr(vG)); I("s_mov_b32", sr(sT0), 32 * USTR); I("v_mul_lo_u32", vr(vAo), vr(vAo), sr(sT0))
        I("v_lshrrev_b32", vr(vT6), 1, vr(vG)); I("s_movk_i32", sr(sT0), USTR); I("v_mul_lo_u32", vr(vT6), vr(vT6), sr(sT0))
        I("v_add_u32", vr(vAo), vr(vAo), vr(vT6))
        I("v_lshl_add_u32", vr(vAo), vr(vC), 2, vr(vAo))
        I("s_mul_i32", sr(sU1), sr(sW), 8 * USTR)
        I("s_lshl_b32", sr(sT1), sr(sF), 6); I("s_add_u32", sr(sU1), sr(sU1), sr(sT1)); I("s_add_u32", sr(sU1), sr(sU1), hex(UPART))
        I("s_mov_b32", sr(sMask), 0); I("s_mov_b32", sr(sMask + 1), -1)
        I("s_waitcnt", "lgkmcnt(0)")
        vCS = 58
        for k in range(4): I("v_mov_b32", vr(36 + k), "0x3f803f80")
        for ks in range(4):
            I("v_mfma_f32_16x16x32_bf16", vr(28, 4), vr(36, 4), vr(B1 + 8 * ks, 4), (0 if ks == 0 else vr(28, 4)))
            I("v_mfma_f32_16x16x32_bf16", vr(32, 4), vr(36, 4), vr(B1 + 8 * ks + 4, 4), (0 if ks == 0 else vr(32, 4)))
        I("v_cndmask_b32", vr(vCS), vr(28), vr(32), sr(sMask, 2))
        I("s_mov_b32", sr(sU2), "0xffff0000"); I("s_mov_b32", sr(sU3), "0xffff0000")
        H0, H1 = 12, 20
        top = self.dry_top()
        sk = self.skip_if_dry()
        def loads():
            I("buffer_load_dwordx4", vr(H0, 4), vr(vAh), sr(rWS, 4), sr(sU0), mods="offen sc1")
            I("buffer_load_dwordx4", vr(H0 + 4, 4), vr(vAh), sr(rWS, 4), sr(sU0), mods="offen offset:16 sc1")
            I("buffer_load_dwordx4", vr(H1, 4), vr(vAh), sr(rWS, 4), sr(sU0), mods="offen offset:2048 sc1")
            I("buffer_load_dwordx4", vr(H1 + 4, 4), vr(vAh), sr(rWS, 4), sr(sU0), mods="offen offset:2064 sc1")
        self.poll(loads, 4, range(12, 28))
        a.label(sk)
        self.stamp(9)
        HN = 36
        for k in range(4):
            I("v_cvt_pk_bf16_f32", vr(HN + k), vr(H0 + 2 * k), vr(H0 + 2 * k + 1))
            I("v_cvt_pk_bf16_f32", vr(HN + 4 + k), vr(H1 + 2 * k), vr(H1 + 2 * k + 1))
        I("ds_write_b128", vr(vAhw), vr(HN, 4), mods=f"offset:{L_HN}")
        I("ds_write_b128", vr(vAhw), vr(HN + 4, 4), mods=f"offset:{L_HN + 1024}")
        A1, A2, B1s, B2s = 28, 29, 30, 31
        for (H, P1, P2) in ((H0, 60, 32), (H1, 62, 34)):
            I("v_pk_add_f32", vr(P1, 2), vr(H, 2), vr(H + 2, 2))
            I("v_pk_mul_f32", vr(P2, 2), vr(H, 2), vr(H, 2))
        for j in (4, 6):
            for (H, P1, P2) in ((H0, 60, 32), (H1, 62, 34)):
                I("v_pk_add_f32", vr(P1, 2), vr(P1, 2), vr(H + j, 2))
        for j in (2, 4, 6):
            for (H, P1, P2) in ((H0, 60, 32), (H1, 62, 34)):
                I("v_pk_fma_f32", vr(P2, 2), vr(H + j, 2), vr(H + j, 2), vr(P2, 2))
        I("v_add_f32", vr(A1), vr(60), vr(61)); I("v_add_f32", vr(A2), vr(32), vr(33))
        I("v_add_f32", vr(B1s), vr(62), vr(63)); I("v_add_f32", vr(B2s), vr(34), vr(35))
        I("s_waitcnt", "lgkmcnt(0)")
        for ks in range(4):
            I("ds_read_b128", vr(HN + 4 * ks, 4), vr(vAhr), mods=f"offset:{L_HN + ks * 64}")
        self.wave_reduce63("v_add_f32", [A1, A2, B1s, B2s])
        for (r, s) in ((A1, sT0), (A2, sT1), (B1s, sT2), (B2s, sT3)):
            I("v_readlane_b32", sr(s), vr(r), 63)
        I("s_waitcnt", "lgkmcnt(0)")
        D0, D1 = 12, 16
        for ks in range(4):
            I("v_mfma_f32_16x16x32_bf16", vr(D0, 4), vr(HN + 4 * ks, 4), vr(B1 + 8 * ks, 4), (0 if ks == 0 else vr(D0, 4)))
            I("v_mfma_f32_16x16x32_bf16", vr(D1, 4), vr(HN + 4 * ks, 4), vr(B1 + 8 * ks + 4, 4), (0 if ks == 0 else vr(D1, 4)))
        M0, M1, R0, R1, T0, T1 = 28, 29, 30, 31, 32, 33
        self.ln_scalars(sT0, sT1, sT2, sT3, M0, M1, R0, R1, T0, T1)
        I("v_cndmask_b32", vr(M0), vr(M0), vr(M1), sr(sU2, 2))
        I("v_cndmask_b32", vr(R0), vr(R0), vr(R1), sr(sU2, 2))
        I("v_cndmask_b32", vr(D0), vr(D0), vr(D1), sr(sMask, 2))
        I("v_fma_f32", vr(D0), f"-{vr(M0)}", vr(vCS), vr(D0))
        I("v_mul_f32", vr(D0), vr(D0), vr(R0))
        I("ds_write_b32", vr(vAuw), vr(D0), mods=f"offset:{L_UP}")
        I("s_waitcnt", "lgkmcnt(0)")
        I("s_barrier")
        for w in range(4):
            I("ds_read_b32", vr(28 + w), vr(vAur), mods=f"offset:{L_UP + w * 256}")
        I("s_waitcnt", "lgkmcnt(0)")
        I("v_add_f32", vr(28), vr(28), vr(29)); I("v_add_f32", vr(30), vr(30), vr(31))
        I("v_add_f32", vr(28), vr(28), vr(30))
        I("v_cvt_pk_bf16_f32", vr(29), vr(28), vr(28))
        I("v_lshlrev_b32", vr(28), 16, vr(29))
        I("v_mul_f32", vr(29), "0xbfb8aa3b", vr(28))
        I("v_exp_f32", vr(29), vr(29))
        I("v_add_f32", vr(29), 1.0, vr(29))
        I("v_rcp_f32", vr(29), vr(29))
        I("v_mul_f32", vr(28), vr(28), vr(29))
        I("v_cvt_pk_bf16_f32", vr(28), vr(28), vr(28))
        I("ds_write_b16", vr(vAaw), vr(28), mods=f"offset:{L_ACT}")
        I("s_waitcnt", "lgkmcnt(0)")
        I("ds_read_b128", vr(28, 4), vr(vAar), mods=f"offset:{L_ACT}")
        I("s_waitcnt", "lgkmcnt(0)")
        self.stamp(10)
        DD = 32
        assert DD + 20 <= vAhr
        I("s_waitcnt", "vmcnt(0)")
        Dregs = [12, 16, 20, 24, 36, 40, 44, 48]
        for tt in range(8):
            I("v_mfma_f32_16x16x32_bf16", vr(Dregs[tt], 4), vr(28, 4), vr(B2 + 4 * tt, 4), 0)
        for tt in range(0, 8, 2):
            I("v_cndmask_b32", vr(32 + tt // 2), vr(Dregs[tt]), vr(Dregs[tt + 1]), sr(sMask, 2))
        for tt in range(4): self.clamp(32 + tt)
        lab_nb = self.L("NB")
        I("s_cmp_eq_u32", sr(sDry), 0)
        I("s_cbranch_scc1", lab_nb)
        I("s_barrier")
        a.label(lab_nb)
        self.dry_end(top)
        for tt in range(4):
            I("buffer_store_dword", vr(32 + tt), vr(vAo), sr(rWS, 4), sr(sU1), mods="offen sc1")
            if tt < 3: I("s_add_u32", sr(sU1), sr(sU1), 2 * USTR)
        self.stamp(11)

    def finish(self):
        a, I = self.a, self.I
        a.label("L_FIN")
        if self.stamps:
            self.stamp(20)
            I("s_getreg_b32", sr(sT0), "hwreg(HW_REG_HW_ID)")
            I("s_getreg_b32", sr(sT1), "hwreg(HW_REG_XCC_ID)")
            I("v_writelane_b32", "v0", sr(sT0), 30)
            I("v_writelane_b32", "v0", sr(sT1), 31)
            self.execall()
            I("s_lshl_b32", sr(sT0), "s2", 4); I("s_add_u32", sr(sT0), sr(sT0), sr(sW)); I("s_lshl_b32", sr(sT0), sr(sT0), 8)
            I("s_add_u32", sr(sT0), sr(sT0), hex(STAMP))
            I("v_lshlrev_b32", vr(vT5), 2, vr(vLane))
            I("buffer_store_dword", "v0", vr(vT5), sr(rWS, 4), sr(sT0), mods="offen")
        a.label("L_END")
        return self.wrap()

    def wrap(self):
        body = self.a.text()
        hdr = open("sequential_preLN__mha_block_cached__dense_activation_silu__decode.s.ref").read().split("\n")
        top = [l for l in hdr if l.startswith(";") and "@launch" not in l and "Override" not in l and "grid=ceil" not in l][:12]
        out = "\n".join(top) + "\n"
        out += f"; @launch grid=(256,1,1) block=(1024,1,1) lds={LDS_SIZE}\n"
        out += f""".amdgcn_target "amdgcn-amd-amdhsa--gfx950"
.text
.globl {KN}
.p2align 8
.type {KN},@function
{KN}:
{body}  s_endpgm
.section .rodata,"a"
.p2align 6
.amdhsa_kernel {KN}
  .amdhsa_next_free_vgpr 128
  .amdhsa_next_free_sgpr 102
  .amdhsa_accum_offset 128
  .amdhsa_group_segment_fixed_size 0
  .amdhsa_kernarg_size 88
  .amdhsa_user_sgpr_count 2
  .amdhsa_user_sgpr_kernarg_segment_ptr 1
  .amdhsa_system_sgpr_workgroup_id_x 1
.end_amdhsa_kernel
"""
        return out

if __name__ == "__main__":
    kw = {}
    for x in sys.argv[2:]:
        k, v = x.split("=")
        kw[k] = int(v) if v.lstrip("-").isdigit() and k != "prios" else v
    g = Gen(**kw)
    open(sys.argv[1], "w").write(g.build())
    print("nops inserted:", g.a.nops, "lines", len(g.a.lines))
```

```python
import sys
from asmlib import Asm, vr, sr

KN = "sequential_preLN__mha_block_cached__dense_activation_silu__decode_kernel"

ML    = 0x040000
OPART = 0x050000
YPART = 0x080000
HBUF  = 0x100000
UPART = 0x110000
USTR  = 48 * 64
NF    = 43
EPOCH = 0x030000
TAGM = 0x3FF
STAMP = 0x200000
WSSZ  = 0x400000
L_QP = 0
L_OP = 0
L_QB = 8192
L_ML = 8192 + 256
L_CNT = 8192 + 256 + 128
L_QCNT = L_CNT + 4
L_FQ = L_CNT + 8
L_UP = 8192 + 512
L_ACT = 8192 + 512 + 1024
L_HN = 8192 + 2048 + 1024
L_WB = 20480
L_W2 = L_WB + 32768
L_XN = L_WB
WROW = 1056
LDS_SIZE = L_WB + 64 * WROW + 256

LOG2E = 0x3FB8AA3B
SCALE = 0x3DB504F3
SPIN_MAX = 400000
OOB = 0x40000000

sW, sE, sHalf, sBH, sB, sH, sM = 3, 4, 5, 6, 7, 8, 9
sDry = 10
sT0, sT1, sT2, sT3, sT4 = 11, 12, 13, 14, 15
pX, pK, pV, pWQ, pWO, pBX, pW1, pW2, pOUT, pDBG, pWS = 16, 18, 20, 22, 24, 26, 28, 30, 32, 34, 36
sRB = 26
sRole = 27
sHW = 101
rK, rV, rWS, rX, rWQ, rWA, rWB, rOUT, rDBG = 40, 44, 48, 52, 56, 60, 64, 68, 72
sOFF = 76
sN = 93
sSpin = 94
sF = 95
sMask = 96
sU0, sU1, sU2, sU3 = 98, 99, 100, 101
sStamp0 = 38
sEp = 10
sTagM = 76
rT1 = 16
vLane, vC, vG, vKV = 1, 2, 3, 4
vT5, vT6, vT7 = 5, 6, 7
vTag = 4
vCk0, vCk1 = 5, 6
vQ = 8
vD = 12
vS, vS2 = 16, 17
vACC = 20
DATA0 = 28
def kslot(i): return DATA0 + 4 * i
def vslot(i):
    if i < 8: return DATA0 + 4 * (17 + i)
    return DATA0 + 4 * (i - 8)

class Gen:
    def __init__(self, stamps=0, stop=None, skew=0, npre=4, dbgtime=0, nowq=0, prios="32111", nodma=0, noinv=0,
                 dry=0, pipe=0, wqflag="", late_wo=99, earlybar=1, npre2=15, hshift=8, map=1, pat=1, kfirst=1, t1test=0, touch=0, noq=0, bw=4, tags=1, wsplit=16, fearly=0, wo_at=0, rot=2):
        self.a = Asm()
        self.stamps, self.stop, self.skew, self.npre, self.dbgtime = stamps, stop, skew, npre, dbgtime
        self.nowq, self.nodma, self.noinv, self.dry, self.pipe = nowq, nodma, noinv, dry, pipe
        self.prios = [int(c) for c in str(prios).zfill(5)]
        self.wqflag = wqflag
        self.late_wo = late_wo
        self.earlybar = earlybar
        self.npre2 = npre2
        self.hshift = hshift
        self.map = map
        self.pat = pat
        self.kfirst = kfirst
        self.t1test = t1test
        self.touch = touch
        self.noq = noq
        self.bw = bw
        self.tags = tags
        self.wsplit = wsplit
        self.fearly = fearly
        self.wo_at = wo_at
        self.rot = rot
        self.nslot = 17 if skew else 16
        self.issued = []
        self.lab = 0
        self.wo_done = False

    def L(self, p="L"):
        self.lab += 1
        return f"{p}_{self.lab}"
    def I(self, *a, **k): self.a.I(*a, **k)

    def stamp(self, k):
        if not self.stamps: return
        if k == 0:
            self.I("s_memrealtime", sr(sStamp0, 2)); return
        if k == 1:
            self.I("s_waitcnt", "lgkmcnt(0)")
            self.I("v_mov_b32", "v0", 0)
            self.I("v_writelane_b32", "v0", sr(sStamp0), 0)
            self.I("v_writelane_b32", "v0", "s94", 19)
        self.I("s_memrealtime", sr(sStamp0, 2))
        self.I("s_waitcnt", "lgkmcnt(0)")
        self.I("v_writelane_b32", "v0", sr(sStamp0), k)

    def csel(self, dst, x, y):
        self.I("s_mov_b32", sr(dst), x)
        self.I("s_cselect_b32", sr(dst), sr(dst), y)
    def exec63(self):
        self.I("s_mov_b32", "exec_lo", 0); self.I("s_mov_b32", "exec_hi", "0x80000000")
    def execm(self, lo, hi):
        self.I("s_mov_b32", "exec_lo", lo); self.I("s_mov_b32", "exec_hi", hi)
    def execall(self): self.I("s_mov_b64", "exec", -1)

    def srd(self, r, plo, size, addoff=None):
        I = self.I
        if addoff is None:
            I("s_mov_b32", sr(r), sr(plo)); I("s_mov_b32", sr(r + 1), sr(plo + 1))
        else:
            I("s_add_u32", sr(r), sr(plo), addoff); I("s_addc_u32", sr(r + 1), sr(plo + 1), 0)
        I("s_mov_b32", sr(r + 2), size); I("s_mov_b32", sr(r + 3), "0x20000")

    def vm(self, tag, op, *ops, mods=""):
        self.I(op, *ops, mods=mods)
        self.issued.append(tag)
    def wait_vm(self, tag):
        idx = self.issued.index(tag)
        n = len(self.issued) - 1 - idx
        self.I("s_waitcnt", f"vmcnt({min(n, 63)})")

    def dpp(self, op, d, s0, s1, ctrl, rm="0xf"):
        self.I(op + "_dpp", vr(d), vr(s0), vr(s1), mods=f"{ctrl} row_mask:{rm} bank_mask:0xf")
    def row_reduce(self, op, regs):
        for sh in (8, 4, 2, 1):
            for r in regs: self.dpp(op, r, r, r, f"row_ror:{sh}")
    def wave_reduce63(self, op, regs):
        self.row_reduce(op, regs)
        for r in regs: self.dpp(op, r, r, r, "row_bcast:15", "0xa")
        for r in regs: self.dpp(op, r, r, r, "row_bcast:31", "0xc")
    def swap_add(self, which, a, b, d, op="v_add_f32"):
        self.I(f"v_permlane{which}_swap_b32", vr(a), vr(b))
        self.I(op, vr(d), vr(a), vr(b))
    def unpack(self, lo, hi, src):
        self.I("v_lshlrev_b32", vr(lo), 16, vr(src))
        self.I("v_and_b32", vr(hi), "0xffff0000", vr(src))
    def clamp(self, r, src=None):
        src = r if src is None else src
        if self.tags:
            self.I("v_and_or_b32", vr(r), vr(src), sr(sTagM), vr(vTag))
        else:
            self.I("v_min_u32", vr(r), -2, vr(src))
    def perm_g(self, d, t):
        I = self.I
        I("v_and_b32", vr(d), 1, vr(vG)); I("v_lshlrev_b32", vr(d), 1, vr(d))
        I("v_lshrrev_b32", vr(t), 1, vr(vG)); I("v_or_b32", vr(d), vr(d), vr(t))

    def check_regs(self, regs, t, t2=None):
        I = self.I
        rs = list(regs)
        if self.tags:
            for r in rs: I("v_xor_b32", vr(r), vr(vTag), vr(r))
            first = True
            while rs:
                if first:
                    if len(rs) >= 3:
                        I("v_or3_b32", vr(t), vr(rs[0]), vr(rs[1]), vr(rs[2])); rs = rs[3:]
                    elif len(rs) == 2:
                        I("v_or_b32", vr(t), vr(rs[0]), vr(rs[1])); rs = rs[2:]
                    else:
                        I("v_mov_b32", vr(t), vr(rs[0])); rs = rs[1:]
                    first = False
                elif len(rs) >= 2:
                    I("v_or3_b32", vr(t), vr(t), vr(rs[0]), vr(rs[1])); rs = rs[2:]
                else:
                    I("v_or_b32", vr(t), vr(t), vr(rs[0])); rs = rs[1:]
            I("v_and_b32", vr(t), hex(TAGM), vr(t))
            I("v_cmp_ne_u32", "vcc", 0, vr(t))
            return
        if len(rs) == 1:
            I("v_cmp_eq_u32", "vcc", -1, vr(rs[0])); return
        first = True
        while rs:
            if first:
                if len(rs) >= 3:
                    I("v_max3_u32", vr(t), vr(rs[0]), vr(rs[1]), vr(rs[2])); rs = rs[3:]
                else:
                    I("v_max_u32", vr(t), vr(rs[0]), vr(rs[1])); rs = rs[2:]
                first = False
            elif len(rs) >= 2:
                I("v_max3_u32", vr(t), vr(t), vr(rs[0]), vr(rs[1])); rs = rs[2:]
            else:
                I("v_max_u32", vr(t), vr(t), vr(rs[0])); rs = rs[1:]
        I("v_cmp_eq_u32", "vcc", -1, vr(t))

    def poll(self, loads, nloads, regs, t=vT7):
        I = self.I
        lp, ok = self.L("POLL"), self.L("POK")
        I("s_mov_b32", sr(sSpin), SPIN_MAX)
        if self.pipe: loads()
        self.a.label(lp)
        loads()
        I("s_waitcnt", f"vmcnt({nloads if self.pipe else 0})")
        self.check_regs(regs, t)
        I("s_cbranch_vccz", ok)
        I("s_sub_u32", sr(sSpin), sr(sSpin), 1)
        I("s_cbranch_scc0", lp)
        self.a.label(ok)

    def poll2(self, ld, n, rawA, rawB, clean, fix=None, first_sleep=3):
        I = self.I
        lp, ok = self.L("P2"), self.L("P2OK")
        cnt = len(clean)
        def check(raw):
            for i in range(cnt): I("v_xor_b32", vr(clean[i]), vr(vTag), vr(raw + i))
            if fix: fix()
            rs = list(clean)
            I("v_or3_b32", vr(vT7), vr(rs[0]), vr(rs[1]), vr(rs[2])); rs = rs[3:]
            while rs:
                if len(rs) >= 2:
                    I("v_or3_b32", vr(vT7), vr(vT7), vr(rs[0]), vr(rs[1])); rs = rs[2:]
                else:
                    I("v_or_b32", vr(vT7), vr(vT7), vr(rs[0])); rs = rs[1:]
            I("v_and_b32", vr(vT7), hex(TAGM), vr(vT7))
            I("v_cmp_ne_u32", "vcc", 0, vr(vT7))
        I("s_mov_b32", sr(sSpin), SPIN_MAX)
        ld(rawA)
        if first_sleep: I("s_sleep", first_sleep)
        self.a.label(lp)
        ld(rawB)
        I("s_waitcnt", f"vmcnt({n})")
        check(rawA)
        I("s_cbranch_vccz", ok)
        ld(rawA)
        I("s_waitcnt", f"vmcnt({n})")
        check(rawB)
        I("s_cbranch_vccz", ok)
        I("s_sub_u32", sr(sSpin), sr(sSpin), 1)
        I("s_cbranch_scc1", ok)
        I("s_branch", lp)
        self.a.label(ok)

    def ln_scalars(self, s10, s20, s11, s21, vm0, vm1, vr0, vr1, t0, t1):
        I = self.I
        inv = "0x3b000000"
        I("v_mov_b32", vr(vm0), sr(s10)); I("v_mov_b32", vr(vm1), sr(s11))
        I("v_mov_b32", vr(vr0), sr(s20)); I("v_mov_b32", vr(vr1), sr(s21))
        for r in (vm0, vm1, vr0, vr1): I("v_mul_f32", vr(r), inv, vr(r))
        I("v_fma_f32", vr(vr0), f"-{vr(vm0)}", vr(vm0), vr(vr0))
        I("v_fma_f32", vr(vr1), f"-{vr(vm1)}", vr(vm1), vr(vr1))
        I("v_max_f32", vr(vr0), 0, vr(vr0)); I("v_max_f32", vr(vr1), 0, vr(vr1))
        I("v_cvt_pk_bf16_f32", vr(t0), vr(vm0), vr(vm1))
        I("v_cvt_pk_bf16_f32", vr(t1), vr(vr0), vr(vr1))
        self.unpack(vm0, vm1, t0)
        self.unpack(vr0, vr1, t1)
        I("v_add_f32", vr(vr0), "0x3727c5ac", vr(vr0)); I("v_add_f32", vr(vr1), "0x3727c5ac", vr(vr1))
        I("v_cvt_pk_bf16_f32", vr(t1), vr(vr0), vr(vr1))
        self.unpack(vr0, vr1, t1)
        I("v_sqrt_f32", vr(vr0), vr(vr0)); I("v_sqrt_f32", vr(vr1), vr(vr1))
        I("v_cvt_pk_bf16_f32", vr(t1), vr(vr0), vr(vr1))
        self.unpack(vr0, vr1, t1)
        I("v_rcp_f32", vr(vr0), vr(vr0)); I("v_rcp_f32", vr(vr1), vr(vr1))

    def ln_scalars1(self, s1, s2, vm0, vr0, t0):
        I = self.I
        inv = "0x3b000000"
        I("v_mov_b32", vr(vm0), sr(s1)); I("v_mov_b32", vr(vr0), sr(s2))
        I("v_mul_f32", vr(vm0), inv, vr(vm0)); I("v_mul_f32", vr(vr0), inv, vr(vr0))
        I("v_fma_f32", vr(vr0), f"-{vr(vm0)}", vr(vm0), vr(vr0))
        I("v_max_f32", vr(vr0), 0, vr(vr0))
        I("v_cvt_pk_bf16_f32", vr(t0), vr(vm0), vr(vr0))
        self.unpack(vm0, vr0, t0)
        I("v_add_f32", vr(vr0), "0x3727c5ac", vr(vr0))
        I("v_cvt_pk_bf16_f32", vr(t0), vr(vr0), vr(vr0))
        I("v_lshlrev_b32", vr(vr0), 16, vr(t0))
        I("v_sqrt_f32", vr(vr0), vr(vr0))
        I("v_cvt_pk_bf16_f32", vr(t0), vr(vr0), vr(vr0))
        I("v_lshlrev_b32", vr(vr0), 16, vr(t0))
        I("v_rcp_f32", vr(vr0), vr(vr0))

    def lds_set(self, off, val_sgpr_or_imm):
        I = self.I
        I("v_mov_b32", vr(vT6), off); I("v_mov_b32", vr(vT7), val_sgpr_or_imm)
        I("ds_write_b32", vr(vT6), vr(vT7))

    def lds_wait(self, off, val, sleep=1):
        I = self.I
        lp, ok = self.L("LW"), self.L("LWOK")
        I("v_mov_b32", vr(vT6), off)
        self.a.label(lp)
        I("ds_read_b32", vr(vT7), vr(vT6))
        I("s_waitcnt", "lgkmcnt(0)")
        I("v_readfirstlane_b32", sr(sT4), vr(vT7))
        I("s_cmp_ge_u32", sr(sT4), val)
        I("s_cbranch_scc1", ok)
        if sleep: I("s_sleep", sleep)
        I("s_branch", lp)
        self.a.label(ok)

    def invalidate(self):
        I = self.I
        for k in range(4): I("v_mov_b32", vr(20 + k), -1)
        I("v_lshlrev_b32", vr(vT5), 4, vr(vLane))
        I("s_lshl_b32", sr(sT0), sr(sBH), 2); I("s_add_u32", sr(sT0), sr(sT0), sr(sM))
        I("s_lshl_b32", sr(sT1), sr(sT0), 9); I("s_add_u32", sr(sT1), sr(sT1), hex(OPART))
        I("s_lshl_b32", sr(sT2), sr(sT0), 3); I("s_add_u32", sr(sT2), sr(sT2), hex(ML))
        self.execm(-1, 0)
        I("buffer_store_dwordx4", vr(20, 4), vr(vT5), sr(rWS, 4), sr(sT1), mods="offen sc1")
        I("s_mov_b64", "exec", 1)
        I("buffer_store_dwordx2", vr(20, 2), vr(vT5), sr(rWS, 4), sr(sT2), mods="offen sc1")
        I("s_lshl_b32", sr(sT1), sr(sBH), 6); I("s_add_u32", sr(sT1), sr(sT1), hex(HBUF))
        I("s_cmp_eq_u32", sr(sRole), 3)
        I("s_cselect_b32", sr(sT1), sr(sT1), hex(OOB))
        I("s_mov_b64", "exec", 15)
        I("buffer_store_dwordx4", vr(20, 4), vr(vT5), sr(rWS, 4), sr(sT1), mods="offen sc1")
        self.execall()
        I("s_cmp_eq_u32", sr(sRole), 1)
        self.csel(sT0, 4096, USTR)
        self.csel(sT1, hex(YPART), hex(UPART))
        I("s_lshl_b32", sr(sT2), sr(sF), 6); I("s_add_u32", sr(sT1), sr(sT1), sr(sT2))
        I("s_cmp_eq_u32", sr(sRole), 0); I("s_cselect_b32", sr(sT1), hex(OOB), sr(sT1))
        I("s_cmp_eq_u32", sr(sRole), 3); I("s_cselect_b32", sr(sT1), hex(OOB), sr(sT1))
        I("v_lshrrev_b32", vr(vT6), 2, vr(vLane))
        I("v_mul_lo_u32", vr(vT6), vr(vT6), sr(sT0))
        I("v_and_b32", vr(vT7), 3, vr(vLane)); I("v_lshlrev_b32", vr(vT7), 4, vr(vT7))
        I("v_add_u32", vr(vT6), vr(vT6), vr(vT7))
        I("s_lshl_b32", sr(sT0), sr(sT0), 4)
        for k in range(4):
            I("buffer_store_dwordx4", vr(20, 4), vr(vT6), sr(rWS, 4), sr(sT1), mods="offen sc1")
            if k < 3: I("s_add_u32", sr(sT1), sr(sT1), sr(sT0))

    def roles(self):
        a, I = self.a, self.I
        self.srd(rWS, pWS, hex(WSSZ))
        self.srd(rDBG, pDBG, 256)
        self.srd(rOUT, pOUT, 2048)
        I("s_and_b32", sr(sT0), "s2", 7); I("s_lshr_b32", sr(sT1), sr(sT0), 1); I("s_lshl_b32", sr(sT1), sr(sT1), 4)
        I("s_lshr_b32", sr(sT2), "s2", 4); I("s_add_u32", sr(sT1), sr(sT1), sr(sT2))
        I("s_and_b32", sr(sT0), sr(sT0), 1)
        I("s_bfe_u32", sr(sT2), "s2", "0x10003")
        I("s_lshl_b32", sr(sT2), sr(sT2), 1); I("s_add_u32", sr(sT0), sr(sT0), sr(sT2))
        I("s_mov_b32", sr(sRole), 0)
        I("s_mov_b32", sr(sF), sr(sT1))
        I("s_cmp_eq_u32", sr(sT0), 1); I("s_cselect_b32", sr(sRole), 3, sr(sRole))
        I("s_cmp_lt_u32", sr(sT1), NF); I("s_cselect_b32", sr(sT2), 2, 0)
        I("s_cmp_eq_u32", sr(sT0), 2); I("s_cselect_b32", sr(sRole), sr(sT2), sr(sRole))
        I("s_add_u32", sr(sT2), sr(sT1), 2 * self.hshift); I("s_and_b32", sr(sT2), sr(sT2), 63)
        I("s_cmp_eq_u32", sr(sT0), 0); I("s_cselect_b32", sr(sRole), 1, sr(sRole)); I("s_cselect_b32", sr(sF), sr(sT2), sr(sF))
        I("s_lshr_b32", sr(sHW), sr(sF), 1)
        lab_f, lab_done = self.L("RF"), self.L("RDONE")
        I("s_cmp_eq_u32", sr(sRole), 2)
        I("s_cbranch_scc1", lab_f)
        I("s_lshl_b32", sr(sT0), sr(sF), 16)
        self.srd(rWA, pWO, (65536 if not self.nodma else 0), sr(sT0))
        self.srd(rWB, pWO, 0, sr(sT0))
        I("s_branch", lab_done)
        a.label(lab_f)
        I("s_lshl_b32", sr(sT0), sr(sF), 6)
        I("s_sub_u32", sr(sT1), hex(512 * 2752), sr(sT0))
        self.srd(rWA, pW1, sr(sT1), sr(sT0))
        I("s_lshl_b32", sr(sT0), sr(sF), 15)
        self.srd(rWB, pW2, 32768, sr(sT0))
        a.label(lab_done)

    def build(self):
        a, I = self.a, self.I
        self.stamp(0)
        if self.dbgtime: I("s_memrealtime", "s[38:39]")
        I("s_load_dwordx16", sr(16, 16), "s[0:1]", 0)
        I("s_load_dwordx4", sr(32, 4), "s[0:1]", 64)
        I("s_load_dwordx2", sr(36, 2), "s[0:1]", 80)
        I("s_cmp_ge_u32", "s2", 256)
        I("s_cbranch_scc1", "L_END")
        I("v_and_b32", vr(vLane), 63, "v0")
        I("v_lshrrev_b32", vr(vT5), 6, "v0")
        I("v_and_b32", vr(vC), 15, "v0")
        I("v_readfirstlane_b32", sr(sW), vr(vT5))
        I("v_bfe_u32", vr(vG), "v0", 4, 2)
        I("s_and_b32", sr(sT0), "s2", 7)
        I("s_lshr_b32", sr(sT1), "s2", 3)
        if self.map == 0:
            I("s_and_b32", sr(sE), sr(sT0), 1)
            I("s_lshr_b32", sr(sT0), sr(sT0), 1)
            I("s_and_b32", sr(sHalf), sr(sT1), 1)
            I("s_lshr_b32", sr(sT2), sr(sT1), 1)
            I("s_lshr_b32", sr(sB), sr(sT2), 3)
            I("s_and_b32", sr(sT2), sr(sT2), 7)
            I("s_lshl_b32", sr(sH), sr(sT0), 3); I("s_add_u32", sr(sH), sr(sH), sr(sT2))
        else:
            I("s_and_b32", sr(sE), sr(sT1), 1)
            I("s_bfe_u32", sr(sHalf), sr(sT1), "0x10001")
            I("s_bfe_u32", sr(sB), sr(sT1), "0x10002")
            I("s_lshr_b32", sr(sT2), sr(sT1), 3)
            I("s_lshl_b32", sr(sH), sr(sT0), 2); I("s_add_u32", sr(sH), sr(sH), sr(sT2))
        I("s_lshl_b32", sr(sBH), sr(sB), 5); I("s_add_u32", sr(sBH), sr(sBH), sr(sH))
        I("s_lshl_b32", sr(sM), sr(sHalf), 1); I("s_add_u32", sr(sM), sr(sM), sr(sE))
        I("v_lshlrev_b32", vr(vKV), 4, vr(vLane))
        if self.pat == 1:
            I("s_lshl_b32", sr(sT0), sr(sW), 15)
            I("v_add_u32", vr(vKV), sr(sT0), vr(vKV))
            I("s_cmp_eq_u32", sr(sE), 0)
            self.csel(sT0, 1024, -1024)
            self.csel(sN, 16 + self.skew, 16 - self.skew)
            I("s_mul_i32", sr(sOFF), sr(sE), 31744)
        else:
            I("s_cmp_eq_u32", sr(sE), 0)
            self.csel(sN, 16 + self.skew, 16 - self.skew)
            I("s_mul_i32", sr(sT0), sr(sN), sr(sW)); I("s_lshl_b32", sr(sT0), sr(sT0), 10)
            I("v_add_u32", vr(vKV), sr(sT0), vr(vKV))
            I("s_movk_i32", sr(sT0), 1024)
            I("s_mul_i32", sr(sOFF), sr(sE), 16 * (16 + self.skew) * 1024)
        for i in range(1, self.nslot):
            I("s_add_u32", sr(sOFF + i), sr(sOFF + i - 1), sr(sT0))
        if self.skew:
            for i in (15, 16):
                I("s_cmp_gt_u32", sr(sN), i)
                I("s_cselect_b32", sr(sOFF + i), sr(sOFF + i), hex(OOB))
        I("s_waitcnt", "lgkmcnt(0)")
        if self.tags: I("s_load_dword", sr(sEp), sr(pWS, 2), hex(EPOCH))
        I("s_setprio", self.prios[0])
        if not self.tags:
            lab_r1 = self.L("RL1")
            I("s_cmp_eq_u32", sr(sW), 0)
            I("s_cbranch_scc0", lab_r1)
            self.roles()
            if not self.noinv: self.invalidate()
            a.label(lab_r1)
        NP = self.npre
        XF, WQ = 8, kslot(17)
        I("s_lshl_b32", sr(sT0), sr(sBH), 20); I("s_lshl_b32", sr(sT1), sr(sHalf), 19); I("s_add_u32", sr(sT0), sr(sT0), sr(sT1))
        self.srd(rK, pK, "0x80000", sr(sT0))
        for kq in range(NP):
            self.vm(f"K{kq}", "buffer_load_dwordx4", vr(kslot(kq), 4), vr(vKV), sr(rK, 4), sr(sOFF + kq), mods="offen nt")
        if self.stamps:
            I("s_memrealtime", "s[94:95]")
        self.srd(rV, pV, "0x80000", sr(sT0))
        self.srd(rX, pX, 2048)
        I("s_lshl_b32", sr(sT0), sr(sH), 8)
        I("s_sub_u32", sr(sT1), hex(512 * 8192), sr(sT0))
        self.srd(rWQ, pWQ, sr(sT1), sr(sT0))
        if self.t1test:
            I("s_lshl_b32", sr(sT0), sr(sH), 17)
            self.srd(rT1, pWO, 131072, sr(sT0))
        if not self.tags:
            raise SystemExit("tags=0 no longer supported with this ordering")
        if self.map == 0:
            I("s_lshl_b32", sr(sT0), sr(sB), 1); I("s_add_u32", sr(sT0), sr(sT0), sr(sHalf)); I("s_lshl_b32", sr(sT0), sr(sT0), 2)
        else:
            I("s_lshr_b32", sr(sT0), "s2", 3); I("s_and_b32", sr(sT0), sr(sT0), 7); I("s_mul_i32", sr(sT0), sr(sT0), self.rot)
        I("s_add_u32", sr(sT0), sr(sT0), sr(sW)); I("s_and_b32", sr(sRB), sr(sT0), 15)
        I("v_lshlrev_b32", vr(vT5), 4, vr(vLane))
        I("s_lshl_b32", sr(sT1), sr(sB), 10)
        self.vm("xf", "buffer_load_dwordx4", vr(XF, 4), vr(vT5), sr(rX, 4), sr(sT1), mods="offen")
        I("s_lshl_b32", sr(sT0), sr(sRB), 5)
        I("v_lshl_add_u32", vr(vT6), vr(vG), 1, sr(sT0))
        I("v_lshlrev_b32", vr(vT7), 13, vr(vT6))
        I("v_lshl_add_u32", vr(vT7), vr(vC), 4, vr(vT7))
        for i in range(8):
            off = (8 * (i >> 1) + (i & 1)) * 8192
            I("s_mov_b32", sr(sT2), off if not self.nowq else OOB)
            self.vm(f"wq{i}", "buffer_load_dwordx4", vr(WQ + 4 * i, 4), vr(vT7), sr(rWQ, 4), sr(sT2), mods=("offen " + self.wqflag).strip())
            if i == 1:
                I("v_lshlrev_b32", vr(vT5), 2, vr(vLane)); I("v_mov_b32", vr(vT6), 0)
                I("s_mov_b64", "exec", 15)
                I("ds_write_b32", vr(vT5), vr(vT6), mods=f"offset:{L_CNT}")
                self.execall()
                I("s_waitcnt", "lgkmcnt(0)")
                I("s_barrier")
        I("s_setprio", self.prios[1])
        nK2 = self.npre2 - NP
        if self.bw:
            lab_b = self.L("BW")
            I("s_cmp_ge_u32", sr(sW), self.bw)
            I("s_cbranch_scc1", lab_b)
        for kq in range(NP, self.npre2):
            self.vm(f"K{kq}", "buffer_load_dwordx4", vr(kslot(kq), 4), vr(vKV), sr(rK, 4), sr(sOFF + kq), mods="offen nt")
        if self.bw:
            a.label(lab_b)
        def wait_dual(tag):
            if not self.bw:
                self.wait_vm(tag); return
            idx = self.issued.index(tag)
            n = len(self.issued) - 1 - idx
            l0, l1 = self.L("WD"), self.L("WDJ")
            I("s_cmp_ge_u32", sr(sW), self.bw)
            I("s_cbranch_scc1", l0)
            I("s_waitcnt", f"vmcnt({n})")
            I("s_branch", l1)
            a.label(l0)
            I("s_waitcnt", f"vmcnt({n - nK2})")
            a.label(l1)
        self.stamp(1)
        self.roles()
        if self.touch and not self.stamps:
            lab_nt = self.L("NT")
            I("s_cmp_eq_u32", sr(sW), 1)
            I("s_cbranch_scc0", lab_nt)
            I("v_mov_b32", vr(vT5), 0)
            I("s_mov_b64", "exec", 1)
            I("s_mov_b32", sr(sT0), hex(OPART))
            I("buffer_load_dword", "v0", vr(vT5), sr(rV, 4), 0, mods="offen nt")
            I("buffer_load_dword", "v0", vr(vT5), sr(rWS, 4), sr(sT0), mods="offen sc1")
            I("buffer_load_dword", "v0", vr(vT5), sr(rWA, 4), 0, mods="offen nt")
            I("buffer_load_dword", "v0", vr(vT5), sr(rWB, 4), 0, mods="offen nt")
            I("buffer_load_dword", "v0", vr(vT5), sr(rOUT, 4), 0, mods="offen nt")
            self.execall()
            I("s_waitcnt", "vmcnt(63)")
            a.label(lab_nt)
        if self.noq:
            I("s_branch", "L_NOQ")
        I("s_mov_b32", sr(sT4), "0x3f803f80")
        wait_dual("xf")
        if not self.tags:
            lab_noat = self.L("NOAT")
            I("s_cmp_eq_u32", sr(sW), 0)
            I("s_cbranch_scc0", lab_noat)
            self.stamp(17)
            I("v_mov_b32", vr(vT5), 0); I("v_mov_b32", vr(vT6), 1)
            I("s_lshl_b32", sr(sT0), sr(sH), 2)
            I("s_mov_b64", "exec", 1)
            I("buffer_atomic_add", vr(vT6), vr(vT5), sr(rDBG, 4), sr(sT0), mods="offen sc1")
            self.execall()
            a.label(lab_noat)
        I("s_mov_b32", sr(sT4), "0x3f803f80")
        A1, A2, T0 = 22, 23, 26
        for k in range(4):
            I("v_dot2_f32_bf16", vr(A1), vr(XF + k), sr(sT4), (0 if k == 0 else vr(A1)))
            I("v_dot2_f32_bf16", vr(A2), vr(XF + k), vr(XF + k), (0 if k == 0 else vr(A2)))
        self.wave_reduce63("v_add_f32", [A1, A2])
        I("v_readlane_b32", sr(sT0), vr(A1), 63); I("v_readlane_b32", sr(sT1), vr(A2), 63)
        M0, R0 = 22, 23
        self.ln_scalars1(sT0, sT1, M0, R0, T0)
        XU = 12
        for k in range(4): self.unpack(XU + 2 * k, XU + 2 * k + 1, XF + k)
        for e in range(8): I("v_sub_f32", vr(XU + e), vr(XU + e), vr(M0))
        for k in range(4): I("v_cvt_pk_bf16_f32", vr(XF + k), vr(XU + 2 * k), vr(XU + 2 * k + 1))
        for k in range(4): self.unpack(XU + 2 * k, XU + 2 * k + 1, XF + k)
        for e in range(8): I("v_mul_f32", vr(XU + e), vr(XU + e), vr(R0))
        for k in range(4): I("v_cvt_pk_bf16_f32", vr(XF + k), vr(XU + 2 * k), vr(XU + 2 * k + 1))
        I("v_lshlrev_b32", vr(vT5), 4, vr(vLane))
        I("s_lshl_b32", sr(sT0), sr(sW), 10)
        I("v_add_u32", vr(vT5), sr(sT0), vr(vT5))
        I("ds_write_b128", vr(vT5), vr(XF, 4), mods=f"offset:{L_XN}")
        I("s_lshl_b32", sr(sT1), sr(sRB), 6); I("s_add_u32", sr(sT0), sr(sT0), sr(sT1))
        I("v_lshlrev_b32", vr(vT5), 2, vr(vG))
        I("v_add_u32", vr(vT5), sr(sT0), vr(vT5))
        I("s_waitcnt", "lgkmcnt(0)")
        for ip in range(4):
            I("ds_read_b32", vr(12 + ip), vr(vT5), mods=f"offset:{L_XN + 16 * ip}")
        P = vACC
        PT = kslot(15)
        I("s_mov_b32", sr(sT2), "0x05040100"); I("s_mov_b32", sr(sT3), "0x07060302")
        I("s_waitcnt", "lgkmcnt(0)")
        for ip in range(4):
            wait_dual(f"wq{2 * ip + 1}")
            wa, wb = WQ + 8 * ip, WQ + 8 * ip + 4
            for k in range(4):
                I("v_perm_b32", vr(PT + 2 * k), vr(wb + k), vr(wa + k), sr(sT2))
                I("v_perm_b32", vr(PT + 2 * k + 1), vr(wb + k), vr(wa + k), sr(sT3))
            for e in range(8):
                I("v_dot2_f32_bf16", vr(P + e), vr(PT + e), vr(12 + ip), (0 if ip == 0 else vr(P + e)))
        for i in range(4): I("v_permlane32_swap_b32", vr(P + 2 * i), vr(P + 2 * i + 1))
        for i in range(4): I("v_add_f32", vr(P + 2 * i), vr(P + 2 * i), vr(P + 2 * i + 1))
        for i in range(2): I("v_permlane16_swap_b32", vr(P + 4 * i), vr(P + 4 * i + 2))
        for i in range(2): I("v_add_f32", vr(8 + i), vr(P + 4 * i), vr(P + 4 * i + 2))
        self.perm_g(vT6, vT7)
        I("v_lshl_add_u32", vr(vT5), vr(vC), 3, vr(vT6))
        I("v_lshlrev_b32", vr(vT5), 2, vr(vT5))
        I("s_lshl_b32", sr(sT0), sr(sW), 9)
        I("v_add_u32", vr(vT5), sr(sT0), vr(vT5))
        I("ds_write_b32", vr(vT5), vr(8), mods=f"offset:{L_QP}")
        I("ds_write_b32", vr(vT5), vr(9), mods=f"offset:{L_QP + 16}")
        I("s_waitcnt", "lgkmcnt(0)")
        I("v_mov_b32", vr(vT6), L_QCNT); I("v_mov_b32", vr(vT7), 1)
        I("s_mov_b64", "exec", 1)
        I("ds_add_rtn_u32", vr(vT5), vr(vT6), vr(vT7))
        self.execall()
        I("s_waitcnt", "lgkmcnt(0)")
        I("v_readfirstlane_b32", sr(sT0), vr(vT5))
        self.stamp(2)
        lab_notlast = self.L("NOTLAST")
        I("s_cmp_eq_u32", sr(sT0), 15)
        I("s_cbranch_scc0", lab_notlast)
        I("v_and_b32", vr(vT5), 31, vr(vLane)); I("v_lshlrev_b32", vr(vT5), 4, vr(vT5))
        I("v_lshrrev_b32", vr(vT6), 5, vr(vLane)); I("v_lshlrev_b32", vr(vT6), 12, vr(vT6))
        I("v_add_u32", vr(vT5), vr(vT5), vr(vT6))
        RB = WQ
        for k in range(8):
            I("ds_read_b128", vr(RB + 4 * k, 4), vr(vT5), mods=f"offset:{L_QP + 512 * k}")
        I("s_waitcnt", "lgkmcnt(0)")
        for e in range(4):
            for k in (0, 2, 4, 6): I("v_add_f32", vr(RB + 4 * k + e), vr(RB + 4 * k + e), vr(RB + 4 * k + 4 + e))
        for e in range(4):
            I("v_add_f32", vr(RB + e), vr(RB + e), vr(RB + 8 + e)); I("v_add_f32", vr(RB + 16 + e), vr(RB + 16 + e), vr(RB + 24 + e))
        for e in range(4): I("v_add_f32", vr(RB + e), vr(RB + e), vr(RB + 16 + e))
        for e in range(4): I("v_mov_b32", vr(RB + 4 + e), vr(RB + e))
        for e in range(4): I("v_permlane32_swap_b32", vr(RB + e), vr(RB + 4 + e))
        for e in range(4): I("v_add_f32", vr(RB + e), vr(RB + e), vr(RB + 4 + e))
        I("v_cvt_pk_bf16_f32", vr(RB + 8), vr(RB), vr(RB + 1)); I("v_cvt_pk_bf16_f32", vr(RB + 9), vr(RB + 2), vr(RB + 3))
        I("v_and_b32", vr(vT5), 31, vr(vLane)); I("v_lshlrev_b32", vr(vT5), 3, vr(vT5))
        I("ds_write_b64", vr(vT5), vr(RB + 8, 2), mods=f"offset:{L_QB}")
        I("s_waitcnt", "lgkmcnt(0)")
        self.lds_set(L_FQ, 1)
        a.label(lab_notlast)
        if self.noq:
            a.label("L_NOQ")
            self.lds_set(L_FQ, 1)
        if self.bw:
            lab_b2 = self.L("BW2")
            I("s_cmp_ge_u32", sr(sW), self.bw)
            I("s_cbranch_scc0", lab_b2)
            I("s_setprio", self.prios[1])
            for kq in range(NP, self.npre2):
                I("buffer_load_dwordx4", vr(kslot(kq), 4), vr(vKV), sr(rK, 4), sr(sOFF + kq), mods="offen nt")
            a.label(lab_b2)
        I("s_setprio", self.prios[2])
        for i in range(self.npre2, self.nslot):
            self.vm(f"K{i}", "buffer_load_dwordx4", vr(kslot(i), 4), vr(vKV), sr(rK, 4), sr(sOFF + i), mods="offen nt")
        if self.t1test:
            I("v_lshrrev_b32", vr(vT5), 2, vr(vLane)); I("v_lshlrev_b32", vr(vT5), 10, vr(vT5))
            I("v_and_b32", vr(vT6), 3, vr(vLane)); I("v_lshl_add_u32", vr(vT5), vr(vT6), 4, vr(vT5))
            I("s_lshl_b32", sr(sT1), sr(sW), 6); I("v_add_u32", vr(vT5), sr(sT1), vr(vT5))
            I("s_lshr_b32", sr(sT3), "s2", 3); I("s_and_b32", sr(sT3), sr(sT3), 7)
            I("s_lshl_b32", sr(sT1), sr(sW), 12); I("s_add_u32", sr(sT1), sr(sT1), 20480)
            for k in range(8):
                I("s_add_u32", sr(sT2), sr(sT3), k); I("s_and_b32", sr(sT2), sr(sT2), 7); I("s_lshl_b32", sr(sT2), sr(sT2), 14)
                I("s_mov_b32", "m0", sr(sT1))
                self.vm(f"T1_{k}", "buffer_load_dwordx4", vr(vT5), sr(rT1, 4), sr(sT2), mods=("offen lds" if self.t1test == 1 else "offen nt lds"))
        if not self.kfirst:
            I("s_setprio", self.prios[3])
            for i in range(8):
                self.vm(f"V{i}", "buffer_load_dwordx4", vr(vslot(i), 4), vr(vKV), sr(rV, 4), sr(sOFF + i), mods="offen nt")
            self.stamp(16)
            self.lds_wait(L_FQ, 1)
            I("s_setprio", self.prios[4])
            self.stamp(4)
            I("v_lshlrev_b32", vr(vT5), 4, vr(vC))
            I("ds_read_b128", vr(vQ, 4), vr(vT5), mods=f"offset:{L_QB}")
            I("s_mov_b32", sr(sMask), "0x00010001"); I("s_mov_b32", sr(sMask + 1), "0x00010001")
            I("v_mov_b32", vr(vS), 0)
            I("s_waitcnt", "lgkmcnt(0)")
            groups = [[0, 1, 2, 3], [4, 5, 6, 7], [8, 9, 10, 11], [12, 13, 14], [15, 16]]
            nextv = 8
            for grp in groups:
                self.wait_vm(f"K{grp[-1]}")
                for n, i in enumerate(grp):
                    I("v_dot2_f32_bf16", vr(vD + n), vr(kslot(i)), vr(vQ), 0)
                for k in range(1, 4):
                    for n, i in enumerate(grp):
                        I("v_dot2_f32_bf16", vr(vD + n), vr(kslot(i) + k), vr(vQ + k), vr(vD + n))
                for i in grp:
                    if i <= 8 and nextv <= 16:
                        assert vslot(nextv) == kslot(i)
                        self.vm(f"V{nextv}", "buffer_load_dwordx4", vr(vslot(nextv), 4), vr(vKV), sr(rV, 4), sr(sOFF + nextv), mods="offen nt")
                        nextv += 1
                self.row_reduce("v_add_f32", [vD + n for n in range(len(grp))])
                for n, i in enumerate(grp):
                    if i < 16:
                        I("v_cndmask_b32", vr(vS), vr(vS), vr(vD + n), sr(sMask, 2))
                        if i < 15: I("s_lshl_b64", sr(sMask, 2), sr(sMask, 2), 1)
                    else:
                        I("v_mov_b32", vr(vS2), vr(vD + n))
                if nextv == 17 and not self.wo_done and not self.late_wo:
                    self.wo_dma()
        else:
            lab_qok, lab_kph, lab_vdone = self.L("QOK"), self.L("KPH"), self.L("VD")
            I("s_setprio", self.prios[3])
            I("v_mov_b32", vr(vT6), L_FQ)
            I("ds_read_b32", vr(vT7), vr(vT6))
            I("s_waitcnt", "lgkmcnt(0)")
            I("v_readfirstlane_b32", sr(sU3 - 1), vr(vT7))
            I("s_cmp_ge_u32", sr(sU3 - 1), 1)
            I("s_cbranch_scc1", lab_kph)
            for i in range(8):
                I("buffer_load_dwordx4", vr(vslot(i), 4), vr(vKV), sr(rV, 4), sr(sOFF + i), mods="offen nt")
            self.stamp(16)
            self.lds_wait(L_FQ, 1)
            a.label(lab_kph)
            I("s_setprio", self.prios[4])
            self.stamp(4)
            I("v_lshlrev_b32", vr(vT5), 4, vr(vC))
            I("ds_read_b128", vr(vQ, 4), vr(vT5), mods=f"offset:{L_QB}")
            I("s_mov_b32", sr(sMask), "0x00010001"); I("s_mov_b32", sr(sMask + 1), "0x00010001")
            I("v_mov_b32", vr(vS), 0)
            I("s_waitcnt", "lgkmcnt(0)")
            groups = [[0, 1, 2, 3], [4, 5, 6, 7], [8, 9, 10, 11], [12, 13, 14], [15, 16]]
            if self.nslot == 16:
                groups = [[0, 1, 2, 3], [4, 5, 6, 7], [8, 9, 10, 11], [12, 13, 14, 15]]
                I("v_mov_b32", vr(vS2), 0)
            for grp in groups:
                self.wait_vm(f"K{grp[-1]}")
                for n, i in enumerate(grp):
                    I("v_dot2_f32_bf16", vr(vD + n), vr(kslot(i)), vr(vQ), 0)
                for k in range(1, 4):
                    for n, i in enumerate(grp):
                        I("v_dot2_f32_bf16", vr(vD + n), vr(kslot(i) + k), vr(vQ + k), vr(vD + n))
                if grp[-1] == self.nslot - 1:
                    I("s_cmp_ge_u32", sr(sU3 - 1), 1)
                    I("s_cbranch_scc0", lab_vdone)
                    for i in range(8):
                        I("buffer_load_dwordx4", vr(vslot(i), 4), vr(vKV), sr(rV, 4), sr(sOFF + i), mods="offen nt")
                    a.label(lab_vdone)
                    for i in range(8): self.issued.append(f"V{i}")
                    for i in range(8, self.nslot):
                        self.vm(f"V{i}", "buffer_load_dwordx4", vr(vslot(i), 4), vr(vKV), sr(rV, 4), sr(sOFF + i), mods="offen nt")
                self.row_reduce("v_add_f32", [vD + n for n in range(len(grp))])
                for n, i in enumerate(grp):
                    if i < 16:
                        I("v_cndmask_b32", vr(vS), vr(vS), vr(vD + n), sr(sMask, 2))
                        if i < 15: I("s_lshl_b64", sr(sMask, 2), sr(sMask, 2), 1)
                    else:
                        I("v_mov_b32", vr(vS2), vr(vD + n))
            if not self.wo_done and not self.late_wo:
                self.wo_dma()
        T0, T1 = 18, 19
        I("v_cvt_pk_bf16_f32", vr(T0), vr(vS), vr(vS2))
        self.unpack(vS, vS2, T0)
        I("v_mul_f32", vr(vS), hex(SCALE), vr(vS)); I("v_mul_f32", vr(vS2), hex(SCALE), vr(vS2))
        I("v_cvt_pk_bf16_f32", vr(T0), vr(vS), vr(vS2))
        self.unpack(vS, vS2, T0)
        I("v_mov_b32", vr(T1), "0xff800000")
        I("v_cmp_gt_u32", "vcc", sr(sN), vr(vC))
        I("v_cndmask_b32", vr(vS), vr(T1), vr(vS), "vcc")
        I("s_cmp_gt_u32", sr(sN), 16)
        self.csel(sT0, "0x7f800000", "0xff800000")
        I("v_min_f32", vr(vS2), sr(sT0), vr(vS2))
        I("v_max_f32", vr(T0), vr(vS), vr(vS2))
        self.wave_reduce63("v_max_f32", [T0])
        I("v_readlane_b32", sr(sT0), vr(T0), 63)
        I("v_subrev_f32", vr(vS), sr(sT0), vr(vS)); I("v_subrev_f32", vr(vS2), sr(sT0), vr(vS2))
        I("v_mul_f32", vr(vS), hex(LOG2E), vr(vS)); I("v_mul_f32", vr(vS2), hex(LOG2E), vr(vS2))
        I("v_exp_f32", vr(vS), vr(vS)); I("v_exp_f32", vr(vS2), vr(vS2))
        I("v_mov_b32", vr(T0), vr(vS))
        I("v_fmac_f32", vr(T0), "0x3d800000", vr(vS2))
        self.wave_reduce63("v_add_f32", [T0])
        I("v_mov_b32", vr(T1), vr(T0))
        I("v_mov_b32", vr(T0), sr(sT0))
        I("s_lshl_b32", sr(sT1), sr(sW), 3)
        I("v_mov_b32", vr(vT5), sr(sT1))
        self.exec63()
        I("ds_write_b64", vr(vT5), vr(T0, 2), mods=f"offset:{L_ML}")
        I("s_waitcnt", "lgkmcnt(0)")
        I("v_mov_b32", vr(vT5), L_CNT); I("v_mov_b32", vr(vT6), 1)
        I("ds_add_u32", vr(vT5), vr(vT6))
        self.execall()
        self.stamp(5)
        if self.tags:
            I("s_add_u32", sr(sEp), sr(sEp), 1)
            I("s_and_b32", sr(sT0), sr(sEp), hex(TAGM))
            I("v_mov_b32", vr(vTag), sr(sT0))
            I("s_mov_b32", sr(sTagM), hex(0xFFFFFFFF ^ TAGM))
        self.perm_g(vT6, vT7)
        I("v_lshl_add_u32", vr(19), vr(vC), 3, vr(vT6))
        I("v_lshlrev_b32", vr(19), 2, vr(19))
        I("s_lshl_b32", sr(sT0), sr(sW), 9)
        I("v_add_u32", vr(19), sr(sT0), vr(19))
        for e in range(8): I("v_mov_b32", vr(vACC + e), 0)
        for i in range(self.nslot):
            if self.wo_at and i > self.wo_at:
                idx = self.issued.index(f"V{i}")
                n = len(self.issued) - 1 - idx
                l0, l1 = self.L("WV"), self.L("WVJ")
                I("s_cmp_eq_u32", sr(sRole), 1)
                I("s_cbranch_scc1", l0)
                I("s_waitcnt", f"vmcnt({n})")
                I("s_branch", l1)
                a.label(l0)
                I("s_waitcnt", f"vmcnt({n + 4})")
                a.label(l1)
            else:
                self.wait_vm(f"V{i}")
            for k in range(4):
                self.unpack(8 + 2 * k, 9 + 2 * k, vslot(i) + k)
            for k in range(4):
                for hh in range(2):
                    if i < 16:
                        I("v_fmac_f32_dpp", vr(vACC + 2 * k + hh), vr(vS), vr(8 + 2 * k + hh), mods=f"row_newbcast:{i} row_mask:0xf bank_mask:0xf")
                    else:
                        I("v_fmac_f32", vr(vACC + 2 * k + hh), vr(vS2), vr(8 + 2 * k + hh))
            if self.wo_at and i == self.wo_at:
                self.wo_dma()
        self.stamp(6)
        for i in range(4): I("v_permlane32_swap_b32", vr(vACC + 2 * i), vr(vACC + 2 * i + 1))
        for i in range(4): I("v_add_f32", vr(vACC + 2 * i), vr(vACC + 2 * i), vr(vACC + 2 * i + 1))
        for i in range(2): I("v_permlane16_swap_b32", vr(vACC + 4 * i), vr(vACC + 4 * i + 2))
        for i in range(2): I("v_add_f32", vr(8 + i), vr(vACC + 4 * i), vr(vACC + 4 * i + 2))
        I("ds_write_b32", vr(19), vr(8), mods=f"offset:{L_OP}")
        I("ds_write_b32", vr(19), vr(9), mods=f"offset:{L_OP + 16}")
        if self.wsplit and not self.wo_at:
            lab_ws = self.L("WSP")
            I("s_cmp_lt_u32", sr(sW), self.wsplit)
            I("s_cbranch_scc0", lab_ws)
            self.wo_dma()
            a.label(lab_ws)
        if self.fearly: self.ffn_dma()
        lab_w4 = self.L("W4")
        I("s_cmp_lt_u32", sr(sW), 4)
        I("s_cbranch_scc0", lab_w4)
        self.lds_wait(L_CNT, 16, sleep=1)
        I("v_lshrrev_b32", vr(vT7), 3, vr(vLane))
        I("v_lshlrev_b32", vr(13), 4, vr(vT7))
        I("ds_read_b128", vr(12, 4), vr(13), mods=f"offset:{L_ML}")
        I("s_waitcnt", "lgkmcnt(0)")
        I("v_max_f32", vr(16), vr(12), vr(14))
        self.wave_reduce63("v_max_f32", [16])
        I("v_readlane_b32", sr(sT0), vr(16), 63)
        I("v_subrev_f32", vr(12), sr(sT0), vr(12)); I("v_subrev_f32", vr(14), sr(sT0), vr(14))
        I("v_mul_f32", vr(12), hex(LOG2E), vr(12)); I("v_mul_f32", vr(14), hex(LOG2E), vr(14))
        I("v_exp_f32", vr(12), vr(12)); I("v_exp_f32", vr(14), vr(14))
        I("v_mul_f32", vr(16), vr(12), vr(13)); I("v_fmac_f32", vr(16), vr(14), vr(15))
        I("v_mul_f32", vr(16), "0x3e000000", vr(16))
        self.wave_reduce63("v_add_f32", [16])
        lab_noml = self.L("NOML")
        I("s_cmp_eq_u32", sr(sW), 0)
        I("s_cbranch_scc0", lab_noml)
        I("v_mov_b32", vr(17), vr(16))
        I("v_mov_b32", vr(16), sr(sT0))
        self.clamp(16); self.clamp(17)
        I("s_lshl_b32", sr(sT1), sr(sBH), 2); I("s_add_u32", sr(sT1), sr(sT1), sr(sM)); I("s_lshl_b32", sr(sT1), sr(sT1), 3)
        I("s_add_u32", sr(sT1), sr(sT1), hex(ML))
        I("v_mov_b32", vr(vT5), 0)
        self.exec63()
        I("buffer_store_dwordx2", vr(16, 2), vr(vT5), sr(rWS, 4), sr(sT1), mods="offen sc1")
        self.execall()
        a.label(lab_noml)
        if not self.tags: self.check_all_counters()
        self.stamp(18)
        I("v_and_b32", vr(vT5), 7, vr(vLane)); I("v_lshlrev_b32", vr(16), 4, vr(vT5))
        I("v_lshrrev_b32", vr(vT7), 3, vr(vLane)); I("v_lshlrev_b32", vr(vT6), 10, vr(vT7))
        I("v_add_u32", vr(16), vr(16), vr(vT6))
        I("s_lshl_b32", sr(sT0), sr(sW), 7)
        I("v_add_u32", vr(16), sr(sT0), vr(16))
        self.perm_g(vT6, vT7)
        I("v_lshl_add_u32", vr(17), vr(vT5), 2, vr(vT6))
        I("v_lshlrev_b32", vr(17), 2, vr(17))
        I("s_lshl_b32", sr(sU0), sr(sBH), 2); I("s_add_u32", sr(sU0), sr(sU0), sr(sM)); I("s_lshl_b32", sr(sU0), sr(sU0), 9)
        I("s_add_u32", sr(sU0), sr(sU0), sr(sT0)); I("s_add_u32", sr(sU0), sr(sU0), hex(OPART))
        a.label(lab_w4)
        I("s_waitcnt", "lgkmcnt(0)")
        I("s_barrier")
        self.stamp(7)
        lab_exit_wait = self.L("XW")
        I("s_cmp_lt_u32", sr(sW), 4)
        I("s_cbranch_scc0", lab_exit_wait)
        I("ds_read_b128", vr(20, 4), vr(16), mods=f"offset:{L_OP}")
        I("ds_read_b128", vr(24, 4), vr(16), mods=f"offset:{L_OP + 512}")
        I("s_waitcnt", "lgkmcnt(0)")
        for e in range(4): I("v_mul_f32", vr(20 + e), vr(20 + e), vr(12))
        for e in range(4): I("v_fmac_f32", vr(20 + e), vr(24 + e), vr(14))
        I("v_permlane32_swap_b32", vr(20), vr(21)); I("v_permlane32_swap_b32", vr(22), vr(23))
        I("v_add_f32", vr(20), vr(20), vr(21)); I("v_add_f32", vr(22), vr(22), vr(23))
        self.swap_add(16, 20, 22, 20)
        self.dpp("v_add_f32", 20, 20, 20, "row_ror:8")
        self.clamp(20)
        self.execm("0x00ff00ff", "0x00ff00ff")
        I("buffer_store_dword", vr(20), vr(17), sr(rWS, 4), sr(sU0), mods="offen sc1")
        self.execall()
        self.stamp(8)
        if self.stop == "attn":
            a.label(lab_exit_wait)
            return self.finish()
        self.tail(lab_exit_wait)
        return self.finish()

    def wo_dma(self):
        I = self.I
        skip = self.L("NWD")
        self.wo_done = True
        I("s_cmp_eq_u32", sr(sRole), 1)
        I("s_cbranch_scc0", skip)
        I("s_lshl_b32", sr(sT2), sr(sW), 12)
        I("v_lshlrev_b32", vr(vT5), 4, vr(vLane))
        I("s_mul_i32", sr(sT1), sr(sW), 4 * WROW); I("s_add_u32", sr(sT1), sr(sT1), L_WB)
        for k in range(4):
            I("s_mov_b32", "m0", sr(sT1))
            I("buffer_load_dwordx4", vr(vT5), sr(rWA, 4), sr(sT2), mods="offen nt lds")
            if k < 3:
                I("s_add_u32", sr(sT1), sr(sT1), WROW); I("s_add_u32", sr(sT2), sr(sT2), 1024)
        self.a.label(skip)

    def ffn_dma(self):
        I = self.I
        skip = self.L("NFD")
        I("s_cmp_eq_u32", sr(sRole), 2)
        I("s_cbranch_scc0", skip)
        I("s_lshl_b32", sr(sT0), sr(sW), 5)
        I("v_lshrrev_b32", vr(vT5), 2, vr(vLane)); I("v_add_u32", vr(vT5), sr(sT0), vr(vT5))
        I("s_movk_i32", sr(sT1), 2752)
        I("v_mul_lo_u32", vr(vT5), vr(vT5), sr(sT1))
        I("v_and_b32", vr(vT6), 3, vr(vLane))
        I("v_lshl_add_u32", vr(vT5), vr(vT6), 4, vr(vT5))
        I("s_lshl_b32", sr(sT0), sr(sW), 11); I("s_add_u32", sr(sT1), sr(sT0), L_WB)
        I("s_mov_b32", "m0", sr(sT1))
        I("buffer_load_dwordx4", vr(vT5), sr(rWA, 4), 0, mods="offen lds")
        I("s_add_u32", sr(sT1), sr(sT1), 1024)
        I("s_mov_b32", sr(sT2), 16 * 2752)
        I("s_mov_b32", "m0", sr(sT1))
        I("buffer_load_dwordx4", vr(vT5), sr(rWA, 4), sr(sT2), mods="offen lds")
        I("v_lshlrev_b32", vr(vT6), 4, vr(vLane)); I("v_add_u32", vr(vT6), sr(sT0), vr(vT6))
        I("s_mul_i32", sr(sT1), sr(sW), 2 * WROW); I("s_add_u32", sr(sT1), sr(sT1), L_W2)
        I("s_mov_b32", "m0", sr(sT1))
        I("buffer_load_dwordx4", vr(vT6), sr(rWB, 4), 0, mods="offen nt lds")
        I("s_add_u32", sr(sT1), sr(sT1), WROW)
        I("s_movk_i32", sr(sT2), 1024)
        I("s_mov_b32", "m0", sr(sT1))
        I("buffer_load_dwordx4", vr(vT6), sr(rWB, 4), sr(sT2), mods="offen nt lds")
        self.a.label(skip)

    def check_all_counters(self):
        a, I = self.a, self.I
        lp, ok = self.L("CA"), self.L("CAOK")
        I("s_mov_b32", sr(sSpin), SPIN_MAX)
        I("v_and_b32", vr(vT5), 31, vr(vLane)); I("v_lshlrev_b32", vr(vT5), 2, vr(vT5))
        a.label(lp)
        I("buffer_load_dword", vr(vT6), vr(vT5), sr(rDBG, 4), 0, mods="offen sc1")
        I("s_waitcnt", "vmcnt(0)")
        I("v_cmp_gt_u32", "vcc", 8, vr(vT6))
        I("s_cbranch_vccz", ok)
        I("s_sub_u32", sr(sSpin), sr(sSpin), 1)
        I("s_cbranch_scc0", lp)
        a.label(ok)

    def tail(self, lab_exit_wait):
        a, I = self.a, self.I
        if self.late_wo == 99 and self.wsplit < 4: self.wo_dma()
        if not self.fearly: self.ffn_dma()
        lab_ffn, lab_red = self.L("FFN"), self.L("RED")
        I("s_cmp_eq_u32", sr(sRole), 0)
        I("s_cbranch_scc1", "L_FIN")
        I("s_cmp_eq_u32", sr(sRole), 3)
        I("s_cbranch_scc1", lab_red)
        I("s_cmp_eq_u32", sr(sRole), 1)
        I("s_cbranch_scc0", lab_ffn)
        self.wo_stage()
        a.label(lab_ffn)
        self.ffn_stage()
        I("s_branch", "L_FIN")
        a.label(lab_red)
        I("s_cmp_eq_u32", sr(sW), 0)
        I("s_cbranch_scc0", "L_FIN")
        self.reducer()
        I("s_branch", "L_FIN")
        a.label(lab_exit_wait)
        if self.late_wo == 99:
            lab_ws2 = self.L("WSP2")
            I("s_cmp_ge_u32", sr(sW), self.wsplit)
            I("s_cbranch_scc0", lab_ws2)
            self.wo_dma()
            a.label(lab_ws2)
        if not self.fearly: self.ffn_dma()
        I("s_cmp_eq_u32", sr(sRole), 0)
        I("s_cbranch_scc1", "L_FIN")
        I("s_cmp_eq_u32", sr(sRole), 3)
        I("s_cbranch_scc1", "L_FIN")
        I("s_waitcnt", "vmcnt(0)")
        I("s_barrier")
        I("s_branch", "L_FIN")

    def dry_top(self):
        top = self.L("TOP")
        self.I("s_mov_b32", sr(sDry), 1 if self.dry else 0)
        self.a.label(top)
        return top
    def skip_if_dry(self):
        lab = self.L("SK")
        self.I("s_cmp_eq_u32", sr(sDry), 1)
        self.I("s_cbranch_scc1", lab)
        return lab
    def dry_end(self, top):
        lab = self.L("REAL")
        self.I("s_cmp_eq_u32", sr(sDry), 0)
        self.I("s_cbranch_scc1", lab)
        self.I("s_mov_b32", sr(sDry), 0)
        self.I("s_branch", top)
        self.a.label(lab)

    def wo_stage(self):
        a, I = self.a, self.I
        vI4, vI2 = 8, 9
        BW = 64
        vBS, vMS = 10, 11
        vAml, vAown, vAo, vAy = 40, 41, 42, 43
        ML0, O0 = 12, 44
        I("v_bfe_u32", vr(vBS), vr(vC), 2, 1); I("v_and_b32", vr(vMS), 3, vr(vC))
        I("v_lshlrev_b32", vr(vAml), 10, vr(vBS))
        I("v_lshl_add_u32", vr(vAown), vr(vMS), 3, vr(vAml))
        I("s_lshl_b32", sr(sU0), sr(sHW), 5); I("s_add_u32", sr(sU0), sr(sU0), hex(ML))
        I("v_lshlrev_b32", vr(vAo), 16, vr(vBS))
        I("v_lshl_add_u32", vr(vAo), vr(vMS), 9, vr(vAo))
        I("v_lshl_add_u32", vr(vAo), vr(vG), 5, vr(vAo))
        I("s_lshl_b32", sr(sU1), sr(sHW), 11)
        I("s_and_b32", sr(sT1), sr(sF), 1); I("s_lshl_b32", sr(sT1), sr(sT1), 8)
        I("s_add_u32", sr(sU1), sr(sU1), sr(sT1)); I("s_add_u32", sr(sU1), sr(sU1), hex(OPART))
        def loads_o():
            for k in range(4):
                I("buffer_load_dwordx4", vr(O0 + 4 * k, 4), vr(vAo), sr(rWS, 4), sr(sU1), mods=f"offen offset:{(k >> 1) * 128 + (k & 1) * 16} sc1")
        def loads_ml():
            I("buffer_load_dwordx4", vr(ML0, 4), vr(vAml), sr(rWS, 4), sr(sU0), mods="offen sc1")
            I("buffer_load_dwordx4", vr(ML0 + 4, 4), vr(vAml), sr(rWS, 4), sr(sU0), mods="offen offset:16 sc1")
            I("buffer_load_dwordx2", vr(ML0 + 8, 2), vr(vAown), sr(rWS, 4), sr(sU0), mods="offen sc1")
        def loads():
            loads_o(); loads_ml()
        loads()
        I("v_lshrrev_b32", vr(vI4), 2, vr(vC)); I("v_and_b32", vr(vI2), 3, vr(vC))
        I("v_lshl_add_u32", vr(vT5), vr(vG), 3, vr(vI4))
        I("s_movk_i32", sr(sT0), WROW)
        I("v_mul_lo_u32", vr(vT5), vr(vT5), sr(sT0))
        I("v_lshl_add_u32", vr(vT5), vr(vI2), 3, vr(vT5))
        I("s_lshl_b32", sr(sT0), sr(sW), 8)
        I("v_add_u32", vr(vT5), sr(sT0), vr(vT5))
        I("v_add_u32", vr(vT5), L_WB, vr(vT5))
        I("s_waitcnt", "vmcnt(7)")
        I("s_barrier")
        self.stamp(23)
        for ks in range(2):
            for tt in range(8):
                I("ds_read_b64_tr_b16", vr(BW + 32 * ks + 4 * tt, 2), vr(vT5), mods=f"offset:{32 * ks * WROW + 32 * tt}")
                I("ds_read_b64_tr_b16", vr(BW + 32 * ks + 4 * tt + 2, 2), vr(vT5), mods=f"offset:{(32 * ks + 4) * WROW + 32 * tt}")
        I("v_and_b32", vr(vAy), 1, vr(vG)); I("v_lshlrev_b32", vr(vAy), 17, vr(vAy))
        I("v_lshrrev_b32", vr(vT6), 1, vr(vG)); I("v_lshlrev_b32", vr(vT6), 12, vr(vT6))
        I("v_add_u32", vr(vAy), vr(vAy), vr(vT6))
        I("v_lshl_add_u32", vr(vAy), vr(vC), 2, vr(vAy))
        I("s_lshl_b32", sr(sU2), sr(sW), 15)
        I("s_lshl_b32", sr(sT1), sr(sF), 6); I("s_add_u32", sr(sU2), sr(sU2), sr(sT1)); I("s_add_u32", sr(sU2), sr(sU2), hex(YPART))
        I("s_mov_b32", sr(sMask), 0); I("s_mov_b32", sr(sMask + 1), -1)
        lp_all, lp_first, lp_chk, lp_o, ok, bail = (self.L(n) for n in ("PA", "PF", "PC", "PO", "POK", "PB"))
        T = 22
        I("s_mov_b32", sr(sSpin), SPIN_MAX)
        I("s_branch", lp_first)
        a.label(lp_all)
        loads()
        a.label(lp_first)
        I("s_waitcnt", "vmcnt(0)")
        self.check_regs(range(ML0, ML0 + 10), vT7)
        I("s_cbranch_vccz", bail)
        I("s_sub_u32", sr(sSpin), sr(sSpin), 1)
        I("s_cbranch_scc0", lp_all)
        a.label(bail)
        I("v_max3_f32", vr(T), vr(ML0), vr(ML0 + 2), vr(ML0 + 4)); I("v_max_f32", vr(T), vr(T), vr(ML0 + 6))
        for n in range(5): I("v_sub_f32", vr(T + 1 + n), vr(ML0 + 2 * n), vr(T))
        for n in range(5): I("v_mul_f32", vr(T + 1 + n), hex(LOG2E), vr(T + 1 + n))
        for n in range(5): I("v_exp_f32", vr(T + 1 + n), vr(T + 1 + n))
        I("v_mul_f32", vr(T), vr(T + 1), vr(ML0 + 1))
        I("v_fmac_f32", vr(T), vr(T + 2), vr(ML0 + 3)); I("v_fmac_f32", vr(T), vr(T + 3), vr(ML0 + 5)); I("v_fmac_f32", vr(T), vr(T + 4), vr(ML0 + 7))
        I("v_rcp_f32", vr(T), vr(T))
        I("v_mul_f32", vr(T), vr(T), vr(T + 5))
        I("s_branch", lp_chk)
        a.label(lp_o)
        loads_o()
        I("s_waitcnt", "vmcnt(0)")
        a.label(lp_chk)
        self.check_regs(range(O0, O0 + 16), vT7)
        I("s_cbranch_vccz", ok)
        I("s_sub_u32", sr(sSpin), sr(sSpin), 1)
        I("s_cbranch_scc0", lp_o)
        a.label(ok)
        self.stamp(21)
        for e in range(16): I("v_mul_f32", vr(O0 + e), vr(O0 + e), vr(T))
        for e in range(16): self.dpp("v_add_f32", O0 + e, O0 + e, O0 + e, "quad_perm:[1,0,3,2]")
        for e in range(16): self.dpp("v_add_f32", O0 + e, O0 + e, O0 + e, "quad_perm:[2,3,0,1]")
        AO = 28
        for k in range(8): I("v_cvt_pk_bf16_f32", vr(AO + k), vr(O0 + 2 * k), vr(O0 + 2 * k + 1))
        I("s_waitcnt", "lgkmcnt(0)")
        Dr = [44, 48, 52, 56, 12, 16, 20, 24]
        for tt in range(8):
            I("v_mfma_f32_16x16x32_bf16", vr(Dr[tt], 4), vr(AO, 4), vr(BW + 4 * tt, 4), 0)
        for tt in range(8):
            I("v_mfma_f32_16x16x32_bf16", vr(Dr[tt], 4), vr(AO + 4, 4), vr(BW + 32 + 4 * tt, 4), vr(Dr[tt], 4))
        for tt in range(0, 8, 2):
            I("v_cndmask_b32", vr(36 + tt // 2), vr(Dr[tt]), vr(Dr[tt + 1]), sr(sMask, 2))
        for tt in range(4): self.clamp(36 + tt)
        for tt in range(4):
            I("buffer_store_dword", vr(36 + tt), vr(vAy), sr(rWS, 4), sr(sU2), mods="offen sc1")
            if tt < 3: I("s_add_u32", sr(sU2), sr(sU2), 8192)
        self.stamp(22)
        I("s_branch", "L_FIN")

    def reduce16(self, r0, out):
        I = self.I
        I("v_permlane32_swap_b32", vr(r0), vr(r0 + 1)); I("v_permlane32_swap_b32", vr(r0 + 2), vr(r0 + 3))
        I("v_add_f32", vr(r0), vr(r0), vr(r0 + 1)); I("v_add_f32", vr(r0 + 2), vr(r0 + 2), vr(r0 + 3))
        self.swap_add(16, r0, r0 + 2, out)
        self.dpp("v_add_f32", out, out, out, "row_ror:8")
        self.dpp("v_add_f32", out, out, out, "row_ror:4")

    def reducer(self):
        a, I = self.a, self.I
        vCol, vX, vAo, vH, vA, vAh = 60, 61, 62, 63, 8, 9
        Y, S, U3 = 64, 96, 112
        self.perm_g(vT6, vT7)
        I("v_and_b32", vr(vCol), 3, vr(vLane))
        I("v_lshl_add_u32", vr(vCol), vr(vCol), 2, vr(vT6))
        I("v_lshlrev_b32", vr(vAo), 1, vr(vCol))
        I("s_lshl_b32", sr(sT0), sr(sF), 5)
        I("buffer_load_ushort", vr(vX), vr(vAo), sr(rX, 4), sr(sT0), mods="offen")
        I("v_lshlrev_b32", vr(vA), 4, vr(vLane))
        I("v_lshlrev_b32", vr(vAh), 2, vr(vCol))
        I("s_lshl_b32", sr(sU0), sr(sF), 12); I("s_add_u32", sr(sU0), sr(sU0), hex(YPART))
        I("s_lshl_b32", sr(sU2), sr(sF), 6); I("s_add_u32", sr(sU2), sr(sU2), hex(HBUF))
        I("s_lshl_b32", sr(sU3), sr(sF), 5)
        I("s_mul_i32", sr(sT0), sr(sF), USTR); I("s_add_u32", sr(sT0), sr(sT0), hex(UPART))
        I("s_add_u32", sr(rWA), sr(pWS), sr(sT0)); I("s_addc_u32", sr(rWA + 1), sr(pWS + 1), 0)
        I("s_mov_b32", sr(rWA + 2), NF * 64); I("s_mov_b32", sr(rWA + 3), "0x20000")
        def ldy(base):
            for k in range(4):
                I("buffer_load_dwordx4", vr(base + 4 * k, 4), vr(vA), sr(rWS, 4), sr(sU0), mods=f"offen offset:{k * 1024} sc1")
        Y = 32
        self.poll2(ldy, 4, 64, 80, list(range(Y, Y + 16)))
        self.stamp(12)
        I("v_lshlrev_b32", vr(vX), 16, vr(vX))
        for e in range(4):
            I("v_add_f32", vr(S + e), vr(Y + e), vr(Y + 4 + e)); I("v_add_f32", vr(S + 4 + e), vr(Y + 8 + e), vr(Y + 12 + e))
        for e in range(4): I("v_add_f32", vr(S + e), vr(S + e), vr(S + 4 + e))
        self.reduce16(S, vH)
        I("v_cvt_pk_bf16_f32", vr(vH), vr(vH), vr(vH))
        I("v_lshlrev_b32", vr(vH), 16, vr(vH))
        I("v_add_f32", vr(vH), vr(vH), vr(vX))
        I("v_cvt_pk_bf16_f32", vr(vH), vr(vH), vr(vH))
        I("v_lshlrev_b32", vr(vH), 16, vr(vH))
        self.clamp(12, vH)
        self.execm("0x000f000f", "0x000f000f")
        I("buffer_store_dword", vr(12), vr(vAh), sr(rWS, 4), sr(sU2), mods="offen sc1")
        self.execall()
        self.stamp(13)
        I("s_mov_b32", sr(sMask), 0); I("s_mov_b32", sr(sMask + 1), "0xfffff000")
        def ldu(base):
            for k in range(3):
                I("buffer_load_dwordx4", vr(base + 4 * k, 4), vr(vA), sr(rWA, 4), 0, mods=f"offen offset:{k * 1024} sc1")
        U3 = 16
        def fix():
            for k in range(4):
                I("v_cndmask_b32", vr(U3 + 8 + k), vr(U3 + 8 + k), 0, sr(sMask, 2))
        self.poll2(ldu, 3, 104, 116, list(range(U3, U3 + 12)), fix=fix)
        self.stamp(14)
        for e in range(4):
            I("v_add_f32", vr(S + e), vr(U3 + e), vr(U3 + 4 + e))
        for e in range(4): I("v_add_f32", vr(S + e), vr(S + e), vr(U3 + 8 + e))
        self.reduce16(S, 12)
        I("v_cvt_pk_bf16_f32", vr(12), vr(12), vr(12))
        I("v_lshlrev_b32", vr(12), 16, vr(12))
        I("v_add_f32", vr(12), vr(12), vr(vH))
        I("v_cvt_pk_bf16_f32", vr(12), vr(12), vr(12))
        self.execm("0x000f000f", "0x000f000f")
        I("buffer_store_short", vr(12), vr(vAo), sr(rOUT, 4), sr(sU3), mods="offen")
        self.execall()
        if self.tags:
            lab_ne = self.L("NEP")
            I("s_cmp_eq_u32", sr(sF), 0)
            I("s_cbranch_scc0", lab_ne)
            I("v_mov_b32", vr(13), sr(sEp)); I("v_mov_b32", vr(14), 0)
            I("s_mov_b32", sr(sT0), hex(EPOCH))
            I("s_mov_b64", "exec", 1)
            I("buffer_store_dword", vr(13), vr(14), sr(rWS, 4), sr(sT0), mods="offen sc1")
            self.execall()
            a.label(lab_ne)
        if self.dbgtime:
            I("s_memrealtime", "s[12:13]")
            I("s_waitcnt", "lgkmcnt(0)")
            I("s_sub_u32", sr(sT1), sr(sT1), "s38")
            I("v_mov_b32", vr(12), sr(sT1)); I("v_mov_b32", vr(vT6), 0)
            I("s_lshl_b32", sr(sT0), sr(sF), 2)
            I("s_mov_b64", "exec", 1)
            I("buffer_store_dword", vr(12), vr(vT6), sr(rDBG, 4), sr(sT0), mods="offen")
            self.execall()
        self.stamp(15)

    def ffn_stage(self):
        a, I = self.a, self.I
        if self.stop in ("y", "h"):
            I("s_waitcnt", "vmcnt(0)"); I("s_barrier"); return
        vI4, vI2 = 8, 9
        B1, B2 = 64, 96
        I("s_waitcnt", "vmcnt(0)")
        I("s_barrier")
        I("v_lshrrev_b32", vr(vI4), 2, vr(vC)); I("v_and_b32", vr(vI2), 3, vr(vC))
        I("v_lshl_add_u32", vr(vT5), vr(vG), 3, vr(vI4)); I("v_lshlrev_b32", vr(vT5), 6, vr(vT5))
        I("v_lshl_add_u32", vr(vT5), vr(vI2), 3, vr(vT5))
        I("s_lshl_b32", sr(sT0), sr(sW), 13)
        I("v_add_u32", vr(vT5), sr(sT0), vr(vT5))
        for ks in range(4):
            for nt in range(2):
                o = L_WB + ks * 2048 + nt * 32
                I("ds_read_b64_tr_b16", vr(B1 + 8 * ks + 4 * nt, 2), vr(vT5), mods=f"offset:{o}")
                I("ds_read_b64_tr_b16", vr(B1 + 8 * ks + 4 * nt + 2, 2), vr(vT5), mods=f"offset:{o + 256}")
        I("v_lshl_add_u32", vr(vT6), vr(vG), 3, vr(vI4))
        I("s_movk_i32", sr(sT0), WROW)
        I("v_mul_lo_u32", vr(vT6), vr(vT6), sr(sT0))
        I("v_lshl_add_u32", vr(vT6), vr(vI2), 3, vr(vT6))
        I("s_lshl_b32", sr(sT0), sr(sW), 8)
        I("v_add_u32", vr(vT6), sr(sT0), vr(vT6))
        I("v_add_u32", vr(59), L_W2, vr(vT6))
        vAh, vAhw, vAhr, vAuw, vAur, vAaw, vAar, vAo = 10, 11, 52, 53, 54, 55, 56, 57
        I("v_lshlrev_b32", vr(vAh), 5, vr(vLane))
        I("s_mov_b32", sr(sU0), hex(HBUF))
        I("v_lshlrev_b32", vr(vAhw), 4, vr(vLane)); I("s_lshl_b32", sr(sT0), sr(sW), 11); I("v_add_u32", vr(vAhw), sr(sT0), vr(vAhw))
        I("v_bfe_u32", vr(vT7), vr(vC), 2, 1)
        I("v_lshlrev_b32", vr(vAhr), 10, vr(vT7)); I("v_lshl_add_u32", vr(vAhr), vr(vG), 4, vr(vAhr))
        I("s_mul_i32", sr(sT0), sr(sW), 2048 + 256); I("v_add_u32", vr(vAhr), sr(sT0), vr(vAhr))
        I("v_and_b32", vr(vAuw), 1, vr(vG)); I("v_lshlrev_b32", vr(vAuw), 7, vr(vAuw))
        I("v_lshrrev_b32", vr(vT5), 1, vr(vG)); I("v_lshl_add_u32", vr(vAuw), vr(vT5), 6, vr(vAuw))
        I("v_lshl_add_u32", vr(vAuw), vr(vC), 2, vr(vAuw))
        I("s_lshl_b32", sr(sT0), sr(sW), 8); I("v_add_u32", vr(vAuw), sr(sT0), vr(vAuw))
        I("v_lshlrev_b32", vr(vAur), 2, vr(vLane))
        I("s_lshl_b32", sr(sT0), sr(sW), 7)
        I("v_lshlrev_b32", vr(vAaw), 1, vr(vLane)); I("v_add_u32", vr(vAaw), sr(sT0), vr(vAaw))
        I("v_lshlrev_b32", vr(vAar), 6, vr(vT7)); I("v_lshl_add_u32", vr(vAar), vr(vG), 4, vr(vAar)); I("v_add_u32", vr(vAar), sr(sT0), vr(vAar))
        I("v_and_b32", vr(vAo), 1, vr(vG)); I("s_mov_b32", sr(sT0), 32 * USTR); I("v_mul_lo_u32", vr(vAo), vr(vAo), sr(sT0))
        I("v_lshrrev_b32", vr(vT6), 1, vr(vG)); I("s_movk_i32", sr(sT0), USTR); I("v_mul_lo_u32", vr(vT6), vr(vT6), sr(sT0))
        I("v_add_u32", vr(vAo), vr(vAo), vr(vT6))
        I("v_lshl_add_u32", vr(vAo), vr(vC), 2, vr(vAo))
        I("s_mul_i32", sr(sU1), sr(sW), 8 * USTR)
        I("s_lshl_b32", sr(sT1), sr(sF), 6); I("s_add_u32", sr(sU1), sr(sU1), sr(sT1)); I("s_add_u32", sr(sU1), sr(sU1), hex(UPART))
        I("s_mov_b32", sr(sMask), 0); I("s_mov_b32", sr(sMask + 1), -1)
        I("s_waitcnt", "lgkmcnt(0)")
        vCS = 58
        for k in range(4): I("v_mov_b32", vr(36 + k), "0x3f803f80")
        for ks in range(4):
            I("v_mfma_f32_16x16x32_bf16", vr(28, 4), vr(36, 4), vr(B1 + 8 * ks, 4), (0 if ks == 0 else vr(28, 4)))
            I("v_mfma_f32_16x16x32_bf16", vr(32, 4), vr(36, 4), vr(B1 + 8 * ks + 4, 4), (0 if ks == 0 else vr(32, 4)))
        I("v_cndmask_b32", vr(vCS), vr(28), vr(32), sr(sMask, 2))
        I("s_mov_b32", sr(sU2), "0xffff0000"); I("s_mov_b32", sr(sU3), "0xffff0000")
        H0, H1 = 12, 20
        def ldh(base):
            I("buffer_load_dwordx4", vr(base, 4), vr(vAh), sr(rWS, 4), sr(sU0), mods="offen sc1")
            I("buffer_load_dwordx4", vr(base + 4, 4), vr(vAh), sr(rWS, 4), sr(sU0), mods="offen offset:16 sc1")
            I("buffer_load_dwordx4", vr(base + 8, 4), vr(vAh), sr(rWS, 4), sr(sU0), mods="offen offset:2048 sc1")
            I("buffer_load_dwordx4", vr(base + 12, 4), vr(vAh), sr(rWS, 4), sr(sU0), mods="offen offset:2064 sc1")
        self.poll2(ldh, 4, 96, 112, list(range(12, 28)))
        self.stamp(9)
        HN = 36
        for k in range(4):
            I("v_cvt_pk_bf16_f32", vr(HN + k), vr(H0 + 2 * k), vr(H0 + 2 * k + 1))
            I("v_cvt_pk_bf16_f32", vr(HN + 4 + k), vr(H1 + 2 * k), vr(H1 + 2 * k + 1))
        I("ds_write_b128", vr(vAhw), vr(HN, 4), mods=f"offset:{L_HN}")
        I("ds_write_b128", vr(vAhw), vr(HN + 4, 4), mods=f"offset:{L_HN + 1024}")
        A1, A2, B1s, B2s = 28, 29, 30, 31
        for (H, P1, P2) in ((H0, 60, 32), (H1, 62, 34)):
            I("v_pk_add_f32", vr(P1, 2), vr(H, 2), vr(H + 2, 2))
            I("v_pk_mul_f32", vr(P2, 2), vr(H, 2), vr(H, 2))
        for j in (4, 6):
            for (H, P1, P2) in ((H0, 60, 32), (H1, 62, 34)):
                I("v_pk_add_f32", vr(P1, 2), vr(P1, 2), vr(H + j, 2))
        for j in (2, 4, 6):
            for (H, P1, P2) in ((H0, 60, 32), (H1, 62, 34)):
                I("v_pk_fma_f32", vr(P2, 2), vr(H + j, 2), vr(H + j, 2), vr(P2, 2))
        I("v_add_f32", vr(A1), vr(60), vr(61)); I("v_add_f32", vr(A2), vr(32), vr(33))
        I("v_add_f32", vr(B1s), vr(62), vr(63)); I("v_add_f32", vr(B2s), vr(34), vr(35))
        I("s_waitcnt", "lgkmcnt(0)")
        for ks in range(4):
            I("ds_read_b128", vr(HN + 4 * ks, 4), vr(vAhr), mods=f"offset:{L_HN + ks * 64}")
        self.wave_reduce63("v_add_f32", [A1, A2, B1s, B2s])
        for (r, s) in ((A1, sT0), (A2, sT1), (B1s, sT2), (B2s, sT3)):
            I("v_readlane_b32", sr(s), vr(r), 63)
        I("s_waitcnt", "lgkmcnt(0)")
        D0, D1 = 12, 16
        for ks in range(4):
            I("v_mfma_f32_16x16x32_bf16", vr(D0, 4), vr(HN + 4 * ks, 4), vr(B1 + 8 * ks, 4), (0 if ks == 0 else vr(D0, 4)))
            I("v_mfma_f32_16x16x32_bf16", vr(D1, 4), vr(HN + 4 * ks, 4), vr(B1 + 8 * ks + 4, 4), (0 if ks == 0 else vr(D1, 4)))
        M0, M1, R0, R1, T0, T1 = 28, 29, 30, 31, 32, 33
        self.ln_scalars(sT0, sT1, sT2, sT3, M0, M1, R0, R1, T0, T1)
        I("v_cndmask_b32", vr(M0), vr(M0), vr(M1), sr(sU2, 2))
        I("v_cndmask_b32", vr(R0), vr(R0), vr(R1), sr(sU2, 2))
        I("v_cndmask_b32", vr(D0), vr(D0), vr(D1), sr(sMask, 2))
        I("v_fma_f32", vr(D0), f"-{vr(M0)}", vr(vCS), vr(D0))
        I("v_mul_f32", vr(D0), vr(D0), vr(R0))
        I("ds_write_b32", vr(vAuw), vr(D0), mods=f"offset:{L_UP}")
        I("s_waitcnt", "vmcnt(0) lgkmcnt(0)")
        I("s_barrier")
        for w in range(4):
            I("ds_read_b32", vr(28 + w), vr(vAur), mods=f"offset:{L_UP + w * 256}")
        for tt in range(8):
            I("ds_read_b64_tr_b16", vr(B2 + 4 * tt, 2), vr(59), mods=f"offset:{32 * tt}")
            I("ds_read_b64_tr_b16", vr(B2 + 4 * tt + 2, 2), vr(59), mods=f"offset:{4 * WROW + 32 * tt}")
        I("s_waitcnt", "lgkmcnt(15)")
        I("v_add_f32", vr(28), vr(28), vr(29)); I("v_add_f32", vr(30), vr(30), vr(31))
        I("v_add_f32", vr(28), vr(28), vr(30))
        I("v_cvt_pk_bf16_f32", vr(29), vr(28), vr(28))
        I("v_lshlrev_b32", vr(28), 16, vr(29))
        I("v_mul_f32", vr(29), "0xbfb8aa3b", vr(28))
        I("v_exp_f32", vr(29), vr(29))
        I("v_add_f32", vr(29), 1.0, vr(29))
        I("v_rcp_f32", vr(29), vr(29))
        I("v_mul_f32", vr(28), vr(28), vr(29))
        I("v_cvt_pk_bf16_f32", vr(28), vr(28), vr(28))
        I("ds_write_b16", vr(vAaw), vr(28), mods=f"offset:{L_ACT}")
        I("s_waitcnt", "lgkmcnt(0)")
        I("ds_read_b128", vr(28, 4), vr(vAar), mods=f"offset:{L_ACT}")
        I("s_waitcnt", "lgkmcnt(0)")
        self.stamp(10)
        DD = 32
        assert DD + 20 <= vAhr
        I("s_waitcnt", "vmcnt(0)")
        Dregs = [12, 16, 20, 24, 36, 40, 44, 48]
        for tt in range(8):
            I("v_mfma_f32_16x16x32_bf16", vr(Dregs[tt], 4), vr(28, 4), vr(B2 + 4 * tt, 4), 0)
        for tt in range(0, 8, 2):
            I("v_cndmask_b32", vr(32 + tt // 2), vr(Dregs[tt]), vr(Dregs[tt + 1]), sr(sMask, 2))
        for tt in range(4): self.clamp(32 + tt)
        for tt in range(4):
            I("buffer_store_dword", vr(32 + tt), vr(vAo), sr(rWS, 4), sr(sU1), mods="offen sc1")
            if tt < 3: I("s_add_u32", sr(sU1), sr(sU1), 2 * USTR)
        self.stamp(11)

    def finish(self):
        a, I = self.a, self.I
        a.label("L_FIN")
        if self.stamps:
            self.stamp(20)
            I("s_getreg_b32", sr(sT0), "hwreg(HW_REG_HW_ID)")
            I("s_getreg_b32", sr(sT1), "hwreg(HW_REG_XCC_ID)")
            I("v_writelane_b32", "v0", sr(sT0), 30)
            I("v_writelane_b32", "v0", sr(sT1), 31)
            self.execall()
            I("s_lshl_b32", sr(sT0), "s2", 4); I("s_add_u32", sr(sT0), sr(sT0), sr(sW)); I("s_lshl_b32", sr(sT0), sr(sT0), 8)
            I("s_add_u32", sr(sT0), sr(sT0), hex(STAMP))
            I("v_lshlrev_b32", vr(vT5), 2, vr(vLane))
            I("buffer_store_dword", "v0", vr(vT5), sr(rWS, 4), sr(sT0), mods="offen")
        a.label("L_END")
        return self.wrap()

    def wrap(self):
        body = self.a.text()
        hdr = open("sequential_preLN__mha_block_cached__dense_activation_silu__decode.s.ref").read().split("\n")
        top = [l for l in hdr if l.startswith(";") and "@launch" not in l and "Override" not in l and "grid=ceil" not in l][:12]
        out = "\n".join(top) + "\n"
        out += f"; @launch grid=(256,1,1) block=(1024,1,1) lds={LDS_SIZE}\n"
        out += """;
;      y partials -> 64 reducers: h = x + attn            h -> 43 workgroups: LN, w1, silu, w2 (MFMA)
"""
        out += f""".amdgcn_target "amdgcn-amd-amdhsa--gfx950"
.text
.globl {KN}
.p2align 8
.type {KN},@function
{KN}:
{body}  s_endpgm
.section .rodata,"a"
.p2align 6
.amdhsa_kernel {KN}
  .amdhsa_next_free_vgpr 128
  .amdhsa_next_free_sgpr 102
  .amdhsa_accum_offset 128
  .amdhsa_group_segment_fixed_size 0
  .amdhsa_kernarg_size 88
  .amdhsa_user_sgpr_count 2
  .amdhsa_user_sgpr_kernarg_segment_ptr 1
  .amdhsa_system_sgpr_workgroup_id_x 1
.end_amdhsa_kernel
"""
        return out

if __name__ == "__main__":
    kw = {}
    for x in sys.argv[2:]:
        k, v = x.split("=")
        kw[k] = int(v) if v.lstrip("-").isdigit() and k != "prios" else v
    g = Gen(**kw)
    open(sys.argv[1], "w").write(g.build())
    print("nops inserted:", g.a.nops, "lines", len(g.a.lines))
```
